```python
import torch

def _softmax(x, axis=-1):
    return torch.softmax(x, dim=axis)
def _gelu(x):
    return torch.nn.functional.gelu(x, approximate="tanh")
def _silu(x):
    return torch.nn.functional.silu(x)
def _sigmoid(x):
    return torch.sigmoid(x)
def _layernorm(x, axis=-1, eps=1e-5):
    m = x.mean(dim=axis, keepdim=True)
    v = x.var(dim=axis, keepdim=True, unbiased=False)
    return (x - m) / torch.sqrt(v + eps)
def _scatter_add(tgt, idx, src, axis=0):
    return tgt.clone().index_add_(axis, idx, src)
def _segment_sum(src, seg, n):
    out = torch.zeros((n,) + src.shape[1:], dtype=src.dtype)
    return out.index_add_(0, seg, src)
def _pad(x, pw):
    flat = tuple(v for pair in reversed(pw) for v in pair)
    return torch.nn.functional.pad(x, flat)

kernel_name = 'parallel_sum__linear_attn_block__dense_activation_gelu__prompt'

def setup_inputs():

    _w = (lambda a: (lambda t: t.to(torch.bfloat16) if t.is_floating_point() else t)(torch.as_tensor(a)))
    def _A_setup():
        B, S, D = 1, 2048, 512
        return {
            "x": _w((lambda *s: torch.randn(*s, dtype=torch.bfloat16) * 0.05)(B, S, D)),
            "wqkv": _w((lambda *s: torch.randn(*s, dtype=torch.bfloat16) * 0.05)(D, 3 * D)),
            "wo": _w((lambda *s: torch.randn(*s, dtype=torch.bfloat16) * 0.05)(D, D)),
        }
    _A_in = _A_setup()

    def _B_setup():
        B, S, D, F = 1, 2048, 512, 1376
        return {
            "x": _w((lambda *s: torch.randn(*s, dtype=torch.bfloat16) * 0.05)(B, S, D)),
            "w1": _w((lambda *s: torch.randn(*s, dtype=torch.bfloat16) * 0.4)(D, F) * (D ** -0.5)),
            "b1": _w((lambda *s: torch.randn(*s, dtype=torch.bfloat16) * 12.8)(F) * 0.01),
            "w2": _w((lambda *s: torch.randn(*s, dtype=torch.bfloat16) * 0.1)(F, D) * (F ** -0.5)),
            "b2": _w((lambda *s: torch.randn(*s, dtype=torch.bfloat16) * 1.6)(D) * 0.01),
        }
    _B_in = _B_setup()

    return {
        "A_x": _A_in["x"],
        "A_wqkv": _A_in["wqkv"],
        "A_wo": _A_in["wo"],
        "B_x": _B_in["x"],
        "B_w1": _B_in["w1"],
        "B_b1": _B_in["b1"],
        "B_w2": _B_in["w2"],
        "B_b2": _B_in["b2"],
    }

def reference(A_x, A_wqkv, A_wo, B_x, B_w1, B_b1, B_w2, B_b2):
    def _A_ref(x, wqkv, wo):
        B, S, D = x.shape
        H = 32; Dh = D // H
        qkv = (lambda x, *d: x.permute(*d))((x @ wqkv).reshape(B, S, 3, H, Dh), 2, 0, 3, 1, 4)
        q, k, v = qkv[0], qkv[1], qkv[2]
        phi = lambda t: torch.where(t > 0, t + 1, torch.exp(t)) + 1e-6
        pq, pk = phi(q), phi(k)
        kv = torch.einsum("bhsd,bhse->bhde", pk, v)
        z = torch.einsum("bhsd->bhd", pk)
        num = torch.einsum("bhqd,bhde->bhqe", pq, kv)
        den = torch.einsum("bhqd,bhd->bhq", pq, z)[..., None] + 1e-6
        o = num / den
        return (lambda x, *d: x.permute(*d))(o, 0, 2, 1, 3).reshape(B, S, D) @ wo

    def _B_ref(x, w1, b1, w2, b2):
        h = torch.einsum("bsd,df->bsf", x, w1) + b1
        h = _gelu(h)
        return torch.einsum("bsf,fd->bsd", h, w2) + b2

    x = A_x
    xn = _layernorm(x, axis=-1)
    return x + _A_ref(xn, A_wqkv, A_wo) + _B_ref(xn, B_w1, B_b1, B_w2, B_b2)
```

```python
HEADER = '''.amdgcn_target "amdgcn-amd-amdhsa--gfx950"
.text
'''
def kernel_begin(name):
    return f'''.globl {name}
.p2align 8
.type {name},@function
{name}:
'''
def kernel_desc(name, vgpr, sgpr, accum, extra=''):
    return f'''.amdhsa_kernel {name}
  .amdhsa_next_free_vgpr {vgpr}
  .amdhsa_next_free_sgpr {sgpr}
  .amdhsa_accum_offset {accum}
  .amdhsa_group_segment_fixed_size 0
  .amdhsa_kernarg_size 88
  .amdhsa_user_sgpr_count 2
  .amdhsa_user_sgpr_kernarg_segment_ptr 1
  .amdhsa_system_sgpr_workgroup_id_x 1
{extra}.end_amdhsa_kernel
'''
RODATA = '''.section .rodata,"a"
.p2align 6
'''
class E:
    def __init__(self):
        self.l = []
        self.nlabel = 0
    def __call__(self, s=''):
        for line in s.split('\n'):
            line = line.strip()
            if line:
                if line.endswith(':'):
                    self.l.append(line)
                else:
                    self.l.append('    ' + line)
    def label(self, base='L'):
        self.nlabel += 1
        return f'{base}_{self.nlabel}'
    def text(self):
        return '\n'.join(self.l) + '\n'
```

```python
import sys
sys.path.insert(0,'work')
from asmlib import E, HEADER, kernel_begin, kernel_desc, RODATA
import struct
S=2048; D=512; F=1376
WS_HF=0
WS_PQ=64*86*1024
WS_KV=WS_PQ+64*32*1024
KV_BYTES=32*272*4
WS_SIZE=WS_KV+KV_BYTES
WS_TS=0x900000
def f2u(x): return struct.unpack('<I',struct.pack('<f',x))[0]
def hx(x): return hex(f2u(x))
LOG2E=1.4426950408889634
GC1=-2.0*LOG2E*0.7978845608028654
GC2=GC1*0.044715
def vr(b,n): return f'v[{b}:{b+n-1}]' if n>1 else f'v{b}'
def sr(b,n): return f's[{b}:{b+n-1}]' if n>1 else f's{b}'
def srd(e, b, lo, size):
    e(f's_mov_b32 s{b}, s{lo}')
    e(f's_and_b32 s{b+1}, s{lo+1}, 0xffff')
    e(f's_mov_b32 s{b+2}, {size}')
    e(f's_mov_b32 s{b+3}, 0x20000')
def interleave(main, fill, pattern=None):
    out=[]
    n=len(main); k=0
    if pattern is None:
        pattern=[]
        rem=len(fill)
        for i in range(n):
            c=(rem + (n-i) -1)//(n-i); pattern.append(c); rem-=c
    for i,m in enumerate(main):
        out.append(m)
        for _ in range(pattern[i] if i<len(pattern) else 0):
            if k<len(fill): out.append(fill[k]); k+=1
    out+=fill[k:]
    return out
```

```python
from common import *

REC=0
RSTD=4096
CSP=4608
KVP=8192
SLOT=40960

ACC=128
CS=224
SEL=236
FA=64; FB=84
XA=104
WA=108
BIA=114
XF=64
KC=72
WF=80
T0=8
OUT=40

def acc(t,a): return ACC+(t*2+a)*16

def prologue(e,opt):
    e(f'''
    s_cmp_ge_u32 s2, 256
    s_cbranch_scc1 K1_END
    s_load_dwordx4 s[28:31], s[0:1], 0
    s_load_dwordx4 s[32:35], s[0:1], 32
    s_load_dwordx4 s[36:39], s[0:1], 72
    v_lshrrev_b32 v1, 6, v0
    v_and_b32 v2, 63, v0
    v_readfirstlane_b32 s3, v1
    s_and_b32 s8, s2, 7
    s_lshr_b32 s9, s2, 3
    s_and_b32 s10, s9, 7
    s_lshr_b32 s11, s9, 3
    s_lshr_b32 s4, s8, 2
    s_lshl_b32 s4, s4, 3
    s_add_u32 s4, s4, s10             ; rb
    s_and_b32 s5, s8, 3
    s_lshl_b32 s5, s5, 1
    s_and_b32 s12, s11, 1
    s_add_u32 s5, s5, s12
    s_lshr_b32 s7, s11, 1
    s_lshl_b32 s12, s7, 3
    s_add_u32 s5, s5, s12             ; cb
    ''')
    rot=opt.get('rot','half')
    if rot=='none': e('s_mov_b32 s6, 0')
    elif rot=='half': e('s_add_u32 s6, s10, s11\ns_and_b32 s6, s6, 1\ns_lshl_b32 s6, s6, 2')
    elif rot=='quarter': e('s_add_u32 s6, s10, s11\ns_and_b32 s6, s6, 3\ns_lshl_b32 s6, s6, 1')
    elif rot=='full': e('s_lshl_b32 s6, s11, 1\ns_add_u32 s6, s6, s10\ns_and_b32 s6, s6, 7')
    e(f'''
    s_and_b32 s12, s5, 7
    s_mul_i32 s13, s12, 6
    s_mul_i32 s14, s12, 5
    s_add_u32 s14, s14, 3
    s_min_u32 s44, s13, s14
    s_cmp_lt_u32 s12, 3
    s_cselect_b32 s45, 6, 5
    s_lshl_b32 s13, s12, 7
    s_lshl_b32 s14, s44, 6
    s_mov_b32 s40, 2752
    s_mov_b32 s15, 128
    s_cmp_eq_u32 s7, 0
    s_cselect_b32 s40, 3072, s40
    s_cselect_b32 s41, s13, s14
    s_cselect_b32 s15, 1024, s15
    s_add_u32 s42, s41, s15
    s_add_u32 s43, s42, s15
    s_mov_b32 s64, {SLOT}
    s_mov_b32 s65, {-3*SLOT & 0xffffffff:#x}
    s_waitcnt lgkmcnt(0)
    ''')
    srd(e,8,28,S*D*2)
    e(f'''
    s_cmp_eq_u32 s7, 0
    s_cselect_b32 s12, s30, s32
    s_cselect_b32 s13, s31, s33
    s_mov_b32 s14, {D*F*2}
    s_cselect_b32 s14, {D*3*D*2}, s14
    s_and_b32 s13, s13, 0xffff
    s_mov_b32 s15, 0x20000
    ''')
    srd(e,16,38,WS_SIZE)
    srd(e,20,34,F*2)
    srd(e,24,36,256)
    e('''
    s_cmp_lt_u32 s3, 4
    s_cbranch_scc1 K1_CONS
    ''')

def loader(e,opt):
    e('''
    s_and_b32 s46, s3, 3
    v_lshrrev_b32 v3, 3, v2
    v_and_b32 v4, 7, v2
    v_lshrrev_b32 v5, 4, v2
    v_xor_b32 v6, v4, v5
    v_lshlrev_b32 v6, 4, v6
    v_lshl_add_u32 v10, v3, 10, v6
    s_lshl_b32 s47, s4, 17
    s_lshl_b32 s48, s46, 15
    s_add_u32 s47, s47, s48
    v_add_u32 v10, s47, v10
    v_xor_b32 v11, 64, v10
    v_add_u32 v11, 0x2000, v11
    v_add_u32 v12, 0x4000, v10
    v_add_u32 v13, 0x4000, v11
    v_and_b32 v5, 1, v5
    v_lshlrev_b32 v5, 2, v5
    v_xor_b32 v4, v4, v5
    v_lshlrev_b32 v4, 4, v4
    s_lshl_b32 s47, s46, 4
    v_add_u32 v14, s47, v3
    v_mul_lo_u32 v14, v14, s40
    v_add_u32 v14, v14, v4
    s_lshl_b32 s47, s40, 3
    v_add_u32 v15, s47, v14
    s_lshl_b32 s54, s46, 12
    s_lshl_b32 s55, s46, 11
    s_add_u32 s55, s55, 16384
    s_lshl_b32 s56, s40, 6
    s_mov_b32 s48, s6
    s_mov_b32 s53, 0
    ''')
    def stage_addr():
        return ['s_lshl_b32 s49, s48, 7','s_mul_i32 s50, s48, s56','s_add_u32 s51, s50, s42',
                's_add_u32 s52, s50, s43','s_add_u32 s50, s50, s41',
                's_add_u32 s58, s53, s54','s_add_u32 s59, s53, s55']
    def stage_adv():
        return ['s_add_u32 s48, s48, 1','s_and_b32 s48, s48, 7',
                f's_add_u32 s53, s53, s64', f's_cmp_eq_u32 s53, {4*SLOT}','s_cselect_b32 s53, 0, s53']
    def dma():
        L=[]
        for i in range(4):
            L.append([f's_add_u32 m0, s58, {i*1024}', 's_nop 0', f'buffer_load_dwordx4 v{10+i}, s[8:11], s49 offen lds'])
        for sub in range(3):
            for h in range(2):
                L.append([f's_add_u32 m0, s59, {sub*8192+h*1024}', 's_nop 0', f'buffer_load_dwordx4 v{14+h}, s[12:15], s{50+sub} offen lds'])
        return L
    e('s_mov_b32 s47, 4')
    e('K1_LI:')
    for x in stage_addr(): e(x)
    for g in dma():
        for x in g: e(x)
    for x in stage_adv(): e(x)
    e('''
    s_sub_u32 s47, s47, 1
    s_cmp_lg_u32 s47, 0
    s_cbranch_scc1 K1_LI
    v_and_b32 v3, 31, v2
    v_lshrrev_b32 v4, 5, v2
    v_lshrrev_b32 v5, 1, v3
    v_and_b32 v5, 7, v5
    v_lshlrev_b32 v4, 2, v4
    v_xor_b32 v5, v5, v4
    v_lshlrev_b32 v5, 4, v5
    v_lshl_add_u32 v16, v3, 7, v5
    s_lshl_b32 s47, s46, 12
    v_add_u32 v16, s47, v16
    v_xor_b32 v17, 16, v16
    v_xor_b32 v18, 32, v16
    v_xor_b32 v19, 48, v16
    v_mov_b32 v36, 0
    v_mov_b32 v37, 0
    v_mov_b32 v38, 0
    v_mov_b32 v39, 0
    s_mov_b32 s60, 0xffff0000
    s_mov_b32 s61, 0
    s_mov_b32 s62, 0
    ''')
    def stats_reads(): return [f'ds_read_b128 v[{20+4*j}:{23+4*j}], v{16+j}' for j in range(4)]
    def stats_valu():
        L=[]
        for d in range(16):
            t=40+2*(d%4)
            L+= [f'v_lshlrev_b32 v{t}, 16, v{20+d}', f'v_and_b32 v{t+1}, s60, v{20+d}',
                 f'v_add_f32 v36, v36, v{t}', f'v_add_f32 v37, v37, v{t+1}',
                 f'v_fmac_f32 v38, v{t}, v{t}', f'v_fmac_f32 v39, v{t+1}, v{t+1}']
        return L
    def stats_adv():
        return ['s_add_u32 s61, s61, s64', f's_cmp_eq_u32 s61, {4*SLOT}', 's_cselect_b32 s63, s65, s64', 's_cselect_b32 s61, 0, s61']+\
               [f'v_add_u32 v{16+j}, s63, v{16+j}' for j in range(4)]
    e('s_waitcnt vmcnt(30)')
    e('K1_SO:')
    e('s_barrier')
    for x in stats_reads(): e(x)
    e('s_waitcnt lgkmcnt(0)')
    for x in stats_valu(): e(x)
    for x in stats_adv(): e(x)
    e('''
    s_cmp_eq_u32 s62, 0
    s_cbranch_scc1 K1_LM0
    s_cmp_eq_u32 s62, 3
    s_cbranch_scc1 K1_LDONE
    s_add_u32 s62, s62, 1
    s_cmp_eq_u32 s62, 2
    s_cbranch_scc1 K1_W10
    s_waitcnt vmcnt(0)
    s_branch K1_SO
    K1_W10:
    s_waitcnt vmcnt(10)
    s_branch K1_SO
    K1_LM0:
    s_mov_b32 s47, 4
    K1_LM:
    s_waitcnt vmcnt(20)
    s_barrier
    ''')
    for x in stats_reads(): e(x)
    for x in stage_addr(): e(x)
    g=dma(); sv=stats_valu()
    for x in g[0]: e(x)
    e('s_waitcnt lgkmcnt(0)')
    k=0
    for i in range(1,10):
        for x in sv[k:k+10]: e(x)
        k+=10
        for x in g[i]: e(x)
    for x in sv[k:]: e(x)
    for x in stage_adv(): e(x)
    for x in stats_adv(): e(x)
    e(f'''
    s_sub_u32 s47, s47, 1
    s_cmp_lg_u32 s47, 0
    s_cbranch_scc1 K1_LM
    s_waitcnt vmcnt(20)
    s_mov_b32 s62, 1
    s_branch K1_SO
    K1_LDONE:
    v_add_f32 v36, v36, v37
    v_add_f32 v38, v38, v39
    v_mov_b32 v37, v36
    v_mov_b32 v39, v38
    s_nop 1
    v_permlane32_swap_b32 v36, v37
    v_permlane32_swap_b32 v38, v39
    v_add_f32 v36, v36, v37
    v_add_f32 v38, v38, v39
    v_mul_f32 v36, {hx(-1.0/512)}, v36          ; -mean
    v_mul_f32 v38, {hx(1.0/512)}, v38
    v_fma_f32 v38, -v36, v36, v38               ; var
    v_max_f32 v38, 0, v38
    v_add_f32 v38, {hx(1e-5)}, v38
    v_rsq_f32 v44, v38                          ; rstd
    v_cvt_pk_bf16_f32 v40, v36, v36
    v_mul_f32 v45, v38, v44                     ; sigma
    v_lshlrev_b32 v40, 16, v40
    v_sub_f32 v41, v36, v40
    v_cvt_pk_bf16_f32 v40, v40, v41             ; d0
    v_mov_b32 v41, v40                          ; d1
    v_cvt_pk_bf16_f32 v42, v45, v45
    v_lshlrev_b32 v42, 16, v42
    v_sub_f32 v43, v45, v42
    v_cvt_pk_bf16_f32 v42, v42, v43             ; d2
    v_mov_b32 v43, 0
    v_mul_f32 v46, v44, v44
    v_mul_f32 v46, v46, v44
    v_mul_f32 v46, {hx(GC2)}, v46               ; cA
    v_mul_f32 v47, {hx(GC1)}, v44               ; cB
    v_and_b32 v3, 31, v2
    s_lshl_b32 s47, s46, 5
    v_add_u32 v3, s47, v3                       ; row
    v_lshlrev_b32 v4, 5, v3
    ds_write_b128 v4, v[40:43] offset:{REC}
    ds_write_b128 v4, v[44:47] offset:{REC+16}
    v_lshlrev_b32 v4, 2, v3
    ds_write_b32 v4, v44 offset:{RSTD}
    s_cmp_lg_u32 s7, 0
    s_cbranch_scc1 K1_LE1
    s_cmp_lg_u32 s3, 4
    s_cbranch_scc1 K1_LE1
    s_lshl_b32 s47, s5, 2
    v_mov_b32 v4, s47
    s_mov_b32 s48, 0x40000
    K1_POLL:
    buffer_load_dword v5, v4, s[24:27], 0 offen sc1
    s_waitcnt vmcnt(0)
    v_readfirstlane_b32 s47, v5
    s_sub_u32 s48, s48, 1
    s_cmp_lg_u32 s47, 0
    s_cbranch_scc1 K1_LE1
    s_sleep 4
    s_cmp_lg_u32 s48, 0
    s_cbranch_scc1 K1_POLL
    K1_LE1:
    s_waitcnt lgkmcnt(0)
    s_barrier
    s_cmp_lg_u32 s7, 0
    s_cbranch_scc1 K1_END
    s_branch K1_KVRED
    ''')

def cons_setup(e,opt):
    e('K1_CONS:')
    e(f'''
    s_and_b32 s46, s3, 1          ; sh
    s_lshr_b32 s47, s3, 1         ; nh
    s_cmp_lg_u32 s7, 0
    s_cbranch_scc1 K1_NOZ
    s_cmp_lg_u32 s4, 0
    s_cbranch_scc1 K1_NOZ
    s_cmp_lg_u32 s3, 0
    s_cbranch_scc1 K1_NOZ
    v_mov_b32 v8, 0
    v_mov_b32 v9, 0
    v_mov_b32 v10, 0
    v_mov_b32 v11, 0
    v_lshlrev_b32 v4, 4, v2
    s_mul_i32 s48, s5, 4352
    s_add_u32 s48, s48, {WS_KV}
    buffer_store_dwordx4 v[8:11], v4, s[16:19], s48 offen sc1
    buffer_store_dwordx4 v[8:11], v4, s[16:19], s48 offen offset:1024 sc1
    buffer_store_dwordx4 v[8:11], v4, s[16:19], s48 offen offset:2048 sc1
    buffer_store_dwordx4 v[8:11], v4, s[16:19], s48 offen offset:3072 sc1
    s_mov_b32 exec_lo, 0xffff
    s_mov_b32 exec_hi, 0
    s_add_u32 s48, s48, 4096
    buffer_store_dwordx4 v[8:11], v4, s[16:19], s48 offen sc1
    s_waitcnt vmcnt(0)
    s_mov_b32 exec_lo, 1
    v_mov_b32 v5, 1
    s_lshl_b32 s48, s5, 2
    v_mov_b32 v4, s48
    buffer_store_dword v5, v4, s[24:27], 0 offen sc1
    s_mov_b64 exec, -1
    K1_NOZ:
    v_and_b32 v3, 31, v2             ; r32
    v_lshrrev_b32 v4, 5, v2          ; hi
    s_mul_i32 s48, s47, 3
    s_add_u32 s48, s48, s44
    s_lshl_b32 s49, s48, 6
    v_lshl_add_u32 v5, v3, 1, s49
    buffer_load_ushort v{BIA}, v5, s[20:23], 0 offen
    buffer_load_ushort v{BIA+1}, v5, s[20:23], 0 offen offset:64
    buffer_load_ushort v{BIA+2}, v5, s[20:23], 0 offen offset:128
    v_lshrrev_b32 v5, 1, v3
    v_and_b32 v5, 7, v5
    v_xor_b32 v5, v5, v4
    v_lshlrev_b32 v5, 4, v5
    v_lshl_add_u32 v5, v3, 7, v5
    s_lshl_b32 s49, s46, 13
    v_add_u32 v5, s49, v5
    s_lshl_b32 s49, s46, 5
    v_xor_b32 v{XA}, s49, v5
    v_xor_b32 v{XA+1}, 32, v5
    v_xor_b32 v{XA+1}, s49, v{XA+1}
    v_xor_b32 v{XA+2}, 64, v{XA}
    v_xor_b32 v{XA+3}, 64, v{XA+1}
    v_and_b32 v6, 15, v2
    v_lshrrev_b32 v6, 2, v6
    v_lshl_add_u32 v6, v4, 3, v6
    v_lshlrev_b32 v6, 7, v6          ; (8hi + i>>2)*128
    v_and_b32 v7, 3, v2
    v_lshlrev_b32 v7, 3, v7
    v_bfe_u32 v8, v2, 4, 1
    v_lshl_add_u32 v7, v8, 5, v7     ; g16*32 + (i&3)*8
    v_bfe_u32 v8, v2, 3, 1
    v_lshlrev_b32 v8, 6, v8          ; 64*bit3
    s_lshl_b32 s50, s46, 11          ; sh*2048
    ''')
    for t in range(3):
        e(f'''
        s_mul_i32 s51, s47, 3
        s_add_u32 s51, s51, {t}
        s_lshr_b32 s52, s51, 1
        s_and_b32 s51, s51, 1
        s_cmp_eq_u32 s7, 0
        s_cselect_b32 s52, {t}, s52
        s_cselect_b32 s51, s47, s51
        s_lshl_b32 s52, s52, 13
        s_add_u32 s52, s52, 16384
        s_lshl_b32 s51, s51, 6
        v_add_u32 v9, s51, v7
        v_xor_b32 v9, v9, v8
        v_add3_u32 v9, v9, v6, s52
        v_add_u32 v{WA+2*t}, s50, v9
        v_subrev_u32 v{WA+2*t+1}, s50, v9
        ''')
    for r in range(ACC,ACC+96+12): e(f'v_mov_b32 v{r}, 0')
    for r in range(FB,FB+20): e(f'v_mov_b32 v{r}, 0')
    e(f'''
    v_lshrrev_b32 v5, 4, v2
    v_xor_b32 v5, v5, v2
    v_and_b32 v5, 1, v5
    v_cmp_eq_u32 vcc, 0, v5
    v_mov_b32 v6, 0x3f803f80
    s_nop 0
    v_cndmask_b32 v{SEL}, 0, v6, vcc
    v_mov_b32 v{SEL+1}, v{SEL}
    v_mov_b32 v{SEL+2}, v{SEL}
    v_mov_b32 v{SEL+3}, v{SEL}
    s_mov_b32 s48, 8
    s_mov_b32 s49, 0
    s_cmp_lg_u32 s7, 0
    s_cbranch_scc1 K1_CF
    ''')

def reads(p,buf):
    par=p&1
    L=[f'ds_read_b128 {vr(buf,4)}, v{XA+p}']
    L+=[f'ds_read_b64_tr_b16 {vr(buf+8,2)}, v{WA+par} offset:{p*2048}', f'ds_read_b64_tr_b16 {vr(buf+10,2)}, v{WA+par} offset:{p*2048+512}']
    L+=[f'ds_read_b128 {vr(buf+4,4)}, v{XA+p} offset:4096']
    for t in (1,2):
        L+=[f'ds_read_b64_tr_b16 {vr(buf+8+4*t,2)}, v{WA+2*t+par} offset:{p*2048}', f'ds_read_b64_tr_b16 {vr(buf+10+4*t,2)}, v{WA+2*t+par} offset:{p*2048+512}']
    return L
def mfmas(buf,ffn,cs):
    L=[]
    for t in range(3):
        for a in range(2):
            X=vr(buf+4*a,4); W=vr(buf+8+4*t,4); A=vr(acc(t,a),16)
            if ffn or t==0: L.append(f'v_mfma_f32_32x32x16_bf16 {A}, {W}, {X}, {A}')
            else: L.append(f'v_mfma_f32_32x32x16_bf16 {A}, {X}, {W}, {A}')
        if cs: L.append(f'v_mfma_f32_16x16x32_bf16 {vr(CS+4*t,4)}, {vr(SEL,4)}, {vr(buf+8+4*t,4)}, {vr(CS+4*t,4)}')
    return L
def mainloop(e,ffn,tag):
    e(f'K1_ML{tag}:')
    e('s_barrier')
    for x in interleave(mfmas(FB,ffn,False), reads(0,FA), [3,3,2,0,0,0]): e(x)
    e('s_waitcnt lgkmcnt(0)')
    for x in interleave(mfmas(FA,ffn,True), reads(1,FB), [3,3,2]): e(x)
    e('s_waitcnt lgkmcnt(0)')
    for x in interleave(mfmas(FB,ffn,False), reads(2,FA), [3,3,2]): e(x)
    e('s_waitcnt lgkmcnt(0)')
    adv=['s_add_u32 s49, s49, s64', f's_cmp_eq_u32 s49, {4*SLOT}', 's_cselect_b32 s50, s65, s64', 's_cselect_b32 s49, 0, s49']
    m=mfmas(FA,ffn,True)
    for x in interleave(m[:4], reads(3,FB)+adv, [3,3,2,4]): e(x)
    upd=[f'v_add_u32 v{XA+i}, s50, v{XA+i}' for i in range(4)]+[f'v_add_u32 v{WA+i}, s50, v{WA+i}' for i in range(6)]
    for x in interleave(m[4:], upd, [2,2,2,2,2]): e(x)
    e(f'''
    s_waitcnt lgkmcnt(0)
    s_sub_u32 s48, s48, 1
    s_cmp_lg_u32 s48, 0
    s_cbranch_scc1 K1_ML{tag}
    ''')
    for x in mfmas(FB,ffn,False): e(x)

def post(e,ffn):
    e(f'''
    v_and_b32 v3, 15, v2
    s_mul_i32 s48, s46, 6
    s_mul_i32 s49, s47, 3
    s_add_u32 s48, s48, s49
    s_lshl_b32 s48, s48, 7
    v_lshl_add_u32 v3, v3, 2, s48
    ''')
    for t in range(3):
        e(f'ds_write_b32 v3, v{CS+4*t} offset:{CSP+t*128}')
        e(f'ds_write_b32 v3, v{CS+4*t+1} offset:{CSP+t*128+64}')
    e(f'''
    s_waitcnt lgkmcnt(0)
    s_barrier
    v_and_b32 v3, 31, v2
    s_lshl_b32 s48, s46, 6
    v_add_u32 v4, s48, v3
    v_lshlrev_b32 v4, 5, v4
    ds_read_b128 v[{XF}:{XF+3}], v4 offset:{REC}
    ds_read_b128 v[{XF+4}:{XF+7}], v4 offset:{REC+1024}
    ds_read_b128 v[{KC}:{KC+3}], v4 offset:{REC+16}
    ds_read_b128 v[{KC+4}:{KC+7}], v4 offset:{REC+1024+16}
    s_mul_i32 s49, s47, 384
    v_lshl_add_u32 v5, v3, 2, s49
    ''')
    for t in range(3):
        e(f'ds_read_b32 v{8+2*t}, v5 offset:{CSP+t*128}')
        e(f'ds_read_b32 v{9+2*t}, v5 offset:{CSP+768+t*128}')
    e('''
    v_cmp_gt_u32 vcc, 32, v2
    s_nop 0
    s_waitcnt vmcnt(0) lgkmcnt(0)
    ''')
    for r in range(XF,XF+8):
        if (r-XF)%4!=3: e(f'v_cndmask_b32 v{r}, 0, v{r}, vcc')
    for t in range(3):
        w=WF+4*t
        e(f'''
        v_add_f32 v{8+2*t}, v{8+2*t}, v{9+2*t}
        v_cvt_pk_bf16_f32 v{w}, v{8+2*t}, v{8+2*t}
        v_lshlrev_b32 v{9+2*t}, 16, v{w}
        v_sub_f32 v{9+2*t}, v{8+2*t}, v{9+2*t}
        v_cvt_pk_bf16_f32 v{w+1}, v{9+2*t}, v{9+2*t}
        ''')
        if ffn:
            e(f'v_lshlrev_b32 v{w+2}, 16, v{BIA+t}')
            e(f'v_or_b32 v{w+2}, v{w+2}, v{BIA+t}')
        else:
            e(f'v_mov_b32 v{w+2}, 0')
        e(f'v_mov_b32 v{w+3}, 0')
    e('s_nop 1')
    for t in range(3):
        for a in range(2):
            A=vr(acc(t,a),16)
            if ffn or t==0: e(f'v_mfma_f32_32x32x16_bf16 {A}, {vr(WF+4*t,4)}, {vr(XF+4*a,4)}, {A}')
            else: e(f'v_mfma_f32_32x32x16_bf16 {A}, {vr(XF+4*a,4)}, {vr(WF+4*t,4)}, {A}')

def pk(op,d,a,b,c=None,sel=''):
    s=f'v_pk_{op}_f32 v[{d}:{d+1}], v[{a}:{a+1}], v[{b}:{b+1}]'
    if c is not None: s+=f', v[{c}:{c+1}]'
    return s+(' '+sel if sel else '')

def gelu_tile(t,a):
    A=acc(t,a); rs,cA=KC+4*a,KC+4*a+2
    L=[]
    for g in range(2):
        b=A+8*g
        R=range(0,8,2)
        for i in R: L.append(pk('mul',T0+i,b+i,b+i))
        for i in R: L.append(pk('fma',T0+i,T0+i,cA,cA,'op_sel:[0,0,1] op_sel_hi:[1,0,1]'))
        for i in R: L.append(pk('mul',T0+i,T0+i,b+i))
        for i in range(8): L.append(f'v_exp_f32 v{T0+i}, v{T0+i}')
        for i in R: L.append(pk('fma',T0+i,T0+i,rs,rs,'op_sel:[0,1,1] op_sel_hi:[1,1,1]'))
        for i in range(8): L.append(f'v_rcp_f32 v{T0+i}, v{T0+i}')
        L.append('s_nop 0')
        for i in R: L.append(pk('mul',T0+i,T0+i,b+i))
        for i in R: L.append(f'v_cvt_pk_bf16_f32 v{OUT+4*g+i//2}, v{T0+i}, v{T0+i+1}')
    return L

def store2(e,so,off,opt,tmp=53):
    fl=opt.get('stflag','')
    if off+1024>4095:
        e(f's_add_u32 s{tmp}, s{so}, {off}')
        so=tmp; off=0
    e(f'buffer_store_dwordx4 v[{OUT}:{OUT+3}], v4, s[16:19], s{so} offen offset:{off} {fl}')
    e(f'buffer_store_dwordx4 v[{OUT+4}:{OUT+7}], v4, s[16:19], s{so} offen offset:{off+1024} {fl}')

def ffn_path(e,opt):
    e('K1_CF:')
    mainloop(e,True,'F')
    post(e,True)
    e(f'''
    v_lshlrev_b32 v4, 4, v2
    s_lshl_b32 s48, s4, 2
    s_lshl_b32 s49, s46, 1
    s_add_u32 s48, s48, s49           ; s-tile (a=0)
    s_mul_i32 s48, s48, 86
    s_mul_i32 s49, s47, 3
    s_add_u32 s49, s49, s44
    s_lshl_b32 s50, s49, 1
    s_add_u32 s48, s48, s50
    s_lshl_b32 s48, s48, 10
    s_add_u32 s51, s48, {86*1024}     ; a=1
    s_mul_i32 s52, s47, 3
    s_sub_u32 s52, s45, s52
    ''')
    for t in range(3):
        if t==2:
            e('s_cmp_lt_u32 s52, 3')
            e('s_cbranch_scc1 K1_END')
        for a in range(2):
            for x in gelu_tile(t,a): e(x)
            store2(e, 48 if a==0 else 51, t*2048, opt)
    e('s_endpgm')

def qkv_path(e,opt):
    mainloop(e,False,'Q')
    post(e,False)
    RS=48
    e(f'''
    v_lshlrev_b32 v4, 4, v2
    s_lshl_b32 s48, s4, 2
    s_lshl_b32 s49, s46, 1
    s_add_u32 s48, s48, s49           ; s-tile a=0
    s_lshl_b32 s48, s48, 5
    s_lshl_b32 s49, s5, 2
    s_lshl_b32 s50, s47, 1
    s_add_u32 s49, s49, s50
    s_add_u32 s48, s48, s49
    s_lshl_b32 s48, s48, 10
    s_add_u32 s48, s48, {WS_PQ}
    s_add_u32 s51, s48, {32*1024}
    s_mov_b32 s54, {hx(LOG2E)}
    s_mov_b32 s55, {hx(1e-6)}
    v_lshrrev_b32 v5, 5, v2
    v_lshlrev_b32 v5, 4, v5
    s_lshl_b32 s49, s46, 8
    v_add_u32 v5, s49, v5
    v_mul_f32 v6, s54, v{KC}
    v_mul_f32 v7, s54, v{KC+4}        ; a=1
    ''')
    for a in range(2):
        A=acc(0,a); rs=KC+4*a; rl=6+a
        for g in range(2):
            b=A+8*g
            for i in range(8): e(f'v_mul_f32 v{T0+i}, v{b+i}, v{rl}')
            for i in range(8): e(f'v_min_f32 v{T0+i}, 0, v{T0+i}')
            for i in range(8): e(f'v_exp_f32 v{T0+i}, v{T0+i}')
            for i in range(8): e(f'v_max_f32 v{T0+8+i}, 0, v{b+i}')
            for i in range(8): e(f'v_add_f32 v{T0+i}, s55, v{T0+i}')
            for i in range(8): e(f'v_fmac_f32 v{T0+i}, v{T0+8+i}, v{rs}')
            for i in range(0,8,2): e(f'v_cvt_pk_bf16_f32 v{OUT+4*g+i//2}, v{T0+i}, v{T0+i+1}')
        store2(e, 48 if a==0 else 51, 0, opt)
    KV=acc(0,0); Z=acc(0,1)
    PK=96; VF=104
    ONE=112
    for r in range(4): e(f'v_mov_b32 v{ONE+r}, 0x3f803f80')
    for a in range(2):
        for g in range(4): e(f'ds_read_b128 v[{RS+4*g}:{RS+4*g+3}], v5 offset:{RSTD+a*128+g*32}')
        e('s_waitcnt lgkmcnt(0)')
        K=acc(1,a); V=acc(2,a)
        for g in range(2):
            b=K+8*g; r0=RS+8*g
            for i in range(8): e(f'v_mul_f32 v{T0+8+i}, v{b+i}, v{r0+i}')
            for i in range(8): e(f'v_mul_f32 v{T0+i}, s54, v{T0+8+i}')
            for i in range(8): e(f'v_min_f32 v{T0+i}, 0, v{T0+i}')
            for i in range(8): e(f'v_exp_f32 v{T0+i}, v{T0+i}')
            for i in range(8): e(f'v_max_f32 v{T0+8+i}, 0, v{T0+8+i}')
            for i in range(8): e(f'v_add_f32 v{T0+i}, s55, v{T0+i}')
            for i in range(8): e(f'v_add_f32 v{T0+i}, v{T0+i}, v{T0+8+i}')
            for i in range(0,8,2): e(f'v_cvt_pk_bf16_f32 v{PK+4*g+i//2}, v{T0+i}, v{T0+i+1}')
            bv=V+8*g
            for i in range(8): e(f'v_mul_f32 v{T0+i}, v{bv+i}, v{r0+i}')
            for i in range(0,8,2): e(f'v_cvt_pk_bf16_f32 v{VF+4*g+i//2}, v{T0+i}, v{T0+i+1}')
        e('s_nop 1')
        for g in range(2):
            c0 = '0' if (a==0 and g==0) else vr(KV,16)
            z0 = '0' if (a==0 and g==0) else vr(Z,16)
            e(f'v_mfma_f32_32x32x16_bf16 {vr(KV,16)}, {vr(PK+4*g,4)}, {vr(VF+4*g,4)}, {c0}')
            e(f'v_mfma_f32_32x32x16_bf16 {vr(Z,16)}, {vr(PK+4*g,4)}, {vr(ONE,4)}, {z0}')
    e(f'''
    v_and_b32 v8, 15, v2
    v_lshrrev_b32 v9, 5, v2
    v_mul_u32_u24 v9, 17, v9
    v_add_u32 v8, v8, v9
    v_lshlrev_b32 v8, 5, v8           ; (hiD*17+e)*32
    v_bfe_u32 v9, v2, 4, 1
    v_mul_u32_u24 v9, 1088, v9
    v_add_u32 v8, v8, v9
    s_mul_i32 s48, s46, 4352
    s_mul_i32 s49, s47, 2176
    s_add_u32 s48, s48, s49
    v_add_u32 v8, s48, v8
    v_lshrrev_b32 v9, 5, v2
    v_mul_u32_u24 v9, {17*32}, v9
    v_add_u32 v9, s48, v9
    s_nop 7
    s_mov_b32 exec_lo, 0x0000ffff
    s_mov_b32 exec_hi, 0x0000ffff
    ds_write_b128 v8, v[{KV}:{KV+3}] offset:{KVP}
    ds_write_b128 v8, v[{KV+4}:{KV+7}] offset:{KVP+16}
    s_mov_b32 exec_lo, 0xffff0000
    s_mov_b32 exec_hi, 0xffff0000
    ds_write_b128 v8, v[{KV+8}:{KV+11}] offset:{KVP}
    ds_write_b128 v8, v[{KV+12}:{KV+15}] offset:{KVP+16}
    s_mov_b32 exec_lo, 1
    s_mov_b32 exec_hi, 1
    ds_write_b128 v9, v[{Z}:{Z+3}] offset:{KVP+512}
    ds_write_b128 v9, v[{Z+4}:{Z+7}] offset:{KVP+512+16}
    ds_write_b128 v9, v[{Z+8}:{Z+11}] offset:{KVP+512+1088}
    ds_write_b128 v9, v[{Z+12}:{Z+15}] offset:{KVP+512+1088+16}
    s_mov_b64 exec, -1
    K1_KVRED:
    s_waitcnt lgkmcnt(0)
    s_barrier
    ''')
    e(f'''
    v_lshlrev_b32 v3, 2, v0
    ds_read_b32 v8, v3 offset:{KVP}
    ds_read_b32 v9, v3 offset:{KVP+4352}
    ds_read_b32 v10, v3 offset:{KVP+2048}
    ds_read_b32 v11, v3 offset:{KVP+2048+4352}
    s_mul_i32 s48, s5, 4352
    s_add_u32 s48, s48, {WS_KV}
    s_waitcnt lgkmcnt(0)
    v_add_f32 v8, v8, v9
    v_add_f32 v10, v10, v11
    buffer_atomic_add_f32 v8, v3, s[16:19], s48 offen
    buffer_atomic_add_f32 v10, v3, s[16:19], s48 offen offset:2048
    s_cmp_lg_u32 s3, 0
    s_cbranch_scc1 K1_END
    ds_read_b32 v8, v3 offset:{KVP+4096}
    ds_read_b32 v9, v3 offset:{KVP+4096+4352}
    s_add_u32 s48, s48, 4096
    s_waitcnt lgkmcnt(0)
    v_add_f32 v8, v8, v9
    buffer_atomic_add_f32 v8, v3, s[16:19], s48 offen
    ''')

def k1(opt):
    e=E()
    prologue(e,opt)
    loader(e,opt)
    cons_setup(e,opt)
    qkv_path(e,opt)
    e('K1_END:')
    e('s_endpgm')
    ffn_path(e,opt)
    return e.text()
```

```python
from common import *
ACC=128
AR=64
BF=88
KVF=96
D1=100
D1B=192
OF=208
KT=16
WLDS=17408
BRING=0
KVL=6144
def acc(a,b): return ACC+(b*2+a)*16

def k2(opt):
    e=E()
    e(f'''
    s_cmp_ge_u32 s2, 256
    s_cbranch_scc1 K2_END
    s_load_dwordx2 s[28:29], s[0:1], 0
    s_load_dwordx2 s[30:31], s[0:1], 16
    s_load_dwordx4 s[32:35], s[0:1], 48
    s_load_dwordx2 s[36:37], s[0:1], 64
    s_load_dwordx2 s[38:39], s[0:1], 80
    v_lshrrev_b32 v1, 6, v0
    v_and_b32 v2, 63, v0
    v_readfirstlane_b32 s3, v1
    s_and_b32 s8, s2, 7
    s_lshr_b32 s9, s2, 3
    s_and_b32 s4, s9, 3
    s_lshl_b32 s8, s8, 2
    s_add_u32 s4, s4, s8
    s_lshr_b32 s5, s9, 2              ; cb2 0..7
    s_mul_i32 s40, s3, 21
    s_add_u32 s40, s40, 3
    s_cmp_eq_u32 s3, 0
    s_cselect_b32 s40, 0, s40         ; f0
    s_cselect_b32 s41, 24, 21         ; nF
    s_mul_i32 s42, s3, 9
    s_sub_u32 s42, s42, 3
    s_cmp_eq_u32 s3, 0
    s_cselect_b32 s42, 0, s42         ; h0
    s_cselect_b32 s43, 6, 9
    s_cmp_eq_u32 s3, 3
    s_cselect_b32 s43, 8, s43         ; nH
    ''')
    if opt.get('rot2','on')=='on':
        e('s_mul_i32 s44, s5, s41\ns_lshr_b32 s44, s44, 3')
    else:
        e('s_mov_b32 s44, 0')
    e(f'''
    s_lshl_b32 s45, s4, 1             ; s-tile a=0
    s_mul_i32 s46, s45, 86
    s_add_u32 s47, s40, s44
    s_add_u32 s48, s46, s47
    s_lshl_b32 s48, s48, 10
    s_lshl_b32 s49, s47, 14
    s_sub_u32 s50, s41, s44
    s_add_u32 s51, s46, s40
    s_lshl_b32 s51, s51, 10
    s_lshl_b32 s52, s40, 14
    s_mov_b32 s53, s44
    s_lshl_b32 s54, s45, 5
    s_add_u32 s54, s54, s42
    s_lshl_b32 s54, s54, 10
    s_add_u32 s54, s54, {WS_PQ}
    s_lshl_b32 s55, s42, 14
    s_mov_b32 s56, s43
    s_mov_b32 s57, {86*1024}
    s_waitcnt lgkmcnt(0)
    ''')
    srd(e,8,38,WS_SIZE)
    srd(e,12,32,F*D*2)
    srd(e,16,28,S*D*2)
    srd(e,20,36,S*D*2)
    srd(e,24,34,D*2)
    e(f'''
    s_mov_b32 s58, s30
    s_and_b32 s59, s31, 0xffff
    s_mov_b32 s60, 0
    s_mul_i32 s61, s3, {WLDS}
    v_lshlrev_b32 v3, 4, v2
    v_lshrrev_b32 v4, 3, v2
    v_and_b32 v5, 7, v2
    v_bfe_u32 v6, v2, 4, 1
    v_lshlrev_b32 v6, 2, v6
    v_xor_b32 v5, v5, v6
    v_lshlrev_b32 v5, 4, v5
    v_lshl_add_u32 v4, v4, 10, v5
    s_lshl_b32 s62, s5, 7
    v_add_u32 v4, s62, v4
    v_add_u32 v5, 0x2000, v4          ; rows 8..15
    v_and_b32 v6, 31, v2
    v_min_u32 v6, 16, v6
    v_lshrrev_b32 v7, 5, v2
    v_mul_u32_u24 v8, 17, v7
    v_add_u32 v6, v6, v8
    v_lshlrev_b32 v6, 5, v6
    s_mul_i32 s62, s42, 1088
    s_add_u32 s62, s62, {WS_KV}
    ''')
    KT=16
    for h in range(9):
        e(f'buffer_load_dwordx4 v[{KT+8*h}:{KT+8*h+3}], v6, s[8:11], s62 offen')
        e(f'buffer_load_dwordx4 v[{KT+8*h+4}:{KT+8*h+7}], v6, s[8:11], s62 offen offset:16')
        if h<8: e('s_add_u32 s62, s62, 1088')
    XR=216
    e(f'''
    v_lshrrev_b32 v9, 3, v0
    v_and_b32 v10, 7, v0
    v_lshlrev_b32 v10, 4, v10
    s_lshl_b32 s62, s4, 16            ; rb2*64*1024
    s_lshl_b32 s63, s5, 7
    s_add_u32 s62, s62, s63
    v_lshl_add_u32 v11, v9, 10, v10
    v_add_u32 v11, s62, v11
    buffer_load_dwordx4 v[{XR}:{XR+3}], v11, s[16:19], 0 offen
    v_add_u32 v12, 0x8000, v11
    buffer_load_dwordx4 v[{XR+4}:{XR+7}], v12, s[16:19], 0 offen
    v_add_u32 v13, s63, v10
    buffer_load_dwordx4 v[{XR+8}:{XR+11}], v13, s[24:27], 0 offen
    ''')
    e(f'''
    v_and_b32 v14, 15, v2
    v_lshrrev_b32 v14, 2, v14
    v_lshl_add_u32 v14, v7, 2, v14     ; 4hi + (i>>2)
    v_lshlrev_b32 v14, 7, v14
    v_and_b32 v15, 3, v2
    v_lshlrev_b32 v15, 3, v15
    v_bfe_u32 v8, v2, 4, 1
    v_lshl_add_u32 v15, v8, 5, v15
    v_bfe_u32 v8, v2, 3, 1
    v_lshlrev_b32 v8, 6, v8
    v_xor_b32 v15, v15, v8
    v_add3_u32 v14, v14, v15, s61      ; tile b=0
    v_xor_b32 v15, 64, v14
    ''')
    for r in range(ACC,ACC+64): e(f'v_mov_b32 v{r}, 0')
    e('s_waitcnt vmcnt(3)')
    e(f'v_add_u32 v8, s61, v3')
    for h in range(9):
        for i in range(4):
            e(f'v_cvt_pk_bf16_f32 v{KT+8*h+i}, v{KT+8*h+2*i}, v{KT+8*h+2*i+1}')
        e(f'ds_write_b128 v8, v[{KT+8*h}:{KT+8*h+3}] offset:{KVL+h*1024}')
    e('s_waitcnt lgkmcnt(0)')
    def issue(p):
        lab=e.label('K2_SK')
        L=[]
        e(f's_cmp_eq_u32 s50, 0')
        e(f's_cbranch_scc1 {lab}')
        e(f'buffer_load_dwordx4 v[{AR+8*p}:{AR+8*p+3}], v3, s[8:11], s48 offen')
        e(f's_add_u32 s62, s48, s57')
        e(f'buffer_load_dwordx4 v[{AR+8*p+4}:{AR+8*p+7}], v3, s[8:11], s62 offen')
        e(f's_add_u32 m0, s61, {BRING+p*2048}')
        e(f's_add_u32 s48, s48, 1024')
        e(f'buffer_load_dwordx4 v4, s[12:15], s49 offen lds')
        e(f's_add_u32 m0, s61, {BRING+p*2048+1024}')
        e(f's_sub_u32 s50, s50, 1')
        e(f'buffer_load_dwordx4 v5, s[12:15], s49 offen lds')
        e(f's_add_u32 s49, s49, 16384')
        e(f's_cmp_lg_u32 s50, 0')
        e(f's_cbranch_scc1 {lab}')
        lab2=e.label('K2_SC'); lab3=e.label('K2_SD')
        e(f'''
        s_add_u32 s60, s60, 1
        s_cmp_eq_u32 s60, 1
        s_cbranch_scc0 {lab2}
        s_mov_b32 s48, s51
        s_mov_b32 s49, s52
        s_mov_b32 s50, s53
        s_cmp_lg_u32 s53, 0
        s_cbranch_scc1 {lab}
        s_mov_b32 s60, 2
        {lab2}:
        s_cmp_eq_u32 s60, 2
        s_cbranch_scc0 {lab}
        s_mov_b32 s48, s54
        s_mov_b32 s49, s55
        s_mov_b32 s50, s56
        s_mov_b32 s57, {32*1024}
        s_mov_b32 s12, s58
        s_mov_b32 s13, s59
        s_mov_b32 s14, {D*D*2}
        {lab}:
        ''')
    def breads(p):
        return [f'ds_read_b64_tr_b16 v[{BF}:{BF+1}], v14 offset:{BRING+p*2048}',
                f'ds_read_b64_tr_b16 v[{BF+2}:{BF+3}], v14 offset:{BRING+p*2048+1024}',
                f'ds_read_b64_tr_b16 v[{BF+4}:{BF+5}], v15 offset:{BRING+p*2048}',
                f'ds_read_b64_tr_b16 v[{BF+6}:{BF+7}], v15 offset:{BRING+p*2048+1024}']
    for p in range(3): issue(p)
    e('s_mov_b32 s63, s41')
    e('K2_FL:')
    for p in range(3):
        e('s_waitcnt vmcnt(8)')
        for x in breads(p): e(x)
        e('s_waitcnt lgkmcnt(0)')
        for b in range(2):
            for a in range(2):
                e(f'v_mfma_f32_32x32x16_bf16 {vr(acc(a,b),16)}, {vr(BF+4*b,4)}, {vr(AR+8*p+4*a,4)}, {vr(acc(a,b),16)}')
        issue(p)
    e('''
    s_sub_u32 s63, s63, 3
    s_cmp_lg_u32 s63, 0
    s_cbranch_scc1 K2_FL
    ''')
    e(f'''
    s_mov_b32 s63, s43
    v_add_u32 v8, s61, v3
    s_mov_b32 s64, {hx(1e-6)}
    ''')
    e('K2_AL:')
    for p in range(3):
        l4=e.label('K2_W4'); l0=e.label('K2_W0'); lc=e.label('K2_WC')
        e(f'''
        s_cmp_eq_u32 s63, 1
        s_cbranch_scc1 {l0}
        s_cmp_eq_u32 s63, 2
        s_cbranch_scc1 {l4}
        s_waitcnt vmcnt(8)
        s_branch {lc}
        {l4}:
        s_waitcnt vmcnt(4)
        s_branch {lc}
        {l0}:
        s_waitcnt vmcnt(0)
        {lc}:
        ds_read_b128 v[{KVF}:{KVF+3}], v8 offset:{KVL}
        ''')
        for x in breads(p): e(x)
        e('s_waitcnt lgkmcnt(4)')
        e(f'v_mfma_f32_32x32x16_bf16 {vr(D1,16)}, {vr(KVF,4)}, {vr(AR+8*p,4)}, 0')
        e(f'v_mfma_f32_32x32x16_bf16 {vr(D1B,16)}, {vr(KVF,4)}, {vr(AR+8*p+4,4)}, 0')
        e('v_add_u32 v8, 1024, v8')
        e('s_nop 9')
        for a,Dr in ((0,D1),(1,D1B)):
            if a==1: e('s_nop 0')
            e(f'v_add_f32 v16, s64, v{Dr+8}')
            e(f'v_rcp_f32 v16, v16')
            e('s_nop 0')
            for i in range(8): e(f'v_mul_f32 v{Dr+i}, v{Dr+i}, v16')
            for i in range(4): e(f'v_cvt_pk_bf16_f32 v{OF+4*a+i}, v{Dr+2*i}, v{Dr+2*i+1}')
        e('s_waitcnt lgkmcnt(0)')
        e('s_nop 0')
        for b in range(2):
            for a in range(2):
                e(f'v_mfma_f32_32x32x16_bf16 {vr(acc(a,b),16)}, {vr(BF+4*b,4)}, {vr(OF+4*a,4)}, {vr(acc(a,b),16)}')
        issue(p)
        e('s_sub_u32 s63, s63, 1')
        e('s_cmp_eq_u32 s63, 0')
        if p<2: e('s_cbranch_scc1 K2_EP')
        else: e('s_cbranch_scc0 K2_AL')
    e('K2_EP:')
    e(f'''
    v_and_b32 v6, 31, v2
    v_mul_u32_u24 v6, 272, v6
    v_lshl_add_u32 v6, v7, 4, v6
    v_add_u32 v6, s61, v6
    s_nop 7
    ''')
    for a in range(2):
        for b in range(2):
            for g in range(4):
                off=a*32*272 + (32*b+8*g)*4
                e(f'ds_write_b128 v6, v[{acc(a,b)+4*g}:{acc(a,b)+4*g+3}] offset:{off}')
    e(f'''
    v_lshrrev_b32 v9, 3, v0
    v_and_b32 v10, 7, v0
    v_mul_u32_u24 v9, 272, v9
    v_lshl_add_u32 v9, v10, 5, v9
    s_mov_b32 s62, 0xffff0000
    s_waitcnt lgkmcnt(0)
    s_barrier
    ''')
    XR=216
    for q in range(2):
        for w in range(4):
            off=w*WLDS+q*32*272
            e(f'ds_read_b128 v[{16+8*w}:{19+8*w}], v9 offset:{off}')
            e(f'ds_read_b128 v[{20+8*w}:{23+8*w}], v9 offset:{off+16}')
        e('s_waitcnt lgkmcnt(0)')
        for i in range(8):
            e(f'v_add_f32 v{16+i}, v{16+i}, v{24+i}')
            e(f'v_add_f32 v{32+i}, v{32+i}, v{40+i}')
        for i in range(8): e(f'v_add_f32 v{16+i}, v{16+i}, v{32+i}')
        for i in range(4):
            e(f'v_lshlrev_b32 v24, 16, v{XR+4*q+i}')
            e(f'v_and_b32 v25, s62, v{XR+4*q+i}')
            e(f'v_lshlrev_b32 v26, 16, v{XR+8+i}')
            e(f'v_and_b32 v27, s62, v{XR+8+i}')
            e(f'v_add_f32 v24, v24, v26')
            e(f'v_add_f32 v25, v25, v27')
            e(f'v_add_f32 v{16+2*i}, v{16+2*i}, v24')
            e(f'v_add_f32 v{17+2*i}, v{17+2*i}, v25')
        for i in range(4): e(f'v_cvt_pk_bf16_f32 v{48+4*q+i}, v{16+2*i}, v{17+2*i}')
        e(f'buffer_store_dwordx4 v[{48+4*q}:{51+4*q}], v{11+q}, s[20:23], 0 offen')
    e('K2_END:')
    e('s_endpgm')
    return e.text()
```

```python
import sys, json
from common import *
import k1, k2
PRE=open('parallel_sum__linear_attn_block__dense_activation_gelu__prompt.s.ref').read().split('; Override launch')[0]
def build(opt):
    o=PRE
    o+='; Two launches: k1 = LN-folded qkv / ffn1 GEMMs (+phi, gelu, kv sums), k2 = output GEMM (attention finish, ffn2, residual).\n'
    o+='; @launch kernel=k1_kernel grid=(256,1,1) block=(512,1,1) lds=163840\n'
    o+='; @launch kernel=k2_kernel grid=(256,1,1) block=(256,1,1) lds=98304\n'
    if opt.get('ts'): o+='; @launch kernel=k3_kernel grid=(1,1,1) block=(256,1,1) lds=0\n'
    o+=HEADER
    o+=kernel_begin('k1_kernel')+k1.k1(opt)
    o+=kernel_begin('k2_kernel')+k2.k2(opt)
    if opt.get('ts'): o+=kernel_begin('k3_kernel')+k2.k3_ts()
    o+=RODATA+kernel_desc('k1_kernel',240,96,240)
    o+='.p2align 6\n'+kernel_desc('k2_kernel',232,96,232)
    if opt.get('ts'): o+='.p2align 6\n'+kernel_desc('k3_kernel',64,96,64)
    return o
if __name__=='__main__':
    opt=json.loads(sys.argv[2]) if len(sys.argv)>2 else {}
    open(sys.argv[1],'w').write(build(opt))
```

```python
from common import *

REC=0
RSTD=4096
CSP=4608
KVP=8192
SLOT=40960

ACC=128
CS=224
SEL=236
FA=64; FB=84
XA=104
WA=108
BIA=114
XF=64
KC=72
WF=80
T0=8
OUT=40

def acc(t,a): return ACC+(t*2+a)*16

def prologue(e,opt):
    e(f'''
    s_cmp_ge_u32 s2, 256
    s_cbranch_scc1 K1_END
    s_load_dwordx4 s[28:31], s[0:1], 0
    s_load_dwordx4 s[32:35], s[0:1], 32
    s_load_dwordx4 s[36:39], s[0:1], 72
    v_lshrrev_b32 v1, 6, v0
    v_and_b32 v2, 63, v0
    v_readfirstlane_b32 s3, v1
    s_and_b32 s8, s2, 7
    s_lshr_b32 s9, s2, 3
    s_and_b32 s10, s9, 7
    s_lshr_b32 s11, s9, 3
    s_lshr_b32 s4, s8, 2
    s_lshl_b32 s4, s4, 3
    s_add_u32 s4, s4, s10             ; rb
    s_and_b32 s5, s8, 3
    s_lshl_b32 s5, s5, 1
    s_and_b32 s12, s11, 1
    s_add_u32 s5, s5, s12
    s_lshr_b32 s7, s11, 1
    s_lshl_b32 s12, s7, 3
    s_add_u32 s5, s5, s12             ; cb
    ''')
    rot=opt.get('rot','half')
    if rot=='none': e('s_mov_b32 s6, 0')
    elif rot=='half': e('s_add_u32 s6, s10, s11\ns_and_b32 s6, s6, 1\ns_lshl_b32 s6, s6, 2')
    elif rot=='quarter': e('s_add_u32 s6, s10, s11\ns_and_b32 s6, s6, 3\ns_lshl_b32 s6, s6, 1')
    elif rot=='full': e('s_lshl_b32 s6, s11, 1\ns_add_u32 s6, s6, s10\ns_and_b32 s6, s6, 7')
    e(f'''
    s_and_b32 s12, s5, 7
    s_mul_i32 s13, s12, 6
    s_mul_i32 s14, s12, 5
    s_add_u32 s14, s14, 3
    s_min_u32 s44, s13, s14
    s_cmp_lt_u32 s12, 3
    s_cselect_b32 s45, 6, 5
    s_lshl_b32 s13, s12, 7
    s_lshl_b32 s14, s44, 6
    s_mov_b32 s40, 2752
    s_mov_b32 s15, 128
    s_cmp_eq_u32 s7, 0
    s_cselect_b32 s40, 3072, s40
    s_cselect_b32 s41, s13, s14
    s_cselect_b32 s15, 1024, s15
    s_add_u32 s42, s41, s15
    s_add_u32 s43, s42, s15
    s_mov_b32 s64, {SLOT}
    s_mov_b32 s65, {-3*SLOT & 0xffffffff:#x}
    s_waitcnt lgkmcnt(0)
    ''')
    srd(e,8,28,S*D*2)
    e(f'''
    s_cmp_eq_u32 s7, 0
    s_cselect_b32 s12, s30, s32
    s_cselect_b32 s13, s31, s33
    s_mov_b32 s14, {D*F*2}
    s_cselect_b32 s14, {D*3*D*2}, s14
    s_and_b32 s13, s13, 0xffff
    s_mov_b32 s15, 0x20000
    ''')
    srd(e,16,38,WS_SIZE)
    srd(e,20,34,F*2)
    srd(e,24,36,256)
    e('''
    s_cmp_lt_u32 s3, 4
    s_cbranch_scc1 K1_CONS
    ''')

def loader(e,opt):
    e('''
    s_and_b32 s46, s3, 3
    v_lshrrev_b32 v3, 3, v2
    v_and_b32 v4, 7, v2
    v_lshrrev_b32 v5, 4, v2
    v_xor_b32 v6, v4, v5
    v_lshlrev_b32 v6, 4, v6
    v_lshl_add_u32 v10, v3, 10, v6
    s_lshl_b32 s47, s4, 17
    s_lshl_b32 s48, s46, 15
    s_add_u32 s47, s47, s48
    v_add_u32 v10, s47, v10
    v_xor_b32 v11, 64, v10
    v_add_u32 v11, 0x2000, v11
    v_add_u32 v12, 0x4000, v10
    v_add_u32 v13, 0x4000, v11
    v_and_b32 v5, 1, v5
    v_lshlrev_b32 v5, 2, v5
    v_xor_b32 v4, v4, v5
    v_lshlrev_b32 v4, 4, v4
    s_lshl_b32 s47, s46, 4
    v_add_u32 v14, s47, v3
    v_mul_lo_u32 v14, v14, s40
    v_add_u32 v14, v14, v4
    s_lshl_b32 s47, s40, 3
    v_add_u32 v15, s47, v14
    s_lshl_b32 s54, s46, 12
    s_lshl_b32 s55, s46, 11
    s_add_u32 s55, s55, 16384
    s_lshl_b32 s56, s40, 6
    s_mov_b32 s48, s6
    s_mov_b32 s53, 0
    ''')
    def stage_addr():
        return ['s_lshl_b32 s49, s48, 7','s_mul_i32 s50, s48, s56','s_add_u32 s51, s50, s42',
                's_add_u32 s52, s50, s43','s_add_u32 s50, s50, s41',
                's_add_u32 s58, s53, s54','s_add_u32 s59, s53, s55']
    def stage_adv():
        return ['s_add_u32 s48, s48, 1','s_and_b32 s48, s48, 7',
                f's_add_u32 s53, s53, s64', f's_cmp_eq_u32 s53, {4*SLOT}','s_cselect_b32 s53, 0, s53']
    def dma():
        L=[]
        for i in range(4):
            L.append([f's_add_u32 m0, s58, {i*1024}', 's_nop 0', f'buffer_load_dwordx4 v{10+i}, s[8:11], s49 offen lds'])
        for sub in range(3):
            for h in range(2):
                L.append([f's_add_u32 m0, s59, {sub*8192+h*1024}', 's_nop 0', f'buffer_load_dwordx4 v{14+h}, s[12:15], s{50+sub} offen lds'])
        return L
    e('s_mov_b32 s47, 4')
    e('K1_LI:')
    for x in stage_addr(): e(x)
    for g in dma():
        for x in g: e(x)
    for x in stage_adv(): e(x)
    e('''
    s_sub_u32 s47, s47, 1
    s_cmp_lg_u32 s47, 0
    s_cbranch_scc1 K1_LI
    v_and_b32 v3, 31, v2
    v_lshrrev_b32 v4, 5, v2
    v_lshrrev_b32 v5, 1, v3
    v_and_b32 v5, 7, v5
    v_lshlrev_b32 v4, 2, v4
    v_xor_b32 v5, v5, v4
    v_lshlrev_b32 v5, 4, v5
    v_lshl_add_u32 v16, v3, 7, v5
    s_lshl_b32 s47, s46, 12
    v_add_u32 v16, s47, v16
    v_xor_b32 v17, 16, v16
    v_xor_b32 v18, 32, v16
    v_xor_b32 v19, 48, v16
    v_mov_b32 v36, 0
    v_mov_b32 v37, 0
    v_mov_b32 v38, 0
    v_mov_b32 v39, 0
    s_mov_b32 s60, 0xffff0000
    s_mov_b32 s61, 0
    s_mov_b32 s62, 0
    ''')
    def stats_reads(): return [f'ds_read_b128 v[{20+4*j}:{23+4*j}], v{16+j}' for j in range(4)]
    def stats_valu():
        L=[]
        for d in range(16):
            t=40+2*(d%4)
            L+= [f'v_lshlrev_b32 v{t}, 16, v{20+d}', f'v_and_b32 v{t+1}, s60, v{20+d}',
                 f'v_add_f32 v36, v36, v{t}', f'v_add_f32 v37, v37, v{t+1}',
                 f'v_fmac_f32 v38, v{t}, v{t}', f'v_fmac_f32 v39, v{t+1}, v{t+1}']
        return L
    def stats_adv():
        return ['s_add_u32 s61, s61, s64', f's_cmp_eq_u32 s61, {4*SLOT}', 's_cselect_b32 s63, s65, s64', 's_cselect_b32 s61, 0, s61']+\
               [f'v_add_u32 v{16+j}, s63, v{16+j}' for j in range(4)]
    e('s_waitcnt vmcnt(30)')
    e('K1_SO:')
    e('s_barrier')
    for x in stats_reads(): e(x)
    e('s_waitcnt lgkmcnt(0)')
    for x in stats_valu(): e(x)
    for x in stats_adv(): e(x)
    e('''
    s_cmp_eq_u32 s62, 0
    s_cbranch_scc1 K1_LM0
    s_cmp_eq_u32 s62, 3
    s_cbranch_scc1 K1_LDONE
    s_add_u32 s62, s62, 1
    s_cmp_eq_u32 s62, 2
    s_cbranch_scc1 K1_W10
    s_waitcnt vmcnt(0)
    s_branch K1_SO
    K1_W10:
    s_waitcnt vmcnt(10)
    s_branch K1_SO
    K1_LM0:
    s_mov_b32 s47, 4
    K1_LM:
    s_waitcnt vmcnt(20)
    s_barrier
    ''')
    for x in stats_reads(): e(x)
    for x in stage_addr(): e(x)
    g=dma(); sv=stats_valu()
    for x in g[0]: e(x)
    e('s_waitcnt lgkmcnt(0)')
    k=0
    for i in range(1,10):
        for x in sv[k:k+10]: e(x)
        k+=10
        for x in g[i]: e(x)
    for x in sv[k:]: e(x)
    for x in stage_adv(): e(x)
    for x in stats_adv(): e(x)
    e(f'''
    s_sub_u32 s47, s47, 1
    s_cmp_lg_u32 s47, 0
    s_cbranch_scc1 K1_LM
    s_waitcnt vmcnt(20)
    s_mov_b32 s62, 1
    s_branch K1_SO
    K1_LDONE:
    v_add_f32 v36, v36, v37
    v_add_f32 v38, v38, v39
    v_mov_b32 v37, v36
    v_mov_b32 v39, v38
    s_nop 1
    v_permlane32_swap_b32 v36, v37
    v_permlane32_swap_b32 v38, v39
    v_add_f32 v36, v36, v37
    v_add_f32 v38, v38, v39
    v_mul_f32 v36, {hx(-1.0/512)}, v36          ; -mean
    v_mul_f32 v38, {hx(1.0/512)}, v38
    v_fma_f32 v38, -v36, v36, v38               ; var
    v_max_f32 v38, 0, v38
    v_add_f32 v38, {hx(1e-5)}, v38
    v_rsq_f32 v44, v38                          ; rstd
    v_cvt_pk_bf16_f32 v40, v36, v36
    v_mul_f32 v45, v38, v44                     ; sigma
    v_lshlrev_b32 v40, 16, v40
    v_sub_f32 v41, v36, v40
    v_cvt_pk_bf16_f32 v40, v40, v41             ; d0
    v_mov_b32 v41, v40                          ; d1
    v_cvt_pk_bf16_f32 v42, v45, v45
    v_lshlrev_b32 v42, 16, v42
    v_sub_f32 v43, v45, v42
    v_cvt_pk_bf16_f32 v42, v42, v43             ; d2
    v_mov_b32 v43, 0
    v_mul_f32 v46, v44, v44
    v_mul_f32 v46, v46, v44
    v_mul_f32 v46, {hx(GC2)}, v46               ; cA
    v_mul_f32 v47, {hx(GC1)}, v44               ; cB
    v_and_b32 v3, 31, v2
    s_lshl_b32 s47, s46, 5
    v_add_u32 v3, s47, v3                       ; row
    v_lshlrev_b32 v4, 5, v3
    ds_write_b128 v4, v[40:43] offset:{REC}
    ds_write_b128 v4, v[44:47] offset:{REC+16}
    v_lshlrev_b32 v4, 2, v3
    ds_write_b32 v4, v44 offset:{RSTD}
    s_cmp_lg_u32 s7, 0
    s_cbranch_scc1 K1_LE1
    s_cmp_lg_u32 s3, 4
    s_cbranch_scc1 K1_LE1
    s_lshl_b32 s47, s5, 2
    v_mov_b32 v4, s47
    s_mov_b32 s48, 0x40000
    K1_POLL:
    buffer_load_dword v5, v4, s[24:27], 0 offen sc1
    s_waitcnt vmcnt(0)
    v_readfirstlane_b32 s47, v5
    s_sub_u32 s48, s48, 1
    s_cmp_lg_u32 s47, 0
    s_cbranch_scc1 K1_LE1
    s_sleep 4
    s_cmp_lg_u32 s48, 0
    s_cbranch_scc1 K1_POLL
    K1_LE1:
    s_waitcnt lgkmcnt(0)
    s_barrier
    s_cmp_lg_u32 s7, 0
    s_cbranch_scc1 K1_END
    s_branch K1_KVRED
    ''')

def cons_setup(e,opt):
    e('K1_CONS:')
    e(f'''
    s_and_b32 s46, s3, 1          ; sh
    s_lshr_b32 s47, s3, 1         ; nh
    s_cmp_lg_u32 s7, 0
    s_cbranch_scc1 K1_NOZ
    s_cmp_lg_u32 s4, 0
    s_cbranch_scc1 K1_NOZ
    s_cmp_lg_u32 s3, 0
    s_cbranch_scc1 K1_NOZ
    v_mov_b32 v8, 0
    v_mov_b32 v9, 0
    v_mov_b32 v10, 0
    v_mov_b32 v11, 0
    v_lshlrev_b32 v4, 4, v2
    s_mul_i32 s48, s5, 4352
    s_add_u32 s48, s48, {WS_KV}
    buffer_store_dwordx4 v[8:11], v4, s[16:19], s48 offen sc1
    buffer_store_dwordx4 v[8:11], v4, s[16:19], s48 offen offset:1024 sc1
    buffer_store_dwordx4 v[8:11], v4, s[16:19], s48 offen offset:2048 sc1
    buffer_store_dwordx4 v[8:11], v4, s[16:19], s48 offen offset:3072 sc1
    s_mov_b32 exec_lo, 0xffff
    s_mov_b32 exec_hi, 0
    s_add_u32 s48, s48, 4096
    buffer_store_dwordx4 v[8:11], v4, s[16:19], s48 offen sc1
    s_waitcnt vmcnt(0)
    s_mov_b32 exec_lo, 1
    v_mov_b32 v5, 1
    s_lshl_b32 s48, s5, 2
    v_mov_b32 v4, s48
    buffer_store_dword v5, v4, s[24:27], 0 offen sc1
    s_mov_b64 exec, -1
    K1_NOZ:
    v_and_b32 v3, 31, v2             ; r32
    v_lshrrev_b32 v4, 5, v2          ; hi
    s_mul_i32 s48, s47, 3
    s_add_u32 s48, s48, s44
    s_lshl_b32 s49, s48, 6
    v_lshl_add_u32 v5, v3, 1, s49
    buffer_load_ushort v{BIA}, v5, s[20:23], 0 offen
    buffer_load_ushort v{BIA+1}, v5, s[20:23], 0 offen offset:64
    buffer_load_ushort v{BIA+2}, v5, s[20:23], 0 offen offset:128
    v_lshrrev_b32 v5, 1, v3
    v_and_b32 v5, 7, v5
    v_xor_b32 v5, v5, v4
    v_lshlrev_b32 v5, 4, v5
    v_lshl_add_u32 v5, v3, 7, v5
    s_lshl_b32 s49, s46, 13
    v_add_u32 v5, s49, v5
    s_lshl_b32 s49, s46, 5
    v_xor_b32 v{XA}, s49, v5
    v_xor_b32 v{XA+1}, 32, v5
    v_xor_b32 v{XA+1}, s49, v{XA+1}
    v_xor_b32 v{XA+2}, 64, v{XA}
    v_xor_b32 v{XA+3}, 64, v{XA+1}
    v_and_b32 v6, 15, v2
    v_lshrrev_b32 v6, 2, v6
    v_lshl_add_u32 v6, v4, 3, v6
    v_lshlrev_b32 v6, 7, v6          ; (8hi + i>>2)*128
    v_and_b32 v7, 3, v2
    v_lshlrev_b32 v7, 3, v7
    v_bfe_u32 v8, v2, 4, 1
    v_lshl_add_u32 v7, v8, 5, v7     ; g16*32 + (i&3)*8
    v_bfe_u32 v8, v2, 3, 1
    v_lshlrev_b32 v8, 6, v8          ; 64*bit3
    s_lshl_b32 s50, s46, 11          ; sh*2048
    ''')
    for t in range(3):
        e(f'''
        s_mul_i32 s51, s47, 3
        s_add_u32 s51, s51, {t}
        s_lshr_b32 s52, s51, 1
        s_and_b32 s51, s51, 1
        s_cmp_eq_u32 s7, 0
        s_cselect_b32 s52, {t}, s52
        s_cselect_b32 s51, s47, s51
        s_lshl_b32 s52, s52, 13
        s_add_u32 s52, s52, 16384
        s_lshl_b32 s51, s51, 6
        v_add_u32 v9, s51, v7
        v_xor_b32 v9, v9, v8
        v_add3_u32 v9, v9, v6, s52
        v_add_u32 v{WA+2*t}, s50, v9
        v_subrev_u32 v{WA+2*t+1}, s50, v9
        ''')
    for r in range(ACC,ACC+96+12): e(f'v_mov_b32 v{r}, 0')
    for r in range(FB,FB+20): e(f'v_mov_b32 v{r}, 0')
    e(f'''
    v_lshrrev_b32 v5, 4, v2
    v_xor_b32 v5, v5, v2
    v_and_b32 v5, 1, v5
    v_cmp_eq_u32 vcc, 0, v5
    v_mov_b32 v6, 0x3f803f80
    s_nop 0
    v_cndmask_b32 v{SEL}, 0, v6, vcc
    v_mov_b32 v{SEL+1}, v{SEL}
    v_mov_b32 v{SEL+2}, v{SEL}
    v_mov_b32 v{SEL+3}, v{SEL}
    s_mov_b32 s48, 8
    s_mov_b32 s49, 0
    s_cmp_lg_u32 s7, 0
    s_cbranch_scc1 K1_CF
    ''')

def reads(p,buf):
    par=p&1
    L=[f'ds_read_b128 {vr(buf,4)}, v{XA+p}']
    L+=[f'ds_read_b64_tr_b16 {vr(buf+8,2)}, v{WA+par} offset:{p*2048}', f'ds_read_b64_tr_b16 {vr(buf+10,2)}, v{WA+par} offset:{p*2048+512}']
    L+=[f'ds_read_b128 {vr(buf+4,4)}, v{XA+p} offset:4096']
    for t in (1,2):
        L+=[f'ds_read_b64_tr_b16 {vr(buf+8+4*t,2)}, v{WA+2*t+par} offset:{p*2048}', f'ds_read_b64_tr_b16 {vr(buf+10+4*t,2)}, v{WA+2*t+par} offset:{p*2048+512}']
    return L
def mfmas(buf,ffn,cs):
    L=[]
    for t in range(3):
        for a in range(2):
            X=vr(buf+4*a,4); W=vr(buf+8+4*t,4); A=vr(acc(t,a),16)
            if ffn or t==0: L.append(f'v_mfma_f32_32x32x16_bf16 {A}, {W}, {X}, {A}')
            else: L.append(f'v_mfma_f32_32x32x16_bf16 {A}, {X}, {W}, {A}')
        if cs: L.append(f'v_mfma_f32_16x16x32_bf16 {vr(CS+4*t,4)}, {vr(SEL,4)}, {vr(buf+8+4*t,4)}, {vr(CS+4*t,4)}')
    return L
def mainloop(e,ffn,tag):
    e(f'K1_ML{tag}:')
    e('s_barrier')
    for x in interleave(mfmas(FB,ffn,False), reads(0,FA), [3,3,2,0,0,0]): e(x)
    e('s_waitcnt lgkmcnt(0)')
    for x in interleave(mfmas(FA,ffn,True), reads(1,FB), [3,3,2]): e(x)
    e('s_waitcnt lgkmcnt(0)')
    for x in interleave(mfmas(FB,ffn,False), reads(2,FA), [3,3,2]): e(x)
    e('s_waitcnt lgkmcnt(0)')
    adv=['s_add_u32 s49, s49, s64', f's_cmp_eq_u32 s49, {4*SLOT}', 's_cselect_b32 s50, s65, s64', 's_cselect_b32 s49, 0, s49']
    m=mfmas(FA,ffn,True)
    for x in interleave(m[:4], reads(3,FB)+adv, [3,3,2,4]): e(x)
    upd=[f'v_add_u32 v{XA+i}, s50, v{XA+i}' for i in range(4)]+[f'v_add_u32 v{WA+i}, s50, v{WA+i}' for i in range(6)]
    for x in interleave(m[4:], upd, [2,2,2,2,2]): e(x)
    e(f'''
    s_waitcnt lgkmcnt(0)
    s_sub_u32 s48, s48, 1
    s_cmp_lg_u32 s48, 0
    s_cbranch_scc1 K1_ML{tag}
    ''')
    for x in mfmas(FB,ffn,False): e(x)

def post(e,ffn):
    e(f'''
    v_and_b32 v3, 15, v2
    s_mul_i32 s48, s46, 6
    s_mul_i32 s49, s47, 3
    s_add_u32 s48, s48, s49
    s_lshl_b32 s48, s48, 7
    v_lshl_add_u32 v3, v3, 2, s48
    ''')
    for t in range(3):
        e(f'ds_write_b32 v3, v{CS+4*t} offset:{CSP+t*128}')
        e(f'ds_write_b32 v3, v{CS+4*t+1} offset:{CSP+t*128+64}')
    e(f'''
    s_waitcnt lgkmcnt(0)
    s_barrier
    v_and_b32 v3, 31, v2
    s_lshl_b32 s48, s46, 6
    v_add_u32 v4, s48, v3
    v_lshlrev_b32 v4, 5, v4
    ds_read_b128 v[{XF}:{XF+3}], v4 offset:{REC}
    ds_read_b128 v[{XF+4}:{XF+7}], v4 offset:{REC+1024}
    ds_read_b128 v[{KC}:{KC+3}], v4 offset:{REC+16}
    ds_read_b128 v[{KC+4}:{KC+7}], v4 offset:{REC+1024+16}
    s_mul_i32 s49, s47, 384
    v_lshl_add_u32 v5, v3, 2, s49
    ''')
    for t in range(3):
        e(f'ds_read_b32 v{8+2*t}, v5 offset:{CSP+t*128}')
        e(f'ds_read_b32 v{9+2*t}, v5 offset:{CSP+768+t*128}')
    e('''
    v_cmp_gt_u32 vcc, 32, v2
    s_nop 0
    s_waitcnt vmcnt(0) lgkmcnt(0)
    ''')
    for r in range(XF,XF+8):
        if (r-XF)%4!=3: e(f'v_cndmask_b32 v{r}, 0, v{r}, vcc')
    for t in range(3):
        w=WF+4*t
        e(f'''
        v_add_f32 v{8+2*t}, v{8+2*t}, v{9+2*t}
        v_cvt_pk_bf16_f32 v{w}, v{8+2*t}, v{8+2*t}
        v_lshlrev_b32 v{9+2*t}, 16, v{w}
        v_sub_f32 v{9+2*t}, v{8+2*t}, v{9+2*t}
        v_cvt_pk_bf16_f32 v{w+1}, v{9+2*t}, v{9+2*t}
        ''')
        if ffn:
            e(f'v_lshlrev_b32 v{w+2}, 16, v{BIA+t}')
            e(f'v_or_b32 v{w+2}, v{w+2}, v{BIA+t}')
        else:
            e(f'v_mov_b32 v{w+2}, 0')
        e(f'v_mov_b32 v{w+3}, 0')
    e('s_nop 1')
    for t in range(3):
        for a in range(2):
            A=vr(acc(t,a),16)
            if ffn or t==0: e(f'v_mfma_f32_32x32x16_bf16 {A}, {vr(WF+4*t,4)}, {vr(XF+4*a,4)}, {A}')
            else: e(f'v_mfma_f32_32x32x16_bf16 {A}, {vr(XF+4*a,4)}, {vr(WF+4*t,4)}, {A}')

def pk(op,d,a,b,c=None,sel=''):
    s=f'v_pk_{op}_f32 v[{d}:{d+1}], v[{a}:{a+1}], v[{b}:{b+1}]'
    if c is not None: s+=f', v[{c}:{c+1}]'
    return s+(' '+sel if sel else '')

def gelu_tile(t,a):
    A=acc(t,a); rs,cA=KC+4*a,KC+4*a+2
    L=[]
    for g in range(2):
        b=A+8*g
        R=range(0,8,2)
        for i in R: L.append(pk('mul',T0+i,b+i,b+i))
        for i in R: L.append(pk('fma',T0+i,T0+i,cA,cA,'op_sel:[0,0,1] op_sel_hi:[1,0,1]'))
        for i in R: L.append(pk('mul',T0+i,T0+i,b+i))
        for i in range(8): L.append(f'v_exp_f32 v{T0+i}, v{T0+i}')
        for i in R: L.append(pk('fma',T0+i,T0+i,rs,rs,'op_sel:[0,1,1] op_sel_hi:[1,1,1]'))
        for i in range(8): L.append(f'v_rcp_f32 v{T0+i}, v{T0+i}')
        L.append('s_nop 0')
        for i in R: L.append(pk('mul',T0+i,T0+i,b+i))
        for i in R: L.append(f'v_cvt_pk_bf16_f32 v{OUT+4*g+i//2}, v{T0+i}, v{T0+i+1}')
    return L

def store2(e,so,off,opt,tmp=53):
    fl=opt.get('stflag','')
    if off+1024>4095:
        e(f's_add_u32 s{tmp}, s{so}, {off}')
        so=tmp; off=0
    e(f'buffer_store_dwordx4 v[{OUT}:{OUT+3}], v4, s[16:19], s{so} offen offset:{off} {fl}')
    e(f'buffer_store_dwordx4 v[{OUT+4}:{OUT+7}], v4, s[16:19], s{so} offen offset:{off+1024} {fl}')

def ffn_path(e,opt):
    e('K1_CF:')
    mainloop(e,True,'F')
    post(e,True)
    e(f'''
    v_lshlrev_b32 v4, 4, v2
    s_lshl_b32 s48, s4, 2
    s_lshl_b32 s49, s46, 1
    s_add_u32 s48, s48, s49           ; s-tile (a=0)
    s_mul_i32 s48, s48, 86
    s_mul_i32 s49, s47, 3
    s_add_u32 s49, s49, s44
    s_lshl_b32 s50, s49, 1
    s_add_u32 s48, s48, s50
    s_lshl_b32 s48, s48, 10
    s_add_u32 s51, s48, {86*1024}     ; a=1
    s_mul_i32 s52, s47, 3
    s_sub_u32 s52, s45, s52
    ''')
    for t in range(3):
        if t==2:
            e('s_cmp_lt_u32 s52, 3')
            e('s_cbranch_scc1 K1_END')
        for a in range(2):
            for x in gelu_tile(t,a): e(x)
            store2(e, 48 if a==0 else 51, t*2048, opt)
    e('s_endpgm')

def qkv_path(e,opt):
    mainloop(e,False,'Q')
    post(e,False)
    RS=48
    e(f'''
    v_lshlrev_b32 v4, 4, v2
    s_lshl_b32 s48, s4, 2
    s_lshl_b32 s49, s46, 1
    s_add_u32 s48, s48, s49           ; s-tile a=0
    s_lshl_b32 s48, s48, 5
    s_lshl_b32 s49, s5, 2
    s_lshl_b32 s50, s47, 1
    s_add_u32 s49, s49, s50
    s_add_u32 s48, s48, s49
    s_lshl_b32 s48, s48, 10
    s_add_u32 s48, s48, {WS_PQ}
    s_add_u32 s51, s48, {32*1024}
    s_mov_b32 s54, {hx(LOG2E)}
    s_mov_b32 s55, {hx(1e-6)}
    v_lshrrev_b32 v5, 5, v2
    v_lshlrev_b32 v5, 4, v5
    s_lshl_b32 s49, s46, 8
    v_add_u32 v5, s49, v5
    v_mul_f32 v6, s54, v{KC}
    v_mul_f32 v7, s54, v{KC+4}        ; a=1
    ''')
    for a in range(2):
        A=acc(0,a); rs=KC+4*a; rl=6+a
        for g in range(2):
            b=A+8*g
            for i in range(8): e(f'v_mul_f32 v{T0+i}, v{b+i}, v{rl}')
            for i in range(8): e(f'v_min_f32 v{T0+i}, 0, v{T0+i}')
            for i in range(8): e(f'v_exp_f32 v{T0+i}, v{T0+i}')
            for i in range(8): e(f'v_max_f32 v{T0+8+i}, 0, v{b+i}')
            for i in range(8): e(f'v_add_f32 v{T0+i}, s55, v{T0+i}')
            for i in range(8): e(f'v_fmac_f32 v{T0+i}, v{T0+8+i}, v{rs}')
            for i in range(0,8,2): e(f'v_cvt_pk_bf16_f32 v{OUT+4*g+i//2}, v{T0+i}, v{T0+i+1}')
        store2(e, 48 if a==0 else 51, 0, opt)
    KV=acc(0,0); Z=acc(0,1)
    PK=96; VF=104
    ONE=112
    for r in range(4): e(f'v_mov_b32 v{ONE+r}, 0x3f803f80')
    for a in range(2):
        for g in range(4): e(f'ds_read_b128 v[{RS+4*g}:{RS+4*g+3}], v5 offset:{RSTD+a*128+g*32}')
        e('s_waitcnt lgkmcnt(0)')
        K=acc(1,a); V=acc(2,a)
        for g in range(2):
            b=K+8*g; r0=RS+8*g
            for i in range(8): e(f'v_mul_f32 v{T0+8+i}, v{b+i}, v{r0+i}')
            for i in range(8): e(f'v_mul_f32 v{T0+i}, s54, v{T0+8+i}')
            for i in range(8): e(f'v_min_f32 v{T0+i}, 0, v{T0+i}')
            for i in range(8): e(f'v_exp_f32 v{T0+i}, v{T0+i}')
            for i in range(8): e(f'v_max_f32 v{T0+8+i}, 0, v{T0+8+i}')
            for i in range(8): e(f'v_add_f32 v{T0+i}, s55, v{T0+i}')
            for i in range(8): e(f'v_add_f32 v{T0+i}, v{T0+i}, v{T0+8+i}')
            for i in range(0,8,2): e(f'v_cvt_pk_bf16_f32 v{PK+4*g+i//2}, v{T0+i}, v{T0+i+1}')
            bv=V+8*g
            for i in range(8): e(f'v_mul_f32 v{T0+i}, v{bv+i}, v{r0+i}')
            for i in range(0,8,2): e(f'v_cvt_pk_bf16_f32 v{VF+4*g+i//2}, v{T0+i}, v{T0+i+1}')
        e('s_nop 1')
        for g in range(2):
            c0 = '0' if (a==0 and g==0) else vr(KV,16)
            z0 = '0' if (a==0 and g==0) else vr(Z,16)
            e(f'v_mfma_f32_32x32x16_bf16 {vr(KV,16)}, {vr(PK+4*g,4)}, {vr(VF+4*g,4)}, {c0}')
            e(f'v_mfma_f32_32x32x16_bf16 {vr(Z,16)}, {vr(PK+4*g,4)}, {vr(ONE,4)}, {z0}')
    e(f'''
    v_and_b32 v8, 15, v2
    v_lshrrev_b32 v9, 5, v2
    v_mul_u32_u24 v9, 17, v9
    v_add_u32 v8, v8, v9
    v_lshlrev_b32 v8, 5, v8           ; (hiD*17+e)*32
    v_bfe_u32 v9, v2, 4, 1
    v_mul_u32_u24 v9, 1088, v9
    v_add_u32 v8, v8, v9
    s_mul_i32 s48, s46, 4352
    s_mul_i32 s49, s47, 2176
    s_add_u32 s48, s48, s49
    v_add_u32 v8, s48, v8
    v_lshrrev_b32 v9, 5, v2
    v_mul_u32_u24 v9, {17*32}, v9
    v_add_u32 v9, s48, v9
    s_nop 7
    s_mov_b32 exec_lo, 0x0000ffff
    s_mov_b32 exec_hi, 0x0000ffff
    ds_write_b128 v8, v[{KV}:{KV+3}] offset:{KVP}
    ds_write_b128 v8, v[{KV+4}:{KV+7}] offset:{KVP+16}
    s_mov_b32 exec_lo, 0xffff0000
    s_mov_b32 exec_hi, 0xffff0000
    ds_write_b128 v8, v[{KV+8}:{KV+11}] offset:{KVP}
    ds_write_b128 v8, v[{KV+12}:{KV+15}] offset:{KVP+16}
    s_mov_b32 exec_lo, 1
    s_mov_b32 exec_hi, 1
    ds_write_b128 v9, v[{Z}:{Z+3}] offset:{KVP+512}
    ds_write_b128 v9, v[{Z+4}:{Z+7}] offset:{KVP+512+16}
    ds_write_b128 v9, v[{Z+8}:{Z+11}] offset:{KVP+512+1088}
    ds_write_b128 v9, v[{Z+12}:{Z+15}] offset:{KVP+512+1088+16}
    s_mov_b64 exec, -1
    K1_KVRED:
    s_waitcnt lgkmcnt(0)
    s_barrier
    ''')
    e(f'''
    v_lshlrev_b32 v3, 2, v0
    ds_read_b32 v8, v3 offset:{KVP}
    ds_read_b32 v9, v3 offset:{KVP+4352}
    ds_read_b32 v10, v3 offset:{KVP+2048}
    ds_read_b32 v11, v3 offset:{KVP+2048+4352}
    s_mul_i32 s48, s5, 4352
    s_add_u32 s48, s48, {WS_KV}
    s_waitcnt lgkmcnt(0)
    v_add_f32 v8, v8, v9
    v_add_f32 v10, v10, v11
    buffer_atomic_add_f32 v8, v3, s[16:19], s48 offen
    buffer_atomic_add_f32 v10, v3, s[16:19], s48 offen offset:2048
    s_cmp_lg_u32 s3, 0
    s_cbranch_scc1 K1_END
    ds_read_b32 v8, v3 offset:{KVP+4096}
    ds_read_b32 v9, v3 offset:{KVP+4096+4352}
    s_add_u32 s48, s48, 4096
    s_waitcnt lgkmcnt(0)
    v_add_f32 v8, v8, v9
    buffer_atomic_add_f32 v8, v3, s[16:19], s48 offen
    ''')

def stamp_end(e):
    e(f'''
    s_memrealtime s[68:69]
    s_waitcnt lgkmcnt(0)
    s_lshl_b32 s70, s2, 3
    s_add_u32 s70, s70, s3
    s_lshl_b32 s70, s70, 3
    s_add_u32 s70, s70, {WS_TS}
    v_mov_b32 v8, s66
    v_mov_b32 v9, s68
    v_mov_b32 v10, 0
    buffer_store_dwordx2 v[8:9], v10, s[72:75], s70 offen
    ''')
def k1(opt):
    e=E()
    if opt.get('ts'):
        e('s_memrealtime s[66:67]')
    prologue(e,opt)
    if opt.get('ts'):
        pass
    loader(e,opt)
    cons_setup(e,opt)
    qkv_path(e,opt)
    e('K1_END:')
    e('s_endpgm')
    ffn_path(e,opt)
    t=e.text()
    if opt.get('ts'):
        e2=E(); stamp_end(e2); e2('s_endpgm')
        t=t.replace('s_cbranch_scc1 K1_END\n    s_load_dwordx4 s[28:31]','s_cbranch_scc1 K1_EXIT\n    s_load_dwordx4 s[28:31]')
        t=t.replace('K1_END:\n    s_endpgm','K1_END:\n'+e2.text()+'K1_EXIT:\n    s_endpgm',1)
        i=t.rindex('s_endpgm'); t=t[:i]+'s_branch K1_END\n'
        e3=E(); srd(e3,72,38,WS_TS+256*8*8)
        t=t.replace('    s_cmp_lt_u32 s3, 4\n    s_cbranch_scc1 K1_CONS', e3.text()+'    s_cmp_lt_u32 s3, 4\n    s_cbranch_scc1 K1_CONS')
    return t
```

```python
from common import *
ACC=128
AR=64
BF=88
KVF=96
D1=100
D1B=192
OF=208
KT=16
WLDS=17408
BRING=0
KVL=6144
def acc(a,b): return ACC+(b*2+a)*16

def k2(opt):
    e=E()
    if opt.get('ts'): e('s_memrealtime s[66:67]')
    e(f'''
    s_cmp_ge_u32 s2, 256
    s_cbranch_scc1 K2_EXIT
    s_load_dwordx2 s[28:29], s[0:1], 0
    s_load_dwordx2 s[30:31], s[0:1], 16
    s_load_dwordx4 s[32:35], s[0:1], 48
    s_load_dwordx2 s[36:37], s[0:1], 64
    s_load_dwordx2 s[38:39], s[0:1], 80
    v_lshrrev_b32 v1, 6, v0
    v_and_b32 v2, 63, v0
    v_readfirstlane_b32 s3, v1
    s_and_b32 s8, s2, 7
    s_lshr_b32 s9, s2, 3
    s_and_b32 s4, s9, 3
    s_lshl_b32 s8, s8, 2
    s_add_u32 s4, s4, s8
    s_lshr_b32 s5, s9, 2              ; cb2 0..7
    s_mul_i32 s40, s3, 21
    s_add_u32 s40, s40, 3
    s_cmp_eq_u32 s3, 0
    s_cselect_b32 s40, 0, s40         ; f0
    s_cselect_b32 s41, 24, 21         ; nF
    s_mul_i32 s42, s3, 9
    s_sub_u32 s42, s42, 3
    s_cmp_eq_u32 s3, 0
    s_cselect_b32 s42, 0, s42         ; h0
    s_cselect_b32 s43, 6, 9
    s_cmp_eq_u32 s3, 3
    s_cselect_b32 s43, 8, s43         ; nH
    ''')
    if opt.get('rot2','on')=='on':
        e('s_mul_i32 s44, s5, s41\ns_lshr_b32 s44, s44, 3')
    else:
        e('s_mov_b32 s44, 0')
    e(f'''
    s_lshl_b32 s45, s4, 1             ; s-tile a=0
    s_mul_i32 s46, s45, 86
    s_add_u32 s47, s40, s44
    s_add_u32 s48, s46, s47
    s_lshl_b32 s48, s48, 10
    s_lshl_b32 s49, s47, 14
    s_sub_u32 s50, s41, s44
    s_add_u32 s51, s46, s40
    s_lshl_b32 s51, s51, 10
    s_lshl_b32 s52, s40, 14
    s_mov_b32 s53, s44
    s_lshl_b32 s54, s45, 5
    s_add_u32 s54, s54, s42
    s_lshl_b32 s54, s54, 10
    s_add_u32 s54, s54, {WS_PQ}
    s_lshl_b32 s55, s42, 14
    s_mov_b32 s56, s43
    s_mov_b32 s57, {86*1024}
    s_waitcnt lgkmcnt(0)
    ''')
    srd(e,8,38,WS_SIZE)
    srd(e,12,32,F*D*2)
    srd(e,16,28,S*D*2)
    srd(e,20,36,S*D*2)
    srd(e,24,34,D*2)
    e(f'''
    s_mov_b32 s58, s30
    s_and_b32 s59, s31, 0xffff
    s_mov_b32 s60, 0
    s_mul_i32 s61, s3, {WLDS}
    v_lshlrev_b32 v3, 4, v2
    v_lshrrev_b32 v4, 3, v2
    v_and_b32 v5, 7, v2
    v_bfe_u32 v6, v2, 4, 1
    v_lshlrev_b32 v6, 2, v6
    v_xor_b32 v5, v5, v6
    v_lshlrev_b32 v5, 4, v5
    v_lshl_add_u32 v4, v4, 10, v5
    s_lshl_b32 s62, s5, 7
    v_add_u32 v4, s62, v4
    v_add_u32 v5, 0x2000, v4          ; rows 8..15
    v_and_b32 v6, 31, v2
    v_min_u32 v6, 16, v6
    v_lshrrev_b32 v7, 5, v2
    v_mul_u32_u24 v8, 17, v7
    v_add_u32 v6, v6, v8
    v_lshlrev_b32 v6, 5, v6
    s_mul_i32 s62, s42, 1088
    s_add_u32 s62, s62, {WS_KV}
    ''')
    KT=16
    for h in range(9):
        e(f'buffer_load_dwordx4 v[{KT+8*h}:{KT+8*h+3}], v6, s[8:11], s62 offen')
        e(f'buffer_load_dwordx4 v[{KT+8*h+4}:{KT+8*h+7}], v6, s[8:11], s62 offen offset:16')
        if h<8: e('s_add_u32 s62, s62, 1088')
    XR=216
    e(f'''
    v_lshrrev_b32 v9, 3, v0
    v_and_b32 v10, 7, v0
    v_lshlrev_b32 v10, 4, v10
    s_lshl_b32 s62, s4, 16            ; rb2*64*1024
    s_lshl_b32 s63, s5, 7
    s_add_u32 s62, s62, s63
    v_lshl_add_u32 v11, v9, 10, v10
    v_add_u32 v11, s62, v11
    buffer_load_dwordx4 v[{XR}:{XR+3}], v11, s[16:19], 0 offen
    v_add_u32 v12, 0x8000, v11
    buffer_load_dwordx4 v[{XR+4}:{XR+7}], v12, s[16:19], 0 offen
    v_add_u32 v13, s63, v10
    buffer_load_dwordx4 v[{XR+8}:{XR+11}], v13, s[24:27], 0 offen
    ''')
    e(f'''
    v_and_b32 v14, 15, v2
    v_lshrrev_b32 v14, 2, v14
    v_lshl_add_u32 v14, v7, 2, v14     ; 4hi + (i>>2)
    v_lshlrev_b32 v14, 7, v14
    v_and_b32 v15, 3, v2
    v_lshlrev_b32 v15, 3, v15
    v_bfe_u32 v8, v2, 4, 1
    v_lshl_add_u32 v15, v8, 5, v15
    v_bfe_u32 v8, v2, 3, 1
    v_lshlrev_b32 v8, 6, v8
    v_xor_b32 v15, v15, v8
    v_add3_u32 v14, v14, v15, s61      ; tile b=0
    v_xor_b32 v15, 64, v14
    ''')
    for r in range(ACC,ACC+64): e(f'v_mov_b32 v{r}, 0')
    e('s_waitcnt vmcnt(3)')
    e(f'v_add_u32 v8, s61, v3')
    for h in range(9):
        for i in range(4):
            e(f'v_cvt_pk_bf16_f32 v{KT+8*h+i}, v{KT+8*h+2*i}, v{KT+8*h+2*i+1}')
        e(f'ds_write_b128 v8, v[{KT+8*h}:{KT+8*h+3}] offset:{KVL+h*1024}')
    e('s_waitcnt lgkmcnt(0)')
    def issue(p):
        lab=e.label('K2_SK')
        L=[]
        e(f's_cmp_eq_u32 s50, 0')
        e(f's_cbranch_scc1 {lab}')
        e(f'buffer_load_dwordx4 v[{AR+8*p}:{AR+8*p+3}], v3, s[8:11], s48 offen')
        e(f's_add_u32 s62, s48, s57')
        e(f'buffer_load_dwordx4 v[{AR+8*p+4}:{AR+8*p+7}], v3, s[8:11], s62 offen')
        e(f's_add_u32 m0, s61, {BRING+p*2048}')
        e(f's_add_u32 s48, s48, 1024')
        e(f'buffer_load_dwordx4 v4, s[12:15], s49 offen lds')
        e(f's_add_u32 m0, s61, {BRING+p*2048+1024}')
        e(f's_sub_u32 s50, s50, 1')
        e(f'buffer_load_dwordx4 v5, s[12:15], s49 offen lds')
        e(f's_add_u32 s49, s49, 16384')
        e(f's_cmp_lg_u32 s50, 0')
        e(f's_cbranch_scc1 {lab}')
        lab2=e.label('K2_SC'); lab3=e.label('K2_SD')
        e(f'''
        s_add_u32 s60, s60, 1
        s_cmp_eq_u32 s60, 1
        s_cbranch_scc0 {lab2}
        s_mov_b32 s48, s51
        s_mov_b32 s49, s52
        s_mov_b32 s50, s53
        s_cmp_lg_u32 s53, 0
        s_cbranch_scc1 {lab}
        s_mov_b32 s60, 2
        {lab2}:
        s_cmp_eq_u32 s60, 2
        s_cbranch_scc0 {lab}
        s_mov_b32 s48, s54
        s_mov_b32 s49, s55
        s_mov_b32 s50, s56
        s_mov_b32 s57, {32*1024}
        s_mov_b32 s12, s58
        s_mov_b32 s13, s59
        s_mov_b32 s14, {D*D*2}
        {lab}:
        ''')
    def breads(p):
        return [f'ds_read_b64_tr_b16 v[{BF}:{BF+1}], v14 offset:{BRING+p*2048}',
                f'ds_read_b64_tr_b16 v[{BF+2}:{BF+3}], v14 offset:{BRING+p*2048+1024}',
                f'ds_read_b64_tr_b16 v[{BF+4}:{BF+5}], v15 offset:{BRING+p*2048}',
                f'ds_read_b64_tr_b16 v[{BF+6}:{BF+7}], v15 offset:{BRING+p*2048+1024}']
    for p in range(3): issue(p)
    e('s_mov_b32 s63, s41')
    e('K2_FL:')
    for p in range(3):
        e('s_waitcnt vmcnt(8)')
        for x in breads(p): e(x)
        e('s_waitcnt lgkmcnt(0)')
        for b in range(2):
            for a in range(2):
                e(f'v_mfma_f32_32x32x16_bf16 {vr(acc(a,b),16)}, {vr(BF+4*b,4)}, {vr(AR+8*p+4*a,4)}, {vr(acc(a,b),16)}')
        issue(p)
    e('''
    s_sub_u32 s63, s63, 3
    s_cmp_lg_u32 s63, 0
    s_cbranch_scc1 K2_FL
    ''')
    e(f'''
    s_mov_b32 s63, s43
    v_add_u32 v8, s61, v3
    s_mov_b32 s64, {hx(1e-6)}
    ''')
    e('K2_AL:')
    for p in range(3):
        l4=e.label('K2_W4'); l0=e.label('K2_W0'); lc=e.label('K2_WC')
        e(f'''
        s_cmp_eq_u32 s63, 1
        s_cbranch_scc1 {l0}
        s_cmp_eq_u32 s63, 2
        s_cbranch_scc1 {l4}
        s_waitcnt vmcnt(8)
        s_branch {lc}
        {l4}:
        s_waitcnt vmcnt(4)
        s_branch {lc}
        {l0}:
        s_waitcnt vmcnt(0)
        {lc}:
        ds_read_b128 v[{KVF}:{KVF+3}], v8 offset:{KVL}
        ''')
        for x in breads(p): e(x)
        e('s_waitcnt lgkmcnt(4)')
        e(f'v_mfma_f32_32x32x16_bf16 {vr(D1,16)}, {vr(KVF,4)}, {vr(AR+8*p,4)}, 0')
        e(f'v_mfma_f32_32x32x16_bf16 {vr(D1B,16)}, {vr(KVF,4)}, {vr(AR+8*p+4,4)}, 0')
        e('v_add_u32 v8, 1024, v8')
        e('s_nop 9')
        for a,Dr in ((0,D1),(1,D1B)):
            if a==1: e('s_nop 0')
            e(f'v_add_f32 v16, s64, v{Dr+8}')
            e(f'v_rcp_f32 v16, v16')
            e('s_nop 0')
            for i in range(8): e(f'v_mul_f32 v{Dr+i}, v{Dr+i}, v16')
            for i in range(4): e(f'v_cvt_pk_bf16_f32 v{OF+4*a+i}, v{Dr+2*i}, v{Dr+2*i+1}')
        e('s_waitcnt lgkmcnt(0)')
        e('s_nop 0')
        for b in range(2):
            for a in range(2):
                e(f'v_mfma_f32_32x32x16_bf16 {vr(acc(a,b),16)}, {vr(BF+4*b,4)}, {vr(OF+4*a,4)}, {vr(acc(a,b),16)}')
        issue(p)
        e('s_sub_u32 s63, s63, 1')
        e('s_cmp_eq_u32 s63, 0')
        if p<2: e('s_cbranch_scc1 K2_EP')
        else: e('s_cbranch_scc0 K2_AL')
    e('K2_EP:')
    e(f'''
    v_and_b32 v6, 31, v2
    v_mul_u32_u24 v6, 272, v6
    v_lshl_add_u32 v6, v7, 4, v6
    v_add_u32 v6, s61, v6
    s_nop 7
    ''')
    for a in range(2):
        for b in range(2):
            for g in range(4):
                off=a*32*272 + (32*b+8*g)*4
                e(f'ds_write_b128 v6, v[{acc(a,b)+4*g}:{acc(a,b)+4*g+3}] offset:{off}')
    e(f'''
    v_lshrrev_b32 v9, 3, v0
    v_and_b32 v10, 7, v0
    v_mul_u32_u24 v9, 272, v9
    v_lshl_add_u32 v9, v10, 5, v9
    s_mov_b32 s62, 0xffff0000
    s_waitcnt lgkmcnt(0)
    s_barrier
    ''')
    XR=216
    for q in range(2):
        for w in range(4):
            off=w*WLDS+q*32*272
            e(f'ds_read_b128 v[{16+8*w}:{19+8*w}], v9 offset:{off}')
            e(f'ds_read_b128 v[{20+8*w}:{23+8*w}], v9 offset:{off+16}')
        e('s_waitcnt lgkmcnt(0)')
        for i in range(8):
            e(f'v_add_f32 v{16+i}, v{16+i}, v{24+i}')
            e(f'v_add_f32 v{32+i}, v{32+i}, v{40+i}')
        for i in range(8): e(f'v_add_f32 v{16+i}, v{16+i}, v{32+i}')
        for i in range(4):
            e(f'v_lshlrev_b32 v24, 16, v{XR+4*q+i}')
            e(f'v_and_b32 v25, s62, v{XR+4*q+i}')
            e(f'v_lshlrev_b32 v26, 16, v{XR+8+i}')
            e(f'v_and_b32 v27, s62, v{XR+8+i}')
            e(f'v_add_f32 v24, v24, v26')
            e(f'v_add_f32 v25, v25, v27')
            e(f'v_add_f32 v{16+2*i}, v{16+2*i}, v24')
            e(f'v_add_f32 v{17+2*i}, v{17+2*i}, v25')
        for i in range(4): e(f'v_cvt_pk_bf16_f32 v{48+4*q+i}, v{16+2*i}, v{17+2*i}')
        e(f'buffer_store_dwordx4 v[{48+4*q}:{51+4*q}], v{11+q}, s[20:23], 0 offen')
    e('K2_END:')
    if opt.get('ts'):
        e(f'''
        s_waitcnt vmcnt(0)
        s_memrealtime s[68:69]
        s_load_dwordx2 s[70:71], s[0:1], 72
        s_mov_b32 s76, s38
        s_and_b32 s77, s39, 0xffff
        s_mov_b32 s78, {WS_TS+256*8*8}
        s_mov_b32 s79, 0x20000
        s_waitcnt lgkmcnt(0)
        s_mov_b32 s72, s70
        s_and_b32 s73, s71, 0xffff
        s_mov_b32 s74, 256
        s_mov_b32 s75, 0x20000
        s_lshl_b32 s80, s2, 6
        s_add_u32 s80, s80, {WS_TS}
        v_and_b32 v8, 7, v2
        v_lshlrev_b32 v8, 3, v8
        buffer_load_dwordx2 v[10:11], v8, s[76:79], s80 offen
        s_waitcnt vmcnt(0)
        v_not_b32 v10, v10
        v_mov_b32 v12, 0
        v_mov_b32 v13, 4
        buffer_atomic_umax v10, v12, s[72:75], 0 offen
        buffer_atomic_umax v11, v13, s[72:75], 0 offen
        v_mov_b32 v14, s66
        v_not_b32 v14, v14
        v_mov_b32 v15, s68
        v_mov_b32 v12, 8
        v_mov_b32 v13, 12
        buffer_atomic_umax v14, v12, s[72:75], 0 offen
        buffer_atomic_umax v15, v13, s[72:75], 0 offen
        ''')
    e('K2_EXIT:')
    e('s_endpgm')
    return e.text()
```

```python
from common import *
ACC=128
AR=64
BF=88
KVF=96
D1=100
D1B=192
OF=208
KT=16
WLDS=17408
BRING=0
KVL=6144
def acc(a,b): return ACC+(b*2+a)*16

def k2(opt):
    e=E()
    if opt.get('ts'): e('s_memrealtime s[66:67]')
    e(f'''
    s_cmp_ge_u32 s2, 256
    s_cbranch_scc1 K2_EXIT
    s_load_dwordx2 s[28:29], s[0:1], 0
    s_load_dwordx2 s[30:31], s[0:1], 16
    s_load_dwordx4 s[32:35], s[0:1], 48
    s_load_dwordx2 s[36:37], s[0:1], 64
    s_load_dwordx2 s[38:39], s[0:1], 80
    v_lshrrev_b32 v1, 6, v0
    v_and_b32 v2, 63, v0
    v_readfirstlane_b32 s3, v1
    s_and_b32 s8, s2, 7
    s_lshr_b32 s9, s2, 3
    s_and_b32 s4, s9, 3
    s_lshl_b32 s8, s8, 2
    s_add_u32 s4, s4, s8
    s_lshr_b32 s5, s9, 2              ; cb2 0..7
    s_mul_i32 s40, s3, 21
    s_add_u32 s40, s40, 3
    s_cmp_eq_u32 s3, 0
    s_cselect_b32 s40, 0, s40         ; f0
    s_cselect_b32 s41, 24, 21         ; nF
    s_mul_i32 s42, s3, 9
    s_sub_u32 s42, s42, 3
    s_cmp_eq_u32 s3, 0
    s_cselect_b32 s42, 0, s42         ; h0
    s_cselect_b32 s43, 6, 9
    s_cmp_eq_u32 s3, 3
    s_cselect_b32 s43, 8, s43         ; nH
    ''')
    if opt.get('rot2','on')=='on':
        e('s_mul_i32 s44, s5, s41\ns_lshr_b32 s44, s44, 3')
    else:
        e('s_mov_b32 s44, 0')
    e(f'''
    s_lshl_b32 s45, s4, 1             ; s-tile a=0
    s_mul_i32 s46, s45, 86
    s_add_u32 s47, s40, s44
    s_add_u32 s48, s46, s47
    s_lshl_b32 s48, s48, 10
    s_lshl_b32 s49, s47, 14
    s_sub_u32 s50, s41, s44
    s_add_u32 s51, s46, s40
    s_lshl_b32 s51, s51, 10
    s_lshl_b32 s52, s40, 14
    s_mov_b32 s53, s44
    s_lshl_b32 s54, s45, 5
    s_add_u32 s54, s54, s42
    s_lshl_b32 s54, s54, 10
    s_add_u32 s54, s54, {WS_PQ}
    s_lshl_b32 s55, s42, 14
    s_mov_b32 s56, s43
    s_mov_b32 s57, {86*1024}
    s_waitcnt lgkmcnt(0)
    ''')
    srd(e,8,38,WS_SIZE)
    srd(e,12,32,F*D*2)
    srd(e,16,28,S*D*2)
    srd(e,20,36,S*D*2)
    srd(e,24,34,D*2)
    e(f'''
    s_mov_b32 s58, s30
    s_and_b32 s59, s31, 0xffff
    s_mov_b32 s60, 0
    s_mul_i32 s61, s3, {WLDS}
    v_lshlrev_b32 v3, 4, v2
    v_lshrrev_b32 v4, 3, v2
    v_and_b32 v5, 7, v2
    v_bfe_u32 v6, v2, 4, 1
    v_lshlrev_b32 v6, 2, v6
    v_xor_b32 v5, v5, v6
    v_lshlrev_b32 v5, 4, v5
    v_lshl_add_u32 v4, v4, 10, v5
    s_lshl_b32 s62, s5, 7
    v_add_u32 v4, s62, v4
    v_add_u32 v5, 0x2000, v4          ; rows 8..15
    v_and_b32 v6, 31, v2
    v_min_u32 v6, 16, v6
    v_lshrrev_b32 v7, 5, v2
    v_mul_u32_u24 v8, 17, v7
    v_add_u32 v6, v6, v8
    v_lshlrev_b32 v6, 5, v6
    s_mul_i32 s62, s42, 1088
    s_add_u32 s62, s62, {WS_KV}
    ''')
    KT=16
    for h in range(9):
        e(f'buffer_load_dwordx4 v[{KT+8*h}:{KT+8*h+3}], v6, s[8:11], s62 offen')
        e(f'buffer_load_dwordx4 v[{KT+8*h+4}:{KT+8*h+7}], v6, s[8:11], s62 offen offset:16')
        if h<8: e('s_add_u32 s62, s62, 1088')
    XR=216
    e(f'''
    v_lshrrev_b32 v9, 3, v0
    v_and_b32 v10, 7, v0
    v_lshlrev_b32 v10, 4, v10
    s_lshl_b32 s62, s4, 16            ; rb2*64*1024
    s_lshl_b32 s63, s5, 7
    s_add_u32 s62, s62, s63
    v_lshl_add_u32 v11, v9, 10, v10
    v_add_u32 v11, s62, v11
    buffer_load_dwordx4 v[{XR}:{XR+3}], v11, s[16:19], 0 offen
    v_add_u32 v12, 0x8000, v11
    buffer_load_dwordx4 v[{XR+4}:{XR+7}], v12, s[16:19], 0 offen
    v_add_u32 v13, s63, v10
    buffer_load_dwordx4 v[{XR+8}:{XR+11}], v13, s[24:27], 0 offen
    ''')
    e(f'''
    v_and_b32 v14, 15, v2
    v_lshrrev_b32 v14, 2, v14
    v_lshl_add_u32 v14, v7, 2, v14     ; 4hi + (i>>2)
    v_lshlrev_b32 v14, 7, v14
    v_and_b32 v15, 3, v2
    v_lshlrev_b32 v15, 3, v15
    v_bfe_u32 v8, v2, 4, 1
    v_lshl_add_u32 v15, v8, 5, v15
    v_bfe_u32 v8, v2, 3, 1
    v_lshlrev_b32 v8, 6, v8
    v_xor_b32 v15, v15, v8
    v_add3_u32 v14, v14, v15, s61      ; tile b=0
    v_xor_b32 v15, 64, v14
    ''')
    for r in range(ACC,ACC+64): e(f'v_mov_b32 v{r}, 0')
    e('s_waitcnt vmcnt(3)')
    e(f'v_add_u32 v8, s61, v3')
    for h in range(9):
        for i in range(4):
            e(f'v_cvt_pk_bf16_f32 v{KT+8*h+i}, v{KT+8*h+2*i}, v{KT+8*h+2*i+1}')
        e(f'ds_write_b128 v8, v[{KT+8*h}:{KT+8*h+3}] offset:{KVL+h*1024}')
    e('s_waitcnt lgkmcnt(0)')
    def issue(p):
        lab=e.label('K2_SK')
        L=[]
        e(f's_cmp_eq_u32 s50, 0')
        e(f's_cbranch_scc1 {lab}')
        e(f'buffer_load_dwordx4 v[{AR+8*p}:{AR+8*p+3}], v3, s[8:11], s48 offen')
        e(f's_add_u32 s62, s48, s57')
        e(f'buffer_load_dwordx4 v[{AR+8*p+4}:{AR+8*p+7}], v3, s[8:11], s62 offen')
        e(f's_add_u32 m0, s61, {BRING+p*2048}')
        e(f's_add_u32 s48, s48, 1024')
        e(f'buffer_load_dwordx4 v4, s[12:15], s49 offen lds')
        e(f's_add_u32 m0, s61, {BRING+p*2048+1024}')
        e(f's_sub_u32 s50, s50, 1')
        e(f'buffer_load_dwordx4 v5, s[12:15], s49 offen lds')
        e(f's_add_u32 s49, s49, 16384')
        e(f's_cmp_lg_u32 s50, 0')
        e(f's_cbranch_scc1 {lab}')
        lab2=e.label('K2_SC'); lab3=e.label('K2_SD')
        e(f'''
        s_add_u32 s60, s60, 1
        s_cmp_eq_u32 s60, 1
        s_cbranch_scc0 {lab2}
        s_mov_b32 s48, s51
        s_mov_b32 s49, s52
        s_mov_b32 s50, s53
        s_cmp_lg_u32 s53, 0
        s_cbranch_scc1 {lab}
        s_mov_b32 s60, 2
        {lab2}:
        s_cmp_eq_u32 s60, 2
        s_cbranch_scc0 {lab}
        s_mov_b32 s48, s54
        s_mov_b32 s49, s55
        s_mov_b32 s50, s56
        s_mov_b32 s57, {32*1024}
        s_mov_b32 s12, s58
        s_mov_b32 s13, s59
        s_mov_b32 s14, {D*D*2}
        {lab}:
        ''')
    def breads(p):
        return [f'ds_read_b64_tr_b16 v[{BF}:{BF+1}], v14 offset:{BRING+p*2048}',
                f'ds_read_b64_tr_b16 v[{BF+2}:{BF+3}], v14 offset:{BRING+p*2048+1024}',
                f'ds_read_b64_tr_b16 v[{BF+4}:{BF+5}], v15 offset:{BRING+p*2048}',
                f'ds_read_b64_tr_b16 v[{BF+6}:{BF+7}], v15 offset:{BRING+p*2048+1024}']
    for p in range(3): issue(p)
    e('s_mov_b32 s63, s41')
    e('K2_FL:')
    for p in range(3):
        e('s_waitcnt vmcnt(8)')
        for x in breads(p): e(x)
        e('s_waitcnt lgkmcnt(0)')
        for b in range(2):
            for a in range(2):
                e(f'v_mfma_f32_32x32x16_bf16 {vr(acc(a,b),16)}, {vr(BF+4*b,4)}, {vr(AR+8*p+4*a,4)}, {vr(acc(a,b),16)}')
        issue(p)
    e('''
    s_sub_u32 s63, s63, 3
    s_cmp_lg_u32 s63, 0
    s_cbranch_scc1 K2_FL
    ''')
    e(f'''
    s_mov_b32 s63, s43
    v_add_u32 v8, s61, v3
    s_mov_b32 s64, {hx(1e-6)}
    ''')
    e('K2_AL:')
    for p in range(3):
        l4=e.label('K2_W4'); l0=e.label('K2_W0'); lc=e.label('K2_WC')
        e(f'''
        s_cmp_eq_u32 s63, 1
        s_cbranch_scc1 {l0}
        s_cmp_eq_u32 s63, 2
        s_cbranch_scc1 {l4}
        s_waitcnt vmcnt(8)
        s_branch {lc}
        {l4}:
        s_waitcnt vmcnt(4)
        s_branch {lc}
        {l0}:
        s_waitcnt vmcnt(0)
        {lc}:
        ds_read_b128 v[{KVF}:{KVF+3}], v8 offset:{KVL}
        ''')
        for x in breads(p): e(x)
        e('s_waitcnt lgkmcnt(4)')
        e(f'v_mfma_f32_32x32x16_bf16 {vr(D1,16)}, {vr(KVF,4)}, {vr(AR+8*p,4)}, 0')
        e(f'v_mfma_f32_32x32x16_bf16 {vr(D1B,16)}, {vr(KVF,4)}, {vr(AR+8*p+4,4)}, 0')
        e('v_add_u32 v8, 1024, v8')
        e('s_nop 9')
        for a,Dr in ((0,D1),(1,D1B)):
            if a==1: e('s_nop 0')
            e(f'v_add_f32 v16, s64, v{Dr+8}')
            e(f'v_rcp_f32 v16, v16')
            e('s_nop 0')
            for i in range(8): e(f'v_mul_f32 v{Dr+i}, v{Dr+i}, v16')
            for i in range(4): e(f'v_cvt_pk_bf16_f32 v{OF+4*a+i}, v{Dr+2*i}, v{Dr+2*i+1}')
        e('s_waitcnt lgkmcnt(0)')
        e('s_nop 0')
        for b in range(2):
            for a in range(2):
                e(f'v_mfma_f32_32x32x16_bf16 {vr(acc(a,b),16)}, {vr(BF+4*b,4)}, {vr(OF+4*a,4)}, {vr(acc(a,b),16)}')
        issue(p)
        e('s_sub_u32 s63, s63, 1')
        e('s_cmp_eq_u32 s63, 0')
        if p<2: e('s_cbranch_scc1 K2_EP')
        else: e('s_cbranch_scc0 K2_AL')
    e('K2_EP:')
    e(f'''
    v_and_b32 v6, 31, v2
    v_mul_u32_u24 v6, 272, v6
    v_lshl_add_u32 v6, v7, 4, v6
    v_add_u32 v6, s61, v6
    s_nop 7
    ''')
    for a in range(2):
        for b in range(2):
            for g in range(4):
                off=a*32*272 + (32*b+8*g)*4
                e(f'ds_write_b128 v6, v[{acc(a,b)+4*g}:{acc(a,b)+4*g+3}] offset:{off}')
    e(f'''
    v_lshrrev_b32 v9, 3, v0
    v_and_b32 v10, 7, v0
    v_mul_u32_u24 v9, 272, v9
    v_lshl_add_u32 v9, v10, 5, v9
    s_mov_b32 s62, 0xffff0000
    s_waitcnt lgkmcnt(0)
    s_barrier
    ''')
    XR=216
    for q in range(2):
        for w in range(4):
            off=w*WLDS+q*32*272
            e(f'ds_read_b128 v[{16+8*w}:{19+8*w}], v9 offset:{off}')
            e(f'ds_read_b128 v[{20+8*w}:{23+8*w}], v9 offset:{off+16}')
        e('s_waitcnt lgkmcnt(0)')
        for i in range(8):
            e(f'v_add_f32 v{16+i}, v{16+i}, v{24+i}')
            e(f'v_add_f32 v{32+i}, v{32+i}, v{40+i}')
        for i in range(8): e(f'v_add_f32 v{16+i}, v{16+i}, v{32+i}')
        for i in range(4):
            e(f'v_lshlrev_b32 v24, 16, v{XR+4*q+i}')
            e(f'v_and_b32 v25, s62, v{XR+4*q+i}')
            e(f'v_lshlrev_b32 v26, 16, v{XR+8+i}')
            e(f'v_and_b32 v27, s62, v{XR+8+i}')
            e(f'v_add_f32 v24, v24, v26')
            e(f'v_add_f32 v25, v25, v27')
            e(f'v_add_f32 v{16+2*i}, v{16+2*i}, v24')
            e(f'v_add_f32 v{17+2*i}, v{17+2*i}, v25')
        for i in range(4): e(f'v_cvt_pk_bf16_f32 v{48+4*q+i}, v{16+2*i}, v{17+2*i}')
        e(f'buffer_store_dwordx4 v[{48+4*q}:{51+4*q}], v{11+q}, s[20:23], 0 offen')
    e('K2_END:')
    if opt.get('ts'):
        e(f'''
        s_waitcnt vmcnt(0)
        s_memrealtime s[68:69]
        s_mov_b32 s76, s38
        s_and_b32 s77, s39, 0xffff
        s_mov_b32 s78, {WS_TS+2*256*8*8}
        s_mov_b32 s79, 0x20000
        s_waitcnt lgkmcnt(0)
        s_lshl_b32 s70, s2, 3
        s_add_u32 s70, s70, s3
        s_lshl_b32 s70, s70, 3
        s_add_u32 s70, s70, {WS_TS+256*8*8}
        v_mov_b32 v8, s66
        v_mov_b32 v9, s68
        v_mov_b32 v10, 0
        buffer_store_dwordx2 v[8:9], v10, s[76:79], s70 offen
        ''')
    e('K2_EXIT:')
    e('s_endpgm')
    return e.text()

def k3_ts():
    e=E()
    e(f'''
    s_cmp_ge_u32 s2, 1
    s_cbranch_scc1 K3_END
    s_load_dwordx4 s[36:39], s[0:1], 72
    s_waitcnt lgkmcnt(0)
    s_mov_b32 s72, s36
    s_and_b32 s73, s37, 0xffff
    s_mov_b32 s74, 256
    s_mov_b32 s75, 0x20000
    s_mov_b32 s76, s38
    s_and_b32 s77, s39, 0xffff
    s_mov_b32 s78, {WS_TS+2*256*8*8}
    s_mov_b32 s79, 0x20000
    v_lshlrev_b32 v3, 6, v0
    s_mov_b32 s80, {WS_TS}
    s_mov_b32 s81, {WS_TS+256*8*8}
    ''')
    for i in range(4): e(f'buffer_load_dwordx4 v[{8+4*i}:{11+4*i}], v3, s[76:79], s80 offen offset:{16*i}')
    for i in range(2): e(f'buffer_load_dwordx4 v[{24+4*i}:{27+4*i}], v3, s[76:79], s81 offen offset:{16*i}')
    e('s_waitcnt vmcnt(0)')
    for i in range(1,8):
        e(f'v_min_u32 v8, v8, v{8+2*i}')
        e(f'v_max_u32 v9, v9, v{9+2*i}')
    for i in range(1,4):
        e(f'v_min_u32 v24, v24, v{24+2*i}')
        e(f'v_max_u32 v25, v25, v{25+2*i}')
    e('''
    v_not_b32 v40, v8
    v_not_b32 v41, v24
    v_mov_b32 v4, 0
    buffer_atomic_umax v40, v4, s[72:75], 0 offen
    buffer_atomic_umax v9, v4, s[72:75], 0 offen offset:4
    buffer_atomic_umax v41, v4, s[72:75], 0 offen offset:8
    buffer_atomic_umax v25, v4, s[72:75], 0 offen offset:12
    buffer_atomic_umax v8, v4, s[72:75], 0 offen offset:16
    v_not_b32 v42, v9
    buffer_atomic_umax v42, v4, s[72:75], 0 offen offset:20
    buffer_atomic_umax v24, v4, s[72:75], 0 offen offset:24
    v_not_b32 v43, v25
    buffer_atomic_umax v43, v4, s[72:75], 0 offen offset:28
    K3_END:
    s_endpgm
    ''')
    return e.text()
```

```python
import sys
sys.path.insert(0,'work')
from asmlib import E, HEADER, kernel_begin, kernel_desc, RODATA
import struct
S=2048; D=512; F=1376
WS_HF=0
WS_PQ=64*86*1024
WS_KV=WS_PQ+64*32*1024
WS_Z=WS_KV+32*1024
WS_SIZE=WS_Z+32*64
WS_TS=0x900000
def f2u(x): return struct.unpack('<I',struct.pack('<f',x))[0]
def hx(x): return hex(f2u(x))
LOG2E=1.4426950408889634
GC1=-2.0*LOG2E*0.7978845608028654
GC2=GC1*0.044715
def vr(b,n): return f'v[{b}:{b+n-1}]' if n>1 else f'v{b}'
def sr(b,n): return f's[{b}:{b+n-1}]' if n>1 else f's{b}'
def srd(e, b, lo, size):
    e(f's_mov_b32 s{b}, s{lo}')
    e(f's_and_b32 s{b+1}, s{lo+1}, 0xffff')
    e(f's_mov_b32 s{b+2}, {size}')
    e(f's_mov_b32 s{b+3}, 0x20000')
def interleave(main, fill, pattern=None):
    out=[]
    n=len(main); k=0
    if pattern is None:
        pattern=[]
        rem=len(fill)
        for i in range(n):
            c=(rem + (n-i) -1)//(n-i); pattern.append(c); rem-=c
    for i,m in enumerate(main):
        out.append(m)
        for _ in range(pattern[i] if i<len(pattern) else 0):
            if k<len(fill): out.append(fill[k]); k+=1
    out+=fill[k:]
    return out

TSV=240
def stamp_init(e,opt):
    if opt.get('prof'):
        e(f'v_mov_b32 v{TSV}, 0\ns_mov_b32 s98, 0')
def stamp(e,opt,wait=True):
    if opt.get('prof'):
        e(f's_memtime s[96:97]\ns_waitcnt lgkmcnt(0)\ns_mov_b32 m0, s98\nv_writelane_b32 v{TSV}, s96, m0\ns_add_u32 s98, s98, 1')
def stamp_flush(e,opt,srd_b,kern,nw):
    if opt.get('prof'):
        e(f'''
        s_memrealtime s[96:97]
        s_waitcnt lgkmcnt(0)
        v_writelane_b32 v{TSV}, s96, 63
        s_lshl_b32 s99, s2, 3
        s_add_u32 s99, s99, s3
        s_lshl_b32 s99, s99, 8
        s_add_u32 s99, s99, {WS_PROF+kern*256*8*256}
        v_and_b32 v241, 63, v0
        v_lshlrev_b32 v241, 2, v241
        buffer_store_dword v{TSV}, v241, s[{srd_b}:{srd_b+3}], s99 offen
        ''')
WS_PROF=0xA00000

CNT_RB=16
CNT_KV=40
```

```python
from common import *

REC=0
RSTD=4096
CSP=4608
KVP=8192
SLOT=40960

ACC=128
CS=224
SEL=236
FA=64; FB=84
XA=104
WA=108
BIA=114
XF=64
KC=72
WF=80
T0=8
OUT=40

def acc(t,a): return ACC+(t*2+a)*16

def prologue(e,opt):
    e(f'''
    s_cmp_ge_u32 s2, 256
    s_cbranch_scc1 K1_END
    s_load_dwordx4 s[28:31], s[0:1], 0
    s_load_dwordx4 s[32:35], s[0:1], 32
    s_load_dwordx4 s[36:39], s[0:1], 72
    v_lshrrev_b32 v1, 6, v0
    v_and_b32 v2, 63, v0
    v_readfirstlane_b32 s3, v1
    s_and_b32 s8, s2, 7
    s_lshr_b32 s9, s2, 3
    s_and_b32 s10, s9, 7
    s_lshr_b32 s11, s9, 3
    s_lshr_b32 s4, s8, 2
    s_lshl_b32 s4, s4, 3
    s_add_u32 s4, s4, s10             ; rb
    s_and_b32 s5, s8, 3
    s_lshl_b32 s5, s5, 1
    s_and_b32 s12, s11, 1
    s_add_u32 s5, s5, s12
    s_lshr_b32 s7, s11, 1
    s_lshl_b32 s12, s7, 3
    s_add_u32 s5, s5, s12             ; cb
    ''')
    rot=opt.get('rot','half')
    if rot=='none': e('s_mov_b32 s6, 0')
    elif rot=='half': e('s_add_u32 s6, s10, s11\ns_and_b32 s6, s6, 1\ns_lshl_b32 s6, s6, 2')
    elif rot=='quarter': e('s_add_u32 s6, s10, s11\ns_and_b32 s6, s6, 3\ns_lshl_b32 s6, s6, 1')
    elif rot=='full': e('s_lshl_b32 s6, s11, 1\ns_add_u32 s6, s6, s10\ns_and_b32 s6, s6, 7')
    e(f'''
    s_and_b32 s12, s5, 7
    s_mul_i32 s13, s12, 6
    s_mul_i32 s14, s12, 5
    s_add_u32 s14, s14, 3
    s_min_u32 s44, s13, s14
    s_cmp_lt_u32 s12, 3
    s_cselect_b32 s45, 6, 5
    s_lshl_b32 s13, s12, 7
    s_lshl_b32 s14, s44, 6
    s_mov_b32 s40, 2752
    s_mov_b32 s15, 128
    s_cmp_eq_u32 s7, 0
    s_cselect_b32 s40, 3072, s40
    s_cselect_b32 s41, s13, s14
    s_cselect_b32 s15, 1024, s15
    s_add_u32 s42, s41, s15
    s_add_u32 s43, s42, s15
    s_mov_b32 s64, {SLOT}
    s_mov_b32 s65, {-3*SLOT & 0xffffffff:#x}
    s_waitcnt lgkmcnt(0)
    ''')
    srd(e,8,28,S*D*2)
    e(f'''
    s_cmp_eq_u32 s7, 0
    s_cselect_b32 s12, s30, s32
    s_cselect_b32 s13, s31, s33
    s_mov_b32 s14, {D*F*2}
    s_cselect_b32 s14, {D*3*D*2}, s14
    s_and_b32 s13, s13, 0xffff
    s_mov_b32 s15, 0x20000
    ''')
    srd(e,16,38,(WS_PROF+2*256*8*256) if opt.get('prof') else WS_SIZE)
    stamp_init(e,opt)
    stamp(e,opt)
    srd(e,20,34,F*2)
    srd(e,24,36,256)
    e('''
    s_cmp_lt_u32 s3, 4
    s_cbranch_scc1 K1_CONS
    ''')

def loader(e,opt):
    e('''
    s_and_b32 s46, s3, 3
    v_lshrrev_b32 v3, 3, v2
    v_and_b32 v4, 7, v2
    v_lshrrev_b32 v5, 4, v2
    v_xor_b32 v6, v4, v5
    v_lshlrev_b32 v6, 4, v6
    v_lshl_add_u32 v10, v3, 10, v6
    s_lshl_b32 s47, s4, 17
    s_lshl_b32 s48, s46, 15
    s_add_u32 s47, s47, s48
    v_add_u32 v10, s47, v10
    v_xor_b32 v11, 64, v10
    v_add_u32 v11, 0x2000, v11
    v_add_u32 v12, 0x4000, v10
    v_add_u32 v13, 0x4000, v11
    v_and_b32 v5, 1, v5
    v_lshlrev_b32 v5, 2, v5
    v_xor_b32 v4, v4, v5
    v_lshlrev_b32 v4, 4, v4
    s_lshl_b32 s47, s46, 4
    v_add_u32 v14, s47, v3
    v_mul_lo_u32 v14, v14, s40
    v_add_u32 v14, v14, v4
    s_lshl_b32 s47, s40, 3
    v_add_u32 v15, s47, v14
    s_lshl_b32 s54, s46, 12
    s_lshl_b32 s55, s46, 11
    s_add_u32 s55, s55, 16384
    s_lshl_b32 s56, s40, 6
    s_mov_b32 s48, s6
    s_mov_b32 s53, 0
    ''')
    def stage_addr():
        return ['s_lshl_b32 s49, s48, 7','s_mul_i32 s50, s48, s56','s_add_u32 s51, s50, s42',
                's_add_u32 s52, s50, s43','s_add_u32 s50, s50, s41',
                's_add_u32 s58, s53, s54','s_add_u32 s59, s53, s55']
    def stage_adv():
        return ['s_add_u32 s48, s48, 1','s_and_b32 s48, s48, 7',
                f's_add_u32 s53, s53, s64', f's_cmp_eq_u32 s53, {4*SLOT}','s_cselect_b32 s53, 0, s53']
    def dma():
        L=[]
        if opt.get('x_nodma1'): return [['s_nop 0']]*10
        for i in range(4):
            L.append([f's_add_u32 m0, s58, {i*1024}', 's_nop 0', f'buffer_load_dwordx4 v{10+i}, s[8:11], s49 offen lds'])
        for sub in range(3):
            for h in range(2):
                L.append([f's_add_u32 m0, s59, {sub*8192+h*1024}', 's_nop 0', f'buffer_load_dwordx4 v{14+h}, s[12:15], s{50+sub} offen lds'])
        return L
    e('s_mov_b32 s47, 2')
    e('K1_LI:')
    for x in stage_addr(): e(x)
    for g in dma():
        for x in g: e(x)
    for x in stage_adv(): e(x)
    e('''
    s_sub_u32 s47, s47, 1
    s_cmp_lg_u32 s47, 0
    s_cbranch_scc1 K1_LI
    v_and_b32 v3, 31, v2
    v_lshrrev_b32 v4, 5, v2
    v_lshrrev_b32 v5, 1, v3
    v_and_b32 v5, 7, v5
    v_lshlrev_b32 v4, 2, v4
    v_xor_b32 v5, v5, v4
    v_lshlrev_b32 v5, 4, v5
    v_lshl_add_u32 v16, v3, 7, v5
    s_lshl_b32 s47, s46, 12
    v_add_u32 v16, s47, v16
    v_xor_b32 v17, 16, v16
    v_xor_b32 v18, 32, v16
    v_xor_b32 v19, 48, v16
    v_mov_b32 v36, 0
    v_mov_b32 v37, 0
    v_mov_b32 v38, 0
    v_mov_b32 v39, 0
    s_mov_b32 s60, 0xffff0000
    s_mov_b32 s61, 0
    s_mov_b32 s62, 0
    ''')
    def stats_reads(): return [f'ds_read_b128 v[{20+4*j}:{23+4*j}], v{16+j}' for j in range(4)]
    def stats_valu():
        L=[]
        if opt.get('x_nostats'): return L
        for d in range(16):
            t=40+2*(d%4)
            L+= [f'v_lshlrev_b32 v{t}, 16, v{20+d}', f'v_and_b32 v{t+1}, s60, v{20+d}',
                 f'v_add_f32 v36, v36, v{t}', f'v_add_f32 v37, v37, v{t+1}',
                 f'v_fmac_f32 v38, v{t}, v{t}', f'v_fmac_f32 v39, v{t+1}, v{t+1}']
        return L
    def stats_adv():
        return ['s_add_u32 s61, s61, s64', f's_cmp_eq_u32 s61, {4*SLOT}', 's_cselect_b32 s63, s65, s64', 's_cselect_b32 s61, 0, s61']+\
               [f'v_add_u32 v{16+j}, s63, v{16+j}' for j in range(4)]
    stamp(e,opt)
    e('s_mov_b32 s47, 6')
    e('K1_LM:')
    e('s_waitcnt vmcnt(10)')
    stamp(e,opt)
    e('s_barrier')
    for x in stats_reads(): e(x)
    for x in stage_addr(): e(x)
    e('s_lshr_b32 s68, s46, 1')
    e('s_mov_b32 s69, 2')
    e('K1_PH:')
    e('s_cmp_eq_u32 s68, 0')
    e('s_cbranch_scc0 K1_PHS')
    for g in dma():
        for x in g: e(x)
    e('s_branch K1_PHE')
    e('K1_PHS:')
    e('s_waitcnt lgkmcnt(0)')
    for x in stats_valu(): e(x)
    e('K1_PHE:')
    e('s_xor_b32 s68, s68, 1')
    e('s_sub_u32 s69, s69, 1')
    e('s_cmp_lg_u32 s69, 0')
    e('s_cbranch_scc1 K1_PH')
    for x in stage_adv(): e(x)
    for x in stats_adv(): e(x)
    e('''
    s_sub_u32 s47, s47, 1
    s_cmp_lg_u32 s47, 0
    s_cbranch_scc1 K1_LM
    s_waitcnt vmcnt(10)
    s_mov_b32 s62, 0
    K1_SO:
    ''')
    stamp(e,opt)
    e('s_barrier')
    for x in stats_reads(): e(x)
    e('s_waitcnt lgkmcnt(0)')
    for x in stats_valu(): e(x)
    for x in stats_adv(): e(x)
    e(f'''
    s_cmp_lg_u32 s62, 0
    s_cbranch_scc1 K1_LDONE
    s_mov_b32 s62, 1
    s_waitcnt vmcnt(0)
    s_branch K1_SO
    K1_LDONE:
    v_add_f32 v36, v36, v37
    v_add_f32 v38, v38, v39
    v_mov_b32 v37, v36
    v_mov_b32 v39, v38
    s_nop 1
    v_permlane32_swap_b32 v36, v37
    v_permlane32_swap_b32 v38, v39
    v_add_f32 v36, v36, v37
    v_add_f32 v38, v38, v39
    v_mul_f32 v36, {hx(-1.0/512)}, v36          ; -mean
    v_mul_f32 v38, {hx(1.0/512)}, v38
    v_fma_f32 v38, -v36, v36, v38               ; var
    v_max_f32 v38, 0, v38
    v_add_f32 v38, {hx(1e-5)}, v38
    v_rsq_f32 v44, v38                          ; rstd
    v_cvt_pk_bf16_f32 v40, v36, v36
    v_mul_f32 v45, v38, v44                     ; sigma
    v_lshlrev_b32 v40, 16, v40
    v_sub_f32 v41, v36, v40
    v_cvt_pk_bf16_f32 v40, v40, v41             ; d0
    v_mov_b32 v41, v40                          ; d1
    v_cvt_pk_bf16_f32 v42, v45, v45
    v_lshlrev_b32 v42, 16, v42
    v_sub_f32 v43, v45, v42
    v_cvt_pk_bf16_f32 v42, v42, v43             ; d2
    v_mov_b32 v43, 0
    v_mul_f32 v46, v44, v44
    v_mul_f32 v46, v46, v44
    v_mul_f32 v46, {hx(GC2)}, v46               ; cA
    v_mul_f32 v47, {hx(GC1)}, v44               ; cB
    v_and_b32 v3, 31, v2
    s_lshl_b32 s47, s46, 5
    v_add_u32 v3, s47, v3                       ; row
    v_lshlrev_b32 v4, 5, v3
    ds_write_b128 v4, v[40:43] offset:{REC}
    ds_write_b128 v4, v[44:47] offset:{REC+16}
    v_lshlrev_b32 v4, 2, v3
    ds_write_b32 v4, v44 offset:{RSTD}
    s_cmp_lg_u32 s7, 0
    s_cbranch_scc1 K1_LE1
    s_cmp_lg_u32 s3, 4
    s_cbranch_scc1 K1_LE1
    s_lshl_b32 s47, s5, 2
    v_mov_b32 v4, s47
    s_mov_b32 s48, 0x40000
    K1_POLL:
    buffer_load_dword v5, v4, s[24:27], 0 offen sc1
    s_waitcnt vmcnt(0)
    v_readfirstlane_b32 s47, v5
    s_sub_u32 s48, s48, 1
    s_cmp_lg_u32 s47, 0
    s_cbranch_scc1 K1_LE1
    s_sleep 4
    s_cmp_lg_u32 s48, 0
    s_cbranch_scc1 K1_POLL
    K1_LE1:
    s_waitcnt lgkmcnt(0)
    s_barrier
    s_cmp_lg_u32 s7, 0
    s_cbranch_scc1 K1_END
    s_branch K1_KVRED
    ''')

def cons_setup(e,opt):
    e('K1_CONS:')
    e(f'''
    s_and_b32 s46, s3, 1          ; sh
    s_lshr_b32 s47, s3, 1         ; nh
    s_cmp_lg_u32 s7, 0
    s_cbranch_scc1 K1_NOZ
    s_cmp_lg_u32 s4, 0
    s_cbranch_scc1 K1_NOZ
    s_cmp_lg_u32 s3, 0
    s_cbranch_scc1 K1_NOZ
    v_mov_b32 v8, 0
    v_mov_b32 v9, 0
    v_mov_b32 v10, 0
    v_mov_b32 v11, 0
    v_lshlrev_b32 v4, 4, v2
    s_lshl_b32 s48, s5, 12
    s_add_u32 s48, s48, {WS_KV}
    buffer_store_dwordx4 v[8:11], v4, s[16:19], s48 offen sc1
    buffer_store_dwordx4 v[8:11], v4, s[16:19], s48 offen offset:1024 sc1
    buffer_store_dwordx4 v[8:11], v4, s[16:19], s48 offen offset:2048 sc1
    buffer_store_dwordx4 v[8:11], v4, s[16:19], s48 offen offset:3072 sc1
    s_mov_b32 exec_lo, 0xffff
    s_mov_b32 exec_hi, 0
    s_lshl_b32 s48, s5, 8
    s_add_u32 s48, s48, {WS_Z}
    buffer_store_dwordx4 v[8:11], v4, s[16:19], s48 offen sc1
    s_waitcnt vmcnt(0)
    s_mov_b32 exec_lo, 1
    v_mov_b32 v5, 1
    s_lshl_b32 s48, s5, 2
    v_mov_b32 v4, s48
    buffer_store_dword v5, v4, s[24:27], 0 offen sc1
    s_mov_b64 exec, -1
    K1_NOZ:
    v_and_b32 v3, 31, v2             ; r32
    v_lshrrev_b32 v4, 5, v2          ; hi
    s_mul_i32 s48, s47, 3
    s_add_u32 s48, s48, s44
    s_lshl_b32 s49, s48, 6
    v_lshl_add_u32 v5, v3, 1, s49
    buffer_load_ushort v{BIA}, v5, s[20:23], 0 offen
    buffer_load_ushort v{BIA+1}, v5, s[20:23], 0 offen offset:64
    buffer_load_ushort v{BIA+2}, v5, s[20:23], 0 offen offset:128
    v_lshrrev_b32 v5, 1, v3
    v_and_b32 v5, 7, v5
    v_xor_b32 v5, v5, v4
    v_lshlrev_b32 v5, 4, v5
    v_lshl_add_u32 v5, v3, 7, v5
    s_lshl_b32 s49, s46, 13
    v_add_u32 v5, s49, v5
    s_lshl_b32 s49, s46, 5
    v_xor_b32 v{XA}, s49, v5
    v_xor_b32 v{XA+1}, 32, v5
    v_xor_b32 v{XA+1}, s49, v{XA+1}
    v_xor_b32 v{XA+2}, 64, v{XA}
    v_xor_b32 v{XA+3}, 64, v{XA+1}
    v_and_b32 v6, 15, v2
    v_lshrrev_b32 v6, 2, v6
    v_lshl_add_u32 v6, v4, 3, v6
    v_lshlrev_b32 v6, 7, v6          ; (8hi + i>>2)*128
    v_and_b32 v7, 3, v2
    v_lshlrev_b32 v7, 3, v7
    v_bfe_u32 v8, v2, 4, 1
    v_lshl_add_u32 v7, v8, 5, v7     ; g16*32 + (i&3)*8
    v_bfe_u32 v8, v2, 3, 1
    v_lshlrev_b32 v8, 6, v8          ; 64*bit3
    s_lshl_b32 s50, s46, 11          ; sh*2048
    ''')
    for t in range(3):
        e(f'''
        s_mul_i32 s51, s47, 3
        s_add_u32 s51, s51, {t}
        s_lshr_b32 s52, s51, 1
        s_and_b32 s51, s51, 1
        s_cmp_eq_u32 s7, 0
        s_cselect_b32 s52, {t}, s52
        s_cselect_b32 s51, s47, s51
        s_lshl_b32 s52, s52, 13
        s_add_u32 s52, s52, 16384
        s_lshl_b32 s51, s51, 6
        v_add_u32 v9, s51, v7
        v_xor_b32 v9, v9, v8
        v_add3_u32 v9, v9, v6, s52
        v_add_u32 v{WA+2*t}, s50, v9
        v_subrev_u32 v{WA+2*t+1}, s50, v9
        ''')
    for r in range(ACC,ACC+96+12): e(f'v_mov_b32 v{r}, 0')
    for r in range(FB,FB+20): e(f'v_mov_b32 v{r}, 0')
    e(f'''
    v_lshrrev_b32 v5, 4, v2
    v_xor_b32 v5, v5, v2
    v_and_b32 v5, 1, v5
    v_cmp_eq_u32 vcc, 0, v5
    v_mov_b32 v6, 0x3f803f80
    s_nop 0
    v_cndmask_b32 v{SEL}, 0, v6, vcc
    v_mov_b32 v{SEL+1}, v{SEL}
    v_mov_b32 v{SEL+2}, v{SEL}
    v_mov_b32 v{SEL+3}, v{SEL}
    s_mov_b32 s48, 8
    s_mov_b32 s49, 0
    ''')
    if opt.get('prio',1): e('s_setprio 3')
    e('''
    s_cmp_lg_u32 s7, 0
    s_cbranch_scc1 K1_CF
    ''')

def reads(p,buf):
    par=p&1
    L=[f'ds_read_b128 {vr(buf,4)}, v{XA+p}']
    L+=[f'ds_read_b64_tr_b16 {vr(buf+8,2)}, v{WA+par} offset:{p*2048}', f'ds_read_b64_tr_b16 {vr(buf+10,2)}, v{WA+par} offset:{p*2048+512}']
    L+=[f'ds_read_b128 {vr(buf+4,4)}, v{XA+p} offset:4096']
    for t in (1,2):
        L+=[f'ds_read_b64_tr_b16 {vr(buf+8+4*t,2)}, v{WA+2*t+par} offset:{p*2048}', f'ds_read_b64_tr_b16 {vr(buf+10+4*t,2)}, v{WA+2*t+par} offset:{p*2048+512}']
    return L
def mfmas(buf,ffn,cs):
    L=[]
    for t in range(3):
        for a in range(2):
            X=vr(buf+4*a,4); W=vr(buf+8+4*t,4); A=vr(acc(t,a),16)
            if ffn or t==0: L.append(f'v_mfma_f32_32x32x16_bf16 {A}, {W}, {X}, {A}')
            else: L.append(f'v_mfma_f32_32x32x16_bf16 {A}, {X}, {W}, {A}')
        if cs: L.append(f'v_mfma_f32_16x16x32_bf16 {vr(CS+4*t,4)}, {vr(SEL,4)}, {vr(buf+8+4*t,4)}, {vr(CS+4*t,4)}')
    return L
class DSQ:
    def __init__(self): self.q=[]
    def issue(self,tag): self.q.append(tag); assert len(self.q)<=15,len(self.q)
    def need(self,e,tags):
        idx=[i for i,t in enumerate(self.q) if t in tags]
        if not idx: return
        k=max(idx); n=len(self.q)-1-k
        e(f's_waitcnt lgkmcnt({n})'); self.q=self.q[k+1:]
    def all(self,e):
        if self.q: e('s_waitcnt lgkmcnt(0)')
        self.q=[]
def reads_t(p,buf,name):
    tags=['x0','w0','w0','x1','w1','w1','w2','w2']
    return [(x,name+t) for x,t in zip(reads(p,buf),tags)]
def mfmas_t(buf,ffn,cs,name):
    L=[]; m=mfmas(buf,ffn,cs); k=0
    for t in range(3):
        for a in range(2):
            L.append((m[k],{name+f'x{a}',name+f'w{t}'})); k+=1
        if cs: L.append((m[k],{name+f'w{t}'})); k+=1
    return L
def segment(e,q,ms,rs,pattern,extra=None):
    k=0
    for i,(m,nd) in enumerate(ms):
        q.need(e,nd)
        e(m)
        for _ in range(pattern[i] if i<len(pattern) else 0):
            if k<len(rs):
                x,tag=rs[k]; k+=1
                e(x)
                if tag: q.issue(tag)
    assert k==len(rs)
def mainloop(e,ffn,tag,opt={}):
    stamp(e,opt)
    if opt.get('x_nocomp1'):
        e(f'K1_ML{tag}:\ns_barrier\ns_sub_u32 s48, s48, 1\ns_cmp_lg_u32 s48, 0\ns_cbranch_scc1 K1_ML{tag}')
        stamp(e,opt); return
    e(f'K1_ML{tag}:')
    e('s_barrier')
    if opt.get('profloop'): stamp(e,opt)
    q=DSQ()
    pat=opt.get('rdpat',[3,3,2])
    segment(e,q,[(m,set()) for m in mfmas(FB,ffn,False)], reads_t(0,FA,'A'), pat)
    segment(e,q,mfmas_t(FA,ffn,True,'A'), reads_t(1,FB,'B'), pat)
    segment(e,q,mfmas_t(FB,ffn,False,'B'), reads_t(2,FA,'A'), pat)
    adv=['s_add_u32 s49, s49, s64', f's_cmp_eq_u32 s49, {4*SLOT}', 's_cselect_b32 s50, s65, s64', 's_cselect_b32 s49, 0, s49']
    upd=[f'v_add_u32 v{XA+i}, s50, v{XA+i}' for i in range(4)]+[f'v_add_u32 v{WA+i}, s50, v{WA+i}' for i in range(6)]
    rs=reads_t(3,FB,'B')+[(x,None) for x in adv+upd]
    segment(e,q,mfmas_t(FA,ffn,True,'A'), rs, pat+[4,2,2,2,2,2])
    q.all(e)
    e(f'''
    s_sub_u32 s48, s48, 1
    s_cmp_lg_u32 s48, 0
    s_cbranch_scc1 K1_ML{tag}
    ''')
    for x in mfmas(FB,ffn,False): e(x)
    stamp(e,opt)

def post(e,ffn,opt={}):
    e(f'''
    v_and_b32 v3, 15, v2
    s_mul_i32 s48, s46, 6
    s_mul_i32 s49, s47, 3
    s_add_u32 s48, s48, s49
    s_lshl_b32 s48, s48, 7
    v_lshl_add_u32 v3, v3, 2, s48
    ''')
    for t in range(3):
        e(f'ds_write_b32 v3, v{CS+4*t} offset:{CSP+t*128}')
        e(f'ds_write_b32 v3, v{CS+4*t+1} offset:{CSP+t*128+64}')
    e(f'''
    s_waitcnt lgkmcnt(0)
    s_barrier
    ''')
    stamp(e,opt)
    e(f'''
    v_and_b32 v3, 31, v2
    s_lshl_b32 s48, s46, 6
    v_add_u32 v4, s48, v3
    v_lshlrev_b32 v4, 5, v4
    ds_read_b128 v[{XF}:{XF+3}], v4 offset:{REC}
    ds_read_b128 v[{XF+4}:{XF+7}], v4 offset:{REC+1024}
    ds_read_b128 v[{KC}:{KC+3}], v4 offset:{REC+16}
    ds_read_b128 v[{KC+4}:{KC+7}], v4 offset:{REC+1024+16}
    s_mul_i32 s49, s47, 384
    v_lshl_add_u32 v5, v3, 2, s49
    ''')
    for t in range(3):
        e(f'ds_read_b32 v{8+2*t}, v5 offset:{CSP+t*128}')
        e(f'ds_read_b32 v{9+2*t}, v5 offset:{CSP+768+t*128}')
    e('''
    v_cmp_gt_u32 vcc, 32, v2
    s_nop 0
    s_waitcnt vmcnt(0) lgkmcnt(0)
    ''')
    for r in range(XF,XF+8):
        if (r-XF)%4!=3: e(f'v_cndmask_b32 v{r}, 0, v{r}, vcc')
    for t in range(3):
        w=WF+4*t
        e(f'''
        v_add_f32 v{8+2*t}, v{8+2*t}, v{9+2*t}
        v_cvt_pk_bf16_f32 v{w}, v{8+2*t}, v{8+2*t}
        v_lshlrev_b32 v{9+2*t}, 16, v{w}
        v_sub_f32 v{9+2*t}, v{8+2*t}, v{9+2*t}
        v_cvt_pk_bf16_f32 v{w+1}, v{9+2*t}, v{9+2*t}
        ''')
        if ffn:
            e(f'v_lshlrev_b32 v{w+2}, 16, v{BIA+t}')
            e(f'v_or_b32 v{w+2}, v{w+2}, v{BIA+t}')
        else:
            e(f'v_mov_b32 v{w+2}, 0')
        e(f'v_mov_b32 v{w+3}, 0')
    e('s_nop 1')
    for t in range(3):
        for a in range(2):
            A=vr(acc(t,a),16)
            if ffn or t==0: e(f'v_mfma_f32_32x32x16_bf16 {A}, {vr(WF+4*t,4)}, {vr(XF+4*a,4)}, {A}')
            else: e(f'v_mfma_f32_32x32x16_bf16 {A}, {vr(XF+4*a,4)}, {vr(WF+4*t,4)}, {A}')

def pk(op,d,a,b,c=None,sel=''):
    s=f'v_pk_{op}_f32 v[{d}:{d+1}], v[{a}:{a+1}], v[{b}:{b+1}]'
    if c is not None: s+=f', v[{c}:{c+1}]'
    return s+(' '+sel if sel else '')

def gelu_tile(t,a):
    A=acc(t,a); rs,cA=KC+4*a,KC+4*a+2
    L=[]
    for g in range(2):
        b=A+8*g
        R=range(0,8,2)
        for i in R: L.append(pk('mul',T0+i,b+i,b+i))
        for i in R: L.append(pk('fma',T0+i,T0+i,cA,cA,'op_sel:[0,0,1] op_sel_hi:[1,0,1]'))
        for i in R: L.append(pk('mul',T0+i,T0+i,b+i))
        for i in range(8): L.append(f'v_exp_f32 v{T0+i}, v{T0+i}')
        for i in R: L.append(pk('fma',T0+i,T0+i,rs,rs,'op_sel:[0,1,1] op_sel_hi:[1,1,1]'))
        for i in range(8): L.append(f'v_rcp_f32 v{T0+i}, v{T0+i}')
        L.append('s_nop 0')
        for i in R: L.append(pk('mul',T0+i,T0+i,b+i))
        for i in R: L.append(f'v_cvt_pk_bf16_f32 v{OUT+4*g+i//2}, v{T0+i}, v{T0+i+1}')
    return L

def store2(e,so,off,opt,tmp=53):
    fl=opt.get('stflag','')
    if off+1024>4095:
        e(f's_add_u32 s{tmp}, s{so}, {off}')
        so=tmp; off=0
    e(f'buffer_store_dwordx4 v[{OUT}:{OUT+3}], v4, s[16:19], s{so} offen offset:{off} {fl}')
    e(f'buffer_store_dwordx4 v[{OUT+4}:{OUT+7}], v4, s[16:19], s{so} offen offset:{off+1024} {fl}')

def ffn_path(e,opt):
    e('K1_CF:')
    mainloop(e,True,'F',opt)
    post(e,True,opt)
    stamp(e,opt)
    e(f'''
    v_lshlrev_b32 v4, 4, v2
    s_lshl_b32 s48, s4, 2
    s_lshl_b32 s49, s46, 1
    s_add_u32 s48, s48, s49           ; s-tile (a=0)
    s_mul_i32 s48, s48, 86
    s_mul_i32 s49, s47, 3
    s_add_u32 s49, s49, s44
    s_lshl_b32 s50, s49, 1
    s_add_u32 s48, s48, s50
    s_lshl_b32 s48, s48, 10
    s_add_u32 s51, s48, {86*1024}     ; a=1
    s_mul_i32 s52, s47, 3
    s_sub_u32 s52, s45, s52
    ''')
    for t in range(3):
        if t==2:
            e('s_cmp_lt_u32 s52, 3')
            e('s_cbranch_scc1 K1_END')
        for a in range(2):
            for x in gelu_tile(t,a): e(x)
            store2(e, 48 if a==0 else 51, t*2048, opt)
            stamp(e,opt)
    e('s_branch K1_END' if opt.get('prof') else 's_endpgm')

def qkv_path(e,opt):
    mainloop(e,False,'Q',opt)
    post(e,False,opt)
    stamp(e,opt)
    RS=48
    e(f'''
    v_lshlrev_b32 v4, 4, v2
    s_lshl_b32 s48, s4, 2
    s_lshl_b32 s49, s46, 1
    s_add_u32 s48, s48, s49           ; s-tile a=0
    s_lshl_b32 s48, s48, 5
    s_lshl_b32 s49, s5, 2
    s_lshl_b32 s50, s47, 1
    s_add_u32 s49, s49, s50
    s_add_u32 s48, s48, s49
    s_lshl_b32 s48, s48, 10
    s_add_u32 s48, s48, {WS_PQ}
    s_add_u32 s51, s48, {32*1024}
    s_mov_b32 s54, {hx(LOG2E)}
    s_mov_b32 s55, {hx(1e-6)}
    v_lshrrev_b32 v5, 5, v2
    v_lshlrev_b32 v5, 4, v5
    s_lshl_b32 s49, s46, 8
    v_add_u32 v5, s49, v5
    v_mul_f32 v6, s54, v{KC}
    v_mul_f32 v7, s54, v{KC+4}        ; a=1
    ''')
    for a in range(2):
        A=acc(0,a); rs=KC+4*a; rl=6+a
        for g in range(2):
            b=A+8*g
            for i in range(8): e(f'v_mul_f32 v{T0+i}, v{b+i}, v{rl}')
            for i in range(8): e(f'v_min_f32 v{T0+i}, 0, v{T0+i}')
            for i in range(8): e(f'v_exp_f32 v{T0+i}, v{T0+i}')
            for i in range(8): e(f'v_max_f32 v{T0+8+i}, 0, v{b+i}')
            for i in range(8): e(f'v_add_f32 v{T0+i}, s55, v{T0+i}')
            for i in range(8): e(f'v_fmac_f32 v{T0+i}, v{T0+8+i}, v{rs}')
            for i in range(0,8,2): e(f'v_cvt_pk_bf16_f32 v{OUT+4*g+i//2}, v{T0+i}, v{T0+i+1}')
        store2(e, 48 if a==0 else 51, 0, opt)
    stamp(e,opt)
    KV=acc(0,0); Z=acc(0,1)
    PK=96; VF=104
    ONE=112
    for r in range(4): e(f'v_mov_b32 v{ONE+r}, 0x3f803f80')
    for a in range(2):
        for g in range(4): e(f'ds_read_b128 v[{RS+4*g}:{RS+4*g+3}], v5 offset:{RSTD+a*128+g*32}')
        e('s_waitcnt lgkmcnt(0)')
        K=acc(1,a); V=acc(2,a)
        for g in range(2):
            b=K+8*g; r0=RS+8*g
            for i in range(8): e(f'v_mul_f32 v{T0+8+i}, v{b+i}, v{r0+i}')
            for i in range(8): e(f'v_mul_f32 v{T0+i}, s54, v{T0+8+i}')
            for i in range(8): e(f'v_min_f32 v{T0+i}, 0, v{T0+i}')
            for i in range(8): e(f'v_exp_f32 v{T0+i}, v{T0+i}')
            for i in range(8): e(f'v_max_f32 v{T0+8+i}, 0, v{T0+8+i}')
            for i in range(8): e(f'v_add_f32 v{T0+i}, s55, v{T0+i}')
            for i in range(8): e(f'v_add_f32 v{T0+i}, v{T0+i}, v{T0+8+i}')
            for i in range(0,8,2): e(f'v_cvt_pk_bf16_f32 v{PK+4*g+i//2}, v{T0+i}, v{T0+i+1}')
            bv=V+8*g
            for i in range(8): e(f'v_mul_f32 v{T0+i}, v{bv+i}, v{r0+i}')
            for i in range(0,8,2): e(f'v_cvt_pk_bf16_f32 v{VF+4*g+i//2}, v{T0+i}, v{T0+i+1}')
        e('s_nop 1')
        for g in range(2):
            c0 = '0' if (a==0 and g==0) else vr(KV,16)
            z0 = '0' if (a==0 and g==0) else vr(Z,16)
            e(f'v_mfma_f32_32x32x16_bf16 {vr(KV,16)}, {vr(PK+4*g,4)}, {vr(VF+4*g,4)}, {c0}')
            e(f'v_mfma_f32_32x32x16_bf16 {vr(Z,16)}, {vr(PK+4*g,4)}, {vr(ONE,4)}, {z0}')
    e(f'''
    v_and_b32 v8, 15, v2
    v_lshrrev_b32 v9, 5, v2
    v_lshl_add_u32 v8, v9, 4, v8
    v_lshlrev_b32 v8, 4, v8           ; (hiD*16+e)*16
    v_bfe_u32 v10, v2, 4, 1
    v_lshl_add_u32 v8, v10, 10, v8
    s_mul_i32 s48, s46, 4352
    s_lshl_b32 s49, s47, 11
    s_add_u32 s49, s48, s49
    v_add_u32 v8, s49, v8
    s_lshl_b32 s49, s47, 7
    s_add_u32 s49, s48, s49
    v_lshl_add_u32 v9, v9, 4, s49
    s_nop 7
    s_mov_b32 exec_lo, 0x0000ffff
    s_mov_b32 exec_hi, 0x0000ffff
    ds_write_b128 v8, v[{KV}:{KV+3}] offset:{KVP}
    ds_write_b128 v8, v[{KV+4}:{KV+7}] offset:{KVP+512}
    s_mov_b32 exec_lo, 0xffff0000
    s_mov_b32 exec_hi, 0xffff0000
    ds_write_b128 v8, v[{KV+8}:{KV+11}] offset:{KVP}
    ds_write_b128 v8, v[{KV+12}:{KV+15}] offset:{KVP+512}
    s_mov_b32 exec_lo, 1
    s_mov_b32 exec_hi, 1
    ds_write_b128 v9, v[{Z}:{Z+3}] offset:{KVP+4096}
    ds_write_b128 v9, v[{Z+4}:{Z+7}] offset:{KVP+4096+32}
    ds_write_b128 v9, v[{Z+8}:{Z+11}] offset:{KVP+4096+64}
    ds_write_b128 v9, v[{Z+12}:{Z+15}] offset:{KVP+4096+64+32}
    s_mov_b64 exec, -1
    ''')
    stamp(e,opt)
    e(f'''
    K1_KVRED:
    s_waitcnt lgkmcnt(0)
    s_barrier
    ''')
    stamp(e,opt)
    e(f'''
    v_lshlrev_b32 v3, 2, v0
    ds_read_b32 v8, v3 offset:{KVP}
    ds_read_b32 v9, v3 offset:{KVP+4352}
    ds_read_b32 v10, v3 offset:{KVP+2048}
    ds_read_b32 v11, v3 offset:{KVP+2048+4352}
    s_lshl_b32 s48, s5, 12
    s_add_u32 s48, s48, {WS_KV}
    s_waitcnt lgkmcnt(0)
    v_add_f32 v8, v8, v9
    v_add_f32 v10, v10, v11
    buffer_atomic_add_f32 v8, v3, s[16:19], s48 offen
    buffer_atomic_add_f32 v10, v3, s[16:19], s48 offen offset:2048
    s_cmp_lg_u32 s3, 0
    s_cbranch_scc1 K1_END
    ds_read_b32 v8, v3 offset:{KVP+4096}
    ds_read_b32 v9, v3 offset:{KVP+4096+4352}
    s_lshl_b32 s48, s5, 8
    s_add_u32 s48, s48, {WS_Z}
    s_waitcnt lgkmcnt(0)
    v_add_f32 v8, v8, v9
    buffer_atomic_add_f32 v8, v3, s[16:19], s48 offen
    ''')

def stamp_end(e):
    e(f'''
    s_memrealtime s[68:69]
    s_waitcnt lgkmcnt(0)
    s_lshl_b32 s70, s2, 3
    s_add_u32 s70, s70, s3
    s_lshl_b32 s70, s70, 3
    s_add_u32 s70, s70, {WS_TS}
    v_mov_b32 v8, s66
    v_mov_b32 v9, s68
    v_mov_b32 v10, 0
    buffer_store_dwordx2 v[8:9], v10, s[72:75], s70 offen
    ''')
def k1(opt):
    e=E()
    if opt.get('ts'):
        e('s_memrealtime s[66:67]')
    prologue(e,opt)
    if opt.get('ts'):
        pass
    loader(e,opt)
    cons_setup(e,opt)
    qkv_path(e,opt)
    e('K1_END:')
    if opt.get('prof'):
        e('s_waitcnt vmcnt(0)')
        stamp(e,opt)
        stamp_flush(e,opt,16,0,8)
    e('K1_EXIT0:')
    e('s_endpgm')
    ffn_path(e,opt)
    t=e.text()
    if opt.get('prof'):
        t=t.replace('s_cbranch_scc1 K1_END\n    s_load_dwordx4 s[28:31]','s_cbranch_scc1 K1_EXIT0\n    s_load_dwordx4 s[28:31]')
    if opt.get('ts'):
        e2=E(); stamp_end(e2); e2('s_endpgm')
        t=t.replace('s_cbranch_scc1 K1_END\n    s_load_dwordx4 s[28:31]','s_cbranch_scc1 K1_EXIT\n    s_load_dwordx4 s[28:31]')
        t=t.replace('K1_END:\nK1_EXIT0:\n    s_endpgm','K1_END:\n'+e2.text()+'K1_EXIT:\n    s_endpgm',1)
        i=t.rindex('s_endpgm'); t=t[:i]+'s_branch K1_END\n'
        e3=E(); srd(e3,72,38,WS_TS+256*8*8)
        t=t.replace('    s_cmp_lt_u32 s3, 4\n    s_cbranch_scc1 K1_CONS', e3.text()+'    s_cmp_lt_u32 s3, 4\n    s_cbranch_scc1 K1_CONS')
    return t
```

```python
from common import *
ACC=128
AR=64
KVR=88
BF=112
KVF=120
D1=16; D1B=32
OF=48
XR=192
WLDS=17408
NB=4
def acc(a,b): return ACC+(b*2+a)*16

def k2(opt):
    e=E()
    if opt.get('ts'): e('s_memrealtime s[66:67]')
    e(f'''
    s_cmp_ge_u32 s2, 256
    s_cbranch_scc1 K2_EXIT
    s_load_dwordx2 s[28:29], s[0:1], 0
    s_load_dwordx2 s[30:31], s[0:1], 16
    s_load_dwordx4 s[32:35], s[0:1], 48
    s_load_dwordx2 s[36:37], s[0:1], 64
    s_load_dwordx2 s[38:39], s[0:1], 80
    v_lshrrev_b32 v1, 6, v0
    v_and_b32 v2, 63, v0
    v_readfirstlane_b32 s3, v1
    s_and_b32 s8, s2, 7
    s_lshr_b32 s9, s2, 3
    s_and_b32 s4, s9, 3
    s_lshl_b32 s8, s8, 2
    s_add_u32 s4, s4, s8
    s_lshr_b32 s5, s9, 2              ; cb2 0..7
    s_mul_i32 s40, s3, 21
    s_add_u32 s40, s40, 3
    s_cmp_eq_u32 s3, 0
    s_cselect_b32 s40, 0, s40         ; f0
    s_cselect_b32 s41, 24, 21         ; nF
    s_mul_i32 s42, s3, 9
    s_sub_u32 s42, s42, 3
    s_cmp_eq_u32 s3, 0
    s_cselect_b32 s42, 0, s42         ; h0
    s_cselect_b32 s43, 6, 9
    s_cmp_eq_u32 s3, 3
    s_cselect_b32 s43, 8, s43         ; nH
    ''')
    if opt.get('rot2','on')=='on':
        e('s_mul_i32 s44, s5, s41\ns_lshr_b32 s44, s44, 3')
    else:
        e('s_mov_b32 s44, 0')
    e(f'''
    s_lshl_b32 s45, s4, 1             ; s-tile a=0
    s_mul_i32 s46, s45, 86
    s_add_u32 s47, s40, s44
    s_add_u32 s48, s46, s47
    s_lshl_b32 s48, s48, 10
    s_lshl_b32 s49, s47, 14
    s_sub_u32 s50, s41, s44           ; A left
    s_mov_b32 s51, s50                ; B left
    s_add_u32 s52, s46, s40
    s_lshl_b32 s52, s52, 10
    s_lshl_b32 s53, s40, 14
    s_lshl_b32 s54, s45, 5
    s_add_u32 s54, s54, s42
    s_lshl_b32 s54, s54, 10
    s_add_u32 s54, s54, {WS_PQ}
    s_lshl_b32 s55, s42, 14
    s_mul_i32 s56, s42, 1088
    s_add_u32 s56, s56, {WS_KV}
    s_mov_b32 s57, {86*1024}
    s_mov_b32 s60, 0
    s_mov_b32 s61, 0
    s_mul_i32 s62, s3, {WLDS}
    s_mov_b32 s63, s62
    s_add_u32 s64, s62, {NB*2048}
    s_mov_b32 s65, 0
    v_lshlrev_b32 v3, 4, v2
    v_lshrrev_b32 v4, 3, v2
    v_and_b32 v5, 7, v2
    v_bfe_u32 v6, v2, 4, 1
    v_lshlrev_b32 v6, 2, v6
    v_xor_b32 v5, v5, v6
    v_lshlrev_b32 v5, 4, v5
    v_lshl_add_u32 v4, v4, 10, v5
    s_lshl_b32 s70, s5, 7
    v_add_u32 v4, s70, v4
    v_add_u32 v5, 0x2000, v4          ; rows 8..15
    v_and_b32 v6, 31, v2
    v_min_u32 v6, 16, v6
    v_lshrrev_b32 v7, 5, v2
    v_mul_u32_u24 v8, 17, v7
    v_add_u32 v6, v6, v8
    v_lshlrev_b32 v6, 5, v6
    s_waitcnt lgkmcnt(0)
    ''')
    srd(e,8,38,(WS_PROF+2*256*8*256) if opt.get('prof') else WS_SIZE)
    srd(e,12,32,F*D*2)
    stamp_init(e,opt)
    stamp(e,opt)
    ldf=opt.get('aflag','')
    def issueB():
        lab=e.label('K2_BS'); l2=e.label('K2_BC')
        e(f'''
        s_cmp_eq_u32 s51, 0
        s_cbranch_scc1 {lab}
        s_mov_b32 m0, s63
        s_add_u32 s63, s63, 1024
        buffer_load_dwordx4 v4, s[12:15], s49 offen lds
        s_mov_b32 m0, s63
        s_add_u32 s63, s63, 1024
        buffer_load_dwordx4 v5, s[12:15], s49 offen lds
        s_cmp_eq_u32 s63, s64
        s_cselect_b32 s63, s62, s63
        s_add_u32 s49, s49, 16384
        s_sub_u32 s51, s51, 1
        s_cmp_lg_u32 s51, 0
        s_cbranch_scc1 {lab}
        s_add_u32 s61, s61, 1
        s_cmp_eq_u32 s61, 1
        s_cbranch_scc0 {l2}
        s_mov_b32 s49, s53
        s_mov_b32 s51, s44
        s_cmp_lg_u32 s44, 0
        s_cbranch_scc1 {lab}
        s_mov_b32 s61, 2
        {l2}:
        s_cmp_eq_u32 s61, 2
        s_cbranch_scc0 {lab}
        s_mov_b32 s49, s55
        s_mov_b32 s51, s43
        s_mov_b32 s12, s30
        s_and_b32 s13, s31, 0xffff
        s_mov_b32 s14, {D*D*2}
        {lab}:
        ''')
    def issueA(p):
        lab=e.label('K2_AS'); l2=e.label('K2_AC'); l3=e.label('K2_AK')
        e(f'''
        s_cmp_eq_u32 s50, 0
        s_cbranch_scc1 {lab}
        buffer_load_dwordx4 v[{AR+8*p}:{AR+8*p+3}], v3, s[8:11], s48 offen {ldf}
        s_add_u32 s70, s48, s57
        buffer_load_dwordx4 v[{AR+8*p+4}:{AR+8*p+7}], v3, s[8:11], s70 offen {ldf}
        s_add_u32 s48, s48, 1024
        s_cmp_eq_u32 s60, 2
        s_cbranch_scc0 {l3}
        buffer_load_dwordx4 v[{KVR+8*p}:{KVR+8*p+3}], v6, s[8:11], s56 offen {ldf}
        buffer_load_dwordx4 v[{KVR+8*p+4}:{KVR+8*p+7}], v6, s[8:11], s56 offen offset:16 {ldf}
        s_add_u32 s56, s56, 1088
        {l3}:
        s_sub_u32 s50, s50, 1
        s_cmp_lg_u32 s50, 0
        s_cbranch_scc1 {lab}
        s_add_u32 s60, s60, 1
        s_cmp_eq_u32 s60, 1
        s_cbranch_scc0 {l2}
        s_mov_b32 s48, s52
        s_mov_b32 s50, s44
        s_cmp_lg_u32 s44, 0
        s_cbranch_scc1 {lab}
        s_mov_b32 s60, 2
        {l2}:
        s_cmp_eq_u32 s60, 2
        s_cbranch_scc0 {lab}
        s_mov_b32 s48, s54
        s_mov_b32 s50, s43
        s_mov_b32 s57, {32*1024}
        {lab}:
        ''')
    for p in range(3):
        issueB(); issueA(p)
    srd(e,16,28,S*D*2)
    srd(e,20,36,S*D*2)
    srd(e,24,34,D*2)
    e(f'''
    v_lshrrev_b32 v9, 3, v0
    v_and_b32 v10, 7, v0
    v_lshlrev_b32 v10, 4, v10
    s_lshl_b32 s70, s4, 16            ; rb2*64*1024
    s_lshl_b32 s71, s5, 7
    s_add_u32 s70, s70, s71
    v_lshl_add_u32 v11, v9, 10, v10
    v_add_u32 v11, s70, v11
    buffer_load_dwordx4 v[{XR}:{XR+3}], v11, s[16:19], 0 offen
    v_add_u32 v12, 0x8000, v11
    buffer_load_dwordx4 v[{XR+4}:{XR+7}], v12, s[16:19], 0 offen
    v_add_u32 v13, s71, v10
    buffer_load_dwordx4 v[{XR+8}:{XR+11}], v13, s[24:27], 0 offen
    v_and_b32 v14, 15, v2
    v_lshrrev_b32 v14, 2, v14
    v_lshl_add_u32 v14, v7, 2, v14     ; 4hi + (i>>2)
    v_lshlrev_b32 v14, 7, v14
    v_and_b32 v15, 3, v2
    v_lshlrev_b32 v15, 3, v15
    v_bfe_u32 v8, v2, 4, 1
    v_lshl_add_u32 v15, v8, 5, v15
    v_bfe_u32 v8, v2, 3, 1
    v_lshlrev_b32 v8, 6, v8
    v_xor_b32 v15, v15, v8
    v_add3_u32 v14, v14, v15, s62      ; tile b=0
    v_xor_b32 v15, 64, v14             ; tile b=1
    s_mov_b32 s72, 2048
    s_mov_b32 s73, {-(NB-1)*2048 & 0xffffffff:#x}
    s_mov_b32 s74, {hx(1e-6)}
    ''')
    for r in range(ACC,ACC+64): e(f'v_mov_b32 v{r}, 0')
    def breads():
        return [f'ds_read_b64_tr_b16 v[{BF}:{BF+1}], v14',
                f'ds_read_b64_tr_b16 v[{BF+2}:{BF+3}], v14 offset:1024',
                f'ds_read_b64_tr_b16 v[{BF+4}:{BF+5}], v15',
                f'ds_read_b64_tr_b16 v[{BF+6}:{BF+7}], v15 offset:1024']
    def badv():
        return ['s_add_u32 s65, s65, 1', f's_cmp_eq_u32 s65, {NB}', 's_cselect_b32 s71, s73, s72', 's_cselect_b32 s65, 0, s65',
                'v_add_u32 v14, s71, v14', 'v_add_u32 v15, s71, v15']
    e('s_mov_b32 s75, s41')
    stamp(e,opt)
    e('K2_FL:')
    if opt.get('profloop'): stamp(e,opt)
    for p in range(3):
        issueB()
        e('s_waitcnt vmcnt(10)')
        for x in breads(): e(x)
        for x in badv(): e(x)
        e('s_waitcnt lgkmcnt(2)')
        for b in range(2):
            if b==1: e('s_waitcnt lgkmcnt(0)')
            for a in range(2):
                e(f'v_mfma_f32_32x32x16_bf16 {vr(acc(a,b),16)}, {vr(BF+4*b,4)}, {vr(AR+8*p+4*a,4)}, {vr(acc(a,b),16)}')
        issueA(p)
    e('''
    s_sub_u32 s75, s75, 3
    s_cmp_lg_u32 s75, 0
    s_cbranch_scc1 K2_FL
    ''')
    stamp(e,opt)
    e('s_mov_b32 s75, s43')
    e('K2_AL:')
    if opt.get('profloop'): stamp(e,opt)
    for p in range(3):
        l6=e.label('K2_W6'); l12=e.label('K2_W12'); l0=e.label('K2_W0'); lc=e.label('K2_WC')
        issueB()
        e(f'''
        s_cmp_gt_u32 s75, 3
        s_cbranch_scc0 {l12}
        s_waitcnt vmcnt(14)
        s_branch {lc}
        {l12}:
        s_cmp_eq_u32 s75, 3
        s_cbranch_scc0 {l6}
        s_waitcnt vmcnt(12)
        s_branch {lc}
        {l6}:
        s_cmp_eq_u32 s75, 2
        s_cbranch_scc0 {l0}
        s_waitcnt vmcnt(6)
        s_branch {lc}
        {l0}:
        s_waitcnt vmcnt(0)
        {lc}:
        ''')
        for x in breads(): e(x)
        for i in range(4): e(f'v_cvt_pk_bf16_f32 v{KVF+i}, v{KVR+8*p+2*i}, v{KVR+8*p+2*i+1}')
        for x in badv(): e(x)
        e(f'v_mfma_f32_32x32x16_bf16 {vr(D1,16)}, {vr(KVF,4)}, {vr(AR+8*p,4)}, 0')
        e(f'v_mfma_f32_32x32x16_bf16 {vr(D1B,16)}, {vr(KVF,4)}, {vr(AR+8*p+4,4)}, 0')
        issueA(p)
        e('s_nop 8')
        for a,Dr in ((0,D1),(1,D1B)):
            e(f'v_add_f32 v8, s74, v{Dr+8}')
            e(f'v_rcp_f32 v8, v8')
            e('s_nop 0')
            for i in range(8): e(f'v_mul_f32 v{Dr+i}, v{Dr+i}, v8')
            for i in range(4): e(f'v_cvt_pk_bf16_f32 v{OF+4*a+i}, v{Dr+2*i}, v{Dr+2*i+1}')
        e('s_waitcnt lgkmcnt(0)')
        e('s_nop 0')
        for b in range(2):
            for a in range(2):
                e(f'v_mfma_f32_32x32x16_bf16 {vr(acc(a,b),16)}, {vr(BF+4*b,4)}, {vr(OF+4*a,4)}, {vr(acc(a,b),16)}')
        e('s_sub_u32 s75, s75, 1')
        e('s_cmp_eq_u32 s75, 0')
        if p<2: e('s_cbranch_scc1 K2_EP')
        else: e('s_cbranch_scc0 K2_AL')
    e('K2_EP:')
    stamp(e,opt)
    e(f'''
    v_and_b32 v6, 31, v2
    v_mul_u32_u24 v6, 272, v6
    v_lshl_add_u32 v6, v7, 4, v6
    v_add_u32 v6, s62, v6
    s_nop 7
    s_nop 3
    ''')
    for a in range(2):
        for b in range(2):
            for g in range(4):
                off=a*32*272 + (32*b+8*g)*4
                e(f'ds_write_b128 v6, v[{acc(a,b)+4*g}:{acc(a,b)+4*g+3}] offset:{off}')
    e(f'''
    v_lshrrev_b32 v9, 3, v0
    v_and_b32 v10, 7, v0
    v_mul_u32_u24 v9, 272, v9
    v_lshl_add_u32 v9, v10, 5, v9
    s_mov_b32 s70, 0xffff0000
    s_waitcnt lgkmcnt(0)
    s_barrier
    ''')
    stamp(e,opt)
    for q in range(2):
        for w in range(4):
            off=w*WLDS+q*32*272
            e(f'ds_read_b128 v[{16+8*w+32*q}:{19+8*w+32*q}], v9 offset:{off}')
            e(f'ds_read_b128 v[{20+8*w+32*q}:{23+8*w+32*q}], v9 offset:{off+16}')
    for q in range(2):
        e(f's_waitcnt lgkmcnt({8*(1-q)})')
        B0=16+32*q
        for i in range(8):
            e(f'v_add_f32 v{B0+i}, v{B0+i}, v{B0+8+i}')
            e(f'v_add_f32 v{B0+16+i}, v{B0+16+i}, v{B0+24+i}')
        for i in range(8): e(f'v_add_f32 v{B0+i}, v{B0+i}, v{B0+16+i}')
        for i in range(4):
            e(f'v_lshlrev_b32 v{B0+8}, 16, v{XR+4*q+i}')
            e(f'v_and_b32 v{B0+9}, s70, v{XR+4*q+i}')
            e(f'v_lshlrev_b32 v{B0+10}, 16, v{XR+8+i}')
            e(f'v_and_b32 v{B0+11}, s70, v{XR+8+i}')
            e(f'v_add_f32 v{B0+8}, v{B0+8}, v{B0+10}')
            e(f'v_add_f32 v{B0+9}, v{B0+9}, v{B0+11}')
            e(f'v_add_f32 v{B0+2*i}, v{B0+2*i}, v{B0+8}')
            e(f'v_add_f32 v{B0+2*i+1}, v{B0+2*i+1}, v{B0+9}')
        for i in range(4): e(f'v_cvt_pk_bf16_f32 v{80+4*q+i}, v{B0+2*i}, v{B0+2*i+1}')
        e(f'buffer_store_dwordx4 v[{80+4*q}:{83+4*q}], v{11+q}, s[20:23], 0 offen')
    e('K2_END:')
    if opt.get('prof'):
        e('s_waitcnt vmcnt(0)')
        stamp(e,opt)
        stamp_flush(e,opt,8,1,4)
    if opt.get('ts'):
        e(f'''
        s_waitcnt vmcnt(0)
        s_memrealtime s[68:69]
        s_mov_b32 s76, s38
        s_and_b32 s77, s39, 0xffff
        s_mov_b32 s78, {WS_TS+2*256*8*8}
        s_mov_b32 s79, 0x20000
        s_waitcnt lgkmcnt(0)
        s_lshl_b32 s70, s2, 3
        s_add_u32 s70, s70, s3
        s_lshl_b32 s70, s70, 3
        s_add_u32 s70, s70, {WS_TS+256*8*8}
        v_mov_b32 v8, s66
        v_mov_b32 v9, s68
        v_mov_b32 v10, 0
        buffer_store_dwordx2 v[8:9], v10, s[76:79], s70 offen
        ''')
    e('K2_EXIT:')
    e('s_endpgm')
    return e.text()

def k3_ts():
    e=E()
    e(f'''
    s_cmp_ge_u32 s2, 1
    s_cbranch_scc1 K3_END
    s_load_dwordx4 s[36:39], s[0:1], 72
    s_waitcnt lgkmcnt(0)
    s_mov_b32 s72, s36
    s_and_b32 s73, s37, 0xffff
    s_mov_b32 s74, 256
    s_mov_b32 s75, 0x20000
    s_mov_b32 s76, s38
    s_and_b32 s77, s39, 0xffff
    s_mov_b32 s78, {WS_TS+2*256*8*8}
    s_mov_b32 s79, 0x20000
    v_lshlrev_b32 v3, 6, v0
    s_mov_b32 s80, {WS_TS}
    s_mov_b32 s81, {WS_TS+256*8*8}
    ''')
    for i in range(4): e(f'buffer_load_dwordx4 v[{8+4*i}:{11+4*i}], v3, s[76:79], s80 offen offset:{16*i}')
    for i in range(4): e(f'buffer_load_dwordx4 v[{24+4*i}:{27+4*i}], v3, s[76:79], s81 offen offset:{16*i}')
    e('s_waitcnt vmcnt(0)')
    for i in range(1,8):
        e(f'v_min_u32 v8, v8, v{8+2*i}')
        e(f'v_max_u32 v9, v9, v{9+2*i}')
    for i in range(1,8):
        e(f'v_min_u32 v24, v24, v{24+2*i}')
        e(f'v_max_u32 v25, v25, v{25+2*i}')
    e('''
    v_not_b32 v40, v8
    v_not_b32 v41, v24
    v_mov_b32 v4, 0
    buffer_atomic_umax v40, v4, s[72:75], 0 offen
    buffer_atomic_umax v9, v4, s[72:75], 0 offen offset:4
    buffer_atomic_umax v41, v4, s[72:75], 0 offen offset:8
    buffer_atomic_umax v25, v4, s[72:75], 0 offen offset:12
    buffer_atomic_umax v8, v4, s[72:75], 0 offen offset:16
    v_not_b32 v42, v9
    buffer_atomic_umax v42, v4, s[72:75], 0 offen offset:20
    buffer_atomic_umax v24, v4, s[72:75], 0 offen offset:24
    v_not_b32 v43, v25
    buffer_atomic_umax v43, v4, s[72:75], 0 offen offset:28
    K3_END:
    s_endpgm
    ''')
    return e.text()
```

```python
from common import *
from k1 import DSQ
SLOT=40960; NS=3
AOFF=0; BOFF=16384; KOFF=32768
ZL=NS*SLOT
XL=ZL+2048
B2L=XL+8192
OL=B2L+1024
LDS_BYTES=OL+16384
ACC=128
F0=64
MASK=0x4888
NST=15

def k2(opt):
    e=E()
    if opt.get('ts'): e('s_memrealtime s[66:67]')
    e(f'''
    s_cmp_ge_u32 s2, 256
    s_cbranch_scc1 K2_EXIT
    s_load_dwordx2 s[28:29], s[0:1], 0
    s_load_dwordx2 s[30:31], s[0:1], 16
    s_load_dwordx4 s[32:35], s[0:1], 48
    s_load_dwordx2 s[36:37], s[0:1], 64
    s_load_dwordx2 s[38:39], s[0:1], 80
    v_lshrrev_b32 v1, 6, v0
    v_and_b32 v2, 63, v0
    v_readfirstlane_b32 s3, v1
    s_and_b32 s8, s2, 7
    s_lshr_b32 s9, s2, 3
    s_and_b32 s4, s9, 3
    s_lshl_b32 s8, s8, 2
    s_add_u32 s4, s4, s8
    s_lshr_b32 s5, s9, 2              ; cb2 0..7
    s_mov_b32 s40, {opt.get('mask2',MASK)}
    s_mov_b32 s64, {SLOT}
    s_mov_b32 s65, {-(NS-1)*SLOT & 0xffffffff:#x}
    s_cmp_lt_u32 s3, 4
    s_cbranch_scc1 K2_COMP
    ''')
    e(f'''
    s_and_b32 s46, s3, 3              ; lw
    ''')
    if opt.get('rot2','on')=='on':
        e('s_and_b32 s42, s4, 3\ns_mul_i32 s41, s42, 3\ns_add_u32 s41, s41, s5\ns_cmp_ge_u32 s41, 11\ns_cselect_b32 s43, 11, 0\ns_sub_u32 s41, s41, s43\ns_add_u32 s42, s42, s5\ns_and_b32 s42, s42, 3')
    else:
        e('s_mov_b32 s41, 0\ns_mov_b32 s42, 0')
    e(f'''
    s_lshl_b32 s45, s4, 1             ; s-tile 0
    s_mul_i32 s47, s45, {86*1024}
    s_lshl_b32 s48, s45, 15
    s_add_u32 s48, s48, {WS_PQ}
    v_lshlrev_b32 v3, 4, v2
    s_lshl_b32 s49, s46, 11
    v_add_u32 v3, s49, v3
    v_lshrrev_b32 v4, 3, v2
    v_and_b32 v5, 7, v2
    v_bfe_u32 v6, v2, 4, 1
    v_lshlrev_b32 v6, 2, v6
    v_xor_b32 v5, v5, v6
    v_lshlrev_b32 v5, 4, v5
    v_lshl_add_u32 v4, v4, 10, v5
    s_lshl_b32 s49, s5, 7
    s_lshl_b32 s50, s46, 15
    s_add_u32 s49, s49, s50
    v_add_u32 v4, s49, v4
    v_add_u32 v5, 0x2000, v4
    v_add_u32 v6, 0x4000, v4
    v_add_u32 v7, 0x6000, v4
    s_lshl_b32 s54, s46, 11
    s_lshl_b32 s55, s46, 12
    s_add_u32 s55, s55, {BOFF}
    s_mov_b32 s53, 0                  ; slot
    s_mov_b32 s52, 0
    s_waitcnt lgkmcnt(0)
    ''')
    srd(e,8,38,(WS_PROF+2*256*8*256) if opt.get('prof') else WS_SIZE)
    srd(e,12,32,F*D*2)
    srd(e,16,30,D*D*2)
    srd(e,20,28,S*D*2)
    srd(e,24,34,D*2)
    stamp_init(e,opt); stamp(e,opt)
    af=opt.get('aflag','')
    def issue(tag):
        la=f'K2_IA{tag}'; lc=f'K2_IC{tag}'
        if opt.get('x_nodma2'):
            e('s_add_u32 s52, s52, 1'); return
        e(f'''
        s_add_u32 s58, s53, s54
        s_add_u32 s59, s53, s55
        s_bitcmp1_b32 s40, s52
        s_cbranch_scc1 {la}
        s_lshl_b32 s56, s41, 13
        s_add_u32 s56, s56, s47
        s_mov_b32 m0, s58
        s_lshl_b32 s60, s41, 17
        buffer_load_dwordx4 v3, s[8:11], s56 offen {af} lds
        buffer_load_dwordx4 v3, s[8:11], s56 offen offset:1024 {af} lds
        s_add_u32 m0, s58, 8192
        s_add_u32 s56, s56, {86*1024}
        buffer_load_dwordx4 v3, s[8:11], s56 offen {af} lds
        buffer_load_dwordx4 v3, s[8:11], s56 offen offset:1024 {af} lds
        s_mov_b32 m0, s59
        s_add_u32 s41, s41, 1
        buffer_load_dwordx4 v4, s[12:15], s60 offen lds
        s_add_u32 m0, s59, 1024
        s_cmp_eq_u32 s41, 11
        buffer_load_dwordx4 v5, s[12:15], s60 offen lds
        s_cselect_b32 s41, 0, s41
        s_add_u32 m0, s59, 2048
        s_nop 0
        buffer_load_dwordx4 v6, s[12:15], s60 offen lds
        s_add_u32 m0, s59, 3072
        s_nop 0
        buffer_load_dwordx4 v7, s[12:15], s60 offen lds
        s_branch {lc}
        {la}:
        s_lshl_b32 s56, s42, 13
        s_add_u32 s57, s56, {WS_KV}
        s_add_u32 s56, s56, s48
        s_mov_b32 m0, s58
        s_lshl_b32 s60, s42, 17
        buffer_load_dwordx4 v3, s[8:11], s56 offen {af} lds
        buffer_load_dwordx4 v3, s[8:11], s56 offen offset:1024 {af} lds
        s_add_u32 m0, s58, 8192
        s_add_u32 s56, s56, {32*1024}
        buffer_load_dwordx4 v3, s[8:11], s56 offen {af} lds
        buffer_load_dwordx4 v3, s[8:11], s56 offen offset:1024 {af} lds
        s_add_u32 m0, s58, {KOFF}
        s_add_u32 s42, s42, 1
        buffer_load_dwordx4 v3, s[8:11], s57 offen {af} lds
        buffer_load_dwordx4 v3, s[8:11], s57 offen offset:1024 {af} lds
        s_mov_b32 m0, s59
        s_and_b32 s42, s42, 3
        buffer_load_dwordx4 v4, s[16:19], s60 offen lds
        s_add_u32 m0, s59, 1024
        s_nop 0
        buffer_load_dwordx4 v5, s[16:19], s60 offen lds
        s_add_u32 m0, s59, 2048
        s_nop 0
        buffer_load_dwordx4 v6, s[16:19], s60 offen lds
        s_add_u32 m0, s59, 3072
        s_nop 0
        buffer_load_dwordx4 v7, s[16:19], s60 offen lds
        {lc}:
        s_add_u32 s52, s52, 1
        s_add_u32 s53, s53, s64
        s_cmp_eq_u32 s53, {NS*SLOT}
        s_cselect_b32 s53, 0, s53
        ''')
    issue('0')
    e(f'''
    v_lshrrev_b32 v8, 3, v2
    v_and_b32 v9, 7, v2
    v_xor_b32 v9, v9, v8
    v_lshlrev_b32 v9, 4, v9
    v_lshl_add_u32 v9, v8, 10, v9
    s_lshl_b32 s56, s4, 16
    s_lshl_b32 s57, s5, 7
    s_add_u32 s56, s56, s57
    s_lshl_b32 s57, s46, 14
    s_add_u32 s56, s56, s57
    s_lshl_b32 s57, s46, 11
    s_add_u32 m0, s57, {XL}
    s_nop 0
    buffer_load_dwordx4 v9, s[20:23], s56 offen lds
    s_add_u32 m0, s57, {XL+1024}
    s_add_u32 s56, s56, 8192
    buffer_load_dwordx4 v9, s[20:23], s56 offen lds
    v_lshlrev_b32 v8, 4, v2
    s_cmp_lt_u32 s46, 2
    s_cbranch_scc0 K2_NZ
    s_lshl_b32 s57, s46, 10
    s_add_u32 m0, s57, {ZL}
    s_add_u32 s56, s57, {WS_Z}
    buffer_load_dwordx4 v8, s[8:11], s56 offen {af} lds
    s_branch K2_NZE
    K2_NZ:
    v_and_b32 v8, 7, v2
    v_lshlrev_b32 v8, 4, v8
    s_lshl_b32 s56, s5, 7
    s_mov_b32 m0, {B2L}
    s_nop 0
    buffer_load_dwordx4 v8, s[24:27], s56 offen lds
    K2_NZE:
    ''')
    issue('1')
    e(f'''
    s_mov_b32 s51, 0
    K2_LL:
    s_cmp_eq_u32 s51, {NST-1}
    s_cbranch_scc1 K2_LW0
    s_waitcnt vmcnt(8)
    s_branch K2_LW1
    K2_LW0:
    s_waitcnt vmcnt(0)
    K2_LW1:
    ''')
    stamp(e,opt) if opt.get('profloop') else None
    e('s_barrier')
    e(f'''
    s_cmp_ge_u32 s51, {NST-2}
    s_cbranch_scc1 K2_LNI
    ''')
    issue('L')
    e(f'''
    K2_LNI:
    s_bitcmp1_b32 s40, s51
    s_cbranch_scc0 K2_LNB
    s_barrier
    K2_LNB:
    s_add_u32 s51, s51, 1
    s_cmp_lg_u32 s51, {NST}
    s_cbranch_scc1 K2_LL
    s_branch K2_END
    ''')
    e('K2_COMP:')
    e(f'''
    s_and_b32 s46, s3, 1              ; a
    s_lshr_b32 s47, s3, 1             ; b
    v_lshrrev_b32 v7, 5, v2           ; hi
    v_lshlrev_b32 v13, 4, v2
    s_lshl_b32 s48, s46, 13
    v_add_u32 v13, s48, v13
    v_and_b32 v14, 15, v2
    v_lshrrev_b32 v14, 2, v14
    v_lshl_add_u32 v14, v7, 2, v14     ; 4hi + (i>>2)
    v_lshlrev_b32 v14, 7, v14
    v_and_b32 v15, 3, v2
    v_lshlrev_b32 v15, 3, v15
    v_bfe_u32 v8, v2, 4, 1
    v_lshl_add_u32 v15, v8, 5, v15
    s_lshl_b32 s48, s47, 6
    v_add_u32 v15, s48, v15
    v_bfe_u32 v8, v2, 3, 1
    v_lshlrev_b32 v8, 6, v8
    v_xor_b32 v15, v15, v8
    v_add_u32 v14, v14, v15
    v_add_u32 v14, {BOFF}, v14         ; B read
    v_and_b32 v9, 31, v2
    v_lshl_add_u32 v10, v7, 4, v9
    v_lshlrev_b32 v10, 4, v10
    v_add_u32 v10, {KOFF}, v10
    v_lshlrev_b32 v11, 4, v7
    v_add_u32 v11, {ZL}, v11
    v_cmp_gt_u32 vcc, 16, v9
    v_mov_b32 v16, 64
    v_mov_b32 v17, 0x400
    v_mov_b32 v18, 32
    v_mov_b32 v19, 0x200
    v_cndmask_b32 v16, v16, v17, vcc
    v_cndmask_b32 v18, v18, v19, vcc
    s_mov_b64 s[70:71], vcc
    s_mov_b32 s74, {hx(1e-6)}
    s_mov_b32 s52, 0
    s_mov_b32 s53, 0
    ''')
    if opt.get('rot2','on')=='on': e('s_and_b32 s42, s4, 3\ns_add_u32 s42, s42, s5\ns_and_b32 s42, s42, 3')
    else: e('s_mov_b32 s42, 0')
    for r in range(ACC,ACC+16): e(f'v_mov_b32 v{r}, 0')
    e('s_waitcnt lgkmcnt(0)')
    srd(e,8,38,(WS_PROF+2*256*8*256) if opt.get('prof') else WS_SIZE)
    srd(e,20,36,S*D*2)
    stamp_init(e,opt); stamp(e,opt)
    if opt.get('prio',1): e('s_setprio 3')
    e('K2_CL:')
    e('s_barrier')
    if opt.get('profloop'): stamp(e,opt)
    if opt.get('x_nocomp2'): e('s_branch K2_CN')
    e('s_bitcmp1_b32 s40, s52')
    e('s_cbranch_scc1 K2_CA')
    q=DSQ()
    def frd(s):
        b=F0+8*s
        return [(f'ds_read_b128 v[{b}:{b+3}], v13 offset:{s*1024}',f'a{s}'),
                (f'ds_read_b64_tr_b16 v[{b+4}:{b+5}], v14 offset:{s*2048}',f'b{s}'),
                (f'ds_read_b64_tr_b16 v[{b+6}:{b+7}], v14 offset:{s*2048+1024}',f'b{s}')]
    for s in range(4):
        for x,t in frd(s): e(x); q.issue(t)
    for s in range(8):
        q.need(e,{f'a{s}',f'b{s}'})
        b=F0+8*s
        e(f'v_mfma_f32_32x32x16_bf16 {vr(ACC,16)}, {vr(b+4,4)}, {vr(b,4)}, {vr(ACC,16)}')
        if s<4:
            for x,t in frd(s+4): e(x); q.issue(t)
    e('s_branch K2_CN')
    e('K2_CA:')
    e(f'''
    v_add_u32 v20, s53, v10
    s_lshl_b32 s48, s42, 9            ; 8 heads * 64 B
    v_add_u32 v21, s48, v11
    s_add_u32 s42, s42, 1
    s_and_b32 s42, s42, 3
    v_cndmask_b32 v20, v21, v20, s[70:71]
    s_lshl_b32 s48, s47, 2            ; 4b
    v_mad_u32_u24 v20, v16, s48, v20  ; + 4b heads
    v_add_u32 v21, v20, v18
    s_lshl_b32 s48, s47, 12
    v_add_u32 v22, s48, v13
    ''')
    q=DSQ()
    DB=[32,48]
    KF=24
    OWN=112
    def ard(h):
        b=F0+12*h
        return [(f'ds_read_b128 v[{b}:{b+3}], v20',f'k{h}'),(f'ds_read_b128 v[{b+4}:{b+7}], v21',f'k{h}'),
           (f'ds_read_b128 v[{b+8}:{b+11}], v22 offset:{h*1024}',f'p{h}')]
    for h in range(4):
        for x,t in ard(h): e(x); q.issue(t)
        if h<3: e('v_add_u32 v20, v20, v16'); e('v_add_u32 v21, v21, v16')
    def fin(h):
        Dr=DB[h%2]
        e(f'v_add_f32 v8, s74, v{Dr+8}')
        e(f'v_rcp_f32 v8, v8')
        e('s_nop 0')
        for i in range(8): e(f'v_mul_f32 v{Dr+i}, v{Dr+i}, v8')
        for i in range(4): e(f'v_cvt_pk_bf16_f32 v{OWN+4*h+i}, v{Dr+2*i}, v{Dr+2*i+1}')
        e(f'ds_write_b128 v23, v[{OWN+4*h}:{OWN+4*h+3}] offset:{h*1024}')
    e(f'''
    v_lshlrev_b32 v23, 4, v2
    s_lshl_b32 s48, s46, 13
    s_lshl_b32 s49, s47, 12
    s_add_u32 s48, s48, s49
    s_add_u32 s48, s48, {OL}
    v_add_u32 v23, s48, v23
    s_xor_b32 s49, s47, 1
    s_lshl_b32 s49, s49, 12
    s_lshl_b32 s48, s46, 13
    s_add_u32 s48, s48, s49
    s_add_u32 s48, s48, {OL}
    v_lshlrev_b32 v19, 4, v2
    v_add_u32 v19, s48, v19
    ''')
    for h in range(4):
        b=F0+12*h
        q.need(e,{f'k{h}',f'p{h}'})
        for i in range(4): e(f'v_cvt_pk_bf16_f32 v{KF+i}, v{b+2*i}, v{b+2*i+1}')
        e('s_nop 1')
        e(f'v_mfma_f32_32x32x16_bf16 {vr(DB[h%2],16)}, {vr(KF,4)}, {vr(b+8,4)}, 0')
        if h==1: e('s_nop 3')
        if h>0: fin(h-1)
    fin(3)
    e('s_lshl_b32 s48, s47, 13')
    e('v_add_u32 v24, s48, v14')
    e('s_xor_b32 s48, s48, 8192')
    e('v_add_u32 v25, s48, v14')
    q=DSQ()
    WB=F0
    e('s_waitcnt lgkmcnt(0)')
    for h in range(4):
        e(f'ds_read_b64_tr_b16 v[{WB+4*h}:{WB+4*h+1}], v24 offset:{h*2048}'); q.issue(f'w{h}')
        e(f'ds_read_b64_tr_b16 v[{WB+4*h+2}:{WB+4*h+3}], v24 offset:{h*2048+1024}'); q.issue(f'w{h}')
    e('s_barrier')
    PO=96
    def prd(h):
        e(f'ds_read_b128 v[{PO+4*h}:{PO+4*h+3}], v19 offset:{h*1024}'); q.issue(f'o{h}')
        e(f'ds_read_b64_tr_b16 v[{WB+16+4*h}:{WB+16+4*h+1}], v25 offset:{h*2048}'); q.issue(f'x{h}')
        e(f'ds_read_b64_tr_b16 v[{WB+16+4*h+2}:{WB+16+4*h+3}], v25 offset:{h*2048+1024}'); q.issue(f'x{h}')
    prd(0); prd(1)
    for h in range(4):
        q.need(e,{f'w{h}'})
        e(f'v_mfma_f32_32x32x16_bf16 {vr(ACC,16)}, {vr(WB+4*h,4)}, {vr(OWN+4*h,4)}, {vr(ACC,16)}')
        if h==0: prd(2)
        if h==2: prd(3)
    for h in range(4):
        q.need(e,{f'o{h}',f'x{h}'})
        e(f'v_mfma_f32_32x32x16_bf16 {vr(ACC,16)}, {vr(WB+16+4*h,4)}, {vr(PO+4*h,4)}, {vr(ACC,16)}')
    e('K2_CN:')
    e(f'''
    s_waitcnt lgkmcnt(0)
    s_add_u32 s53, s53, s64
    s_cmp_eq_u32 s53, {NS*SLOT}
    s_cselect_b32 s50, s65, s64
    s_cselect_b32 s53, 0, s53
    v_add_u32 v13, s50, v13
    v_add_u32 v14, s50, v14
    s_add_u32 s52, s52, 1
    s_cmp_lg_u32 s52, {NST}
    s_cbranch_scc1 K2_CL
    ''')
    stamp(e,opt)
    e(f'''
    v_and_b32 v9, 31, v2
    s_lshl_b32 s48, s46, 5
    v_add_u32 v9, s48, v9
    v_and_b32 v10, 7, v9              ; row&7
    s_lshl_b32 s49, s47, 2
    v_lshlrev_b32 v11, 7, v9
    v_lshl_add_u32 v11, v7, 3, v11
    v_add_u32 v11, {XL}, v11
    v_lshlrev_b32 v12, 3, v7
    s_lshl_b32 s50, s47, 6
    v_add_u32 v12, s50, v12
    v_add_u32 v12, {B2L}, v12         ; b2: b*64 + hi*8
    ''')
    for g in range(4):
        e(f'v_add_u32 v16, s49, {g}' if False else f'v_mov_b32 v16, s49')
        e(f'v_add_u32 v16, {g}, v16')
        e(f'v_xor_b32 v16, v16, v10')
        e(f'v_lshl_add_u32 v16, v16, 4, v11')
        e(f'ds_read_b64 v[{32+2*g}:{33+2*g}], v16')
        e(f'ds_read_b64 v[{40+2*g}:{41+2*g}], v12 offset:{g*16}')
    e(f'''
    s_mov_b32 s70, 0xffff0000
    s_lshl_b32 s48, s4, 6
    v_add_u32 v17, s48, v9
    v_lshlrev_b32 v17, 10, v17
    s_lshl_b32 s48, s5, 7
    s_lshl_b32 s49, s47, 6
    s_add_u32 s48, s48, s49
    v_lshl_add_u32 v17, v7, 4, v17
    v_add_u32 v17, s48, v17
    s_waitcnt lgkmcnt(0)
    ''')
    for g in range(4):
        for c2 in range(2):
            xr=32+2*g+c2; br=40+2*g+c2; a0=ACC+4*g+2*c2
            e(f'''
            v_lshlrev_b32 v20, 16, v{xr}
            v_and_b32 v21, s70, v{xr}
            v_lshlrev_b32 v22, 16, v{br}
            v_and_b32 v23, s70, v{br}
            v_add_f32 v20, v20, v22
            v_add_f32 v21, v21, v23
            v_add_f32 v20, v20, v{a0}
            v_add_f32 v21, v21, v{a0+1}
            v_cvt_pk_bf16_f32 v{48+2*g+c2}, v20, v21
            ''')
    e('''
    s_nop 1
    v_permlane32_swap_b32 v48, v50
    v_permlane32_swap_b32 v49, v51
    v_permlane32_swap_b32 v52, v54
    v_permlane32_swap_b32 v53, v55
    buffer_store_dwordx4 v[48:51], v17, s[20:23], 0 offen
    buffer_store_dwordx4 v[52:55], v17, s[20:23], 0 offen offset:32
    ''')
    e('K2_END:')
    if opt.get('prof'):
        e('s_waitcnt vmcnt(0)')
        stamp(e,opt)
        stamp_flush(e,opt,8,1,8)
    if opt.get('ts'):
        e(f'''
        s_waitcnt vmcnt(0)
        s_memrealtime s[68:69]
        s_mov_b32 s76, s38
        s_and_b32 s77, s39, 0xffff
        s_mov_b32 s78, {WS_TS+2*256*8*8}
        s_mov_b32 s79, 0x20000
        s_waitcnt lgkmcnt(0)
        s_lshl_b32 s70, s2, 3
        s_add_u32 s70, s70, s3
        s_lshl_b32 s70, s70, 3
        s_add_u32 s70, s70, {WS_TS+256*8*8}
        v_mov_b32 v8, s66
        v_mov_b32 v9, s68
        v_mov_b32 v10, 0
        buffer_store_dwordx2 v[8:9], v10, s[76:79], s70 offen
        ''')
    e('K2_EXIT:')
    e('s_endpgm')
    return e.text()
```

```python
import sys, json
from common import *
import k1, k2, k2b
PRE=open('parallel_sum__linear_attn_block__dense_activation_gelu__prompt.s.ref').read().split('; Override launch')[0]
def build(opt):
    o=PRE
    o+='; Two launches: k1 = LN-folded qkv / ffn1 GEMMs (+phi, gelu, kv sums), k2 = output GEMM (attention finish, ffn2, residual).\n'
    o+='; @launch kernel=k1_kernel grid=(256,1,1) block=(512,1,1) lds=163840\n'
    o+=f'; @launch kernel=k2_kernel grid=(256,1,1) block=(512,1,1) lds={k2b.LDS_BYTES}\n'
    if opt.get('ts'): o+='; @launch kernel=k3_kernel grid=(1,1,1) block=(256,1,1) lds=0\n'
    o+=HEADER
    o+=kernel_begin('k1_kernel')+k1.k1(opt)
    o+=kernel_begin('k2_kernel')+k2b.k2(opt)
    if opt.get('ts'): o+=kernel_begin('k3_kernel')+k2.k3_ts()
    o+=RODATA+kernel_desc('k1_kernel',248 if opt.get('prof') else 240,102,248 if opt.get('prof') else 240)
    o+='.p2align 6\n'+kernel_desc('k2_kernel',248 if opt.get('prof') else 144,102,248 if opt.get('prof') else 144)
    if opt.get('ts'): o+='.p2align 6\n'+kernel_desc('k3_kernel',64,96,64)
    return o
if __name__=='__main__':
    opt=json.loads(sys.argv[2]) if len(sys.argv)>2 else {}
    open(sys.argv[1],'w').write(build(opt))
```

```python
from common import *

REC=0
RSTD=4096
CSP=4608
KVP=8192
SLOT=40960

ACC=128
CS=224
SEL=236
FA=64; FB=84
XA=104
WA=108
BIA=114
XF=64
KC=72
WF=80
T0=8
OUT=40

def acc(t,a): return ACC+(t*2+a)*16

def prologue(e,opt):
    e(f'''
    s_cmp_ge_u32 s2, 256
    s_cbranch_scc1 K1_END
    s_load_dwordx4 s[28:31], s[0:1], 0
    s_load_dwordx4 s[32:35], s[0:1], 32
    s_load_dwordx4 s[36:39], s[0:1], 72
    v_lshrrev_b32 v1, 6, v0
    v_and_b32 v2, 63, v0
    v_readfirstlane_b32 s3, v1
    s_and_b32 s8, s2, 7
    s_lshr_b32 s9, s2, 3
    s_and_b32 s10, s9, 7
    s_lshr_b32 s11, s9, 3
    s_lshr_b32 s4, s8, 2
    s_lshl_b32 s4, s4, 3
    s_add_u32 s4, s4, s10             ; rb
    s_and_b32 s5, s8, 3
    s_lshl_b32 s5, s5, 1
    s_and_b32 s12, s11, 1
    s_add_u32 s5, s5, s12
    s_lshr_b32 s7, s11, 1
    s_lshl_b32 s12, s7, 3
    s_add_u32 s5, s5, s12             ; cb
    ''')
    rot=opt.get('rot','half')
    if rot=='none': e('s_mov_b32 s6, 0')
    elif rot=='half': e('s_add_u32 s6, s10, s11\ns_and_b32 s6, s6, 1\ns_lshl_b32 s6, s6, 2')
    elif rot=='quarter': e('s_add_u32 s6, s10, s11\ns_and_b32 s6, s6, 3\ns_lshl_b32 s6, s6, 1')
    elif rot=='full': e('s_lshl_b32 s6, s11, 1\ns_add_u32 s6, s6, s10\ns_and_b32 s6, s6, 7')
    e(f'''
    s_and_b32 s12, s5, 7
    s_mul_i32 s13, s12, 6
    s_mul_i32 s14, s12, 5
    s_add_u32 s14, s14, 3
    s_min_u32 s44, s13, s14
    s_cmp_lt_u32 s12, 3
    s_cselect_b32 s45, 6, 5
    s_lshl_b32 s13, s12, 7
    s_lshl_b32 s14, s44, 6
    s_mov_b32 s40, 2752
    s_mov_b32 s15, 128
    s_cmp_eq_u32 s7, 0
    s_cselect_b32 s40, 3072, s40
    s_cselect_b32 s41, s13, s14
    s_cselect_b32 s15, 1024, s15
    s_add_u32 s42, s41, s15
    s_add_u32 s43, s42, s15
    s_mov_b32 s64, {SLOT}
    s_mov_b32 s65, {-3*SLOT & 0xffffffff:#x}
    s_waitcnt lgkmcnt(0)
    ''')
    srd(e,8,28,S*D*2)
    e(f'''
    s_cmp_eq_u32 s7, 0
    s_cselect_b32 s12, s30, s32
    s_cselect_b32 s13, s31, s33
    s_mov_b32 s14, {D*F*2}
    s_cselect_b32 s14, {D*3*D*2}, s14
    s_and_b32 s13, s13, 0xffff
    s_mov_b32 s15, 0x20000
    ''')
    srd(e,16,38,(WS_PROF+2*256*8*256) if opt.get('prof') else WS_SIZE)
    stamp_init(e,opt)
    stamp(e,opt)
    srd(e,20,34,F*2)
    srd(e,24,36,256)
    if opt.get('spin'):
        e(f'''
        s_memrealtime s[90:91]
        s_mov_b32 s92, s38
        s_and_b32 s93, s39, 0xffff
        s_mov_b32 s94, {WS_TS+4096}
        s_mov_b32 s95, 0x20000
        s_waitcnt lgkmcnt(0)
        s_add_u32 s89, s2, s3
        s_cmp_lg_u32 s89, 0
        s_cbranch_scc1 K1_NOST
        v_mov_b32 v8, s90
        v_mov_b32 v9, 0
        s_mov_b32 s89, {WS_TS}
        buffer_store_dword v8, v9, s[92:95], s89 offen sc1
        K1_NOST:
        ''')
    e('''
    s_cmp_lt_u32 s3, 4
    s_cbranch_scc1 K1_CONS
    ''')

def loader(e,opt):
    e('''
    s_and_b32 s46, s3, 3
    v_lshrrev_b32 v3, 3, v2
    v_and_b32 v4, 7, v2
    v_lshrrev_b32 v5, 4, v2
    v_xor_b32 v6, v4, v5
    v_lshlrev_b32 v6, 4, v6
    v_lshl_add_u32 v10, v3, 10, v6
    s_lshl_b32 s47, s4, 17
    s_lshl_b32 s48, s46, 15
    s_add_u32 s47, s47, s48
    v_add_u32 v10, s47, v10
    v_xor_b32 v11, 64, v10
    v_add_u32 v11, 0x2000, v11
    v_add_u32 v12, 0x4000, v10
    v_add_u32 v13, 0x4000, v11
    v_and_b32 v5, 1, v5
    v_lshlrev_b32 v5, 2, v5
    v_xor_b32 v4, v4, v5
    v_lshlrev_b32 v4, 4, v4
    s_lshl_b32 s47, s46, 4
    v_add_u32 v14, s47, v3
    v_mul_lo_u32 v14, v14, s40
    v_add_u32 v14, v14, v4
    s_lshl_b32 s47, s40, 3
    v_add_u32 v15, s47, v14
    s_lshl_b32 s54, s46, 12
    s_lshl_b32 s55, s46, 11
    s_add_u32 s55, s55, 16384
    s_lshl_b32 s56, s40, 6
    s_mov_b32 s48, s6
    s_mov_b32 s53, 0
    ''')
    def stage_addr():
        return ['s_lshl_b32 s49, s48, 7','s_mul_i32 s50, s48, s56','s_add_u32 s51, s50, s42',
                's_add_u32 s52, s50, s43','s_add_u32 s50, s50, s41',
                's_add_u32 s58, s53, s54','s_add_u32 s59, s53, s55']
    def stage_adv():
        return ['s_add_u32 s48, s48, 1','s_and_b32 s48, s48, 7',
                f's_add_u32 s53, s53, s64', f's_cmp_eq_u32 s53, {4*SLOT}','s_cselect_b32 s53, 0, s53']
    def dma():
        L=[]
        if opt.get('x_nodma1'): return [['s_nop 0']]*10
        for i in range(4):
            L.append([f's_add_u32 m0, s58, {i*1024}', 's_nop 0', f'buffer_load_dwordx4 v{10+i}, s[8:11], s49 offen lds'])
        for sub in range(3):
            for h in range(2):
                L.append([f's_add_u32 m0, s59, {sub*8192+h*1024}', 's_nop 0', f'buffer_load_dwordx4 v{14+h}, s[12:15], s{50+sub} offen lds'])
        return L
    e('s_mov_b32 s47, 2')
    e('K1_LI:')
    for x in stage_addr(): e(x)
    for g in dma():
        for x in g: e(x)
    for x in stage_adv(): e(x)
    e('''
    s_sub_u32 s47, s47, 1
    s_cmp_lg_u32 s47, 0
    s_cbranch_scc1 K1_LI
    v_and_b32 v3, 31, v2
    v_lshrrev_b32 v4, 5, v2
    v_lshrrev_b32 v5, 1, v3
    v_and_b32 v5, 7, v5
    v_lshlrev_b32 v4, 2, v4
    v_xor_b32 v5, v5, v4
    v_lshlrev_b32 v5, 4, v5
    v_lshl_add_u32 v16, v3, 7, v5
    s_lshl_b32 s47, s46, 12
    v_add_u32 v16, s47, v16
    v_xor_b32 v17, 16, v16
    v_xor_b32 v18, 32, v16
    v_xor_b32 v19, 48, v16
    v_mov_b32 v36, 0
    v_mov_b32 v37, 0
    v_mov_b32 v38, 0
    v_mov_b32 v39, 0
    s_mov_b32 s60, 0xffff0000
    s_mov_b32 s61, 0
    s_mov_b32 s62, 0
    ''')
    def stats_reads(): return [f'ds_read_b128 v[{20+4*j}:{23+4*j}], v{16+j}' for j in range(4)]
    def stats_valu():
        L=[]
        if opt.get('x_nostats'): return L
        for d in range(16):
            t=40+2*(d%4)
            L+= [f'v_lshlrev_b32 v{t}, 16, v{20+d}', f'v_and_b32 v{t+1}, s60, v{20+d}',
                 f'v_add_f32 v36, v36, v{t}', f'v_add_f32 v37, v37, v{t+1}',
                 f'v_fmac_f32 v38, v{t}, v{t}', f'v_fmac_f32 v39, v{t+1}, v{t+1}']
        return L
    def stats_adv():
        return ['s_add_u32 s61, s61, s64', f's_cmp_eq_u32 s61, {4*SLOT}', 's_cselect_b32 s63, s65, s64', 's_cselect_b32 s61, 0, s61']+\
               [f'v_add_u32 v{16+j}, s63, v{16+j}' for j in range(4)]
    stamp(e,opt)
    e('s_mov_b32 s47, 6')
    e('K1_LM:')
    e('s_waitcnt vmcnt(10)')
    stamp(e,opt)
    e('s_barrier')
    for x in stats_reads(): e(x)
    for x in stage_addr(): e(x)
    e('s_lshr_b32 s68, s46, 1')
    e('s_mov_b32 s69, 2')
    e('K1_PH:')
    e('s_cmp_eq_u32 s68, 0')
    e('s_cbranch_scc0 K1_PHS')
    for g in dma():
        for x in g: e(x)
    e('s_branch K1_PHE')
    e('K1_PHS:')
    e('s_waitcnt lgkmcnt(0)')
    for x in stats_valu(): e(x)
    e('K1_PHE:')
    e('s_xor_b32 s68, s68, 1')
    e('s_sub_u32 s69, s69, 1')
    e('s_cmp_lg_u32 s69, 0')
    e('s_cbranch_scc1 K1_PH')
    for x in stage_adv(): e(x)
    for x in stats_adv(): e(x)
    e('''
    s_sub_u32 s47, s47, 1
    s_cmp_lg_u32 s47, 0
    s_cbranch_scc1 K1_LM
    s_waitcnt vmcnt(10)
    s_mov_b32 s62, 0
    K1_SO:
    ''')
    stamp(e,opt)
    e('s_barrier')
    for x in stats_reads(): e(x)
    e('s_waitcnt lgkmcnt(0)')
    for x in stats_valu(): e(x)
    for x in stats_adv(): e(x)
    e(f'''
    s_cmp_lg_u32 s62, 0
    s_cbranch_scc1 K1_LDONE
    s_mov_b32 s62, 1
    s_waitcnt vmcnt(0)
    s_branch K1_SO
    K1_LDONE:
    v_add_f32 v36, v36, v37
    v_add_f32 v38, v38, v39
    v_mov_b32 v37, v36
    v_mov_b32 v39, v38
    s_nop 1
    v_permlane32_swap_b32 v36, v37
    v_permlane32_swap_b32 v38, v39
    v_add_f32 v36, v36, v37
    v_add_f32 v38, v38, v39
    v_mul_f32 v36, {hx(-1.0/512)}, v36          ; -mean
    v_mul_f32 v38, {hx(1.0/512)}, v38
    v_fma_f32 v38, -v36, v36, v38               ; var
    v_max_f32 v38, 0, v38
    v_add_f32 v38, {hx(1e-5)}, v38
    v_rsq_f32 v44, v38                          ; rstd
    v_cvt_pk_bf16_f32 v40, v36, v36
    v_mul_f32 v45, v38, v44                     ; sigma
    v_lshlrev_b32 v40, 16, v40
    v_sub_f32 v41, v36, v40
    v_cvt_pk_bf16_f32 v40, v40, v41             ; d0
    v_mov_b32 v41, v40                          ; d1
    v_cvt_pk_bf16_f32 v42, v45, v45
    v_lshlrev_b32 v42, 16, v42
    v_sub_f32 v43, v45, v42
    v_cvt_pk_bf16_f32 v42, v42, v43             ; d2
    v_mov_b32 v43, 0
    v_mul_f32 v46, v44, v44
    v_mul_f32 v46, v46, v44
    v_mul_f32 v46, {hx(GC2)}, v46               ; cA
    v_mul_f32 v47, {hx(GC1)}, v44               ; cB
    v_and_b32 v3, 31, v2
    s_lshl_b32 s47, s46, 5
    v_add_u32 v3, s47, v3                       ; row
    v_lshlrev_b32 v4, 5, v3
    ds_write_b128 v4, v[40:43] offset:{REC}
    ds_write_b128 v4, v[44:47] offset:{REC+16}
    v_lshlrev_b32 v4, 2, v3
    ds_write_b32 v4, v44 offset:{RSTD}
    s_cmp_lg_u32 s7, 0
    s_cbranch_scc1 K1_LE1
    s_cmp_lg_u32 s3, 4
    s_cbranch_scc1 K1_LE1
    s_lshl_b32 s47, s5, 2
    v_mov_b32 v4, s47
    s_mov_b32 s48, 0x40000
    K1_POLL:
    buffer_load_dword v5, v4, s[24:27], 0 offen sc1
    s_waitcnt vmcnt(0)
    v_readfirstlane_b32 s47, v5
    s_sub_u32 s48, s48, 1
    s_cmp_lg_u32 s47, 0
    s_cbranch_scc1 K1_LE1
    s_sleep 4
    s_cmp_lg_u32 s48, 0
    s_cbranch_scc1 K1_POLL
    K1_LE1:
    s_waitcnt lgkmcnt(0)
    s_barrier
    s_cmp_lg_u32 s7, 0
    s_cbranch_scc1 K1_END
    s_branch K1_KVRED
    ''')

def cons_setup(e,opt):
    e('K1_CONS:')
    e(f'''
    s_and_b32 s46, s3, 1          ; sh
    s_lshr_b32 s47, s3, 1         ; nh
    s_cmp_lg_u32 s7, 0
    s_cbranch_scc1 K1_NOZ
    s_cmp_lg_u32 s4, 0
    s_cbranch_scc1 K1_NOZ
    s_cmp_lg_u32 s3, 0
    s_cbranch_scc1 K1_NOZ
    v_mov_b32 v8, 0
    v_mov_b32 v9, 0
    v_mov_b32 v10, 0
    v_mov_b32 v11, 0
    v_lshlrev_b32 v4, 4, v2
    s_lshl_b32 s48, s5, 12
    s_add_u32 s48, s48, {WS_KV}
    buffer_store_dwordx4 v[8:11], v4, s[16:19], s48 offen sc1
    buffer_store_dwordx4 v[8:11], v4, s[16:19], s48 offen offset:1024 sc1
    buffer_store_dwordx4 v[8:11], v4, s[16:19], s48 offen offset:2048 sc1
    buffer_store_dwordx4 v[8:11], v4, s[16:19], s48 offen offset:3072 sc1
    s_mov_b32 exec_lo, 0xffff
    s_mov_b32 exec_hi, 0
    s_lshl_b32 s48, s5, 8
    s_add_u32 s48, s48, {WS_Z}
    buffer_store_dwordx4 v[8:11], v4, s[16:19], s48 offen sc1
    s_waitcnt vmcnt(0)
    s_mov_b32 exec_lo, 1
    v_mov_b32 v5, 1
    s_lshl_b32 s48, s5, 2
    v_mov_b32 v4, s48
    buffer_store_dword v5, v4, s[24:27], 0 offen sc1
    s_mov_b64 exec, -1
    K1_NOZ:
    v_and_b32 v3, 31, v2             ; r32
    v_lshrrev_b32 v4, 5, v2          ; hi
    s_mul_i32 s48, s47, 3
    s_add_u32 s48, s48, s44
    s_lshl_b32 s49, s48, 6
    v_lshl_add_u32 v5, v3, 1, s49
    buffer_load_ushort v{BIA}, v5, s[20:23], 0 offen
    buffer_load_ushort v{BIA+1}, v5, s[20:23], 0 offen offset:64
    buffer_load_ushort v{BIA+2}, v5, s[20:23], 0 offen offset:128
    v_lshrrev_b32 v5, 1, v3
    v_and_b32 v5, 7, v5
    v_xor_b32 v5, v5, v4
    v_lshlrev_b32 v5, 4, v5
    v_lshl_add_u32 v5, v3, 7, v5
    s_lshl_b32 s49, s46, 13
    v_add_u32 v5, s49, v5
    s_lshl_b32 s49, s46, 5
    v_xor_b32 v{XA}, s49, v5
    v_xor_b32 v{XA+1}, 32, v5
    v_xor_b32 v{XA+1}, s49, v{XA+1}
    v_xor_b32 v{XA+2}, 64, v{XA}
    v_xor_b32 v{XA+3}, 64, v{XA+1}
    v_and_b32 v6, 15, v2
    v_lshrrev_b32 v6, 2, v6
    v_lshl_add_u32 v6, v4, 3, v6
    v_lshlrev_b32 v6, 7, v6          ; (8hi + i>>2)*128
    v_and_b32 v7, 3, v2
    v_lshlrev_b32 v7, 3, v7
    v_bfe_u32 v8, v2, 4, 1
    v_lshl_add_u32 v7, v8, 5, v7     ; g16*32 + (i&3)*8
    v_bfe_u32 v8, v2, 3, 1
    v_lshlrev_b32 v8, 6, v8          ; 64*bit3
    s_lshl_b32 s50, s46, 11          ; sh*2048
    ''')
    for t in range(3):
        e(f'''
        s_mul_i32 s51, s47, 3
        s_add_u32 s51, s51, {t}
        s_lshr_b32 s52, s51, 1
        s_and_b32 s51, s51, 1
        s_cmp_eq_u32 s7, 0
        s_cselect_b32 s52, {t}, s52
        s_cselect_b32 s51, s47, s51
        s_lshl_b32 s52, s52, 13
        s_add_u32 s52, s52, 16384
        s_lshl_b32 s51, s51, 6
        v_add_u32 v9, s51, v7
        v_xor_b32 v9, v9, v8
        v_add3_u32 v9, v9, v6, s52
        v_add_u32 v{WA+2*t}, s50, v9
        v_subrev_u32 v{WA+2*t+1}, s50, v9
        ''')
    for r in range(ACC,ACC+96+12): e(f'v_mov_b32 v{r}, 0')
    for r in range(FB,FB+20): e(f'v_mov_b32 v{r}, 0')
    e(f'''
    v_lshrrev_b32 v5, 4, v2
    v_xor_b32 v5, v5, v2
    v_and_b32 v5, 1, v5
    v_cmp_eq_u32 vcc, 0, v5
    v_mov_b32 v6, 0x3f803f80
    s_nop 0
    v_cndmask_b32 v{SEL}, 0, v6, vcc
    v_mov_b32 v{SEL+1}, v{SEL}
    v_mov_b32 v{SEL+2}, v{SEL}
    v_mov_b32 v{SEL+3}, v{SEL}
    s_mov_b32 s48, 8
    s_mov_b32 s49, 0
    ''')
    if opt.get('prio',1): e('s_setprio 3')
    e('''
    s_cmp_lg_u32 s7, 0
    s_cbranch_scc1 K1_CF
    ''')

def reads(p,buf):
    par=p&1
    L=[f'ds_read_b128 {vr(buf,4)}, v{XA+p}']
    L+=[f'ds_read_b64_tr_b16 {vr(buf+8,2)}, v{WA+par} offset:{p*2048}', f'ds_read_b64_tr_b16 {vr(buf+10,2)}, v{WA+par} offset:{p*2048+512}']
    L+=[f'ds_read_b128 {vr(buf+4,4)}, v{XA+p} offset:4096']
    for t in (1,2):
        L+=[f'ds_read_b64_tr_b16 {vr(buf+8+4*t,2)}, v{WA+2*t+par} offset:{p*2048}', f'ds_read_b64_tr_b16 {vr(buf+10+4*t,2)}, v{WA+2*t+par} offset:{p*2048+512}']
    return L
def mfmas(buf,ffn,cs):
    L=[]
    for t in range(3):
        for a in range(2):
            X=vr(buf+4*a,4); W=vr(buf+8+4*t,4); A=vr(acc(t,a),16)
            if ffn or t==0: L.append(f'v_mfma_f32_32x32x16_bf16 {A}, {W}, {X}, {A}')
            else: L.append(f'v_mfma_f32_32x32x16_bf16 {A}, {X}, {W}, {A}')
        if cs: L.append(f'v_mfma_f32_16x16x32_bf16 {vr(CS+4*t,4)}, {vr(SEL,4)}, {vr(buf+8+4*t,4)}, {vr(CS+4*t,4)}')
    return L
class DSQ:
    def __init__(self): self.q=[]
    def issue(self,tag): self.q.append(tag); assert len(self.q)<=15,len(self.q)
    def need(self,e,tags):
        idx=[i for i,t in enumerate(self.q) if t in tags]
        if not idx: return
        k=max(idx); n=len(self.q)-1-k
        e(f's_waitcnt lgkmcnt({n})'); self.q=self.q[k+1:]
    def all(self,e):
        if self.q: e('s_waitcnt lgkmcnt(0)')
        self.q=[]
def reads_t(p,buf,name):
    tags=['x0','w0','w0','x1','w1','w1','w2','w2']
    return [(x,name+t) for x,t in zip(reads(p,buf),tags)]
def mfmas_t(buf,ffn,cs,name):
    L=[]; m=mfmas(buf,ffn,cs); k=0
    for t in range(3):
        for a in range(2):
            L.append((m[k],{name+f'x{a}',name+f'w{t}'})); k+=1
        if cs: L.append((m[k],{name+f'w{t}'})); k+=1
    return L
def segment(e,q,ms,rs,pattern,extra=None):
    k=0
    for i,(m,nd) in enumerate(ms):
        q.need(e,nd)
        e(m)
        for _ in range(pattern[i] if i<len(pattern) else 0):
            if k<len(rs):
                x,tag=rs[k]; k+=1
                e(x)
                if tag: q.issue(tag)
    assert k==len(rs)
def mainloop(e,ffn,tag,opt={}):
    stamp(e,opt)
    if opt.get('x_nocomp1'):
        e(f'K1_ML{tag}:\ns_barrier\ns_sub_u32 s48, s48, 1\ns_cmp_lg_u32 s48, 0\ns_cbranch_scc1 K1_ML{tag}')
        stamp(e,opt); return
    e(f'K1_ML{tag}:')
    e('s_barrier')
    if opt.get('profloop'): stamp(e,opt)
    q=DSQ()
    pat=opt.get('rdpat',[3,3,2])
    segment(e,q,[(m,set()) for m in mfmas(FB,ffn,False)], reads_t(0,FA,'A'), pat)
    segment(e,q,mfmas_t(FA,ffn,True,'A'), reads_t(1,FB,'B'), pat)
    segment(e,q,mfmas_t(FB,ffn,False,'B'), reads_t(2,FA,'A'), pat)
    adv=['s_add_u32 s49, s49, s64', f's_cmp_eq_u32 s49, {4*SLOT}', 's_cselect_b32 s50, s65, s64', 's_cselect_b32 s49, 0, s49']
    upd=[f'v_add_u32 v{XA+i}, s50, v{XA+i}' for i in range(4)]+[f'v_add_u32 v{WA+i}, s50, v{WA+i}' for i in range(6)]
    rs=reads_t(3,FB,'B')+[(x,None) for x in adv+upd]
    segment(e,q,mfmas_t(FA,ffn,True,'A'), rs, pat+[4,2,2,2,2,2])
    q.all(e)
    e(f'''
    s_sub_u32 s48, s48, 1
    s_cmp_lg_u32 s48, 0
    s_cbranch_scc1 K1_ML{tag}
    ''')
    for x in mfmas(FB,ffn,False): e(x)
    stamp(e,opt)

def post(e,ffn,opt={}):
    e(f'''
    v_and_b32 v3, 15, v2
    s_mul_i32 s48, s46, 6
    s_mul_i32 s49, s47, 3
    s_add_u32 s48, s48, s49
    s_lshl_b32 s48, s48, 7
    v_lshl_add_u32 v3, v3, 2, s48
    ''')
    for t in range(3):
        e(f'ds_write_b32 v3, v{CS+4*t} offset:{CSP+t*128}')
        e(f'ds_write_b32 v3, v{CS+4*t+1} offset:{CSP+t*128+64}')
    e(f'''
    s_waitcnt lgkmcnt(0)
    s_barrier
    ''')
    stamp(e,opt)
    e(f'''
    v_and_b32 v3, 31, v2
    s_lshl_b32 s48, s46, 6
    v_add_u32 v4, s48, v3
    v_lshlrev_b32 v4, 5, v4
    ds_read_b128 v[{XF}:{XF+3}], v4 offset:{REC}
    ds_read_b128 v[{XF+4}:{XF+7}], v4 offset:{REC+1024}
    ds_read_b128 v[{KC}:{KC+3}], v4 offset:{REC+16}
    ds_read_b128 v[{KC+4}:{KC+7}], v4 offset:{REC+1024+16}
    s_mul_i32 s49, s47, 384
    v_lshl_add_u32 v5, v3, 2, s49
    ''')
    for t in range(3):
        e(f'ds_read_b32 v{8+2*t}, v5 offset:{CSP+t*128}')
        e(f'ds_read_b32 v{9+2*t}, v5 offset:{CSP+768+t*128}')
    e('''
    v_cmp_gt_u32 vcc, 32, v2
    s_nop 0
    s_waitcnt vmcnt(0) lgkmcnt(0)
    ''')
    for r in range(XF,XF+8):
        if (r-XF)%4!=3: e(f'v_cndmask_b32 v{r}, 0, v{r}, vcc')
    for t in range(3):
        w=WF+4*t
        e(f'''
        v_add_f32 v{8+2*t}, v{8+2*t}, v{9+2*t}
        v_cvt_pk_bf16_f32 v{w}, v{8+2*t}, v{8+2*t}
        v_lshlrev_b32 v{9+2*t}, 16, v{w}
        v_sub_f32 v{9+2*t}, v{8+2*t}, v{9+2*t}
        v_cvt_pk_bf16_f32 v{w+1}, v{9+2*t}, v{9+2*t}
        ''')
        if ffn:
            e(f'v_lshlrev_b32 v{w+2}, 16, v{BIA+t}')
            e(f'v_or_b32 v{w+2}, v{w+2}, v{BIA+t}')
        else:
            e(f'v_mov_b32 v{w+2}, 0')
        e(f'v_mov_b32 v{w+3}, 0')
    e('s_nop 1')
    for t in range(3):
        for a in range(2):
            A=vr(acc(t,a),16)
            if ffn or t==0: e(f'v_mfma_f32_32x32x16_bf16 {A}, {vr(WF+4*t,4)}, {vr(XF+4*a,4)}, {A}')
            else: e(f'v_mfma_f32_32x32x16_bf16 {A}, {vr(XF+4*a,4)}, {vr(WF+4*t,4)}, {A}')

def pk(op,d,a,b,c=None,sel=''):
    s=f'v_pk_{op}_f32 v[{d}:{d+1}], v[{a}:{a+1}], v[{b}:{b+1}]'
    if c is not None: s+=f', v[{c}:{c+1}]'
    return s+(' '+sel if sel else '')

def gelu_tile(t,a):
    A=acc(t,a); rs,cA=KC+4*a,KC+4*a+2
    L=[]
    for g in range(2):
        b=A+8*g
        R=range(0,8,2)
        for i in R: L.append(pk('mul',T0+i,b+i,b+i))
        for i in R: L.append(pk('fma',T0+i,T0+i,cA,cA,'op_sel:[0,0,1] op_sel_hi:[1,0,1]'))
        for i in R: L.append(pk('mul',T0+i,T0+i,b+i))
        for i in range(8): L.append(f'v_exp_f32 v{T0+i}, v{T0+i}')
        for i in R: L.append(pk('fma',T0+i,T0+i,rs,rs,'op_sel:[0,1,1] op_sel_hi:[1,1,1]'))
        for i in range(8): L.append(f'v_rcp_f32 v{T0+i}, v{T0+i}')
        L.append('s_nop 0')
        for i in R: L.append(pk('mul',T0+i,T0+i,b+i))
        for i in R: L.append(f'v_cvt_pk_bf16_f32 v{OUT+4*g+i//2}, v{T0+i}, v{T0+i+1}')
    return L

def store2(e,so,off,opt,tmp=53):
    fl=opt.get('stflag','')
    if off+1024>4095:
        e(f's_add_u32 s{tmp}, s{so}, {off}')
        so=tmp; off=0
    e(f'buffer_store_dwordx4 v[{OUT}:{OUT+3}], v4, s[16:19], s{so} offen offset:{off} {fl}')
    e(f'buffer_store_dwordx4 v[{OUT+4}:{OUT+7}], v4, s[16:19], s{so} offen offset:{off+1024} {fl}')

def ffn_path(e,opt):
    e('K1_CF:')
    mainloop(e,True,'F',opt)
    post(e,True,opt)
    stamp(e,opt)
    e(f'''
    v_lshlrev_b32 v4, 4, v2
    s_lshl_b32 s48, s4, 2
    s_lshl_b32 s49, s46, 1
    s_add_u32 s48, s48, s49           ; s-tile (a=0)
    s_mul_i32 s48, s48, 86
    s_mul_i32 s49, s47, 3
    s_add_u32 s49, s49, s44
    s_lshl_b32 s50, s49, 1
    s_add_u32 s48, s48, s50
    s_lshl_b32 s48, s48, 10
    s_add_u32 s51, s48, {86*1024}     ; a=1
    s_mul_i32 s52, s47, 3
    s_sub_u32 s52, s45, s52
    ''')
    for t in range(3):
        if t==2:
            e('s_cmp_lt_u32 s52, 3')
            e('s_cbranch_scc1 K1_END')
        for a in range(2):
            for x in gelu_tile(t,a): e(x)
            store2(e, 48 if a==0 else 51, t*2048, opt)
            stamp(e,opt)
    e('s_branch K1_END' if opt.get('prof') else 's_endpgm')

def qkv_path(e,opt):
    mainloop(e,False,'Q',opt)
    post(e,False,opt)
    stamp(e,opt)
    RS=48
    e(f'''
    v_lshlrev_b32 v4, 4, v2
    s_lshl_b32 s48, s4, 2
    s_lshl_b32 s49, s46, 1
    s_add_u32 s48, s48, s49           ; s-tile a=0
    s_lshl_b32 s48, s48, 5
    s_lshl_b32 s49, s5, 2
    s_lshl_b32 s50, s47, 1
    s_add_u32 s49, s49, s50
    s_add_u32 s48, s48, s49
    s_lshl_b32 s48, s48, 10
    s_add_u32 s48, s48, {WS_PQ}
    s_add_u32 s51, s48, {32*1024}
    s_mov_b32 s54, {hx(LOG2E)}
    s_mov_b32 s55, {hx(1e-6)}
    v_lshrrev_b32 v5, 5, v2
    v_lshlrev_b32 v5, 4, v5
    s_lshl_b32 s49, s46, 8
    v_add_u32 v5, s49, v5
    v_mul_f32 v6, s54, v{KC}
    v_mul_f32 v7, s54, v{KC+4}        ; a=1
    ''')
    for a in range(2):
        A=acc(0,a); rs=KC+4*a; rl=6+a
        for g in range(2):
            b=A+8*g
            for i in range(8): e(f'v_mul_f32 v{T0+i}, v{b+i}, v{rl}')
            for i in range(8): e(f'v_min_f32 v{T0+i}, 0, v{T0+i}')
            for i in range(8): e(f'v_exp_f32 v{T0+i}, v{T0+i}')
            for i in range(8): e(f'v_max_f32 v{T0+8+i}, 0, v{b+i}')
            for i in range(8): e(f'v_add_f32 v{T0+i}, s55, v{T0+i}')
            for i in range(8): e(f'v_fmac_f32 v{T0+i}, v{T0+8+i}, v{rs}')
            for i in range(0,8,2): e(f'v_cvt_pk_bf16_f32 v{OUT+4*g+i//2}, v{T0+i}, v{T0+i+1}')
        store2(e, 48 if a==0 else 51, 0, opt)
    stamp(e,opt)
    KV=acc(0,0); Z=acc(0,1)
    PK=96; VF=104
    ONE=112
    for r in range(4): e(f'v_mov_b32 v{ONE+r}, 0x3f803f80')
    for a in range(2):
        for g in range(4): e(f'ds_read_b128 v[{RS+4*g}:{RS+4*g+3}], v5 offset:{RSTD+a*128+g*32}')
        e('s_waitcnt lgkmcnt(0)')
        K=acc(1,a); V=acc(2,a)
        for g in range(2):
            b=K+8*g; r0=RS+8*g
            for i in range(8): e(f'v_mul_f32 v{T0+8+i}, v{b+i}, v{r0+i}')
            for i in range(8): e(f'v_mul_f32 v{T0+i}, s54, v{T0+8+i}')
            for i in range(8): e(f'v_min_f32 v{T0+i}, 0, v{T0+i}')
            for i in range(8): e(f'v_exp_f32 v{T0+i}, v{T0+i}')
            for i in range(8): e(f'v_max_f32 v{T0+8+i}, 0, v{T0+8+i}')
            for i in range(8): e(f'v_add_f32 v{T0+i}, s55, v{T0+i}')
            for i in range(8): e(f'v_add_f32 v{T0+i}, v{T0+i}, v{T0+8+i}')
            for i in range(0,8,2): e(f'v_cvt_pk_bf16_f32 v{PK+4*g+i//2}, v{T0+i}, v{T0+i+1}')
            bv=V+8*g
            for i in range(8): e(f'v_mul_f32 v{T0+i}, v{bv+i}, v{r0+i}')
            for i in range(0,8,2): e(f'v_cvt_pk_bf16_f32 v{VF+4*g+i//2}, v{T0+i}, v{T0+i+1}')
        e('s_nop 1')
        for g in range(2):
            c0 = '0' if (a==0 and g==0) else vr(KV,16)
            z0 = '0' if (a==0 and g==0) else vr(Z,16)
            e(f'v_mfma_f32_32x32x16_bf16 {vr(KV,16)}, {vr(PK+4*g,4)}, {vr(VF+4*g,4)}, {c0}')
            e(f'v_mfma_f32_32x32x16_bf16 {vr(Z,16)}, {vr(PK+4*g,4)}, {vr(ONE,4)}, {z0}')
    e(f'''
    v_and_b32 v8, 15, v2
    v_lshrrev_b32 v9, 5, v2
    v_lshl_add_u32 v8, v9, 4, v8
    v_lshlrev_b32 v8, 4, v8           ; (hiD*16+e)*16
    v_bfe_u32 v10, v2, 4, 1
    v_lshl_add_u32 v8, v10, 10, v8
    s_mul_i32 s48, s46, 4352
    s_lshl_b32 s49, s47, 11
    s_add_u32 s49, s48, s49
    v_add_u32 v8, s49, v8
    s_lshl_b32 s49, s47, 7
    s_add_u32 s49, s48, s49
    v_lshl_add_u32 v9, v9, 4, s49
    s_nop 7
    s_mov_b32 exec_lo, 0x0000ffff
    s_mov_b32 exec_hi, 0x0000ffff
    ds_write_b128 v8, v[{KV}:{KV+3}] offset:{KVP}
    ds_write_b128 v8, v[{KV+4}:{KV+7}] offset:{KVP+512}
    s_mov_b32 exec_lo, 0xffff0000
    s_mov_b32 exec_hi, 0xffff0000
    ds_write_b128 v8, v[{KV+8}:{KV+11}] offset:{KVP}
    ds_write_b128 v8, v[{KV+12}:{KV+15}] offset:{KVP+512}
    s_mov_b32 exec_lo, 1
    s_mov_b32 exec_hi, 1
    ds_write_b128 v9, v[{Z}:{Z+3}] offset:{KVP+4096}
    ds_write_b128 v9, v[{Z+4}:{Z+7}] offset:{KVP+4096+32}
    ds_write_b128 v9, v[{Z+8}:{Z+11}] offset:{KVP+4096+64}
    ds_write_b128 v9, v[{Z+12}:{Z+15}] offset:{KVP+4096+64+32}
    s_mov_b64 exec, -1
    ''')
    stamp(e,opt)
    e(f'''
    K1_KVRED:
    s_waitcnt lgkmcnt(0)
    s_barrier
    ''')
    stamp(e,opt)
    e(f'''
    v_lshlrev_b32 v3, 2, v0
    ds_read_b32 v8, v3 offset:{KVP}
    ds_read_b32 v9, v3 offset:{KVP+4352}
    ds_read_b32 v10, v3 offset:{KVP+2048}
    ds_read_b32 v11, v3 offset:{KVP+2048+4352}
    s_lshl_b32 s48, s5, 12
    s_add_u32 s48, s48, {WS_KV}
    s_waitcnt lgkmcnt(0)
    v_add_f32 v8, v8, v9
    v_add_f32 v10, v10, v11
    buffer_atomic_add_f32 v8, v3, s[16:19], s48 offen
    buffer_atomic_add_f32 v10, v3, s[16:19], s48 offen offset:2048
    s_cmp_lg_u32 s3, 0
    s_cbranch_scc1 K1_END
    ds_read_b32 v8, v3 offset:{KVP+4096}
    ds_read_b32 v9, v3 offset:{KVP+4096+4352}
    s_lshl_b32 s48, s5, 8
    s_add_u32 s48, s48, {WS_Z}
    s_waitcnt lgkmcnt(0)
    v_add_f32 v8, v8, v9
    buffer_atomic_add_f32 v8, v3, s[16:19], s48 offen
    ''')

def stamp_end(e):
    e(f'''
    s_memrealtime s[68:69]
    s_waitcnt lgkmcnt(0)
    s_lshl_b32 s70, s2, 3
    s_add_u32 s70, s70, s3
    s_lshl_b32 s70, s70, 3
    s_add_u32 s70, s70, {WS_TS}
    v_mov_b32 v8, s66
    v_mov_b32 v9, s68
    v_mov_b32 v10, 0
    buffer_store_dwordx2 v[8:9], v10, s[72:75], s70 offen
    ''')
def k1(opt):
    e=E()
    if opt.get('ts'):
        e('s_memrealtime s[66:67]')
    prologue(e,opt)
    if opt.get('ts'):
        pass
    loader(e,opt)
    cons_setup(e,opt)
    qkv_path(e,opt)
    e('K1_END:')
    if opt.get('prof'):
        e('s_waitcnt vmcnt(0)')
        stamp(e,opt)
        stamp_flush(e,opt,16,0,8)
    e('K1_EXIT0:')
    e('s_endpgm')
    ffn_path(e,opt)
    t=e.text()
    if opt.get('prof'):
        t=t.replace('s_cbranch_scc1 K1_END\n    s_load_dwordx4 s[28:31]','s_cbranch_scc1 K1_EXIT0\n    s_load_dwordx4 s[28:31]')
    if opt.get('ts'):
        e2=E(); stamp_end(e2); e2('s_endpgm')
        t=t.replace('s_cbranch_scc1 K1_END\n    s_load_dwordx4 s[28:31]','s_cbranch_scc1 K1_EXIT\n    s_load_dwordx4 s[28:31]')
        t=t.replace('K1_END:\nK1_EXIT0:\n    s_endpgm','K1_END:\n'+e2.text()+'K1_EXIT:\n    s_endpgm',1)
        i=t.rindex('s_endpgm'); t=t[:i]+'s_branch K1_END\n'
        e3=E(); srd(e3,72,38,WS_TS+256*8*8)
        t=t.replace('    s_cmp_lt_u32 s3, 4\n    s_cbranch_scc1 K1_CONS', e3.text()+'    s_cmp_lt_u32 s3, 4\n    s_cbranch_scc1 K1_CONS')
    return t
```

```python
from common import *
from k1 import DSQ
SLOT=40960; NS=3
AOFF=0; BOFF=16384; KOFF=32768
ZL=NS*SLOT
XL=ZL+2048
B2L=XL+8192
OL=B2L+1024
LDS_BYTES=OL+16384
ACC=128
F0=64
MASK=0x4888
NST=15

def k2(opt):
    e=E()
    if opt.get('ts'): e('s_memrealtime s[66:67]')
    e(f'''
    s_cmp_ge_u32 s2, 256
    s_cbranch_scc1 K2_EXIT
    s_load_dwordx2 s[28:29], s[0:1], 0
    s_load_dwordx2 s[30:31], s[0:1], 16
    s_load_dwordx4 s[32:35], s[0:1], 48
    s_load_dwordx2 s[36:37], s[0:1], 64
    s_load_dwordx2 s[38:39], s[0:1], 80
    v_lshrrev_b32 v1, 6, v0
    v_and_b32 v2, 63, v0
    v_readfirstlane_b32 s3, v1
    s_and_b32 s8, s2, 7
    s_lshr_b32 s9, s2, 3
    s_and_b32 s4, s9, 3
    s_lshl_b32 s8, s8, 2
    s_add_u32 s4, s4, s8
    s_lshr_b32 s5, s9, 2              ; cb2 0..7
    s_mov_b32 s40, {opt.get('mask2',MASK)}
    s_mov_b32 s64, {SLOT}
    s_mov_b32 s65, {-(NS-1)*SLOT & 0xffffffff:#x}
    s_cmp_lt_u32 s3, 4
    s_cbranch_scc1 K2_COMP
    ''')
    e(f'''
    s_and_b32 s46, s3, 3              ; lw
    ''')
    if opt.get('rot2','on')=='on':
        e('s_and_b32 s42, s4, 3\ns_mul_i32 s41, s42, 3\ns_add_u32 s41, s41, s5\ns_cmp_ge_u32 s41, 11\ns_cselect_b32 s43, 11, 0\ns_sub_u32 s41, s41, s43\ns_add_u32 s42, s42, s5\ns_and_b32 s42, s42, 3')
    else:
        e('s_mov_b32 s41, 0\ns_mov_b32 s42, 0')
    e(f'''
    s_lshl_b32 s45, s4, 1             ; s-tile 0
    s_mul_i32 s47, s45, {86*1024}
    s_lshl_b32 s48, s45, 15
    s_add_u32 s48, s48, {WS_PQ}
    v_lshlrev_b32 v3, 4, v2
    s_lshl_b32 s49, s46, 11
    v_add_u32 v3, s49, v3
    v_lshrrev_b32 v4, 3, v2
    v_and_b32 v5, 7, v2
    v_bfe_u32 v6, v2, 4, 1
    v_lshlrev_b32 v6, 2, v6
    v_xor_b32 v5, v5, v6
    v_lshlrev_b32 v5, 4, v5
    v_lshl_add_u32 v4, v4, 10, v5
    s_lshl_b32 s49, s5, 7
    s_lshl_b32 s50, s46, 15
    s_add_u32 s49, s49, s50
    v_add_u32 v4, s49, v4
    v_add_u32 v5, 0x2000, v4
    v_add_u32 v6, 0x4000, v4
    v_add_u32 v7, 0x6000, v4
    s_lshl_b32 s54, s46, 11
    s_lshl_b32 s55, s46, 12
    s_add_u32 s55, s55, {BOFF}
    s_mov_b32 s53, 0                  ; slot
    s_mov_b32 s52, 0
    s_waitcnt lgkmcnt(0)
    ''')
    srd(e,8,38,(WS_PROF+2*256*8*256) if opt.get('prof') else WS_SIZE)
    srd(e,12,32,F*D*2)
    srd(e,16,30,D*D*2)
    srd(e,20,28,S*D*2)
    srd(e,24,34,D*2)
    stamp_init(e,opt); stamp(e,opt)
    af=opt.get('aflag','')
    def issue(tag):
        la=f'K2_IA{tag}'; lc=f'K2_IC{tag}'
        if opt.get('x_nodma2'):
            e('s_add_u32 s52, s52, 1'); return
        e(f'''
        s_add_u32 s58, s53, s54
        s_add_u32 s59, s53, s55
        s_bitcmp1_b32 s40, s52
        s_cbranch_scc1 {la}
        s_lshl_b32 s56, s41, 13
        s_add_u32 s56, s56, s47
        s_mov_b32 m0, s58
        s_lshl_b32 s60, s41, 17
        buffer_load_dwordx4 v3, s[8:11], s56 offen {af} lds
        buffer_load_dwordx4 v3, s[8:11], s56 offen offset:1024 {af} lds
        s_add_u32 m0, s58, 8192
        s_add_u32 s56, s56, {86*1024}
        buffer_load_dwordx4 v3, s[8:11], s56 offen {af} lds
        buffer_load_dwordx4 v3, s[8:11], s56 offen offset:1024 {af} lds
        s_mov_b32 m0, s59
        s_add_u32 s41, s41, 1
        buffer_load_dwordx4 v4, s[12:15], s60 offen lds
        s_add_u32 m0, s59, 1024
        s_cmp_eq_u32 s41, 11
        buffer_load_dwordx4 v5, s[12:15], s60 offen lds
        s_cselect_b32 s41, 0, s41
        s_add_u32 m0, s59, 2048
        s_nop 0
        buffer_load_dwordx4 v6, s[12:15], s60 offen lds
        s_add_u32 m0, s59, 3072
        s_nop 0
        buffer_load_dwordx4 v7, s[12:15], s60 offen lds
        s_branch {lc}
        {la}:
        s_lshl_b32 s56, s42, 13
        s_add_u32 s57, s56, {WS_KV}
        s_add_u32 s56, s56, s48
        s_mov_b32 m0, s58
        s_lshl_b32 s60, s42, 17
        buffer_load_dwordx4 v3, s[8:11], s56 offen {af} lds
        buffer_load_dwordx4 v3, s[8:11], s56 offen offset:1024 {af} lds
        s_add_u32 m0, s58, 8192
        s_add_u32 s56, s56, {32*1024}
        buffer_load_dwordx4 v3, s[8:11], s56 offen {af} lds
        buffer_load_dwordx4 v3, s[8:11], s56 offen offset:1024 {af} lds
        s_add_u32 m0, s58, {KOFF}
        s_add_u32 s42, s42, 1
        buffer_load_dwordx4 v3, s[8:11], s57 offen {af} lds
        buffer_load_dwordx4 v3, s[8:11], s57 offen offset:1024 {af} lds
        s_mov_b32 m0, s59
        s_and_b32 s42, s42, 3
        buffer_load_dwordx4 v4, s[16:19], s60 offen lds
        s_add_u32 m0, s59, 1024
        s_nop 0
        buffer_load_dwordx4 v5, s[16:19], s60 offen lds
        s_add_u32 m0, s59, 2048
        s_nop 0
        buffer_load_dwordx4 v6, s[16:19], s60 offen lds
        s_add_u32 m0, s59, 3072
        s_nop 0
        buffer_load_dwordx4 v7, s[16:19], s60 offen lds
        {lc}:
        s_add_u32 s52, s52, 1
        s_add_u32 s53, s53, s64
        s_cmp_eq_u32 s53, {NS*SLOT}
        s_cselect_b32 s53, 0, s53
        ''')
    issue('0')
    e(f'''
    v_lshrrev_b32 v8, 3, v2
    v_and_b32 v9, 7, v2
    v_xor_b32 v9, v9, v8
    v_lshlrev_b32 v9, 4, v9
    v_lshl_add_u32 v9, v8, 10, v9
    s_lshl_b32 s56, s4, 16
    s_lshl_b32 s57, s5, 7
    s_add_u32 s56, s56, s57
    s_lshl_b32 s57, s46, 14
    s_add_u32 s56, s56, s57
    s_lshl_b32 s57, s46, 11
    s_add_u32 m0, s57, {XL}
    s_nop 0
    buffer_load_dwordx4 v9, s[20:23], s56 offen lds
    s_add_u32 m0, s57, {XL+1024}
    s_add_u32 s56, s56, 8192
    buffer_load_dwordx4 v9, s[20:23], s56 offen lds
    v_lshlrev_b32 v8, 4, v2
    s_cmp_lt_u32 s46, 2
    s_cbranch_scc0 K2_NZ
    s_lshl_b32 s57, s46, 10
    s_add_u32 m0, s57, {ZL}
    s_add_u32 s56, s57, {WS_Z}
    buffer_load_dwordx4 v8, s[8:11], s56 offen {af} lds
    s_branch K2_NZE
    K2_NZ:
    v_and_b32 v8, 7, v2
    v_lshlrev_b32 v8, 4, v8
    s_lshl_b32 s56, s5, 7
    s_mov_b32 m0, {B2L}
    s_nop 0
    buffer_load_dwordx4 v8, s[24:27], s56 offen lds
    K2_NZE:
    ''')
    issue('1')
    e(f'''
    s_mov_b32 s51, 0
    K2_LL:
    s_cmp_eq_u32 s51, {NST-1}
    s_cbranch_scc1 K2_LW0
    s_waitcnt vmcnt(8)
    s_branch K2_LW1
    K2_LW0:
    s_waitcnt vmcnt(0)
    K2_LW1:
    ''')
    stamp(e,opt) if opt.get('profloop') else None
    e('s_barrier')
    e(f'''
    s_cmp_ge_u32 s51, {NST-2}
    s_cbranch_scc1 K2_LNI
    ''')
    issue('L')
    e(f'''
    K2_LNI:
    s_bitcmp1_b32 s40, s51
    s_cbranch_scc0 K2_LNB
    s_barrier
    K2_LNB:
    s_add_u32 s51, s51, 1
    s_cmp_lg_u32 s51, {NST}
    s_cbranch_scc1 K2_LL
    s_branch K2_END
    ''')
    e('K2_COMP:')
    e(f'''
    s_and_b32 s46, s3, 1              ; a
    s_lshr_b32 s47, s3, 1             ; b
    v_lshrrev_b32 v7, 5, v2           ; hi
    v_lshlrev_b32 v13, 4, v2
    s_lshl_b32 s48, s46, 13
    v_add_u32 v13, s48, v13
    v_and_b32 v14, 15, v2
    v_lshrrev_b32 v14, 2, v14
    v_lshl_add_u32 v14, v7, 2, v14     ; 4hi + (i>>2)
    v_lshlrev_b32 v14, 7, v14
    v_and_b32 v15, 3, v2
    v_lshlrev_b32 v15, 3, v15
    v_bfe_u32 v8, v2, 4, 1
    v_lshl_add_u32 v15, v8, 5, v15
    s_lshl_b32 s48, s47, 6
    v_add_u32 v15, s48, v15
    v_bfe_u32 v8, v2, 3, 1
    v_lshlrev_b32 v8, 6, v8
    v_xor_b32 v15, v15, v8
    v_add_u32 v14, v14, v15
    v_add_u32 v14, {BOFF}, v14         ; B read
    v_and_b32 v9, 31, v2
    v_lshl_add_u32 v10, v7, 4, v9
    v_lshlrev_b32 v10, 4, v10
    v_add_u32 v10, {KOFF}, v10
    v_lshlrev_b32 v11, 4, v7
    v_add_u32 v11, {ZL}, v11
    v_cmp_gt_u32 vcc, 16, v9
    v_mov_b32 v16, 64
    v_mov_b32 v17, 0x400
    v_mov_b32 v18, 32
    v_mov_b32 v19, 0x200
    v_cndmask_b32 v16, v16, v17, vcc
    v_cndmask_b32 v18, v18, v19, vcc
    s_mov_b64 s[70:71], vcc
    s_mov_b32 s74, {hx(1e-6)}
    s_mov_b32 s52, 0
    s_mov_b32 s53, 0
    ''')
    if opt.get('rot2','on')=='on': e('s_and_b32 s42, s4, 3\ns_add_u32 s42, s42, s5\ns_and_b32 s42, s42, 3')
    else: e('s_mov_b32 s42, 0')
    for r in range(ACC,ACC+16): e(f'v_mov_b32 v{r}, 0')
    e('s_waitcnt lgkmcnt(0)')
    srd(e,8,38,(WS_PROF+2*256*8*256) if opt.get('prof') else WS_SIZE)
    srd(e,20,36,S*D*2)
    stamp_init(e,opt); stamp(e,opt)
    if opt.get('prio',1): e('s_setprio 3')
    e('K2_CL:')
    e('s_barrier')
    if opt.get('profloop'): stamp(e,opt)
    if opt.get('x_nocomp2'): e('s_branch K2_CN')
    e('s_bitcmp1_b32 s40, s52')
    e('s_cbranch_scc1 K2_CA')
    q=DSQ()
    def frd(s):
        b=F0+8*s
        return [(f'ds_read_b128 v[{b}:{b+3}], v13 offset:{s*1024}',f'a{s}'),
                (f'ds_read_b64_tr_b16 v[{b+4}:{b+5}], v14 offset:{s*2048}',f'b{s}'),
                (f'ds_read_b64_tr_b16 v[{b+6}:{b+7}], v14 offset:{s*2048+1024}',f'b{s}')]
    for s in range(4):
        for x,t in frd(s): e(x); q.issue(t)
    for s in range(8):
        q.need(e,{f'a{s}',f'b{s}'})
        b=F0+8*s
        e(f'v_mfma_f32_32x32x16_bf16 {vr(ACC,16)}, {vr(b+4,4)}, {vr(b,4)}, {vr(ACC,16)}')
        if s<4:
            for x,t in frd(s+4): e(x); q.issue(t)
    e('s_branch K2_CN')
    e('K2_CA:')
    e(f'''
    v_add_u32 v20, s53, v10
    s_lshl_b32 s48, s42, 9            ; 8 heads * 64 B
    v_add_u32 v21, s48, v11
    s_add_u32 s42, s42, 1
    s_and_b32 s42, s42, 3
    v_cndmask_b32 v20, v21, v20, s[70:71]
    s_lshl_b32 s48, s47, 2            ; 4b
    v_mad_u32_u24 v20, v16, s48, v20  ; + 4b heads
    v_add_u32 v21, v20, v18
    s_lshl_b32 s48, s47, 12
    v_add_u32 v22, s48, v13
    ''')
    q=DSQ()
    DB=[32,48]
    KF=24
    OWN=112
    def ard(h):
        b=F0+12*h
        return [(f'ds_read_b128 v[{b}:{b+3}], v20',f'k{h}'),(f'ds_read_b128 v[{b+4}:{b+7}], v21',f'k{h}'),
           (f'ds_read_b128 v[{b+8}:{b+11}], v22 offset:{h*1024}',f'p{h}')]
    for h in range(4):
        for x,t in ard(h): e(x); q.issue(t)
        if h<3: e('v_add_u32 v20, v20, v16'); e('v_add_u32 v21, v21, v16')
    def fin(h):
        Dr=DB[h%2]
        e(f'v_add_f32 v8, s74, v{Dr+8}')
        e(f'v_rcp_f32 v8, v8')
        e('s_nop 0')
        for i in range(8): e(f'v_mul_f32 v{Dr+i}, v{Dr+i}, v8')
        for i in range(4): e(f'v_cvt_pk_bf16_f32 v{OWN+4*h+i}, v{Dr+2*i}, v{Dr+2*i+1}')
        e(f'ds_write_b128 v23, v[{OWN+4*h}:{OWN+4*h+3}] offset:{h*1024}')
    e(f'''
    v_lshlrev_b32 v23, 4, v2
    s_lshl_b32 s48, s46, 13
    s_lshl_b32 s49, s47, 12
    s_add_u32 s48, s48, s49
    s_add_u32 s48, s48, {OL}
    v_add_u32 v23, s48, v23
    s_xor_b32 s49, s47, 1
    s_lshl_b32 s49, s49, 12
    s_lshl_b32 s48, s46, 13
    s_add_u32 s48, s48, s49
    s_add_u32 s48, s48, {OL}
    v_lshlrev_b32 v19, 4, v2
    v_add_u32 v19, s48, v19
    ''')
    for h in range(4):
        b=F0+12*h
        q.need(e,{f'k{h}',f'p{h}'})
        for i in range(4): e(f'v_cvt_pk_bf16_f32 v{KF+i}, v{b+2*i}, v{b+2*i+1}')
        e('s_nop 1')
        e(f'v_mfma_f32_32x32x16_bf16 {vr(DB[h%2],16)}, {vr(KF,4)}, {vr(b+8,4)}, 0')
        if h==1: e('s_nop 3')
        if h>0: fin(h-1)
    fin(3)
    e('s_lshl_b32 s48, s47, 13')
    e('v_add_u32 v24, s48, v14')
    e('s_xor_b32 s48, s48, 8192')
    e('v_add_u32 v25, s48, v14')
    q=DSQ()
    WB=F0
    e('s_waitcnt lgkmcnt(0)')
    for h in range(4):
        e(f'ds_read_b64_tr_b16 v[{WB+4*h}:{WB+4*h+1}], v24 offset:{h*2048}'); q.issue(f'w{h}')
        e(f'ds_read_b64_tr_b16 v[{WB+4*h+2}:{WB+4*h+3}], v24 offset:{h*2048+1024}'); q.issue(f'w{h}')
    e('s_barrier')
    PO=96
    def prd(h):
        e(f'ds_read_b128 v[{PO+4*h}:{PO+4*h+3}], v19 offset:{h*1024}'); q.issue(f'o{h}')
        e(f'ds_read_b64_tr_b16 v[{WB+16+4*h}:{WB+16+4*h+1}], v25 offset:{h*2048}'); q.issue(f'x{h}')
        e(f'ds_read_b64_tr_b16 v[{WB+16+4*h+2}:{WB+16+4*h+3}], v25 offset:{h*2048+1024}'); q.issue(f'x{h}')
    prd(0); prd(1)
    for h in range(4):
        q.need(e,{f'w{h}'})
        e(f'v_mfma_f32_32x32x16_bf16 {vr(ACC,16)}, {vr(WB+4*h,4)}, {vr(OWN+4*h,4)}, {vr(ACC,16)}')
        if h==0: prd(2)
        if h==2: prd(3)
    for h in range(4):
        q.need(e,{f'o{h}',f'x{h}'})
        e(f'v_mfma_f32_32x32x16_bf16 {vr(ACC,16)}, {vr(WB+16+4*h,4)}, {vr(PO+4*h,4)}, {vr(ACC,16)}')
    e('K2_CN:')
    e(f'''
    s_waitcnt lgkmcnt(0)
    s_add_u32 s53, s53, s64
    s_cmp_eq_u32 s53, {NS*SLOT}
    s_cselect_b32 s50, s65, s64
    s_cselect_b32 s53, 0, s53
    v_add_u32 v13, s50, v13
    v_add_u32 v14, s50, v14
    s_add_u32 s52, s52, 1
    s_cmp_lg_u32 s52, {NST}
    s_cbranch_scc1 K2_CL
    ''')
    stamp(e,opt)
    e(f'''
    v_and_b32 v9, 31, v2
    s_lshl_b32 s48, s46, 5
    v_add_u32 v9, s48, v9
    v_and_b32 v10, 7, v9              ; row&7
    s_lshl_b32 s49, s47, 2
    v_lshlrev_b32 v11, 7, v9
    v_lshl_add_u32 v11, v7, 3, v11
    v_add_u32 v11, {XL}, v11
    v_lshlrev_b32 v12, 3, v7
    s_lshl_b32 s50, s47, 6
    v_add_u32 v12, s50, v12
    v_add_u32 v12, {B2L}, v12         ; b2: b*64 + hi*8
    ''')
    for g in range(4):
        e(f'v_add_u32 v16, s49, {g}' if False else f'v_mov_b32 v16, s49')
        e(f'v_add_u32 v16, {g}, v16')
        e(f'v_xor_b32 v16, v16, v10')
        e(f'v_lshl_add_u32 v16, v16, 4, v11')
        e(f'ds_read_b64 v[{32+2*g}:{33+2*g}], v16')
        e(f'ds_read_b64 v[{40+2*g}:{41+2*g}], v12 offset:{g*16}')
    e(f'''
    s_mov_b32 s70, 0xffff0000
    s_lshl_b32 s48, s4, 6
    v_add_u32 v17, s48, v9
    v_lshlrev_b32 v17, 10, v17
    s_lshl_b32 s48, s5, 7
    s_lshl_b32 s49, s47, 6
    s_add_u32 s48, s48, s49
    v_lshl_add_u32 v17, v7, 4, v17
    v_add_u32 v17, s48, v17
    s_waitcnt lgkmcnt(0)
    ''')
    for g in range(4):
        for c2 in range(2):
            xr=32+2*g+c2; br=40+2*g+c2; a0=ACC+4*g+2*c2
            e(f'''
            v_lshlrev_b32 v20, 16, v{xr}
            v_and_b32 v21, s70, v{xr}
            v_lshlrev_b32 v22, 16, v{br}
            v_and_b32 v23, s70, v{br}
            v_add_f32 v20, v20, v22
            v_add_f32 v21, v21, v23
            v_add_f32 v20, v20, v{a0}
            v_add_f32 v21, v21, v{a0+1}
            v_cvt_pk_bf16_f32 v{48+2*g+c2}, v20, v21
            ''')
    e('''
    s_nop 1
    v_permlane32_swap_b32 v48, v50
    v_permlane32_swap_b32 v49, v51
    v_permlane32_swap_b32 v52, v54
    v_permlane32_swap_b32 v53, v55
    buffer_store_dwordx4 v[48:51], v17, s[20:23], 0 offen
    buffer_store_dwordx4 v[52:55], v17, s[20:23], 0 offen offset:32
    ''')
    e('K2_END:')
    if opt.get('spin'):
        e(f'''
        s_mov_b32 s92, s38
        s_and_b32 s93, s39, 0xffff
        s_mov_b32 s94, {WS_TS+4096}
        s_mov_b32 s95, 0x20000
        v_mov_b32 v9, 0
        s_mov_b32 s89, {WS_TS}
        buffer_load_dword v8, v9, s[92:95], s89 offen sc1
        s_waitcnt vmcnt(0)
        v_readfirstlane_b32 s88, v8
        s_mov_b32 s87, 0x100000
        K2_SPIN:
        s_memrealtime s[90:91]
        s_waitcnt lgkmcnt(0)
        s_sub_u32 s86, s90, s88
        s_sub_u32 s87, s87, 1
        s_cmp_eq_u32 s87, 0
        s_cbranch_scc1 K2_SPINE
        s_cmp_lt_u32 s86, {opt['spin']}
        s_cbranch_scc1 K2_SPIN
        K2_SPINE:
        ''')
    if opt.get('prof'):
        e('s_waitcnt vmcnt(0)')
        stamp(e,opt)
        stamp_flush(e,opt,8,1,8)
    if opt.get('ts'):
        e(f'''
        s_waitcnt vmcnt(0)
        s_memrealtime s[68:69]
        s_mov_b32 s76, s38
        s_and_b32 s77, s39, 0xffff
        s_mov_b32 s78, {WS_TS+2*256*8*8}
        s_mov_b32 s79, 0x20000
        s_waitcnt lgkmcnt(0)
        s_lshl_b32 s70, s2, 3
        s_add_u32 s70, s70, s3
        s_lshl_b32 s70, s70, 3
        s_add_u32 s70, s70, {WS_TS+256*8*8}
        v_mov_b32 v8, s66
        v_mov_b32 v9, s68
        v_mov_b32 v10, 0
        buffer_store_dwordx2 v[8:9], v10, s[76:79], s70 offen
        ''')
    e('K2_EXIT:')
    e('s_endpgm')
    return e.text()
```

```python
from common import *

REC=0
RSTD=4096
CSP=4608
KVP=8192
SLOT=40960

ACC=128
CS=224
SEL=236
FA=64; FB=84
XA=104
WA=108
BIA=114
XF=64
KC=72
WF=80
T0=8
OUT=40

def acc(t,a): return ACC+(t*2+a)*16

def prologue(e,opt):
    e(f'''
    s_cmp_ge_u32 s2, 256
    s_cbranch_scc1 K1_END
    s_load_dwordx4 s[28:31], s[0:1], 0
    s_load_dwordx4 s[32:35], s[0:1], 32
    s_load_dwordx4 s[36:39], s[0:1], 72
    v_lshrrev_b32 v1, 6, v0
    v_and_b32 v2, 63, v0
    v_readfirstlane_b32 s3, v1
    s_and_b32 s8, s2, 7
    s_lshr_b32 s9, s2, 3
    s_and_b32 s10, s9, 7
    s_lshr_b32 s11, s9, 3
    s_lshr_b32 s4, s8, 2
    s_lshl_b32 s4, s4, 3
    s_add_u32 s4, s4, s10             ; rb
    s_and_b32 s5, s8, 3
    s_lshl_b32 s5, s5, 1
    s_and_b32 s12, s11, 1
    s_add_u32 s5, s5, s12
    s_lshr_b32 s7, s11, 1
    s_lshl_b32 s12, s7, 3
    s_add_u32 s5, s5, s12             ; cb
    ''')
    rot=opt.get('rot','half')
    if rot=='none': e('s_mov_b32 s6, 0')
    elif rot=='half': e('s_add_u32 s6, s10, s11\ns_and_b32 s6, s6, 1\ns_lshl_b32 s6, s6, 2')
    elif rot=='quarter': e('s_add_u32 s6, s10, s11\ns_and_b32 s6, s6, 3\ns_lshl_b32 s6, s6, 1')
    elif rot=='full': e('s_lshl_b32 s6, s11, 1\ns_add_u32 s6, s6, s10\ns_and_b32 s6, s6, 7')
    e(f'''
    s_and_b32 s12, s5, 7
    s_mul_i32 s13, s12, 6
    s_mul_i32 s14, s12, 5
    s_add_u32 s14, s14, 3
    s_min_u32 s44, s13, s14
    s_cmp_lt_u32 s12, 3
    s_cselect_b32 s45, 6, 5
    s_lshl_b32 s13, s12, 7
    s_lshl_b32 s14, s44, 6
    s_mov_b32 s40, 2752
    s_mov_b32 s15, 128
    s_cmp_eq_u32 s7, 0
    s_cselect_b32 s40, 3072, s40
    s_cselect_b32 s41, s13, s14
    s_cselect_b32 s15, 1024, s15
    s_add_u32 s42, s41, s15
    s_add_u32 s43, s42, s15
    s_mov_b32 s64, {SLOT}
    s_mov_b32 s65, {-3*SLOT & 0xffffffff:#x}
    s_waitcnt lgkmcnt(0)
    ''')
    srd(e,8,28,S*D*2)
    e(f'''
    s_cmp_eq_u32 s7, 0
    s_cselect_b32 s12, s30, s32
    s_cselect_b32 s13, s31, s33
    s_mov_b32 s14, {D*F*2}
    s_cselect_b32 s14, {D*3*D*2}, s14
    s_and_b32 s13, s13, 0xffff
    s_mov_b32 s15, 0x20000
    ''')
    srd(e,16,38,(WS_PROF+2*256*8*256) if opt.get('prof') else WS_SIZE)
    stamp_init(e,opt)
    stamp(e,opt)
    srd(e,20,34,F*2)
    srd(e,24,36,256)
    if opt.get('spin'):
        e(f'''
        s_memrealtime s[90:91]
        s_mov_b32 s92, s38
        s_and_b32 s93, s39, 0xffff
        s_mov_b32 s94, {WS_TS+4096}
        s_mov_b32 s95, 0x20000
        s_waitcnt lgkmcnt(0)
        s_add_u32 s89, s2, s3
        s_cmp_lg_u32 s89, 0
        s_cbranch_scc1 K1_NOST
        v_mov_b32 v8, s90
        v_mov_b32 v9, 0
        s_mov_b32 s89, {WS_TS}
        buffer_store_dword v8, v9, s[92:95], s89 offen sc1
        K1_NOST:
        ''')
    e('''
    s_cmp_lt_u32 s3, 4
    s_cbranch_scc1 K1_CONS
    ''')

def loader(e,opt):
    e('''
    s_and_b32 s46, s3, 3
    v_lshrrev_b32 v3, 3, v2
    v_and_b32 v4, 7, v2
    v_lshrrev_b32 v5, 4, v2
    v_xor_b32 v6, v4, v5
    v_lshlrev_b32 v6, 4, v6
    v_lshl_add_u32 v10, v3, 10, v6
    s_lshl_b32 s47, s4, 17
    s_lshl_b32 s48, s46, 15
    s_add_u32 s47, s47, s48
    v_add_u32 v10, s47, v10
    v_xor_b32 v11, 64, v10
    v_add_u32 v11, 0x2000, v11
    v_add_u32 v12, 0x4000, v10
    v_add_u32 v13, 0x4000, v11
    v_and_b32 v5, 1, v5
    v_lshlrev_b32 v5, 2, v5
    v_xor_b32 v4, v4, v5
    v_lshlrev_b32 v4, 4, v4
    s_lshl_b32 s47, s46, 4
    v_add_u32 v14, s47, v3
    v_mul_lo_u32 v14, v14, s40
    v_add_u32 v14, v14, v4
    s_lshl_b32 s47, s40, 3
    v_add_u32 v15, s47, v14
    s_lshl_b32 s54, s46, 12
    s_lshl_b32 s55, s46, 11
    s_add_u32 s55, s55, 16384
    s_lshl_b32 s56, s40, 6
    s_mov_b32 s48, s6
    s_mov_b32 s53, 0
    ''')
    def stage_addr():
        return ['s_lshl_b32 s49, s48, 7','s_mul_i32 s50, s48, s56','s_add_u32 s51, s50, s42',
                's_add_u32 s52, s50, s43','s_add_u32 s50, s50, s41',
                's_add_u32 s58, s53, s54','s_add_u32 s59, s53, s55']
    def stage_adv():
        return ['s_add_u32 s48, s48, 1','s_and_b32 s48, s48, 7',
                f's_add_u32 s53, s53, s64', f's_cmp_eq_u32 s53, {4*SLOT}','s_cselect_b32 s53, 0, s53']
    def dma():
        L=[]
        if opt.get('x_nodma1'): return [['s_nop 0']]*10
        for i in range(4):
            L.append([f's_add_u32 m0, s58, {i*1024}', 's_nop 0', f'buffer_load_dwordx4 v{10+i}, s[8:11], s49 offen lds'])
        for sub in range(3):
            for h in range(2):
                L.append([f's_add_u32 m0, s59, {sub*8192+h*1024}', 's_nop 0', f'buffer_load_dwordx4 v{14+h}, s[12:15], s{50+sub} offen lds'])
        return L
    e('s_mov_b32 s47, 2')
    e('K1_LI:')
    for x in stage_addr(): e(x)
    for g in dma():
        for x in g: e(x)
    for x in stage_adv(): e(x)
    e('''
    s_sub_u32 s47, s47, 1
    s_cmp_lg_u32 s47, 0
    s_cbranch_scc1 K1_LI
    v_and_b32 v3, 31, v2
    v_lshrrev_b32 v4, 5, v2
    v_lshrrev_b32 v5, 1, v3
    v_and_b32 v5, 7, v5
    v_lshlrev_b32 v4, 2, v4
    v_xor_b32 v5, v5, v4
    v_lshlrev_b32 v5, 4, v5
    v_lshl_add_u32 v16, v3, 7, v5
    s_lshl_b32 s47, s46, 12
    v_add_u32 v16, s47, v16
    v_xor_b32 v17, 16, v16
    v_xor_b32 v18, 32, v16
    v_xor_b32 v19, 48, v16
    v_mov_b32 v36, 0
    v_mov_b32 v37, 0
    v_mov_b32 v38, 0
    v_mov_b32 v39, 0
    s_mov_b32 s60, 0xffff0000
    s_mov_b32 s61, 0
    s_mov_b32 s62, 0
    ''')
    def stats_reads(): return [f'ds_read_b128 v[{20+4*j}:{23+4*j}], v{16+j}' for j in range(4)]
    def stats_valu():
        L=[]
        if opt.get('x_nostats'): return L
        for d in range(16):
            t=40+2*(d%4)
            L+= [f'v_lshlrev_b32 v{t}, 16, v{20+d}', f'v_and_b32 v{t+1}, s60, v{20+d}',
                 f'v_add_f32 v36, v36, v{t}', f'v_add_f32 v37, v37, v{t+1}',
                 f'v_fmac_f32 v38, v{t}, v{t}', f'v_fmac_f32 v39, v{t+1}, v{t+1}']
        return L
    def stats_adv():
        return ['s_add_u32 s61, s61, s64', f's_cmp_eq_u32 s61, {4*SLOT}', 's_cselect_b32 s63, s65, s64', 's_cselect_b32 s61, 0, s61']+\
               [f'v_add_u32 v{16+j}, s63, v{16+j}' for j in range(4)]
    stamp(e,opt)
    e('s_mov_b32 s47, 6')
    e('K1_LM:')
    e('s_waitcnt vmcnt(10)')
    stamp(e,opt)
    e('s_barrier')
    for x in stats_reads(): e(x)
    for x in stage_addr(): e(x)
    e('s_lshr_b32 s68, s46, 1')
    e('s_mov_b32 s69, 2')
    e('K1_PH:')
    e('s_cmp_eq_u32 s68, 0')
    e('s_cbranch_scc0 K1_PHS')
    for g in dma():
        for x in g: e(x)
    e('s_branch K1_PHE')
    e('K1_PHS:')
    e('s_waitcnt lgkmcnt(0)')
    for x in stats_valu(): e(x)
    e('K1_PHE:')
    e('s_xor_b32 s68, s68, 1')
    e('s_sub_u32 s69, s69, 1')
    e('s_cmp_lg_u32 s69, 0')
    e('s_cbranch_scc1 K1_PH')
    for x in stage_adv(): e(x)
    for x in stats_adv(): e(x)
    e('''
    s_sub_u32 s47, s47, 1
    s_cmp_lg_u32 s47, 0
    s_cbranch_scc1 K1_LM
    s_waitcnt vmcnt(10)
    s_mov_b32 s62, 0
    K1_SO:
    ''')
    stamp(e,opt)
    e('s_barrier')
    for x in stats_reads(): e(x)
    e('s_waitcnt lgkmcnt(0)')
    for x in stats_valu(): e(x)
    for x in stats_adv(): e(x)
    e(f'''
    s_cmp_lg_u32 s62, 0
    s_cbranch_scc1 K1_LDONE
    s_mov_b32 s62, 1
    s_waitcnt vmcnt(0)
    s_branch K1_SO
    K1_LDONE:
    v_add_f32 v36, v36, v37
    v_add_f32 v38, v38, v39
    v_mov_b32 v37, v36
    v_mov_b32 v39, v38
    s_nop 1
    v_permlane32_swap_b32 v36, v37
    v_permlane32_swap_b32 v38, v39
    v_add_f32 v36, v36, v37
    v_add_f32 v38, v38, v39
    v_mul_f32 v36, {hx(-1.0/512)}, v36          ; -mean
    v_mul_f32 v38, {hx(1.0/512)}, v38
    v_fma_f32 v38, -v36, v36, v38               ; var
    v_max_f32 v38, 0, v38
    v_add_f32 v38, {hx(1e-5)}, v38
    v_rsq_f32 v44, v38                          ; rstd
    v_cvt_pk_bf16_f32 v40, v36, v36
    v_mul_f32 v45, v38, v44                     ; sigma
    v_lshlrev_b32 v40, 16, v40
    v_sub_f32 v41, v36, v40
    v_cvt_pk_bf16_f32 v40, v40, v41             ; d0
    v_mov_b32 v41, v40                          ; d1
    v_cvt_pk_bf16_f32 v42, v45, v45
    v_lshlrev_b32 v42, 16, v42
    v_sub_f32 v43, v45, v42
    v_cvt_pk_bf16_f32 v42, v42, v43             ; d2
    v_mov_b32 v43, 0
    v_mul_f32 v46, v44, v44
    v_mul_f32 v46, v46, v44
    v_mul_f32 v46, {hx(GC2)}, v46               ; cA
    v_mul_f32 v47, {hx(GC1)}, v44               ; cB
    v_and_b32 v3, 31, v2
    s_lshl_b32 s47, s46, 5
    v_add_u32 v3, s47, v3                       ; row
    v_lshlrev_b32 v4, 5, v3
    ds_write_b128 v4, v[40:43] offset:{REC}
    ds_write_b128 v4, v[44:47] offset:{REC+16}
    v_lshlrev_b32 v4, 2, v3
    ds_write_b32 v4, v44 offset:{RSTD}
    s_cmp_lg_u32 s7, 0
    s_cbranch_scc1 K1_LE1
    s_cmp_lg_u32 s3, 4
    s_cbranch_scc1 K1_LE1
    s_lshl_b32 s47, s5, 2
    v_mov_b32 v4, s47
    s_mov_b32 s48, 0x40000
    K1_POLL:
    buffer_load_dword v5, v4, s[24:27], 0 offen sc1
    s_waitcnt vmcnt(0)
    v_readfirstlane_b32 s47, v5
    s_sub_u32 s48, s48, 1
    s_cmp_lg_u32 s47, 0
    s_cbranch_scc1 K1_LE1
    s_sleep 4
    s_cmp_lg_u32 s48, 0
    s_cbranch_scc1 K1_POLL
    K1_LE1:
    s_waitcnt lgkmcnt(0)
    s_barrier
    s_cmp_lg_u32 s7, 0
    s_cbranch_scc1 K1_END
    s_branch K1_KVRED
    ''')

def cons_setup(e,opt):
    e('K1_CONS:')
    e(f'''
    s_and_b32 s46, s3, 1          ; sh
    s_lshr_b32 s47, s3, 1         ; nh
    s_cmp_lg_u32 s7, 0
    s_cbranch_scc1 K1_NOZ
    s_cmp_lg_u32 s4, 0
    s_cbranch_scc1 K1_NOZ
    s_cmp_lg_u32 s3, 0
    s_cbranch_scc1 K1_NOZ
    v_mov_b32 v8, 0
    v_mov_b32 v9, 0
    v_mov_b32 v10, 0
    v_mov_b32 v11, 0
    v_lshlrev_b32 v4, 4, v2
    s_lshl_b32 s48, s5, 12
    s_add_u32 s48, s48, {WS_KV}
    buffer_store_dwordx4 v[8:11], v4, s[16:19], s48 offen sc1
    buffer_store_dwordx4 v[8:11], v4, s[16:19], s48 offen offset:1024 sc1
    buffer_store_dwordx4 v[8:11], v4, s[16:19], s48 offen offset:2048 sc1
    buffer_store_dwordx4 v[8:11], v4, s[16:19], s48 offen offset:3072 sc1
    s_mov_b32 exec_lo, 0xffff
    s_mov_b32 exec_hi, 0
    s_lshl_b32 s48, s5, 8
    s_add_u32 s48, s48, {WS_Z}
    buffer_store_dwordx4 v[8:11], v4, s[16:19], s48 offen sc1
    s_waitcnt vmcnt(0)
    s_mov_b32 exec_lo, 1
    v_mov_b32 v5, 1
    s_lshl_b32 s48, s5, 2
    v_mov_b32 v4, s48
    buffer_store_dword v5, v4, s[24:27], 0 offen sc1
    s_mov_b64 exec, -1
    K1_NOZ:
    v_and_b32 v3, 31, v2             ; r32
    v_lshrrev_b32 v4, 5, v2          ; hi
    s_mul_i32 s48, s47, 3
    s_add_u32 s48, s48, s44
    s_lshl_b32 s49, s48, 6
    v_lshl_add_u32 v5, v3, 1, s49
    buffer_load_ushort v{BIA}, v5, s[20:23], 0 offen
    buffer_load_ushort v{BIA+1}, v5, s[20:23], 0 offen offset:64
    buffer_load_ushort v{BIA+2}, v5, s[20:23], 0 offen offset:128
    v_lshrrev_b32 v5, 1, v3
    v_and_b32 v5, 7, v5
    v_xor_b32 v5, v5, v4
    v_lshlrev_b32 v5, 4, v5
    v_lshl_add_u32 v5, v3, 7, v5
    s_lshl_b32 s49, s46, 13
    v_add_u32 v5, s49, v5
    s_lshl_b32 s49, s46, 5
    v_xor_b32 v{XA}, s49, v5
    v_xor_b32 v{XA+1}, 32, v5
    v_xor_b32 v{XA+1}, s49, v{XA+1}
    v_xor_b32 v{XA+2}, 64, v{XA}
    v_xor_b32 v{XA+3}, 64, v{XA+1}
    v_and_b32 v6, 15, v2
    v_lshrrev_b32 v6, 2, v6
    v_lshl_add_u32 v6, v4, 3, v6
    v_lshlrev_b32 v6, 7, v6          ; (8hi + i>>2)*128
    v_and_b32 v7, 3, v2
    v_lshlrev_b32 v7, 3, v7
    v_bfe_u32 v8, v2, 4, 1
    v_lshl_add_u32 v7, v8, 5, v7     ; g16*32 + (i&3)*8
    v_bfe_u32 v8, v2, 3, 1
    v_lshlrev_b32 v8, 6, v8          ; 64*bit3
    s_lshl_b32 s50, s46, 11          ; sh*2048
    ''')
    for t in range(3):
        e(f'''
        s_mul_i32 s51, s47, 3
        s_add_u32 s51, s51, {t}
        s_lshr_b32 s52, s51, 1
        s_and_b32 s51, s51, 1
        s_cmp_eq_u32 s7, 0
        s_cselect_b32 s52, {t}, s52
        s_cselect_b32 s51, s47, s51
        s_lshl_b32 s52, s52, 13
        s_add_u32 s52, s52, 16384
        s_lshl_b32 s51, s51, 6
        v_add_u32 v9, s51, v7
        v_xor_b32 v9, v9, v8
        v_add3_u32 v9, v9, v6, s52
        v_add_u32 v{WA+2*t}, s50, v9
        v_subrev_u32 v{WA+2*t+1}, s50, v9
        ''')
    for r in range(ACC,ACC+96+12): e(f'v_mov_b32 v{r}, 0')
    for r in range(FB,FB+20): e(f'v_mov_b32 v{r}, 0')
    e(f'''
    v_lshrrev_b32 v5, 4, v2
    v_xor_b32 v5, v5, v2
    v_and_b32 v5, 1, v5
    v_cmp_eq_u32 vcc, 0, v5
    v_mov_b32 v6, 0x3f803f80
    s_nop 0
    v_cndmask_b32 v{SEL}, 0, v6, vcc
    v_mov_b32 v{SEL+1}, v{SEL}
    v_mov_b32 v{SEL+2}, v{SEL}
    v_mov_b32 v{SEL+3}, v{SEL}
    s_mov_b32 s48, 8
    s_mov_b32 s49, 0
    ''')
    if opt.get('prio',1): e('s_setprio 3')
    e('''
    s_cmp_lg_u32 s7, 0
    s_cbranch_scc1 K1_CF
    ''')

def reads(p,buf):
    par=p&1
    L=[f'ds_read_b128 {vr(buf,4)}, v{XA+p}']
    L+=[f'ds_read_b64_tr_b16 {vr(buf+8,2)}, v{WA+par} offset:{p*2048}', f'ds_read_b64_tr_b16 {vr(buf+10,2)}, v{WA+par} offset:{p*2048+512}']
    L+=[f'ds_read_b128 {vr(buf+4,4)}, v{XA+p} offset:4096']
    for t in (1,2):
        L+=[f'ds_read_b64_tr_b16 {vr(buf+8+4*t,2)}, v{WA+2*t+par} offset:{p*2048}', f'ds_read_b64_tr_b16 {vr(buf+10+4*t,2)}, v{WA+2*t+par} offset:{p*2048+512}']
    return L
def mfmas(buf,ffn,cs):
    L=[]
    for t in range(3):
        for a in range(2):
            X=vr(buf+4*a,4); W=vr(buf+8+4*t,4); A=vr(acc(t,a),16)
            if ffn or t==0: L.append(f'v_mfma_f32_32x32x16_bf16 {A}, {W}, {X}, {A}')
            else: L.append(f'v_mfma_f32_32x32x16_bf16 {A}, {X}, {W}, {A}')
        if cs: L.append(f'v_mfma_f32_16x16x32_bf16 {vr(CS+4*t,4)}, {vr(SEL,4)}, {vr(buf+8+4*t,4)}, {vr(CS+4*t,4)}')
    return L
class DSQ:
    def __init__(self): self.q=[]
    def issue(self,tag): self.q.append(tag); assert len(self.q)<=15,len(self.q)
    def need(self,e,tags):
        idx=[i for i,t in enumerate(self.q) if t in tags]
        if not idx: return
        k=max(idx); n=len(self.q)-1-k
        e(f's_waitcnt lgkmcnt({n})'); self.q=self.q[k+1:]
    def all(self,e):
        if self.q: e('s_waitcnt lgkmcnt(0)')
        self.q=[]
def reads_t(p,buf,name):
    tags=['x0','w0','w0','x1','w1','w1','w2','w2']
    return [(x,name+t) for x,t in zip(reads(p,buf),tags)]
def mfmas_t(buf,ffn,cs,name):
    L=[]; m=mfmas(buf,ffn,cs); k=0
    for t in range(3):
        for a in range(2):
            L.append((m[k],{name+f'x{a}',name+f'w{t}'})); k+=1
        if cs: L.append((m[k],{name+f'w{t}'})); k+=1
    return L
def segment(e,q,ms,rs,pattern,extra=None):
    k=0
    for i,(m,nd) in enumerate(ms):
        q.need(e,nd)
        e(m)
        for _ in range(pattern[i] if i<len(pattern) else 0):
            if k<len(rs):
                x,tag=rs[k]; k+=1
                e(x)
                if tag: q.issue(tag)
    assert k==len(rs)
def mainloop(e,ffn,tag,opt={}):
    stamp(e,opt)
    if opt.get('x_nocomp1'):
        e(f'K1_ML{tag}:\ns_barrier\ns_sub_u32 s48, s48, 1\ns_cmp_lg_u32 s48, 0\ns_cbranch_scc1 K1_ML{tag}')
        stamp(e,opt); return
    e(f'K1_ML{tag}:')
    e('s_barrier')
    if opt.get('profloop'): stamp(e,opt)
    q=DSQ()
    pat=opt.get('rdpat',[3,3,2])
    segment(e,q,[(m,set()) for m in mfmas(FB,ffn,False)], reads_t(0,FA,'A'), pat)
    segment(e,q,mfmas_t(FA,ffn,True,'A'), reads_t(1,FB,'B'), pat)
    segment(e,q,mfmas_t(FB,ffn,False,'B'), reads_t(2,FA,'A'), pat)
    adv=['s_add_u32 s49, s49, s64', f's_cmp_eq_u32 s49, {4*SLOT}', 's_cselect_b32 s50, s65, s64', 's_cselect_b32 s49, 0, s49']
    upd=[f'v_add_u32 v{XA+i}, s50, v{XA+i}' for i in range(4)]+[f'v_add_u32 v{WA+i}, s50, v{WA+i}' for i in range(6)]
    rs=reads_t(3,FB,'B')+[(x,None) for x in adv+upd]
    segment(e,q,mfmas_t(FA,ffn,True,'A'), rs, pat+[4,2,2,2,2,2])
    q.all(e)
    e(f'''
    s_sub_u32 s48, s48, 1
    s_cmp_lg_u32 s48, 0
    s_cbranch_scc1 K1_ML{tag}
    ''')
    for x in mfmas(FB,ffn,False): e(x)
    stamp(e,opt)

def post(e,ffn,opt={}):
    e(f'''
    v_and_b32 v3, 15, v2
    s_mul_i32 s48, s46, 6
    s_mul_i32 s49, s47, 3
    s_add_u32 s48, s48, s49
    s_lshl_b32 s48, s48, 7
    v_lshl_add_u32 v3, v3, 2, s48
    ''')
    for t in range(3):
        e(f'ds_write_b32 v3, v{CS+4*t} offset:{CSP+t*128}')
        e(f'ds_write_b32 v3, v{CS+4*t+1} offset:{CSP+t*128+64}')
    e(f'''
    s_waitcnt lgkmcnt(0)
    s_barrier
    ''')
    stamp(e,opt)
    e(f'''
    v_and_b32 v3, 31, v2
    s_lshl_b32 s48, s46, 6
    v_add_u32 v4, s48, v3
    v_lshlrev_b32 v4, 5, v4
    ds_read_b128 v[{XF}:{XF+3}], v4 offset:{REC}
    ds_read_b128 v[{XF+4}:{XF+7}], v4 offset:{REC+1024}
    ds_read_b128 v[{KC}:{KC+3}], v4 offset:{REC+16}
    ds_read_b128 v[{KC+4}:{KC+7}], v4 offset:{REC+1024+16}
    s_mul_i32 s49, s47, 384
    v_lshl_add_u32 v5, v3, 2, s49
    ''')
    for t in range(3):
        e(f'ds_read_b32 v{8+2*t}, v5 offset:{CSP+t*128}')
        e(f'ds_read_b32 v{9+2*t}, v5 offset:{CSP+768+t*128}')
    e('''
    v_cmp_gt_u32 vcc, 32, v2
    s_nop 0
    s_waitcnt vmcnt(0) lgkmcnt(0)
    ''')
    for r in range(XF,XF+8):
        if (r-XF)%4!=3: e(f'v_cndmask_b32 v{r}, 0, v{r}, vcc')
    for t in range(3):
        w=WF+4*t
        e(f'''
        v_add_f32 v{8+2*t}, v{8+2*t}, v{9+2*t}
        v_cvt_pk_bf16_f32 v{w}, v{8+2*t}, v{8+2*t}
        v_lshlrev_b32 v{9+2*t}, 16, v{w}
        v_sub_f32 v{9+2*t}, v{8+2*t}, v{9+2*t}
        v_cvt_pk_bf16_f32 v{w+1}, v{9+2*t}, v{9+2*t}
        ''')
        if ffn:
            e(f'v_lshlrev_b32 v{w+2}, 16, v{BIA+t}')
            e(f'v_or_b32 v{w+2}, v{w+2}, v{BIA+t}')
        else:
            e(f'v_mov_b32 v{w+2}, 0')
        e(f'v_mov_b32 v{w+3}, 0')
    e('s_nop 1')
    for t in range(3):
        for a in range(2):
            A=vr(acc(t,a),16)
            if ffn or t==0: e(f'v_mfma_f32_32x32x16_bf16 {A}, {vr(WF+4*t,4)}, {vr(XF+4*a,4)}, {A}')
            else: e(f'v_mfma_f32_32x32x16_bf16 {A}, {vr(XF+4*a,4)}, {vr(WF+4*t,4)}, {A}')

def pk(op,d,a,b,c=None,sel=''):
    s=f'v_pk_{op}_f32 v[{d}:{d+1}], v[{a}:{a+1}], v[{b}:{b+1}]'
    if c is not None: s+=f', v[{c}:{c+1}]'
    return s+(' '+sel if sel else '')

def gelu_tile(t,a):
    A=acc(t,a); rs,cA=KC+4*a,KC+4*a+2
    L=[]
    for g in range(2):
        b=A+8*g
        R=range(0,8,2)
        for i in R: L.append(pk('mul',T0+i,b+i,b+i))
        for i in R: L.append(pk('fma',T0+i,T0+i,cA,cA,'op_sel:[0,0,1] op_sel_hi:[1,0,1]'))
        for i in R: L.append(pk('mul',T0+i,T0+i,b+i))
        for i in range(8): L.append(f'v_exp_f32 v{T0+i}, v{T0+i}')
        for i in R: L.append(pk('fma',T0+i,T0+i,rs,rs,'op_sel:[0,1,1] op_sel_hi:[1,1,1]'))
        for i in range(8): L.append(f'v_rcp_f32 v{T0+i}, v{T0+i}')
        L.append('s_nop 0')
        for i in R: L.append(pk('mul',T0+i,T0+i,b+i))
        for i in R: L.append(f'v_cvt_pk_bf16_f32 v{OUT+4*g+i//2}, v{T0+i}, v{T0+i+1}')
    return L

def store2(e,so,off,opt,tmp=53):
    fl=opt.get('stflag','')
    if off+1024>4095:
        e(f's_add_u32 s{tmp}, s{so}, {off}')
        so=tmp; off=0
    e(f'buffer_store_dwordx4 v[{OUT}:{OUT+3}], v4, s[16:19], s{so} offen offset:{off} {fl}')
    e(f'buffer_store_dwordx4 v[{OUT+4}:{OUT+7}], v4, s[16:19], s{so} offen offset:{off+1024} {fl}')

def ffn_path(e,opt):
    e('K1_CF:')
    mainloop(e,True,'F',opt)
    post(e,True,opt)
    stamp(e,opt)
    e(f'''
    v_lshlrev_b32 v4, 4, v2
    s_lshl_b32 s48, s4, 2
    s_lshl_b32 s49, s46, 1
    s_add_u32 s48, s48, s49           ; s-tile (a=0)
    s_mul_i32 s48, s48, 86
    s_mul_i32 s49, s47, 3
    s_add_u32 s49, s49, s44
    s_lshl_b32 s50, s49, 1
    s_add_u32 s48, s48, s50
    s_lshl_b32 s48, s48, 10
    s_add_u32 s51, s48, {86*1024}     ; a=1
    s_mul_i32 s52, s47, 3
    s_sub_u32 s52, s45, s52
    ''')
    for t in range(3):
        if t==2:
            e('s_cmp_lt_u32 s52, 3')
            e('s_cbranch_scc1 K1_END')
        for a in range(2):
            for x in gelu_tile(t,a): e(x)
            store2(e, 48 if a==0 else 51, t*2048, opt)
            stamp(e,opt)
    e('s_branch K1_END' if (opt.get('prof') or opt.get('fused')) else 's_endpgm')

def qkv_path(e,opt):
    mainloop(e,False,'Q',opt)
    post(e,False,opt)
    stamp(e,opt)
    RS=48
    e(f'''
    v_lshlrev_b32 v4, 4, v2
    s_lshl_b32 s48, s4, 2
    s_lshl_b32 s49, s46, 1
    s_add_u32 s48, s48, s49           ; s-tile a=0
    s_lshl_b32 s48, s48, 5
    s_lshl_b32 s49, s5, 2
    s_lshl_b32 s50, s47, 1
    s_add_u32 s49, s49, s50
    s_add_u32 s48, s48, s49
    s_lshl_b32 s48, s48, 10
    s_add_u32 s48, s48, {WS_PQ}
    s_add_u32 s51, s48, {32*1024}
    s_mov_b32 s54, {hx(LOG2E)}
    s_mov_b32 s55, {hx(1e-6)}
    v_lshrrev_b32 v5, 5, v2
    v_lshlrev_b32 v5, 4, v5
    s_lshl_b32 s49, s46, 8
    v_add_u32 v5, s49, v5
    v_mul_f32 v6, s54, v{KC}
    v_mul_f32 v7, s54, v{KC+4}        ; a=1
    ''')
    for a in range(2):
        A=acc(0,a); rs=KC+4*a; rl=6+a
        for g in range(2):
            b=A+8*g
            for i in range(8): e(f'v_mul_f32 v{T0+i}, v{b+i}, v{rl}')
            for i in range(8): e(f'v_min_f32 v{T0+i}, 0, v{T0+i}')
            for i in range(8): e(f'v_exp_f32 v{T0+i}, v{T0+i}')
            for i in range(8): e(f'v_max_f32 v{T0+8+i}, 0, v{b+i}')
            for i in range(8): e(f'v_add_f32 v{T0+i}, s55, v{T0+i}')
            for i in range(8): e(f'v_fmac_f32 v{T0+i}, v{T0+8+i}, v{rs}')
            for i in range(0,8,2): e(f'v_cvt_pk_bf16_f32 v{OUT+4*g+i//2}, v{T0+i}, v{T0+i+1}')
        store2(e, 48 if a==0 else 51, 0, opt)
    stamp(e,opt)
    KV=acc(0,0); Z=acc(0,1)
    PK=96; VF=104
    ONE=112
    for r in range(4): e(f'v_mov_b32 v{ONE+r}, 0x3f803f80')
    for a in range(2):
        for g in range(4): e(f'ds_read_b128 v[{RS+4*g}:{RS+4*g+3}], v5 offset:{RSTD+a*128+g*32}')
        e('s_waitcnt lgkmcnt(0)')
        K=acc(1,a); V=acc(2,a)
        for g in range(2):
            b=K+8*g; r0=RS+8*g
            for i in range(8): e(f'v_mul_f32 v{T0+8+i}, v{b+i}, v{r0+i}')
            for i in range(8): e(f'v_mul_f32 v{T0+i}, s54, v{T0+8+i}')
            for i in range(8): e(f'v_min_f32 v{T0+i}, 0, v{T0+i}')
            for i in range(8): e(f'v_exp_f32 v{T0+i}, v{T0+i}')
            for i in range(8): e(f'v_max_f32 v{T0+8+i}, 0, v{T0+8+i}')
            for i in range(8): e(f'v_add_f32 v{T0+i}, s55, v{T0+i}')
            for i in range(8): e(f'v_add_f32 v{T0+i}, v{T0+i}, v{T0+8+i}')
            for i in range(0,8,2): e(f'v_cvt_pk_bf16_f32 v{PK+4*g+i//2}, v{T0+i}, v{T0+i+1}')
            bv=V+8*g
            for i in range(8): e(f'v_mul_f32 v{T0+i}, v{bv+i}, v{r0+i}')
            for i in range(0,8,2): e(f'v_cvt_pk_bf16_f32 v{VF+4*g+i//2}, v{T0+i}, v{T0+i+1}')
        e('s_nop 1')
        for g in range(2):
            c0 = '0' if (a==0 and g==0) else vr(KV,16)
            z0 = '0' if (a==0 and g==0) else vr(Z,16)
            e(f'v_mfma_f32_32x32x16_bf16 {vr(KV,16)}, {vr(PK+4*g,4)}, {vr(VF+4*g,4)}, {c0}')
            e(f'v_mfma_f32_32x32x16_bf16 {vr(Z,16)}, {vr(PK+4*g,4)}, {vr(ONE,4)}, {z0}')
    e(f'''
    v_and_b32 v8, 15, v2
    v_lshrrev_b32 v9, 5, v2
    v_lshl_add_u32 v8, v9, 4, v8
    v_lshlrev_b32 v8, 4, v8           ; (hiD*16+e)*16
    v_bfe_u32 v10, v2, 4, 1
    v_lshl_add_u32 v8, v10, 10, v8
    s_mul_i32 s48, s46, 4352
    s_lshl_b32 s49, s47, 11
    s_add_u32 s49, s48, s49
    v_add_u32 v8, s49, v8
    s_lshl_b32 s49, s47, 7
    s_add_u32 s49, s48, s49
    v_lshl_add_u32 v9, v9, 4, s49
    s_nop 7
    s_mov_b32 exec_lo, 0x0000ffff
    s_mov_b32 exec_hi, 0x0000ffff
    ds_write_b128 v8, v[{KV}:{KV+3}] offset:{KVP}
    ds_write_b128 v8, v[{KV+4}:{KV+7}] offset:{KVP+512}
    s_mov_b32 exec_lo, 0xffff0000
    s_mov_b32 exec_hi, 0xffff0000
    ds_write_b128 v8, v[{KV+8}:{KV+11}] offset:{KVP}
    ds_write_b128 v8, v[{KV+12}:{KV+15}] offset:{KVP+512}
    s_mov_b32 exec_lo, 1
    s_mov_b32 exec_hi, 1
    ds_write_b128 v9, v[{Z}:{Z+3}] offset:{KVP+4096}
    ds_write_b128 v9, v[{Z+4}:{Z+7}] offset:{KVP+4096+32}
    ds_write_b128 v9, v[{Z+8}:{Z+11}] offset:{KVP+4096+64}
    ds_write_b128 v9, v[{Z+12}:{Z+15}] offset:{KVP+4096+64+32}
    s_mov_b64 exec, -1
    ''')
    stamp(e,opt)
    e(f'''
    K1_KVRED:
    s_waitcnt lgkmcnt(0)
    s_barrier
    ''')
    stamp(e,opt)
    e(f'''
    v_lshlrev_b32 v3, 2, v0
    ds_read_b32 v8, v3 offset:{KVP}
    ds_read_b32 v9, v3 offset:{KVP+4352}
    ds_read_b32 v10, v3 offset:{KVP+2048}
    ds_read_b32 v11, v3 offset:{KVP+2048+4352}
    s_lshl_b32 s48, s5, 12
    s_add_u32 s48, s48, {WS_KV}
    s_waitcnt lgkmcnt(0)
    v_add_f32 v8, v8, v9
    v_add_f32 v10, v10, v11
    buffer_atomic_add_f32 v8, v3, s[16:19], s48 offen
    buffer_atomic_add_f32 v10, v3, s[16:19], s48 offen offset:2048
    s_cmp_lg_u32 s3, 0
    s_cbranch_scc1 K1_END
    ds_read_b32 v8, v3 offset:{KVP+4096}
    ds_read_b32 v9, v3 offset:{KVP+4096+4352}
    s_lshl_b32 s48, s5, 8
    s_add_u32 s48, s48, {WS_Z}
    s_waitcnt lgkmcnt(0)
    v_add_f32 v8, v8, v9
    buffer_atomic_add_f32 v8, v3, s[16:19], s48 offen
    ''')

def stamp_end(e):
    e(f'''
    s_memrealtime s[68:69]
    s_waitcnt lgkmcnt(0)
    s_lshl_b32 s70, s2, 3
    s_add_u32 s70, s70, s3
    s_lshl_b32 s70, s70, 3
    s_add_u32 s70, s70, {WS_TS}
    v_mov_b32 v8, s66
    v_mov_b32 v9, s68
    v_mov_b32 v10, 0
    buffer_store_dwordx2 v[8:9], v10, s[72:75], s70 offen
    ''')
def k1(opt):
    e=E()
    if opt.get('ts'):
        e('s_memrealtime s[66:67]')
    prologue(e,opt)
    if opt.get('ts'):
        pass
    loader(e,opt)
    cons_setup(e,opt)
    qkv_path(e,opt)
    e('K1_END:')
    if opt.get('prof'):
        e('s_waitcnt vmcnt(0)')
        stamp(e,opt)
        stamp_flush(e,opt,16,0,8)
    if opt.get('fused'):
        e(f'''
        s_setprio 0
        s_waitcnt vmcnt(0) lgkmcnt(0)
        s_barrier
        s_cmp_lg_u32 s3, 4
        s_cbranch_scc1 K2_ENTRY
        s_mov_b64 exec, 1
        v_mov_b32 v8, 1
        s_lshl_b32 s48, s4, 2
        s_add_u32 s48, s48, {CNT_RB*4}
        v_mov_b32 v9, s48
        buffer_atomic_add v8, v9, s[24:27], 0 offen
        s_cmp_lg_u32 s7, 0
        s_cbranch_scc1 K1_NOKVC
        v_mov_b32 v9, {CNT_KV*4}
        buffer_atomic_add v8, v9, s[24:27], 0 offen
        K1_NOKVC:
        s_mov_b64 exec, -1
        s_branch K2_ENTRY
        ''')
    e('K1_EXIT0:')
    e('s_endpgm')
    ffn_path(e,opt)
    t=e.text()
    if opt.get('fused'):
        t=t.replace('s_cbranch_scc1 K1_END\n    s_load_dwordx4 s[28:31]','s_cbranch_scc1 K1_EXIT0\n    s_load_dwordx4 s[28:31]')
    if opt.get('prof'):
        t=t.replace('s_cbranch_scc1 K1_END\n    s_load_dwordx4 s[28:31]','s_cbranch_scc1 K1_EXIT0\n    s_load_dwordx4 s[28:31]')
    if opt.get('ts'):
        e2=E(); stamp_end(e2); e2('s_endpgm')
        t=t.replace('s_cbranch_scc1 K1_END\n    s_load_dwordx4 s[28:31]','s_cbranch_scc1 K1_EXIT\n    s_load_dwordx4 s[28:31]')
        t=t.replace('K1_END:\nK1_EXIT0:\n    s_endpgm','K1_END:\n'+e2.text()+'K1_EXIT:\n    s_endpgm',1)
        i=t.rindex('s_endpgm'); t=t[:i]+'s_branch K1_END\n'
        e3=E(); srd(e3,72,38,WS_TS+256*8*8)
        t=t.replace('    s_cmp_lt_u32 s3, 4\n    s_cbranch_scc1 K1_CONS', e3.text()+'    s_cmp_lt_u32 s3, 4\n    s_cbranch_scc1 K1_CONS')
    return t
```

```python
from common import *
from k1 import DSQ
SLOT=40960; NS=3
AOFF=0; BOFF=16384; KOFF=32768
ZL=NS*SLOT
XL=ZL+2048
B2L=XL+8192
OL=B2L+1024
LDS_BYTES=OL+16384
ACC=128
F0=64
MASK=0x4888
NST=15

def k2(opt):
    e=E()
    if opt.get('ts'): e('s_memrealtime s[66:67]')
    fused=opt.get('fused')
    if fused: e('K2_ENTRY:')
    else: e('s_cmp_ge_u32 s2, 256\ns_cbranch_scc1 K2_EXIT')
    e(f'''
    s_load_dwordx2 s[28:29], s[0:1], 0
    s_load_dwordx2 s[30:31], s[0:1], 16
    s_load_dwordx4 s[32:35], s[0:1], 48
    s_load_dwordx2 s[36:37], s[0:1], 64
    s_load_dwordx2 s[38:39], s[0:1], 80
    s_load_dwordx2 s[80:81], s[0:1], 72
    v_lshrrev_b32 v1, 6, v0
    v_and_b32 v2, 63, v0
    v_readfirstlane_b32 s3, v1
    s_and_b32 s8, s2, 7
    s_lshr_b32 s9, s2, 3
    s_and_b32 s4, s9, 3
    s_lshl_b32 s8, s8, 2
    s_add_u32 s4, s4, s8
    s_lshr_b32 s5, s9, 2              ; cb2 0..7
    s_mov_b32 s40, {opt.get('mask2',MASK)}
    s_mov_b32 s64, {SLOT}
    s_mov_b32 s65, {-(NS-1)*SLOT & 0xffffffff:#x}
    s_cmp_lt_u32 s3, 4
    s_cbranch_scc1 K2_COMP
    ''')
    e(f'''
    s_and_b32 s46, s3, 3              ; lw
    ''')
    if opt.get('rot2','on')=='on':
        e('s_and_b32 s42, s4, 3\ns_mul_i32 s41, s42, 3\ns_add_u32 s41, s41, s5\ns_cmp_ge_u32 s41, 11\ns_cselect_b32 s43, 11, 0\ns_sub_u32 s41, s41, s43\ns_add_u32 s42, s42, s5\ns_and_b32 s42, s42, 3')
    else:
        e('s_mov_b32 s41, 0\ns_mov_b32 s42, 0')
    e(f'''
    s_lshl_b32 s45, s4, 1             ; s-tile 0
    s_mul_i32 s47, s45, {86*1024}
    s_lshl_b32 s48, s45, 15
    s_add_u32 s48, s48, {WS_PQ}
    v_lshlrev_b32 v3, 4, v2
    s_lshl_b32 s49, s46, 11
    v_add_u32 v3, s49, v3
    v_lshrrev_b32 v4, 3, v2
    v_and_b32 v5, 7, v2
    v_bfe_u32 v6, v2, 4, 1
    v_lshlrev_b32 v6, 2, v6
    v_xor_b32 v5, v5, v6
    v_lshlrev_b32 v5, 4, v5
    v_lshl_add_u32 v4, v4, 10, v5
    s_lshl_b32 s49, s5, 7
    s_lshl_b32 s50, s46, 15
    s_add_u32 s49, s49, s50
    v_add_u32 v4, s49, v4
    v_add_u32 v5, 0x2000, v4
    v_add_u32 v6, 0x4000, v4
    v_add_u32 v7, 0x6000, v4
    s_lshl_b32 s54, s46, 11
    s_lshl_b32 s55, s46, 12
    s_add_u32 s55, s55, {BOFF}
    s_mov_b32 s53, 0                  ; slot
    s_mov_b32 s52, 0
    s_waitcnt lgkmcnt(0)
    ''')
    srd(e,8,38,(WS_PROF+2*256*8*256) if opt.get('prof') else WS_SIZE)
    srd(e,12,32,F*D*2)
    srd(e,16,30,D*D*2)
    srd(e,20,28,S*D*2)
    srd(e,24,34,D*2)
    srd(e,76,80,256)
    if not fused: stamp_init(e,opt)
    stamp(e,opt)
    def poll(idx_expr,target,tag):
        e(f'''
        s_cmp_lg_u32 s3, 4
        s_cbranch_scc1 K2_PE{tag}
        {idx_expr}
        v_mov_b32 v10, s87
        s_mov_b32 s86, 0x40000
        K2_PL{tag}:
        buffer_load_dword v11, v10, s[76:79], 0 offen sc1
        s_waitcnt vmcnt(0)
        v_readfirstlane_b32 s85, v11
        s_sub_u32 s86, s86, 1
        s_cmp_ge_u32 s85, {target}
        s_cbranch_scc1 K2_PE{tag}
        s_sleep 2
        s_cmp_lg_u32 s86, 0
        s_cbranch_scc1 K2_PL{tag}
        K2_PE{tag}:
        ''')
    if fused:
        poll(f's_lshr_b32 s87, s4, 1\ns_lshl_b32 s87, s87, 2\ns_add_u32 s87, s87, {CNT_RB*4}',16,'R')
        stamp(e,opt)
        e('s_barrier')
    af=opt.get('aflag','')
    def issue(tag):
        la=f'K2_IA{tag}'; lc=f'K2_IC{tag}'
        if opt.get('x_nodma2'):
            e('s_add_u32 s52, s52, 1'); return
        e(f'''
        s_add_u32 s58, s53, s54
        s_add_u32 s59, s53, s55
        s_bitcmp1_b32 s40, s52
        s_cbranch_scc1 {la}
        s_lshl_b32 s56, s41, 13
        s_add_u32 s56, s56, s47
        s_mov_b32 m0, s58
        s_lshl_b32 s60, s41, 17
        buffer_load_dwordx4 v3, s[8:11], s56 offen {af} lds
        buffer_load_dwordx4 v3, s[8:11], s56 offen offset:1024 {af} lds
        s_add_u32 m0, s58, 8192
        s_add_u32 s56, s56, {86*1024}
        buffer_load_dwordx4 v3, s[8:11], s56 offen {af} lds
        buffer_load_dwordx4 v3, s[8:11], s56 offen offset:1024 {af} lds
        s_mov_b32 m0, s59
        s_add_u32 s41, s41, 1
        buffer_load_dwordx4 v4, s[12:15], s60 offen lds
        s_add_u32 m0, s59, 1024
        s_cmp_eq_u32 s41, 11
        buffer_load_dwordx4 v5, s[12:15], s60 offen lds
        s_cselect_b32 s41, 0, s41
        s_add_u32 m0, s59, 2048
        s_nop 0
        buffer_load_dwordx4 v6, s[12:15], s60 offen lds
        s_add_u32 m0, s59, 3072
        s_nop 0
        buffer_load_dwordx4 v7, s[12:15], s60 offen lds
        s_branch {lc}
        {la}:
        s_lshl_b32 s56, s42, 13
        s_add_u32 s57, s56, {WS_KV}
        s_add_u32 s56, s56, s48
        s_mov_b32 m0, s58
        s_lshl_b32 s60, s42, 17
        buffer_load_dwordx4 v3, s[8:11], s56 offen {af} lds
        buffer_load_dwordx4 v3, s[8:11], s56 offen offset:1024 {af} lds
        s_add_u32 m0, s58, 8192
        s_add_u32 s56, s56, {32*1024}
        buffer_load_dwordx4 v3, s[8:11], s56 offen {af} lds
        buffer_load_dwordx4 v3, s[8:11], s56 offen offset:1024 {af} lds
        s_add_u32 m0, s58, {KOFF}
        s_add_u32 s42, s42, 1
        buffer_load_dwordx4 v3, s[8:11], s57 offen {af} lds
        buffer_load_dwordx4 v3, s[8:11], s57 offen offset:1024 {af} lds
        s_mov_b32 m0, s59
        s_and_b32 s42, s42, 3
        buffer_load_dwordx4 v4, s[16:19], s60 offen lds
        s_add_u32 m0, s59, 1024
        s_nop 0
        buffer_load_dwordx4 v5, s[16:19], s60 offen lds
        s_add_u32 m0, s59, 2048
        s_nop 0
        buffer_load_dwordx4 v6, s[16:19], s60 offen lds
        s_add_u32 m0, s59, 3072
        s_nop 0
        buffer_load_dwordx4 v7, s[16:19], s60 offen lds
        {lc}:
        s_add_u32 s52, s52, 1
        s_add_u32 s53, s53, s64
        s_cmp_eq_u32 s53, {NS*SLOT}
        s_cselect_b32 s53, 0, s53
        ''')
    issue('0')
    e(f'''
    v_lshrrev_b32 v8, 3, v2
    v_and_b32 v9, 7, v2
    v_xor_b32 v9, v9, v8
    v_lshlrev_b32 v9, 4, v9
    v_lshl_add_u32 v9, v8, 10, v9
    s_lshl_b32 s56, s4, 16
    s_lshl_b32 s57, s5, 7
    s_add_u32 s56, s56, s57
    s_lshl_b32 s57, s46, 14
    s_add_u32 s56, s56, s57
    s_lshl_b32 s57, s46, 11
    s_add_u32 m0, s57, {XL}
    s_nop 0
    buffer_load_dwordx4 v9, s[20:23], s56 offen lds
    s_add_u32 m0, s57, {XL+1024}
    s_add_u32 s56, s56, 8192
    buffer_load_dwordx4 v9, s[20:23], s56 offen lds
    v_lshlrev_b32 v12, 4, v2
    s_cmp_lt_u32 s46, 2
    s_cbranch_scc0 K2_NZ
    ''')
    if not fused:
        e(f'''
        s_lshl_b32 s57, s46, 10
        s_add_u32 m0, s57, {ZL}
        s_add_u32 s56, s57, {WS_Z}
        buffer_load_dwordx4 v12, s[8:11], s56 offen {af} lds
        ''')
    e(f'''
    s_branch K2_NZE
    K2_NZ:
    v_and_b32 v8, 7, v2
    v_lshlrev_b32 v8, 4, v8
    s_lshl_b32 s56, s5, 7
    s_mov_b32 m0, {B2L}
    s_nop 0
    buffer_load_dwordx4 v8, s[24:27], s56 offen lds
    K2_NZE:
    ''')
    issue('1')
    e(f'''
    s_mov_b32 s51, 0
    K2_LL:
    s_cmp_eq_u32 s51, {NST-1}
    s_cbranch_scc1 K2_LW0
    s_waitcnt vmcnt(8)
    s_branch K2_LW1
    K2_LW0:
    s_waitcnt vmcnt(0)
    K2_LW1:
    ''')
    stamp(e,opt) if opt.get('profloop') else None
    if fused:
        first=min(n for n in range(NST) if (opt.get('mask2',MASK)>>n)&1)
        e(f's_cmp_lg_u32 s51, {first-2}')
        e('s_cbranch_scc1 K2_NKP')
        poll(f's_mov_b32 s87, {CNT_KV*4}',128,'K')
        e('K2_NKP:')
    e('s_barrier')
    if fused:
        e(f'''
        s_cmp_lg_u32 s51, {first-2}
        s_cbranch_scc1 K2_NZL
        s_cmp_lt_u32 s46, 2
        s_cbranch_scc0 K2_NZL
        s_lshl_b32 s57, s46, 10
        s_add_u32 m0, s57, {ZL}
        s_add_u32 s56, s57, {WS_Z}
        buffer_load_dwordx4 v12, s[8:11], s56 offen {af} lds
        K2_NZL:
        ''')
    e(f'''
    s_cmp_ge_u32 s51, {NST-2}
    s_cbranch_scc1 K2_LNI
    ''')
    issue('L')
    e(f'''
    K2_LNI:
    s_bitcmp1_b32 s40, s51
    s_cbranch_scc0 K2_LNB
    s_barrier
    K2_LNB:
    s_add_u32 s51, s51, 1
    s_cmp_lg_u32 s51, {NST}
    s_cbranch_scc1 K2_LL
    s_branch K2_END
    ''')
    e('K2_COMP:')
    e(f'''
    s_and_b32 s46, s3, 1              ; a
    s_lshr_b32 s47, s3, 1             ; b
    v_lshrrev_b32 v7, 5, v2           ; hi
    v_lshlrev_b32 v13, 4, v2
    s_lshl_b32 s48, s46, 13
    v_add_u32 v13, s48, v13
    v_and_b32 v14, 15, v2
    v_lshrrev_b32 v14, 2, v14
    v_lshl_add_u32 v14, v7, 2, v14     ; 4hi + (i>>2)
    v_lshlrev_b32 v14, 7, v14
    v_and_b32 v15, 3, v2
    v_lshlrev_b32 v15, 3, v15
    v_bfe_u32 v8, v2, 4, 1
    v_lshl_add_u32 v15, v8, 5, v15
    s_lshl_b32 s48, s47, 6
    v_add_u32 v15, s48, v15
    v_bfe_u32 v8, v2, 3, 1
    v_lshlrev_b32 v8, 6, v8
    v_xor_b32 v15, v15, v8
    v_add_u32 v14, v14, v15
    v_add_u32 v14, {BOFF}, v14         ; B read
    v_and_b32 v9, 31, v2
    v_lshl_add_u32 v10, v7, 4, v9
    v_lshlrev_b32 v10, 4, v10
    v_add_u32 v10, {KOFF}, v10
    v_lshlrev_b32 v11, 4, v7
    v_add_u32 v11, {ZL}, v11
    v_cmp_gt_u32 vcc, 16, v9
    v_mov_b32 v16, 64
    v_mov_b32 v17, 0x400
    v_mov_b32 v18, 32
    v_mov_b32 v19, 0x200
    v_cndmask_b32 v16, v16, v17, vcc
    v_cndmask_b32 v18, v18, v19, vcc
    s_mov_b64 s[70:71], vcc
    s_mov_b32 s74, {hx(1e-6)}
    s_mov_b32 s52, 0
    s_mov_b32 s53, 0
    ''')
    if opt.get('rot2','on')=='on': e('s_and_b32 s42, s4, 3\ns_add_u32 s42, s42, s5\ns_and_b32 s42, s42, 3')
    else: e('s_mov_b32 s42, 0')
    for r in range(ACC,ACC+16): e(f'v_mov_b32 v{r}, 0')
    e('s_waitcnt lgkmcnt(0)')
    srd(e,8,38,(WS_PROF+2*256*8*256) if opt.get('prof') else WS_SIZE)
    srd(e,20,36,S*D*2)
    if not fused: stamp_init(e,opt)
    stamp(e,opt)
    if opt.get('prio',1): e('s_setprio 3')
    if fused: e('s_barrier')
    e('K2_CL:')
    e('s_barrier')
    if opt.get('profloop'): stamp(e,opt)
    if opt.get('x_nocomp2'): e('s_branch K2_CN')
    e('s_bitcmp1_b32 s40, s52')
    e('s_cbranch_scc1 K2_CA')
    q=DSQ()
    def frd(s):
        b=F0+8*s
        return [(f'ds_read_b128 v[{b}:{b+3}], v13 offset:{s*1024}',f'a{s}'),
                (f'ds_read_b64_tr_b16 v[{b+4}:{b+5}], v14 offset:{s*2048}',f'b{s}'),
                (f'ds_read_b64_tr_b16 v[{b+6}:{b+7}], v14 offset:{s*2048+1024}',f'b{s}')]
    for s in range(4):
        for x,t in frd(s): e(x); q.issue(t)
    for s in range(8):
        q.need(e,{f'a{s}',f'b{s}'})
        b=F0+8*s
        e(f'v_mfma_f32_32x32x16_bf16 {vr(ACC,16)}, {vr(b+4,4)}, {vr(b,4)}, {vr(ACC,16)}')
        if s<4:
            for x,t in frd(s+4): e(x); q.issue(t)
    e('s_branch K2_CN')
    e('K2_CA:')
    e(f'''
    v_add_u32 v20, s53, v10
    s_lshl_b32 s48, s42, 9            ; 8 heads * 64 B
    v_add_u32 v21, s48, v11
    s_add_u32 s42, s42, 1
    s_and_b32 s42, s42, 3
    v_cndmask_b32 v20, v21, v20, s[70:71]
    s_lshl_b32 s48, s47, 2            ; 4b
    v_mad_u32_u24 v20, v16, s48, v20  ; + 4b heads
    v_add_u32 v21, v20, v18
    s_lshl_b32 s48, s47, 12
    v_add_u32 v22, s48, v13
    ''')
    q=DSQ()
    DB=[32,48]
    KF=24
    OWN=112
    def ard(h):
        b=F0+12*h
        return [(f'ds_read_b128 v[{b}:{b+3}], v20',f'k{h}'),(f'ds_read_b128 v[{b+4}:{b+7}], v21',f'k{h}'),
           (f'ds_read_b128 v[{b+8}:{b+11}], v22 offset:{h*1024}',f'p{h}')]
    for h in range(4):
        for x,t in ard(h): e(x); q.issue(t)
        if h<3: e('v_add_u32 v20, v20, v16'); e('v_add_u32 v21, v21, v16')
    def fin(h):
        Dr=DB[h%2]
        e(f'v_add_f32 v8, s74, v{Dr+8}')
        e(f'v_rcp_f32 v8, v8')
        e('s_nop 0')
        for i in range(8): e(f'v_mul_f32 v{Dr+i}, v{Dr+i}, v8')
        for i in range(4): e(f'v_cvt_pk_bf16_f32 v{OWN+4*h+i}, v{Dr+2*i}, v{Dr+2*i+1}')
        e(f'ds_write_b128 v23, v[{OWN+4*h}:{OWN+4*h+3}] offset:{h*1024}')
    e(f'''
    v_lshlrev_b32 v23, 4, v2
    s_lshl_b32 s48, s46, 13
    s_lshl_b32 s49, s47, 12
    s_add_u32 s48, s48, s49
    s_add_u32 s48, s48, {OL}
    v_add_u32 v23, s48, v23
    s_xor_b32 s49, s47, 1
    s_lshl_b32 s49, s49, 12
    s_lshl_b32 s48, s46, 13
    s_add_u32 s48, s48, s49
    s_add_u32 s48, s48, {OL}
    v_lshlrev_b32 v19, 4, v2
    v_add_u32 v19, s48, v19
    ''')
    for h in range(4):
        b=F0+12*h
        q.need(e,{f'k{h}',f'p{h}'})
        for i in range(4): e(f'v_cvt_pk_bf16_f32 v{KF+i}, v{b+2*i}, v{b+2*i+1}')
        e('s_nop 1')
        e(f'v_mfma_f32_32x32x16_bf16 {vr(DB[h%2],16)}, {vr(KF,4)}, {vr(b+8,4)}, 0')
        if h==1: e('s_nop 3')
        if h>0: fin(h-1)
    fin(3)
    e('s_lshl_b32 s48, s47, 13')
    e('v_add_u32 v24, s48, v14')
    e('s_xor_b32 s48, s48, 8192')
    e('v_add_u32 v25, s48, v14')
    q=DSQ()
    WB=F0
    e('s_waitcnt lgkmcnt(0)')
    for h in range(4):
        e(f'ds_read_b64_tr_b16 v[{WB+4*h}:{WB+4*h+1}], v24 offset:{h*2048}'); q.issue(f'w{h}')
        e(f'ds_read_b64_tr_b16 v[{WB+4*h+2}:{WB+4*h+3}], v24 offset:{h*2048+1024}'); q.issue(f'w{h}')
    e('s_barrier')
    PO=96
    def prd(h):
        e(f'ds_read_b128 v[{PO+4*h}:{PO+4*h+3}], v19 offset:{h*1024}'); q.issue(f'o{h}')
        e(f'ds_read_b64_tr_b16 v[{WB+16+4*h}:{WB+16+4*h+1}], v25 offset:{h*2048}'); q.issue(f'x{h}')
        e(f'ds_read_b64_tr_b16 v[{WB+16+4*h+2}:{WB+16+4*h+3}], v25 offset:{h*2048+1024}'); q.issue(f'x{h}')
    prd(0); prd(1)
    for h in range(4):
        q.need(e,{f'w{h}'})
        e(f'v_mfma_f32_32x32x16_bf16 {vr(ACC,16)}, {vr(WB+4*h,4)}, {vr(OWN+4*h,4)}, {vr(ACC,16)}')
        if h==0: prd(2)
        if h==2: prd(3)
    for h in range(4):
        q.need(e,{f'o{h}',f'x{h}'})
        e(f'v_mfma_f32_32x32x16_bf16 {vr(ACC,16)}, {vr(WB+16+4*h,4)}, {vr(PO+4*h,4)}, {vr(ACC,16)}')
    e('K2_CN:')
    e(f'''
    s_waitcnt lgkmcnt(0)
    s_add_u32 s53, s53, s64
    s_cmp_eq_u32 s53, {NS*SLOT}
    s_cselect_b32 s50, s65, s64
    s_cselect_b32 s53, 0, s53
    v_add_u32 v13, s50, v13
    v_add_u32 v14, s50, v14
    s_add_u32 s52, s52, 1
    s_cmp_lg_u32 s52, {NST}
    s_cbranch_scc1 K2_CL
    ''')
    stamp(e,opt)
    e(f'''
    v_and_b32 v9, 31, v2
    s_lshl_b32 s48, s46, 5
    v_add_u32 v9, s48, v9
    v_and_b32 v10, 7, v9              ; row&7
    s_lshl_b32 s49, s47, 2
    v_lshlrev_b32 v11, 7, v9
    v_lshl_add_u32 v11, v7, 3, v11
    v_add_u32 v11, {XL}, v11
    v_lshlrev_b32 v12, 3, v7
    s_lshl_b32 s50, s47, 6
    v_add_u32 v12, s50, v12
    v_add_u32 v12, {B2L}, v12         ; b2: b*64 + hi*8
    ''')
    for g in range(4):
        e(f'v_add_u32 v16, s49, {g}' if False else f'v_mov_b32 v16, s49')
        e(f'v_add_u32 v16, {g}, v16')
        e(f'v_xor_b32 v16, v16, v10')
        e(f'v_lshl_add_u32 v16, v16, 4, v11')
        e(f'ds_read_b64 v[{32+2*g}:{33+2*g}], v16')
        e(f'ds_read_b64 v[{40+2*g}:{41+2*g}], v12 offset:{g*16}')
    e(f'''
    s_mov_b32 s70, 0xffff0000
    s_lshl_b32 s48, s4, 6
    v_add_u32 v17, s48, v9
    v_lshlrev_b32 v17, 10, v17
    s_lshl_b32 s48, s5, 7
    s_lshl_b32 s49, s47, 6
    s_add_u32 s48, s48, s49
    v_lshl_add_u32 v17, v7, 4, v17
    v_add_u32 v17, s48, v17
    s_waitcnt lgkmcnt(0)
    ''')
    for g in range(4):
        for c2 in range(2):
            xr=32+2*g+c2; br=40+2*g+c2; a0=ACC+4*g+2*c2
            e(f'''
            v_lshlrev_b32 v20, 16, v{xr}
            v_and_b32 v21, s70, v{xr}
            v_lshlrev_b32 v22, 16, v{br}
            v_and_b32 v23, s70, v{br}
            v_add_f32 v20, v20, v22
            v_add_f32 v21, v21, v23
            v_add_f32 v20, v20, v{a0}
            v_add_f32 v21, v21, v{a0+1}
            v_cvt_pk_bf16_f32 v{48+2*g+c2}, v20, v21
            ''')
    e('''
    s_nop 1
    v_permlane32_swap_b32 v48, v50
    v_permlane32_swap_b32 v49, v51
    v_permlane32_swap_b32 v52, v54
    v_permlane32_swap_b32 v53, v55
    buffer_store_dwordx4 v[48:51], v17, s[20:23], 0 offen
    buffer_store_dwordx4 v[52:55], v17, s[20:23], 0 offen offset:32
    ''')
    e('K2_END:')
    if opt.get('spin'):
        e(f'''
        s_mov_b32 s92, s38
        s_and_b32 s93, s39, 0xffff
        s_mov_b32 s94, {WS_TS+4096}
        s_mov_b32 s95, 0x20000
        v_mov_b32 v9, 0
        s_mov_b32 s89, {WS_TS}
        buffer_load_dword v8, v9, s[92:95], s89 offen sc1
        s_waitcnt vmcnt(0)
        v_readfirstlane_b32 s88, v8
        s_mov_b32 s87, 0x100000
        K2_SPIN:
        s_memrealtime s[90:91]
        s_waitcnt lgkmcnt(0)
        s_sub_u32 s86, s90, s88
        s_sub_u32 s87, s87, 1
        s_cmp_eq_u32 s87, 0
        s_cbranch_scc1 K2_SPINE
        s_cmp_lt_u32 s86, {opt['spin']}
        s_cbranch_scc1 K2_SPIN
        K2_SPINE:
        ''')
    if opt.get('prof'):
        e('s_waitcnt vmcnt(0)')
        stamp(e,opt)
        stamp_flush(e,opt,8,1,8)
    if opt.get('ts'):
        e(f'''
        s_waitcnt vmcnt(0)
        s_memrealtime s[68:69]
        s_mov_b32 s76, s38
        s_and_b32 s77, s39, 0xffff
        s_mov_b32 s78, {WS_TS+2*256*8*8}
        s_mov_b32 s79, 0x20000
        s_waitcnt lgkmcnt(0)
        s_lshl_b32 s70, s2, 3
        s_add_u32 s70, s70, s3
        s_lshl_b32 s70, s70, 3
        s_add_u32 s70, s70, {WS_TS+256*8*8}
        v_mov_b32 v8, s66
        v_mov_b32 v9, s68
        v_mov_b32 v10, 0
        buffer_store_dwordx2 v[8:9], v10, s[76:79], s70 offen
        ''')
    e('K2_EXIT:')
    e('s_endpgm')
    return e.text()
```

```python
import sys, json
from common import *
import k1, k2, k2b
PRE=open('parallel_sum__linear_attn_block__dense_activation_gelu__prompt.s.ref').read().split('; Override launch')[0]
def build_fused(opt):
    opt=dict(opt); opt['fused']=1; opt['k1name']='parallel_sum__linear_attn_block__dense_activation_gelu__prompt_kernel'; opt.setdefault('aflag','sc1'); opt.setdefault('mask2',0x7800)
    KN='parallel_sum__linear_attn_block__dense_activation_gelu__prompt_kernel'
    o=PRE
    o+='; One launch: phase 1 = LN-folded qkv / ffn1 GEMMs (+phi, gelu, kv sums), phase 2 = output GEMM (attention finish, ffn2, residual).\n'
    o+='; @launch grid=(256,1,1) block=(512,1,1) lds=163840\n'
    o+=HEADER+kernel_begin(KN)+k1.k1(opt)+k2b.k2(opt)+'K_TEXT_END:\n    s_endpgm\n'
    nv=248 if opt.get('prof') else 240
    o+=RODATA+kernel_desc(KN,nv,102,nv)
    return o
def build(opt):
    if opt.get('fused'): return build_fused(opt)
    o=PRE
    o+='; Two launches: k1 = LN-folded qkv / ffn1 GEMMs (+phi, gelu, kv sums), k2 = output GEMM (attention finish, ffn2, residual).\n'
    o+='; @launch kernel=k1_kernel grid=(256,1,1) block=(512,1,1) lds=163840\n'
    o+=f'; @launch kernel=k2_kernel grid=(256,1,1) block=(512,1,1) lds={k2b.LDS_BYTES}\n'
    if opt.get('ts'): o+='; @launch kernel=k3_kernel grid=(1,1,1) block=(256,1,1) lds=0\n'
    o+=HEADER
    o+=kernel_begin('k1_kernel')+k1.k1(opt)
    o+=kernel_begin('k2_kernel')+k2b.k2(opt)
    o+='K_TEXT_END:\n    s_endpgm\n'
    if opt.get('ts'): o+=kernel_begin('k3_kernel')+k2.k3_ts()
    o+=RODATA+kernel_desc('k1_kernel',248 if opt.get('prof') else 240,102,248 if opt.get('prof') else 240)
    o+='.p2align 6\n'+kernel_desc('k2_kernel',248 if opt.get('prof') else 144,102,248 if opt.get('prof') else 144)
    if opt.get('ts'): o+='.p2align 6\n'+kernel_desc('k3_kernel',64,96,64)
    return o
if __name__=='__main__':
    opt=json.loads(sys.argv[2]) if len(sys.argv)>2 else {}
    open(sys.argv[1],'w').write(build(opt))
```

```python
from common import *

REC=0
RSTD=4096
CSP=4608
KVP=8192
SLOT=40960

ACC=128
CS=224
SEL=236
FA=64; FB=84
XA=104
WA=108
BIA=114
XF=64
KC=72
WF=80
T0=8
OUT=40

def acc(t,a): return ACC+(t*2+a)*16

def prologue(e,opt):
    e(f'''
    s_cmp_ge_u32 s2, 256
    s_cbranch_scc1 K1_END
    s_load_dwordx4 s[28:31], s[0:1], 0
    s_load_dwordx4 s[32:35], s[0:1], 32
    s_load_dwordx4 s[36:39], s[0:1], 72
    s_load_dwordx2 s[82:83], s[0:1], 16
    s_load_dwordx2 s[84:85], s[0:1], 48
    v_lshrrev_b32 v1, 6, v0
    v_and_b32 v2, 63, v0
    v_readfirstlane_b32 s3, v1
    s_and_b32 s8, s2, 7
    s_lshr_b32 s9, s2, 3
    s_and_b32 s10, s9, 7
    s_lshr_b32 s11, s9, 3
    s_lshr_b32 s4, s8, 2
    s_lshl_b32 s4, s4, 3
    s_add_u32 s4, s4, s10             ; rb
    s_and_b32 s5, s8, 3
    s_lshl_b32 s5, s5, 1
    s_and_b32 s12, s11, 1
    s_add_u32 s5, s5, s12
    s_lshr_b32 s7, s11, 1
    s_lshl_b32 s12, s7, 3
    s_add_u32 s5, s5, s12             ; cb
    ''')
    rot=opt.get('rot','half')
    if rot=='none': e('s_mov_b32 s6, 0')
    elif rot=='half': e('s_add_u32 s6, s10, s11\ns_and_b32 s6, s6, 1\ns_lshl_b32 s6, s6, 2')
    elif rot=='quarter': e('s_add_u32 s6, s10, s11\ns_and_b32 s6, s6, 3\ns_lshl_b32 s6, s6, 1')
    elif rot=='full': e('s_lshl_b32 s6, s11, 1\ns_add_u32 s6, s6, s10\ns_and_b32 s6, s6, 7')
    e(f'''
    s_and_b32 s12, s5, 7
    s_mul_i32 s13, s12, 6
    s_mul_i32 s14, s12, 5
    s_add_u32 s14, s14, 3
    s_min_u32 s44, s13, s14
    s_cmp_lt_u32 s12, 3
    s_cselect_b32 s45, 6, 5
    s_lshl_b32 s13, s12, 7
    s_lshl_b32 s14, s44, 6
    s_mov_b32 s40, 2752
    s_mov_b32 s15, 128
    s_cmp_eq_u32 s7, 0
    s_cselect_b32 s40, 3072, s40
    s_cselect_b32 s41, s13, s14
    s_cselect_b32 s15, 1024, s15
    s_add_u32 s42, s41, s15
    s_add_u32 s43, s42, s15
    s_mov_b32 s64, {SLOT}
    s_mov_b32 s65, {-3*SLOT & 0xffffffff:#x}
    s_waitcnt lgkmcnt(0)
    ''')
    srd(e,8,28,S*D*2)
    e(f'''
    s_cmp_eq_u32 s7, 0
    s_cselect_b32 s12, s30, s32
    s_cselect_b32 s13, s31, s33
    s_mov_b32 s14, {D*F*2}
    s_cselect_b32 s14, {D*3*D*2}, s14
    s_and_b32 s13, s13, 0xffff
    s_mov_b32 s15, 0x20000
    ''')
    srd(e,16,38,(WS_PROF+2*256*8*256) if opt.get('prof') else WS_SIZE)
    stamp_init(e,opt)
    stamp(e,opt)
    srd(e,20,34,F*2)
    srd(e,24,36,256)
    if opt.get('spin'):
        e(f'''
        s_memrealtime s[90:91]
        s_mov_b32 s92, s38
        s_and_b32 s93, s39, 0xffff
        s_mov_b32 s94, {WS_TS+4096}
        s_mov_b32 s95, 0x20000
        s_waitcnt lgkmcnt(0)
        s_add_u32 s89, s2, s3
        s_cmp_lg_u32 s89, 0
        s_cbranch_scc1 K1_NOST
        v_mov_b32 v8, s90
        v_mov_b32 v9, 0
        s_mov_b32 s89, {WS_TS}
        buffer_store_dword v8, v9, s[92:95], s89 offen sc1
        K1_NOST:
        ''')
    e('''
    s_cmp_lt_u32 s3, 4
    s_cbranch_scc1 K1_CONS
    ''')

def loader(e,opt):
    e('''
    s_and_b32 s46, s3, 3
    v_lshrrev_b32 v3, 3, v2
    v_and_b32 v4, 7, v2
    v_lshrrev_b32 v5, 4, v2
    v_xor_b32 v6, v4, v5
    v_lshlrev_b32 v6, 4, v6
    v_lshl_add_u32 v10, v3, 10, v6
    s_lshl_b32 s47, s4, 17
    s_lshl_b32 s48, s46, 15
    s_add_u32 s47, s47, s48
    v_add_u32 v10, s47, v10
    v_xor_b32 v11, 64, v10
    v_add_u32 v11, 0x2000, v11
    v_add_u32 v12, 0x4000, v10
    v_add_u32 v13, 0x4000, v11
    v_and_b32 v5, 1, v5
    v_lshlrev_b32 v5, 2, v5
    v_xor_b32 v4, v4, v5
    v_lshlrev_b32 v4, 4, v4
    s_lshl_b32 s47, s46, 4
    v_add_u32 v14, s47, v3
    v_mul_lo_u32 v14, v14, s40
    v_add_u32 v14, v14, v4
    s_lshl_b32 s47, s40, 3
    v_add_u32 v15, s47, v14
    s_lshl_b32 s54, s46, 12
    s_lshl_b32 s55, s46, 11
    s_add_u32 s55, s55, 16384
    s_lshl_b32 s56, s40, 6
    s_mov_b32 s48, s6
    s_mov_b32 s53, 0
    ''')
    def stage_addr():
        return ['s_lshl_b32 s49, s48, 7','s_mul_i32 s50, s48, s56','s_add_u32 s51, s50, s42',
                's_add_u32 s52, s50, s43','s_add_u32 s50, s50, s41',
                's_add_u32 s58, s53, s54','s_add_u32 s59, s53, s55']
    def stage_adv():
        return ['s_add_u32 s48, s48, 1','s_and_b32 s48, s48, 7',
                f's_add_u32 s53, s53, s64', f's_cmp_eq_u32 s53, {4*SLOT}','s_cselect_b32 s53, 0, s53']
    def dma():
        L=[]
        if opt.get('x_nodma1'): return [['s_nop 0']]*10
        for i in range(4):
            L.append([f's_add_u32 m0, s58, {i*1024}', 's_nop 0', f'buffer_load_dwordx4 v{10+i}, s[8:11], s49 offen lds'])
        for sub in range(3):
            for h in range(2):
                L.append([f's_add_u32 m0, s59, {sub*8192+h*1024}', 's_nop 0', f'buffer_load_dwordx4 v{14+h}, s[12:15], s{50+sub} offen lds'])
        return L
    e('s_mov_b32 s47, 2')
    e('K1_LI:')
    for x in stage_addr(): e(x)
    for g in dma():
        for x in g: e(x)
    for x in stage_adv(): e(x)
    e('''
    s_sub_u32 s47, s47, 1
    s_cmp_lg_u32 s47, 0
    s_cbranch_scc1 K1_LI
    v_and_b32 v3, 31, v2
    v_lshrrev_b32 v4, 5, v2
    v_lshrrev_b32 v5, 1, v3
    v_and_b32 v5, 7, v5
    v_lshlrev_b32 v4, 2, v4
    v_xor_b32 v5, v5, v4
    v_lshlrev_b32 v5, 4, v5
    v_lshl_add_u32 v16, v3, 7, v5
    s_lshl_b32 s47, s46, 12
    v_add_u32 v16, s47, v16
    v_xor_b32 v17, 16, v16
    v_xor_b32 v18, 32, v16
    v_xor_b32 v19, 48, v16
    v_mov_b32 v36, 0
    v_mov_b32 v37, 0
    v_mov_b32 v38, 0
    v_mov_b32 v39, 0
    s_mov_b32 s60, 0xffff0000
    s_mov_b32 s61, 0
    s_mov_b32 s62, 0
    ''')
    def stats_reads(): return [f'ds_read_b128 v[{20+4*j}:{23+4*j}], v{16+j}' for j in range(4)]
    def stats_valu():
        L=[]
        if opt.get('x_nostats'): return L
        for d in range(16):
            t=40+2*(d%4)
            L+= [f'v_lshlrev_b32 v{t}, 16, v{20+d}', f'v_and_b32 v{t+1}, s60, v{20+d}',
                 f'v_add_f32 v36, v36, v{t}', f'v_add_f32 v37, v37, v{t+1}',
                 f'v_fmac_f32 v38, v{t}, v{t}', f'v_fmac_f32 v39, v{t+1}, v{t+1}']
        return L
    def stats_adv():
        return ['s_add_u32 s61, s61, s64', f's_cmp_eq_u32 s61, {4*SLOT}', 's_cselect_b32 s63, s65, s64', 's_cselect_b32 s61, 0, s61']+\
               [f'v_add_u32 v{16+j}, s63, v{16+j}' for j in range(4)]
    stamp(e,opt)
    e('s_mov_b32 s47, 6')
    e('K1_LM:')
    e('s_waitcnt vmcnt(10)')
    stamp(e,opt)
    e('s_barrier')
    for x in stats_reads(): e(x)
    for x in stage_addr(): e(x)
    e('s_lshr_b32 s68, s46, 1')
    e('s_mov_b32 s69, 2')
    e('K1_PH:')
    e('s_cmp_eq_u32 s68, 0')
    e('s_cbranch_scc0 K1_PHS')
    for g in dma():
        for x in g: e(x)
    e('s_branch K1_PHE')
    e('K1_PHS:')
    e('s_waitcnt lgkmcnt(0)')
    for x in stats_valu(): e(x)
    e('K1_PHE:')
    e('s_xor_b32 s68, s68, 1')
    e('s_sub_u32 s69, s69, 1')
    e('s_cmp_lg_u32 s69, 0')
    e('s_cbranch_scc1 K1_PH')
    for x in stage_adv(): e(x)
    for x in stats_adv(): e(x)
    e('''
    s_sub_u32 s47, s47, 1
    s_cmp_lg_u32 s47, 0
    s_cbranch_scc1 K1_LM
    ''')
    if opt.get('pfw'):
        e(f'''
        s_mov_b32 s72, s84
        s_and_b32 s73, s85, 0xffff
        s_mov_b32 s74, {F*D*2}
        s_mov_b32 s75, 0x20000
        s_mov_b32 s76, s82
        s_and_b32 s77, s83, 0xffff
        s_mov_b32 s78, {D*D*2}
        s_mov_b32 s79, 0x20000
        s_lshr_b32 s80, s2, 3
        s_mul_i32 s81, s80, {344*128}
        s_mul_i32 s86, s46, {86*128}
        s_add_u32 s81, s81, s86
        v_lshlrev_b32 v8, 7, v2
        buffer_load_dword v9, v8, s[72:75], s81 offen
        s_add_u32 s81, s81, {64*128}
        s_mov_b32 exec_lo, 0x3fffff
        s_mov_b32 exec_hi, 0
        buffer_load_dword v9, v8, s[72:75], s81 offen
        s_lshl_b32 s81, s80, 14
        s_lshl_b32 s86, s46, 12
        s_add_u32 s81, s81, s86
        s_mov_b32 exec_lo, -1
        buffer_load_dword v9, v8, s[76:79], s81 offen
        s_mov_b64 exec, -1
        s_waitcnt vmcnt(13)
        ''')
    else:
        e('s_waitcnt vmcnt(10)')
    e(f'''
    s_mov_b32 s62, 0
    K1_SO:
    ''')
    stamp(e,opt)
    e('s_barrier')
    for x in stats_reads(): e(x)
    e('s_waitcnt lgkmcnt(0)')
    for x in stats_valu(): e(x)
    for x in stats_adv(): e(x)
    e(f'''
    s_cmp_lg_u32 s62, 0
    s_cbranch_scc1 K1_LDONE
    s_mov_b32 s62, 1
    s_waitcnt vmcnt({3 if opt.get('pfw') else 0})
    s_branch K1_SO
    K1_LDONE:
    v_add_f32 v36, v36, v37
    v_add_f32 v38, v38, v39
    v_mov_b32 v37, v36
    v_mov_b32 v39, v38
    s_nop 1
    v_permlane32_swap_b32 v36, v37
    v_permlane32_swap_b32 v38, v39
    v_add_f32 v36, v36, v37
    v_add_f32 v38, v38, v39
    v_mul_f32 v36, {hx(-1.0/512)}, v36          ; -mean
    v_mul_f32 v38, {hx(1.0/512)}, v38
    v_fma_f32 v38, -v36, v36, v38               ; var
    v_max_f32 v38, 0, v38
    v_add_f32 v38, {hx(1e-5)}, v38
    v_rsq_f32 v44, v38                          ; rstd
    v_cvt_pk_bf16_f32 v40, v36, v36
    v_mul_f32 v45, v38, v44                     ; sigma
    v_lshlrev_b32 v40, 16, v40
    v_sub_f32 v41, v36, v40
    v_cvt_pk_bf16_f32 v40, v40, v41             ; d0
    v_mov_b32 v41, v40                          ; d1
    v_cvt_pk_bf16_f32 v42, v45, v45
    v_lshlrev_b32 v42, 16, v42
    v_sub_f32 v43, v45, v42
    v_cvt_pk_bf16_f32 v42, v42, v43             ; d2
    v_mov_b32 v43, 0
    v_mul_f32 v46, v44, v44
    v_mul_f32 v46, v46, v44
    v_mul_f32 v46, {hx(GC2)}, v46               ; cA
    v_mul_f32 v47, {hx(GC1)}, v44               ; cB
    v_and_b32 v3, 31, v2
    s_lshl_b32 s47, s46, 5
    v_add_u32 v3, s47, v3                       ; row
    v_lshlrev_b32 v4, 5, v3
    ds_write_b128 v4, v[40:43] offset:{REC}
    ds_write_b128 v4, v[44:47] offset:{REC+16}
    v_lshlrev_b32 v4, 2, v3
    ds_write_b32 v4, v44 offset:{RSTD}
    s_cmp_lg_u32 s7, 0
    s_cbranch_scc1 K1_LE1
    s_cmp_lg_u32 s3, 4
    s_cbranch_scc1 K1_LE1
    s_lshl_b32 s47, s5, 2
    v_mov_b32 v4, s47
    s_mov_b32 s48, 0x40000
    K1_POLL:
    buffer_load_dword v5, v4, s[24:27], 0 offen sc1
    s_waitcnt vmcnt(0)
    v_readfirstlane_b32 s47, v5
    s_sub_u32 s48, s48, 1
    s_cmp_lg_u32 s47, 0
    s_cbranch_scc1 K1_LE1
    s_sleep 4
    s_cmp_lg_u32 s48, 0
    s_cbranch_scc1 K1_POLL
    K1_LE1:
    s_waitcnt lgkmcnt(0)
    s_barrier
    s_cmp_lg_u32 s7, 0
    s_cbranch_scc1 K1_END
    s_branch K1_KVRED
    ''')

def cons_setup(e,opt):
    e('K1_CONS:')
    if opt.get('pfcode'):
        n=opt['pfcode']
        e(f'''
        s_cmp_ge_u32 s3, {n}
        s_cbranch_scc1 K1_NOPFC
        s_getpc_b64 s[86:87]
        K1_PC:
        s_sub_u32 s86, s86, K1_PC-{opt.get('k1name','k1_kernel')}
        s_subb_u32 s87, s87, 0
        s_lshl_b32 s88, s3, 13
        v_lshlrev_b32 v8, 7, v2
        v_add_u32 v8, s88, v8
        s_mov_b32 s88, K_TEXT_END-{opt.get('k1name','k1_kernel')}-4
        v_min_u32 v8, s88, v8
        global_load_dword v117, v8, s[86:87]
        K1_NOPFC:
        ''')
    e(f'''
    s_and_b32 s46, s3, 1          ; sh
    s_lshr_b32 s47, s3, 1         ; nh
    s_cmp_lg_u32 s7, 0
    s_cbranch_scc1 K1_NOZ
    s_cmp_lg_u32 s4, 0
    s_cbranch_scc1 K1_NOZ
    s_cmp_lg_u32 s3, 0
    s_cbranch_scc1 K1_NOZ
    v_mov_b32 v8, 0
    v_mov_b32 v9, 0
    v_mov_b32 v10, 0
    v_mov_b32 v11, 0
    v_lshlrev_b32 v4, 4, v2
    s_lshl_b32 s48, s5, 12
    s_add_u32 s48, s48, {WS_KV}
    buffer_store_dwordx4 v[8:11], v4, s[16:19], s48 offen sc1
    buffer_store_dwordx4 v[8:11], v4, s[16:19], s48 offen offset:1024 sc1
    buffer_store_dwordx4 v[8:11], v4, s[16:19], s48 offen offset:2048 sc1
    buffer_store_dwordx4 v[8:11], v4, s[16:19], s48 offen offset:3072 sc1
    s_mov_b32 exec_lo, 0xffff
    s_mov_b32 exec_hi, 0
    s_lshl_b32 s48, s5, 8
    s_add_u32 s48, s48, {WS_Z}
    buffer_store_dwordx4 v[8:11], v4, s[16:19], s48 offen sc1
    s_waitcnt vmcnt(0)
    s_mov_b32 exec_lo, 1
    v_mov_b32 v5, 1
    s_lshl_b32 s48, s5, 2
    v_mov_b32 v4, s48
    buffer_store_dword v5, v4, s[24:27], 0 offen sc1
    s_mov_b64 exec, -1
    K1_NOZ:
    v_and_b32 v3, 31, v2             ; r32
    v_lshrrev_b32 v4, 5, v2          ; hi
    s_mul_i32 s48, s47, 3
    s_add_u32 s48, s48, s44
    s_lshl_b32 s49, s48, 6
    v_lshl_add_u32 v5, v3, 1, s49
    buffer_load_ushort v{BIA}, v5, s[20:23], 0 offen
    buffer_load_ushort v{BIA+1}, v5, s[20:23], 0 offen offset:64
    buffer_load_ushort v{BIA+2}, v5, s[20:23], 0 offen offset:128
    v_lshrrev_b32 v5, 1, v3
    v_and_b32 v5, 7, v5
    v_xor_b32 v5, v5, v4
    v_lshlrev_b32 v5, 4, v5
    v_lshl_add_u32 v5, v3, 7, v5
    s_lshl_b32 s49, s46, 13
    v_add_u32 v5, s49, v5
    s_lshl_b32 s49, s46, 5
    v_xor_b32 v{XA}, s49, v5
    v_xor_b32 v{XA+1}, 32, v5
    v_xor_b32 v{XA+1}, s49, v{XA+1}
    v_xor_b32 v{XA+2}, 64, v{XA}
    v_xor_b32 v{XA+3}, 64, v{XA+1}
    v_and_b32 v6, 15, v2
    v_lshrrev_b32 v6, 2, v6
    v_lshl_add_u32 v6, v4, 3, v6
    v_lshlrev_b32 v6, 7, v6          ; (8hi + i>>2)*128
    v_and_b32 v7, 3, v2
    v_lshlrev_b32 v7, 3, v7
    v_bfe_u32 v8, v2, 4, 1
    v_lshl_add_u32 v7, v8, 5, v7     ; g16*32 + (i&3)*8
    v_bfe_u32 v8, v2, 3, 1
    v_lshlrev_b32 v8, 6, v8          ; 64*bit3
    s_lshl_b32 s50, s46, 11          ; sh*2048
    ''')
    for t in range(3):
        e(f'''
        s_mul_i32 s51, s47, 3
        s_add_u32 s51, s51, {t}
        s_lshr_b32 s52, s51, 1
        s_and_b32 s51, s51, 1
        s_cmp_eq_u32 s7, 0
        s_cselect_b32 s52, {t}, s52
        s_cselect_b32 s51, s47, s51
        s_lshl_b32 s52, s52, 13
        s_add_u32 s52, s52, 16384
        s_lshl_b32 s51, s51, 6
        v_add_u32 v9, s51, v7
        v_xor_b32 v9, v9, v8
        v_add3_u32 v9, v9, v6, s52
        v_add_u32 v{WA+2*t}, s50, v9
        v_subrev_u32 v{WA+2*t+1}, s50, v9
        ''')
    for r in range(ACC,ACC+96+12): e(f'v_mov_b32 v{r}, 0')
    for r in range(FB,FB+20): e(f'v_mov_b32 v{r}, 0')
    e(f'''
    v_lshrrev_b32 v5, 4, v2
    v_xor_b32 v5, v5, v2
    v_and_b32 v5, 1, v5
    v_cmp_eq_u32 vcc, 0, v5
    v_mov_b32 v6, 0x3f803f80
    s_nop 0
    v_cndmask_b32 v{SEL}, 0, v6, vcc
    v_mov_b32 v{SEL+1}, v{SEL}
    v_mov_b32 v{SEL+2}, v{SEL}
    v_mov_b32 v{SEL+3}, v{SEL}
    s_mov_b32 s48, 8
    s_mov_b32 s49, 0
    ''')
    if opt.get('prio',1): e('s_setprio 3')
    e('''
    s_cmp_lg_u32 s7, 0
    s_cbranch_scc1 K1_CF
    ''')

def reads(p,buf):
    par=p&1
    L=[f'ds_read_b128 {vr(buf,4)}, v{XA+p}']
    L+=[f'ds_read_b64_tr_b16 {vr(buf+8,2)}, v{WA+par} offset:{p*2048}', f'ds_read_b64_tr_b16 {vr(buf+10,2)}, v{WA+par} offset:{p*2048+512}']
    L+=[f'ds_read_b128 {vr(buf+4,4)}, v{XA+p} offset:4096']
    for t in (1,2):
        L+=[f'ds_read_b64_tr_b16 {vr(buf+8+4*t,2)}, v{WA+2*t+par} offset:{p*2048}', f'ds_read_b64_tr_b16 {vr(buf+10+4*t,2)}, v{WA+2*t+par} offset:{p*2048+512}']
    return L
def mfmas(buf,ffn,cs):
    L=[]
    for t in range(3):
        for a in range(2):
            X=vr(buf+4*a,4); W=vr(buf+8+4*t,4); A=vr(acc(t,a),16)
            if ffn or t==0: L.append(f'v_mfma_f32_32x32x16_bf16 {A}, {W}, {X}, {A}')
            else: L.append(f'v_mfma_f32_32x32x16_bf16 {A}, {X}, {W}, {A}')
        if cs: L.append(f'v_mfma_f32_16x16x32_bf16 {vr(CS+4*t,4)}, {vr(SEL,4)}, {vr(buf+8+4*t,4)}, {vr(CS+4*t,4)}')
    return L
class DSQ:
    def __init__(self): self.q=[]
    def issue(self,tag): self.q.append(tag); assert len(self.q)<=15,len(self.q)
    def need(self,e,tags):
        idx=[i for i,t in enumerate(self.q) if t in tags]
        if not idx: return
        k=max(idx); n=len(self.q)-1-k
        e(f's_waitcnt lgkmcnt({n})'); self.q=self.q[k+1:]
    def all(self,e):
        if self.q: e('s_waitcnt lgkmcnt(0)')
        self.q=[]
def reads_t(p,buf,name):
    tags=['x0','w0','w0','x1','w1','w1','w2','w2']
    return [(x,name+t) for x,t in zip(reads(p,buf),tags)]
def mfmas_t(buf,ffn,cs,name):
    L=[]; m=mfmas(buf,ffn,cs); k=0
    for t in range(3):
        for a in range(2):
            L.append((m[k],{name+f'x{a}',name+f'w{t}'})); k+=1
        if cs: L.append((m[k],{name+f'w{t}'})); k+=1
    return L
def segment(e,q,ms,rs,pattern,extra=None):
    k=0
    for i,(m,nd) in enumerate(ms):
        q.need(e,nd)
        e(m)
        for _ in range(pattern[i] if i<len(pattern) else 0):
            if k<len(rs):
                x,tag=rs[k]; k+=1
                e(x)
                if tag: q.issue(tag)
    assert k==len(rs)
def mainloop(e,ffn,tag,opt={}):
    stamp(e,opt)
    if opt.get('x_nocomp1'):
        e(f'K1_ML{tag}:\ns_barrier\ns_sub_u32 s48, s48, 1\ns_cmp_lg_u32 s48, 0\ns_cbranch_scc1 K1_ML{tag}')
        stamp(e,opt); return
    e(f'K1_ML{tag}:')
    e('s_barrier')
    if opt.get('profloop'): stamp(e,opt)
    q=DSQ()
    pat=opt.get('rdpat',[3,3,2])
    segment(e,q,[(m,set()) for m in mfmas(FB,ffn,False)], reads_t(0,FA,'A'), pat)
    segment(e,q,mfmas_t(FA,ffn,True,'A'), reads_t(1,FB,'B'), pat)
    segment(e,q,mfmas_t(FB,ffn,False,'B'), reads_t(2,FA,'A'), pat)
    adv=['s_add_u32 s49, s49, s64', f's_cmp_eq_u32 s49, {4*SLOT}', 's_cselect_b32 s50, s65, s64', 's_cselect_b32 s49, 0, s49']
    upd=[f'v_add_u32 v{XA+i}, s50, v{XA+i}' for i in range(4)]+[f'v_add_u32 v{WA+i}, s50, v{WA+i}' for i in range(6)]
    rs=reads_t(3,FB,'B')+[(x,None) for x in adv+upd]
    segment(e,q,mfmas_t(FA,ffn,True,'A'), rs, pat+[4,2,2,2,2,2])
    q.all(e)
    e(f'''
    s_sub_u32 s48, s48, 1
    s_cmp_lg_u32 s48, 0
    s_cbranch_scc1 K1_ML{tag}
    ''')
    for x in mfmas(FB,ffn,False): e(x)
    stamp(e,opt)

def post(e,ffn,opt={}):
    e(f'''
    v_and_b32 v3, 15, v2
    s_mul_i32 s48, s46, 6
    s_mul_i32 s49, s47, 3
    s_add_u32 s48, s48, s49
    s_lshl_b32 s48, s48, 7
    v_lshl_add_u32 v3, v3, 2, s48
    ''')
    for t in range(3):
        e(f'ds_write_b32 v3, v{CS+4*t} offset:{CSP+t*128}')
        e(f'ds_write_b32 v3, v{CS+4*t+1} offset:{CSP+t*128+64}')
    e(f'''
    s_waitcnt lgkmcnt(0)
    s_barrier
    ''')
    stamp(e,opt)
    e(f'''
    v_and_b32 v3, 31, v2
    s_lshl_b32 s48, s46, 6
    v_add_u32 v4, s48, v3
    v_lshlrev_b32 v4, 5, v4
    ds_read_b128 v[{XF}:{XF+3}], v4 offset:{REC}
    ds_read_b128 v[{XF+4}:{XF+7}], v4 offset:{REC+1024}
    ds_read_b128 v[{KC}:{KC+3}], v4 offset:{REC+16}
    ds_read_b128 v[{KC+4}:{KC+7}], v4 offset:{REC+1024+16}
    s_mul_i32 s49, s47, 384
    v_lshl_add_u32 v5, v3, 2, s49
    ''')
    for t in range(3):
        e(f'ds_read_b32 v{8+2*t}, v5 offset:{CSP+t*128}')
        e(f'ds_read_b32 v{9+2*t}, v5 offset:{CSP+768+t*128}')
    e('''
    v_cmp_gt_u32 vcc, 32, v2
    s_nop 0
    s_waitcnt vmcnt(0) lgkmcnt(0)
    ''')
    for r in range(XF,XF+8):
        if (r-XF)%4!=3: e(f'v_cndmask_b32 v{r}, 0, v{r}, vcc')
    for t in range(3):
        w=WF+4*t
        e(f'''
        v_add_f32 v{8+2*t}, v{8+2*t}, v{9+2*t}
        v_cvt_pk_bf16_f32 v{w}, v{8+2*t}, v{8+2*t}
        v_lshlrev_b32 v{9+2*t}, 16, v{w}
        v_sub_f32 v{9+2*t}, v{8+2*t}, v{9+2*t}
        v_cvt_pk_bf16_f32 v{w+1}, v{9+2*t}, v{9+2*t}
        ''')
        if ffn:
            e(f'v_lshlrev_b32 v{w+2}, 16, v{BIA+t}')
            e(f'v_or_b32 v{w+2}, v{w+2}, v{BIA+t}')
        else:
            e(f'v_mov_b32 v{w+2}, 0')
        e(f'v_mov_b32 v{w+3}, 0')
    e('s_nop 1')
    for t in range(3):
        for a in range(2):
            A=vr(acc(t,a),16)
            if ffn or t==0: e(f'v_mfma_f32_32x32x16_bf16 {A}, {vr(WF+4*t,4)}, {vr(XF+4*a,4)}, {A}')
            else: e(f'v_mfma_f32_32x32x16_bf16 {A}, {vr(XF+4*a,4)}, {vr(WF+4*t,4)}, {A}')

def pk(op,d,a,b,c=None,sel=''):
    s=f'v_pk_{op}_f32 v[{d}:{d+1}], v[{a}:{a+1}], v[{b}:{b+1}]'
    if c is not None: s+=f', v[{c}:{c+1}]'
    return s+(' '+sel if sel else '')

def gelu_tile(t,a):
    A=acc(t,a); rs,cA=KC+4*a,KC+4*a+2
    L=[]
    for g in range(2):
        b=A+8*g
        R=range(0,8,2)
        for i in R: L.append(pk('mul',T0+i,b+i,b+i))
        for i in R: L.append(pk('fma',T0+i,T0+i,cA,cA,'op_sel:[0,0,1] op_sel_hi:[1,0,1]'))
        for i in R: L.append(pk('mul',T0+i,T0+i,b+i))
        for i in range(8): L.append(f'v_exp_f32 v{T0+i}, v{T0+i}')
        for i in R: L.append(pk('fma',T0+i,T0+i,rs,rs,'op_sel:[0,1,1] op_sel_hi:[1,1,1]'))
        for i in range(8): L.append(f'v_rcp_f32 v{T0+i}, v{T0+i}')
        L.append('s_nop 0')
        for i in R: L.append(pk('mul',T0+i,T0+i,b+i))
        for i in R: L.append(f'v_cvt_pk_bf16_f32 v{OUT+4*g+i//2}, v{T0+i}, v{T0+i+1}')
    return L

def store2(e,so,off,opt,tmp=53):
    fl=opt.get('stflag','')
    if off+1024>4095:
        e(f's_add_u32 s{tmp}, s{so}, {off}')
        so=tmp; off=0
    e(f'buffer_store_dwordx4 v[{OUT}:{OUT+3}], v4, s[16:19], s{so} offen offset:{off} {fl}')
    e(f'buffer_store_dwordx4 v[{OUT+4}:{OUT+7}], v4, s[16:19], s{so} offen offset:{off+1024} {fl}')

def ffn_path(e,opt):
    e('K1_CF:')
    mainloop(e,True,'F',opt)
    post(e,True,opt)
    stamp(e,opt)
    e(f'''
    v_lshlrev_b32 v4, 4, v2
    s_lshl_b32 s48, s4, 2
    s_lshl_b32 s49, s46, 1
    s_add_u32 s48, s48, s49           ; s-tile (a=0)
    s_mul_i32 s48, s48, 86
    s_mul_i32 s49, s47, 3
    s_add_u32 s49, s49, s44
    s_lshl_b32 s50, s49, 1
    s_add_u32 s48, s48, s50
    s_lshl_b32 s48, s48, 10
    s_add_u32 s51, s48, {86*1024}     ; a=1
    s_mul_i32 s52, s47, 3
    s_sub_u32 s52, s45, s52
    ''')
    for t in range(3):
        if t==2:
            e('s_cmp_lt_u32 s52, 3')
            e('s_cbranch_scc1 K1_END')
        for a in range(2):
            for x in gelu_tile(t,a): e(x)
            store2(e, 48 if a==0 else 51, t*2048, opt)
            stamp(e,opt)
    e('s_branch K1_END' if (opt.get('prof') or opt.get('fused')) else 's_endpgm')

def qkv_path(e,opt):
    mainloop(e,False,'Q',opt)
    post(e,False,opt)
    stamp(e,opt)
    RS=48
    e(f'''
    v_lshlrev_b32 v4, 4, v2
    s_lshl_b32 s48, s4, 2
    s_lshl_b32 s49, s46, 1
    s_add_u32 s48, s48, s49           ; s-tile a=0
    s_lshl_b32 s48, s48, 5
    s_lshl_b32 s49, s5, 2
    s_lshl_b32 s50, s47, 1
    s_add_u32 s49, s49, s50
    s_add_u32 s48, s48, s49
    s_lshl_b32 s48, s48, 10
    s_add_u32 s48, s48, {WS_PQ}
    s_add_u32 s51, s48, {32*1024}
    s_mov_b32 s54, {hx(LOG2E)}
    s_mov_b32 s55, {hx(1e-6)}
    v_lshrrev_b32 v5, 5, v2
    v_lshlrev_b32 v5, 4, v5
    s_lshl_b32 s49, s46, 8
    v_add_u32 v5, s49, v5
    v_mul_f32 v6, s54, v{KC}
    v_mul_f32 v7, s54, v{KC+4}        ; a=1
    ''')
    for a in range(2):
        A=acc(0,a); rs=KC+4*a; rl=6+a
        for g in range(2):
            b=A+8*g
            for i in range(8): e(f'v_mul_f32 v{T0+i}, v{b+i}, v{rl}')
            for i in range(8): e(f'v_min_f32 v{T0+i}, 0, v{T0+i}')
            for i in range(8): e(f'v_exp_f32 v{T0+i}, v{T0+i}')
            for i in range(8): e(f'v_max_f32 v{T0+8+i}, 0, v{b+i}')
            for i in range(8): e(f'v_add_f32 v{T0+i}, s55, v{T0+i}')
            for i in range(8): e(f'v_fmac_f32 v{T0+i}, v{T0+8+i}, v{rs}')
            for i in range(0,8,2): e(f'v_cvt_pk_bf16_f32 v{OUT+4*g+i//2}, v{T0+i}, v{T0+i+1}')
        store2(e, 48 if a==0 else 51, 0, opt)
    stamp(e,opt)
    KV=acc(0,0); Z=acc(0,1)
    PK=96; VF=104
    ONE=112
    for r in range(4): e(f'v_mov_b32 v{ONE+r}, 0x3f803f80')
    for a in range(2):
        for g in range(4): e(f'ds_read_b128 v[{RS+4*g}:{RS+4*g+3}], v5 offset:{RSTD+a*128+g*32}')
        e('s_waitcnt lgkmcnt(0)')
        K=acc(1,a); V=acc(2,a)
        for g in range(2):
            b=K+8*g; r0=RS+8*g
            for i in range(8): e(f'v_mul_f32 v{T0+8+i}, v{b+i}, v{r0+i}')
            for i in range(8): e(f'v_mul_f32 v{T0+i}, s54, v{T0+8+i}')
            for i in range(8): e(f'v_min_f32 v{T0+i}, 0, v{T0+i}')
            for i in range(8): e(f'v_exp_f32 v{T0+i}, v{T0+i}')
            for i in range(8): e(f'v_max_f32 v{T0+8+i}, 0, v{T0+8+i}')
            for i in range(8): e(f'v_add_f32 v{T0+i}, s55, v{T0+i}')
            for i in range(8): e(f'v_add_f32 v{T0+i}, v{T0+i}, v{T0+8+i}')
            for i in range(0,8,2): e(f'v_cvt_pk_bf16_f32 v{PK+4*g+i//2}, v{T0+i}, v{T0+i+1}')
            bv=V+8*g
            for i in range(8): e(f'v_mul_f32 v{T0+i}, v{bv+i}, v{r0+i}')
            for i in range(0,8,2): e(f'v_cvt_pk_bf16_f32 v{VF+4*g+i//2}, v{T0+i}, v{T0+i+1}')
        e('s_nop 1')
        for g in range(2):
            c0 = '0' if (a==0 and g==0) else vr(KV,16)
            z0 = '0' if (a==0 and g==0) else vr(Z,16)
            e(f'v_mfma_f32_32x32x16_bf16 {vr(KV,16)}, {vr(PK+4*g,4)}, {vr(VF+4*g,4)}, {c0}')
            e(f'v_mfma_f32_32x32x16_bf16 {vr(Z,16)}, {vr(PK+4*g,4)}, {vr(ONE,4)}, {z0}')
    e(f'''
    v_and_b32 v8, 15, v2
    v_lshrrev_b32 v9, 5, v2
    v_lshl_add_u32 v8, v9, 4, v8
    v_lshlrev_b32 v8, 4, v8           ; (hiD*16+e)*16
    v_bfe_u32 v10, v2, 4, 1
    v_lshl_add_u32 v8, v10, 10, v8
    s_mul_i32 s48, s46, 4352
    s_lshl_b32 s49, s47, 11
    s_add_u32 s49, s48, s49
    v_add_u32 v8, s49, v8
    s_lshl_b32 s49, s47, 7
    s_add_u32 s49, s48, s49
    v_lshl_add_u32 v9, v9, 4, s49
    s_nop 7
    s_mov_b32 exec_lo, 0x0000ffff
    s_mov_b32 exec_hi, 0x0000ffff
    ds_write_b128 v8, v[{KV}:{KV+3}] offset:{KVP}
    ds_write_b128 v8, v[{KV+4}:{KV+7}] offset:{KVP+512}
    s_mov_b32 exec_lo, 0xffff0000
    s_mov_b32 exec_hi, 0xffff0000
    ds_write_b128 v8, v[{KV+8}:{KV+11}] offset:{KVP}
    ds_write_b128 v8, v[{KV+12}:{KV+15}] offset:{KVP+512}
    s_mov_b32 exec_lo, 1
    s_mov_b32 exec_hi, 1
    ds_write_b128 v9, v[{Z}:{Z+3}] offset:{KVP+4096}
    ds_write_b128 v9, v[{Z+4}:{Z+7}] offset:{KVP+4096+32}
    ds_write_b128 v9, v[{Z+8}:{Z+11}] offset:{KVP+4096+64}
    ds_write_b128 v9, v[{Z+12}:{Z+15}] offset:{KVP+4096+64+32}
    s_mov_b64 exec, -1
    ''')
    stamp(e,opt)
    e(f'''
    K1_KVRED:
    s_waitcnt lgkmcnt(0)
    s_barrier
    ''')
    stamp(e,opt)
    e(f'''
    v_lshlrev_b32 v3, 2, v0
    ds_read_b32 v8, v3 offset:{KVP}
    ds_read_b32 v9, v3 offset:{KVP+4352}
    ds_read_b32 v10, v3 offset:{KVP+2048}
    ds_read_b32 v11, v3 offset:{KVP+2048+4352}
    s_lshl_b32 s48, s5, 12
    s_add_u32 s48, s48, {WS_KV}
    s_waitcnt lgkmcnt(0)
    v_add_f32 v8, v8, v9
    v_add_f32 v10, v10, v11
    buffer_atomic_add_f32 v8, v3, s[16:19], s48 offen
    buffer_atomic_add_f32 v10, v3, s[16:19], s48 offen offset:2048
    s_cmp_lg_u32 s3, 0
    s_cbranch_scc1 K1_END
    ds_read_b32 v8, v3 offset:{KVP+4096}
    ds_read_b32 v9, v3 offset:{KVP+4096+4352}
    s_lshl_b32 s48, s5, 8
    s_add_u32 s48, s48, {WS_Z}
    s_waitcnt lgkmcnt(0)
    v_add_f32 v8, v8, v9
    buffer_atomic_add_f32 v8, v3, s[16:19], s48 offen
    ''')

def stamp_end(e):
    e(f'''
    s_memrealtime s[68:69]
    s_waitcnt lgkmcnt(0)
    s_lshl_b32 s70, s2, 3
    s_add_u32 s70, s70, s3
    s_lshl_b32 s70, s70, 3
    s_add_u32 s70, s70, {WS_TS}
    v_mov_b32 v8, s66
    v_mov_b32 v9, s68
    v_mov_b32 v10, 0
    buffer_store_dwordx2 v[8:9], v10, s[72:75], s70 offen
    ''')
def k1(opt):
    e=E()
    if opt.get('ts'):
        e('s_memrealtime s[66:67]')
    prologue(e,opt)
    if opt.get('ts'):
        pass
    loader(e,opt)
    cons_setup(e,opt)
    qkv_path(e,opt)
    e('K1_END:')
    if opt.get('prof'):
        e('s_waitcnt vmcnt(0)')
        stamp(e,opt)
        stamp_flush(e,opt,16,0,8)
    if opt.get('fused'):
        e(f'''
        s_setprio 0
        s_waitcnt vmcnt(0) lgkmcnt(0)
        s_barrier
        s_cmp_lg_u32 s3, 4
        s_cbranch_scc1 K2_ENTRY
        s_mov_b64 exec, 1
        v_mov_b32 v8, 1
        s_lshl_b32 s48, s4, 2
        s_add_u32 s48, s48, {CNT_RB*4}
        v_mov_b32 v9, s48
        buffer_atomic_add v8, v9, s[24:27], 0 offen
        s_cmp_lg_u32 s7, 0
        s_cbranch_scc1 K1_NOKVC
        v_mov_b32 v9, {CNT_KV*4}
        buffer_atomic_add v8, v9, s[24:27], 0 offen
        K1_NOKVC:
        s_mov_b64 exec, -1
        s_branch K2_ENTRY
        ''')
    e('K1_EXIT0:')
    e('s_endpgm')
    ffn_path(e,opt)
    t=e.text()
    if opt.get('fused'):
        t=t.replace('s_cbranch_scc1 K1_END\n    s_load_dwordx4 s[28:31]','s_cbranch_scc1 K1_EXIT0\n    s_load_dwordx4 s[28:31]')
    if opt.get('prof'):
        t=t.replace('s_cbranch_scc1 K1_END\n    s_load_dwordx4 s[28:31]','s_cbranch_scc1 K1_EXIT0\n    s_load_dwordx4 s[28:31]')
    if opt.get('ts'):
        e2=E(); stamp_end(e2); e2('s_endpgm')
        t=t.replace('s_cbranch_scc1 K1_END\n    s_load_dwordx4 s[28:31]','s_cbranch_scc1 K1_EXIT\n    s_load_dwordx4 s[28:31]')
        t=t.replace('K1_END:\nK1_EXIT0:\n    s_endpgm','K1_END:\n'+e2.text()+'K1_EXIT:\n    s_endpgm',1)
        i=t.rindex('s_endpgm'); t=t[:i]+'s_branch K1_END\n'
        e3=E(); srd(e3,72,38,WS_TS+256*8*8)
        t=t.replace('    s_cmp_lt_u32 s3, 4\n    s_cbranch_scc1 K1_CONS', e3.text()+'    s_cmp_lt_u32 s3, 4\n    s_cbranch_scc1 K1_CONS')
    return t
```

```python
import sys
sys.path.insert(0,'work')
from asmlib import E, HEADER, kernel_begin, kernel_desc, RODATA
import struct
S=2048; D=512; F=1376
WS_HF=0
WS_PQ=64*86*1024
WS_KV=WS_PQ+64*32*1024
WS_Z=WS_KV+32*1024
WS_STG=WS_Z+4096
WS_CSG=WS_STG+2048*16
WS_FLG=WS_CSG+16*16*1024
WS_FLG0=WS_FLG+1024
WS_FLGF=WS_FLG0+2048
WS_SIZE=WS_FLGF+4096
WS_TS=0x900000
def f2u(x): return struct.unpack('<I',struct.pack('<f',x))[0]
def hx(x): return hex(f2u(x))
LOG2E=1.4426950408889634
GC1=-2.0*LOG2E*0.7978845608028654
GC2=GC1*0.044715
def vr(b,n): return f'v[{b}:{b+n-1}]' if n>1 else f'v{b}'
def sr(b,n): return f's[{b}:{b+n-1}]' if n>1 else f's{b}'
def srd(e, b, lo, size):
    e(f's_mov_b32 s{b}, s{lo}')
    e(f's_and_b32 s{b+1}, s{lo+1}, 0xffff')
    e(f's_mov_b32 s{b+2}, {size}')
    e(f's_mov_b32 s{b+3}, 0x20000')
def interleave(main, fill, pattern=None):
    out=[]
    n=len(main); k=0
    if pattern is None:
        pattern=[]
        rem=len(fill)
        for i in range(n):
            c=(rem + (n-i) -1)//(n-i); pattern.append(c); rem-=c
    for i,m in enumerate(main):
        out.append(m)
        for _ in range(pattern[i] if i<len(pattern) else 0):
            if k<len(fill): out.append(fill[k]); k+=1
    out+=fill[k:]
    return out

TSV=240
def stamp_init(e,opt):
    if opt.get('prof'):
        e(f'v_mov_b32 v{TSV}, 0\ns_mov_b32 s98, 0\ns_memrealtime s[96:97]\ns_waitcnt lgkmcnt(0)\nv_writelane_b32 v{TSV}, s96, 62')
def stamp(e,opt,wait=True):
    if opt.get('prof'):
        e(f's_memtime s[96:97]\ns_waitcnt lgkmcnt(0)\ns_mov_b32 m0, s98\nv_writelane_b32 v{TSV}, s96, m0\ns_add_u32 s98, s98, 1')
def stamp_flush(e,opt,srd_b,kern,nw):
    if opt.get('prof'):
        e(f'''
        s_memrealtime s[96:97]
        s_waitcnt lgkmcnt(0)
        v_writelane_b32 v{TSV}, s96, 63
        s_lshl_b32 s99, s2, 3
        s_add_u32 s99, s99, s3
        s_lshl_b32 s99, s99, 8
        s_add_u32 s99, s99, {WS_PROF+kern*256*8*256}
        v_and_b32 v241, 63, v0
        v_lshlrev_b32 v241, 2, v241
        buffer_store_dword v{TSV}, v241, s[{srd_b}:{srd_b+3}], s99 offen
        ''')
WS_PROF=0xA00000

CNT_RB=16
CNT_KV=40
```

```python
from common import *

REC=0
RSTD=4096
CSP=4608
KVP=8192
SLOT=40960

ACC=128
CS=224
SEL=236
FA=64; FB=84
XA=104
WA=108
BIA=114
XF=64
KC=72
WF=80
T0=8
OUT=40

def acc(t,a): return ACC+(t*2+a)*16

def prologue(e,opt):
    e(f'''
    s_cmp_ge_u32 s2, 256
    s_cbranch_scc1 K1_END
    s_load_dwordx4 s[28:31], s[0:1], 0
    s_load_dwordx4 s[32:35], s[0:1], 32
    s_load_dwordx4 s[36:39], s[0:1], 72
    s_load_dwordx2 s[82:83], s[0:1], 16
    s_load_dwordx2 s[84:85], s[0:1], 48
    v_lshrrev_b32 v1, 6, v0
    v_and_b32 v2, 63, v0
    v_readfirstlane_b32 s3, v1
    s_and_b32 s8, s2, 7
    s_lshr_b32 s9, s2, 3
    s_and_b32 s10, s9, 7
    s_lshr_b32 s11, s9, 3
    s_lshr_b32 s4, s8, 2
    s_lshl_b32 s4, s4, 3
    s_add_u32 s4, s4, s10             ; rb
    s_and_b32 s5, s8, 3
    s_lshl_b32 s5, s5, 1
    s_and_b32 s12, s11, 1
    s_add_u32 s5, s5, s12
    s_lshr_b32 s7, s11, 1
    s_lshl_b32 s12, s7, 3
    s_add_u32 s5, s5, s12             ; cb
    ''')
    rot=opt.get('rot','half')
    if rot=='none': e('s_mov_b32 s6, 0')
    elif rot=='half': e('s_add_u32 s6, s10, s11\ns_and_b32 s6, s6, 1\ns_lshl_b32 s6, s6, 2')
    elif rot=='quarter': e('s_add_u32 s6, s10, s11\ns_and_b32 s6, s6, 3\ns_lshl_b32 s6, s6, 1')
    elif rot=='full': e('s_lshl_b32 s6, s11, 1\ns_add_u32 s6, s6, s10\ns_and_b32 s6, s6, 7')
    e(f'''
    s_and_b32 s12, s5, 7
    s_mul_i32 s13, s12, 6
    s_mul_i32 s14, s12, 5
    s_add_u32 s14, s14, 3
    s_min_u32 s44, s13, s14
    s_cmp_lt_u32 s12, 3
    s_cselect_b32 s45, 6, 5
    s_lshl_b32 s13, s12, 7
    s_lshl_b32 s14, s44, 6
    s_mov_b32 s40, 2752
    s_mov_b32 s15, 128
    s_cmp_eq_u32 s7, 0
    s_cselect_b32 s40, 3072, s40
    s_cselect_b32 s41, s13, s14
    s_cselect_b32 s15, 1024, s15
    s_add_u32 s42, s41, s15
    s_add_u32 s43, s42, s15
    s_mov_b32 s64, {SLOT}
    s_mov_b32 s65, {-3*SLOT & 0xffffffff:#x}
    s_waitcnt lgkmcnt(0)
    ''')
    srd(e,8,28,S*D*2)
    e(f'''
    s_cmp_eq_u32 s7, 0
    s_cselect_b32 s12, s30, s32
    s_cselect_b32 s13, s31, s33
    s_mov_b32 s14, {D*F*2}
    s_cselect_b32 s14, {D*3*D*2}, s14
    s_and_b32 s13, s13, 0xffff
    s_mov_b32 s15, 0x20000
    ''')
    srd(e,16,38,(WS_PROF+2*256*8*256) if opt.get('prof') else WS_SIZE)
    stamp_init(e,opt)
    stamp(e,opt)
    srd(e,20,34,F*2)
    srd(e,24,36,256)
    if opt.get('spin'):
        e(f'''
        s_memrealtime s[90:91]
        s_mov_b32 s92, s38
        s_and_b32 s93, s39, 0xffff
        s_mov_b32 s94, {WS_TS+4096}
        s_mov_b32 s95, 0x20000
        s_waitcnt lgkmcnt(0)
        s_add_u32 s89, s2, s3
        s_cmp_lg_u32 s89, 0
        s_cbranch_scc1 K1_NOST
        v_mov_b32 v8, s90
        v_mov_b32 v9, 0
        s_mov_b32 s89, {WS_TS}
        buffer_store_dword v8, v9, s[92:95], s89 offen sc1
        K1_NOST:
        ''')
    e('''
    s_cmp_lt_u32 s3, 4
    s_cbranch_scc1 K1_CONS
    ''')

def loader(e,opt):
    e('''
    s_and_b32 s46, s3, 3
    v_lshrrev_b32 v3, 3, v2
    v_and_b32 v4, 7, v2
    v_lshrrev_b32 v5, 4, v2
    v_xor_b32 v6, v4, v5
    v_lshlrev_b32 v6, 4, v6
    v_lshl_add_u32 v10, v3, 10, v6
    s_lshl_b32 s47, s4, 17
    s_lshl_b32 s48, s46, 15
    s_add_u32 s47, s47, s48
    v_add_u32 v10, s47, v10
    v_xor_b32 v11, 64, v10
    v_add_u32 v11, 0x2000, v11
    v_add_u32 v12, 0x4000, v10
    v_add_u32 v13, 0x4000, v11
    v_and_b32 v5, 1, v5
    v_lshlrev_b32 v5, 2, v5
    v_xor_b32 v4, v4, v5
    v_lshlrev_b32 v4, 4, v4
    s_lshl_b32 s47, s46, 4
    v_add_u32 v14, s47, v3
    v_mul_lo_u32 v14, v14, s40
    v_add_u32 v14, v14, v4
    s_lshl_b32 s47, s40, 3
    v_add_u32 v15, s47, v14
    s_lshl_b32 s54, s46, 12
    s_lshl_b32 s55, s46, 11
    s_add_u32 s55, s55, 16384
    s_lshl_b32 s56, s40, 6
    s_mov_b32 s48, s6
    s_mov_b32 s53, 0
    ''')
    def stage_addr():
        return ['s_lshl_b32 s49, s48, 7','s_mul_i32 s50, s48, s56','s_add_u32 s51, s50, s42',
                's_add_u32 s52, s50, s43','s_add_u32 s50, s50, s41',
                's_add_u32 s58, s53, s54','s_add_u32 s59, s53, s55']
    def stage_adv():
        return ['s_add_u32 s48, s48, 1','s_and_b32 s48, s48, 7',
                f's_add_u32 s53, s53, s64', f's_cmp_eq_u32 s53, {4*SLOT}','s_cselect_b32 s53, 0, s53']
    def dma():
        L=[]
        if opt.get('x_nodma1'): return [['s_nop 0']]*10
        for i in range(4):
            L.append([f's_add_u32 m0, s58, {i*1024}', 's_nop 0', f'buffer_load_dwordx4 v{10+i}, s[8:11], s49 offen lds'])
        for sub in range(3):
            for h in range(2):
                L.append([f's_add_u32 m0, s59, {sub*8192+h*1024}', 's_nop 0', f'buffer_load_dwordx4 v{14+h}, s[12:15], s{50+sub} offen lds'])
        return L
    e('s_mov_b32 s47, 2')
    e('K1_LI:')
    for x in stage_addr(): e(x)
    for g in dma():
        for x in g: e(x)
    for x in stage_adv(): e(x)
    e('''
    s_sub_u32 s47, s47, 1
    s_cmp_lg_u32 s47, 0
    s_cbranch_scc1 K1_LI
    v_and_b32 v3, 31, v2
    v_lshrrev_b32 v4, 5, v2
    v_lshrrev_b32 v5, 1, v3
    v_and_b32 v5, 7, v5
    v_lshlrev_b32 v4, 2, v4
    v_xor_b32 v5, v5, v4
    v_lshlrev_b32 v5, 4, v5
    v_lshl_add_u32 v16, v3, 7, v5
    s_lshl_b32 s47, s46, 12
    v_add_u32 v16, s47, v16
    v_xor_b32 v17, 16, v16
    v_xor_b32 v18, 32, v16
    v_xor_b32 v19, 48, v16
    v_mov_b32 v36, 0
    v_mov_b32 v37, 0
    v_mov_b32 v38, 0
    v_mov_b32 v39, 0
    s_mov_b32 s60, 0xffff0000
    s_mov_b32 s61, 0
    s_mov_b32 s62, 0
    ''')
    def stats_reads(): return [f'ds_read_b128 v[{20+4*j}:{23+4*j}], v{16+j}' for j in range(4)]
    def stats_valu():
        L=[]
        if opt.get('x_nostats'): return L
        for d in range(16):
            t=40+2*(d%4)
            L+= [f'v_lshlrev_b32 v{t}, 16, v{20+d}', f'v_and_b32 v{t+1}, s60, v{20+d}',
                 f'v_add_f32 v36, v36, v{t}', f'v_add_f32 v37, v37, v{t+1}',
                 f'v_fmac_f32 v38, v{t}, v{t}', f'v_fmac_f32 v39, v{t+1}, v{t+1}']
        return L
    def stats_adv():
        return ['s_add_u32 s61, s61, s64', f's_cmp_eq_u32 s61, {4*SLOT}', 's_cselect_b32 s63, s65, s64', 's_cselect_b32 s61, 0, s61']+\
               [f'v_add_u32 v{16+j}, s63, v{16+j}' for j in range(4)]
    stamp(e,opt)
    e('s_mov_b32 s47, 6')
    e('K1_LM:')
    e('s_waitcnt vmcnt(10)')
    stamp(e,opt)
    e('s_barrier')
    for x in stats_reads(): e(x)
    for x in stage_addr(): e(x)
    e('s_lshr_b32 s68, s46, 1')
    e('s_mov_b32 s69, 2')
    e('K1_PH:')
    e('s_cmp_eq_u32 s68, 0')
    e('s_cbranch_scc0 K1_PHS')
    for g in dma():
        for x in g: e(x)
    e('s_branch K1_PHE')
    e('K1_PHS:')
    e('s_waitcnt lgkmcnt(0)')
    for x in stats_valu(): e(x)
    e('K1_PHE:')
    e('s_xor_b32 s68, s68, 1')
    e('s_sub_u32 s69, s69, 1')
    e('s_cmp_lg_u32 s69, 0')
    e('s_cbranch_scc1 K1_PH')
    for x in stage_adv(): e(x)
    for x in stats_adv(): e(x)
    e('''
    s_sub_u32 s47, s47, 1
    s_cmp_lg_u32 s47, 0
    s_cbranch_scc1 K1_LM
    ''')
    if opt.get('pfw'):
        e(f'''
        s_mov_b32 s88, s84
        s_and_b32 s89, s85, 0xffff
        s_mov_b32 s90, {F*D*2}
        s_mov_b32 s91, 0x20000
        s_mov_b32 s76, s82
        s_and_b32 s77, s83, 0xffff
        s_mov_b32 s78, {D*D*2}
        s_mov_b32 s79, 0x20000
        s_lshr_b32 s80, s2, 3
        s_mul_i32 s81, s80, {344*128}
        s_mul_i32 s86, s46, {86*128}
        s_add_u32 s81, s81, s86
        v_lshlrev_b32 v8, 7, v2
        buffer_load_dword v9, v8, s[88:91], s81 offen
        s_add_u32 s81, s81, {64*128}
        s_mov_b32 exec_lo, 0x3fffff
        s_mov_b32 exec_hi, 0
        buffer_load_dword v9, v8, s[88:91], s81 offen
        s_lshl_b32 s81, s80, 14
        s_lshl_b32 s86, s46, 12
        s_add_u32 s81, s81, s86
        s_mov_b32 exec_lo, -1
        buffer_load_dword v9, v8, s[76:79], s81 offen
        s_mov_b64 exec, -1
        s_waitcnt vmcnt(13)
        ''')
    else:
        e('s_waitcnt vmcnt(10)')
    e(f'''
    s_mov_b32 s62, 0
    K1_SO:
    ''')
    stamp(e,opt)
    e('s_barrier')
    for x in stats_reads(): e(x)
    e('s_waitcnt lgkmcnt(0)')
    for x in stats_valu(): e(x)
    for x in stats_adv(): e(x)
    e(f'''
    s_cmp_lg_u32 s62, 0
    s_cbranch_scc1 K1_LDONE
    s_mov_b32 s62, 1
    s_waitcnt vmcnt({3 if opt.get('pfw') else 0})
    s_branch K1_SO
    K1_LDONE:
    v_add_f32 v36, v36, v37
    v_add_f32 v38, v38, v39
    v_mov_b32 v37, v36
    v_mov_b32 v39, v38
    s_nop 1
    v_permlane32_swap_b32 v36, v37
    v_permlane32_swap_b32 v38, v39
    v_add_f32 v36, v36, v37
    v_add_f32 v38, v38, v39
    v_mul_f32 v36, {hx(-1.0/512)}, v36          ; -mean
    v_mul_f32 v38, {hx(1.0/512)}, v38
    v_fma_f32 v38, -v36, v36, v38               ; var
    v_max_f32 v38, 0, v38
    v_add_f32 v38, {hx(1e-5)}, v38
    v_rsq_f32 v44, v38                          ; rstd
    v_cvt_pk_bf16_f32 v40, v36, v36
    v_mul_f32 v45, v38, v44                     ; sigma
    v_lshlrev_b32 v40, 16, v40
    v_sub_f32 v41, v36, v40
    v_cvt_pk_bf16_f32 v40, v40, v41             ; d0
    v_mov_b32 v41, v40                          ; d1
    v_cvt_pk_bf16_f32 v42, v45, v45
    v_lshlrev_b32 v42, 16, v42
    v_sub_f32 v43, v45, v42
    v_cvt_pk_bf16_f32 v42, v42, v43             ; d2
    v_mov_b32 v43, 0
    v_mul_f32 v46, v44, v44
    v_mul_f32 v46, v46, v44
    v_mul_f32 v46, {hx(GC2)}, v46               ; cA
    v_mul_f32 v47, {hx(GC1)}, v44               ; cB
    v_and_b32 v3, 31, v2
    s_lshl_b32 s47, s46, 5
    v_add_u32 v3, s47, v3                       ; row
    v_lshlrev_b32 v4, 5, v3
    ds_write_b128 v4, v[40:43] offset:{REC}
    ds_write_b128 v4, v[44:47] offset:{REC+16}
    v_lshlrev_b32 v4, 2, v3
    ds_write_b32 v4, v44 offset:{RSTD}
    s_cmp_lg_u32 s7, 0
    s_cbranch_scc1 K1_LE1
    s_cmp_lg_u32 s3, 4
    s_cbranch_scc1 K1_LE1
    s_lshl_b32 s47, s5, 2
    v_mov_b32 v4, s47
    s_mov_b32 s48, 0x40000
    K1_POLL:
    buffer_load_dword v5, v4, s[24:27], 0 offen sc1
    s_waitcnt vmcnt(0)
    v_readfirstlane_b32 s47, v5
    s_sub_u32 s48, s48, 1
    s_cmp_lg_u32 s47, 0
    s_cbranch_scc1 K1_LE1
    s_sleep 4
    s_cmp_lg_u32 s48, 0
    s_cbranch_scc1 K1_POLL
    K1_LE1:
    s_waitcnt lgkmcnt(0)
    s_barrier
    s_cmp_lg_u32 s7, 0
    s_cbranch_scc1 K1_END
    s_branch K1_KVRED
    ''')

def cons_setup(e,opt):
    e('K1_CONS:')
    if opt.get('pfcode'):
        n=opt['pfcode']
        e(f'''
        s_cmp_ge_u32 s3, {n}
        s_cbranch_scc1 K1_NOPFC
        s_getpc_b64 s[86:87]
        K1_PC:
        s_sub_u32 s86, s86, K1_PC-{opt.get('k1name','k1_kernel')}
        s_subb_u32 s87, s87, 0
        s_lshl_b32 s88, s3, 13
        v_lshlrev_b32 v8, 7, v2
        v_add_u32 v8, s88, v8
        s_mov_b32 s88, K_TEXT_END-{opt.get('k1name','k1_kernel')}-4
        v_min_u32 v8, s88, v8
        global_load_dword v117, v8, s[86:87]
        K1_NOPFC:
        ''')
    e(f'''
    s_and_b32 s46, s3, 1          ; sh
    s_lshr_b32 s47, s3, 1         ; nh
    s_cmp_lg_u32 s7, 0
    s_cbranch_scc1 K1_NOZ
    s_cmp_lg_u32 s4, 0
    s_cbranch_scc1 K1_NOZ
    s_cmp_lg_u32 s3, 0
    s_cbranch_scc1 K1_NOZ
    v_mov_b32 v8, 0
    v_mov_b32 v9, 0
    v_mov_b32 v10, 0
    v_mov_b32 v11, 0
    v_lshlrev_b32 v4, 4, v2
    s_lshl_b32 s48, s5, 12
    s_add_u32 s48, s48, {WS_KV}
    buffer_store_dwordx4 v[8:11], v4, s[16:19], s48 offen sc1
    buffer_store_dwordx4 v[8:11], v4, s[16:19], s48 offen offset:1024 sc1
    buffer_store_dwordx4 v[8:11], v4, s[16:19], s48 offen offset:2048 sc1
    buffer_store_dwordx4 v[8:11], v4, s[16:19], s48 offen offset:3072 sc1
    s_mov_b32 exec_lo, 0xffff
    s_mov_b32 exec_hi, 0
    s_lshl_b32 s48, s5, 8
    s_add_u32 s48, s48, {WS_Z}
    buffer_store_dwordx4 v[8:11], v4, s[16:19], s48 offen sc1
    s_waitcnt vmcnt(0)
    s_mov_b32 exec_lo, 1
    v_mov_b32 v5, 1
    s_lshl_b32 s48, s5, 2
    v_mov_b32 v4, s48
    buffer_store_dword v5, v4, s[24:27], 0 offen sc1
    s_mov_b64 exec, -1
    K1_NOZ:
    v_and_b32 v3, 31, v2             ; r32
    v_lshrrev_b32 v4, 5, v2          ; hi
    s_mul_i32 s48, s47, 3
    s_add_u32 s48, s48, s44
    s_lshl_b32 s49, s48, 6
    v_lshl_add_u32 v5, v3, 1, s49
    buffer_load_ushort v{BIA}, v5, s[20:23], 0 offen
    buffer_load_ushort v{BIA+1}, v5, s[20:23], 0 offen offset:64
    buffer_load_ushort v{BIA+2}, v5, s[20:23], 0 offen offset:128
    v_lshrrev_b32 v5, 1, v3
    v_and_b32 v5, 7, v5
    v_xor_b32 v5, v5, v4
    v_lshlrev_b32 v5, 4, v5
    v_lshl_add_u32 v5, v3, 7, v5
    s_lshl_b32 s49, s46, 13
    v_add_u32 v5, s49, v5
    s_lshl_b32 s49, s46, 5
    v_xor_b32 v{XA}, s49, v5
    v_xor_b32 v{XA+1}, 32, v5
    v_xor_b32 v{XA+1}, s49, v{XA+1}
    v_xor_b32 v{XA+2}, 64, v{XA}
    v_xor_b32 v{XA+3}, 64, v{XA+1}
    v_and_b32 v6, 15, v2
    v_lshrrev_b32 v6, 2, v6
    v_lshl_add_u32 v6, v4, 3, v6
    v_lshlrev_b32 v6, 7, v6          ; (8hi + i>>2)*128
    v_and_b32 v7, 3, v2
    v_lshlrev_b32 v7, 3, v7
    v_bfe_u32 v8, v2, 4, 1
    v_lshl_add_u32 v7, v8, 5, v7     ; g16*32 + (i&3)*8
    v_bfe_u32 v8, v2, 3, 1
    v_lshlrev_b32 v8, 6, v8          ; 64*bit3
    s_lshl_b32 s50, s46, 11          ; sh*2048
    ''')
    for t in range(3):
        e(f'''
        s_mul_i32 s51, s47, 3
        s_add_u32 s51, s51, {t}
        s_lshr_b32 s52, s51, 1
        s_and_b32 s51, s51, 1
        s_cmp_eq_u32 s7, 0
        s_cselect_b32 s52, {t}, s52
        s_cselect_b32 s51, s47, s51
        s_lshl_b32 s52, s52, 13
        s_add_u32 s52, s52, 16384
        s_lshl_b32 s51, s51, 6
        v_add_u32 v9, s51, v7
        v_xor_b32 v9, v9, v8
        v_add3_u32 v9, v9, v6, s52
        v_add_u32 v{WA+2*t}, s50, v9
        v_subrev_u32 v{WA+2*t+1}, s50, v9
        ''')
    for r in range(ACC,ACC+96+12): e(f'v_mov_b32 v{r}, 0')
    for r in range(FB,FB+20): e(f'v_mov_b32 v{r}, 0')
    e(f'''
    v_lshrrev_b32 v5, 4, v2
    v_xor_b32 v5, v5, v2
    v_and_b32 v5, 1, v5
    v_cmp_eq_u32 vcc, 0, v5
    v_mov_b32 v6, 0x3f803f80
    s_nop 0
    v_cndmask_b32 v{SEL}, 0, v6, vcc
    v_mov_b32 v{SEL+1}, v{SEL}
    v_mov_b32 v{SEL+2}, v{SEL}
    v_mov_b32 v{SEL+3}, v{SEL}
    s_mov_b32 s48, 8
    s_mov_b32 s49, 0
    ''')
    if opt.get('prio',1): e('s_setprio 3')
    e('''
    s_cmp_lg_u32 s7, 0
    s_cbranch_scc1 K1_CF
    ''')

def reads(p,buf):
    par=p&1
    L=[f'ds_read_b128 {vr(buf,4)}, v{XA+p}']
    L+=[f'ds_read_b64_tr_b16 {vr(buf+8,2)}, v{WA+par} offset:{p*2048}', f'ds_read_b64_tr_b16 {vr(buf+10,2)}, v{WA+par} offset:{p*2048+512}']
    L+=[f'ds_read_b128 {vr(buf+4,4)}, v{XA+p} offset:4096']
    for t in (1,2):
        L+=[f'ds_read_b64_tr_b16 {vr(buf+8+4*t,2)}, v{WA+2*t+par} offset:{p*2048}', f'ds_read_b64_tr_b16 {vr(buf+10+4*t,2)}, v{WA+2*t+par} offset:{p*2048+512}']
    return L
def mfmas(buf,ffn,cs):
    L=[]
    for t in range(3):
        for a in range(2):
            X=vr(buf+4*a,4); W=vr(buf+8+4*t,4); A=vr(acc(t,a),16)
            if ffn or t==0: L.append(f'v_mfma_f32_32x32x16_bf16 {A}, {W}, {X}, {A}')
            else: L.append(f'v_mfma_f32_32x32x16_bf16 {A}, {X}, {W}, {A}')
        if cs: L.append(f'v_mfma_f32_16x16x32_bf16 {vr(CS+4*t,4)}, {vr(SEL,4)}, {vr(buf+8+4*t,4)}, {vr(CS+4*t,4)}')
    return L
class DSQ:
    def __init__(self): self.q=[]
    def issue(self,tag): self.q.append(tag); assert len(self.q)<=15,len(self.q)
    def need(self,e,tags):
        idx=[i for i,t in enumerate(self.q) if t in tags]
        if not idx: return
        k=max(idx); n=len(self.q)-1-k
        e(f's_waitcnt lgkmcnt({n})'); self.q=self.q[k+1:]
    def all(self,e):
        if self.q: e('s_waitcnt lgkmcnt(0)')
        self.q=[]
def reads_t(p,buf,name):
    tags=['x0','w0','w0','x1','w1','w1','w2','w2']
    return [(x,name+t) for x,t in zip(reads(p,buf),tags)]
def mfmas_t(buf,ffn,cs,name):
    L=[]; m=mfmas(buf,ffn,cs); k=0
    for t in range(3):
        for a in range(2):
            L.append((m[k],{name+f'x{a}',name+f'w{t}'})); k+=1
        if cs: L.append((m[k],{name+f'w{t}'})); k+=1
    return L
def segment(e,q,ms,rs,pattern,extra=None):
    k=0
    for i,(m,nd) in enumerate(ms):
        q.need(e,nd)
        e(m)
        for _ in range(pattern[i] if i<len(pattern) else 0):
            if k<len(rs):
                x,tag=rs[k]; k+=1
                e(x)
                if tag: q.issue(tag)
    assert k==len(rs)
def mainloop(e,ffn,tag,opt={}):
    stamp(e,opt)
    if opt.get('x_nocomp1'):
        e(f'K1_ML{tag}:\ns_barrier\ns_sub_u32 s48, s48, 1\ns_cmp_lg_u32 s48, 0\ns_cbranch_scc1 K1_ML{tag}')
        stamp(e,opt); return
    e(f'K1_ML{tag}:')
    e('s_barrier')
    if opt.get('profloop'): stamp(e,opt)
    q=DSQ()
    pat=opt.get('rdpat',[3,3,2])
    segment(e,q,[(m,set()) for m in mfmas(FB,ffn,False)], reads_t(0,FA,'A'), pat)
    segment(e,q,mfmas_t(FA,ffn,True,'A'), reads_t(1,FB,'B'), pat)
    segment(e,q,mfmas_t(FB,ffn,False,'B'), reads_t(2,FA,'A'), pat)
    adv=['s_add_u32 s49, s49, s64', f's_cmp_eq_u32 s49, {4*SLOT}', 's_cselect_b32 s50, s65, s64', 's_cselect_b32 s49, 0, s49']
    upd=[f'v_add_u32 v{XA+i}, s50, v{XA+i}' for i in range(4)]+[f'v_add_u32 v{WA+i}, s50, v{WA+i}' for i in range(6)]
    rs=reads_t(3,FB,'B')+[(x,None) for x in adv+upd]
    segment(e,q,mfmas_t(FA,ffn,True,'A'), rs, pat+[4,2,2,2,2,2])
    q.all(e)
    e(f'''
    s_sub_u32 s48, s48, 1
    s_cmp_lg_u32 s48, 0
    s_cbranch_scc1 K1_ML{tag}
    ''')
    for x in mfmas(FB,ffn,False): e(x)
    stamp(e,opt)

def post(e,ffn,opt={}):
    e(f'''
    v_and_b32 v3, 15, v2
    s_mul_i32 s48, s46, 6
    s_mul_i32 s49, s47, 3
    s_add_u32 s48, s48, s49
    s_lshl_b32 s48, s48, 7
    v_lshl_add_u32 v3, v3, 2, s48
    ''')
    for t in range(3):
        e(f'ds_write_b32 v3, v{CS+4*t} offset:{CSP+t*128}')
        e(f'ds_write_b32 v3, v{CS+4*t+1} offset:{CSP+t*128+64}')
    e(f'''
    s_waitcnt lgkmcnt(0)
    s_barrier
    ''')
    stamp(e,opt)
    e(f'''
    v_and_b32 v3, 31, v2
    s_lshl_b32 s48, s46, 6
    v_add_u32 v4, s48, v3
    v_lshlrev_b32 v4, 5, v4
    ds_read_b128 v[{XF}:{XF+3}], v4 offset:{REC}
    ds_read_b128 v[{XF+4}:{XF+7}], v4 offset:{REC+1024}
    ds_read_b128 v[{KC}:{KC+3}], v4 offset:{REC+16}
    ds_read_b128 v[{KC+4}:{KC+7}], v4 offset:{REC+1024+16}
    s_mul_i32 s49, s47, 384
    v_lshl_add_u32 v5, v3, 2, s49
    ''')
    for t in range(3):
        e(f'ds_read_b32 v{8+2*t}, v5 offset:{CSP+t*128}')
        e(f'ds_read_b32 v{9+2*t}, v5 offset:{CSP+768+t*128}')
    e('''
    v_cmp_gt_u32 vcc, 32, v2
    s_nop 0
    s_waitcnt vmcnt(0) lgkmcnt(0)
    ''')
    for r in range(XF,XF+8):
        if (r-XF)%4!=3: e(f'v_cndmask_b32 v{r}, 0, v{r}, vcc')
    for t in range(3):
        w=WF+4*t
        e(f'''
        v_add_f32 v{8+2*t}, v{8+2*t}, v{9+2*t}
        v_cvt_pk_bf16_f32 v{w}, v{8+2*t}, v{8+2*t}
        v_lshlrev_b32 v{9+2*t}, 16, v{w}
        v_sub_f32 v{9+2*t}, v{8+2*t}, v{9+2*t}
        v_cvt_pk_bf16_f32 v{w+1}, v{9+2*t}, v{9+2*t}
        ''')
        if ffn:
            e(f'v_lshlrev_b32 v{w+2}, 16, v{BIA+t}')
            e(f'v_or_b32 v{w+2}, v{w+2}, v{BIA+t}')
        else:
            e(f'v_mov_b32 v{w+2}, 0')
        e(f'v_mov_b32 v{w+3}, 0')
    e('s_nop 1')
    for t in range(3):
        for a in range(2):
            A=vr(acc(t,a),16)
            if ffn or t==0: e(f'v_mfma_f32_32x32x16_bf16 {A}, {vr(WF+4*t,4)}, {vr(XF+4*a,4)}, {A}')
            else: e(f'v_mfma_f32_32x32x16_bf16 {A}, {vr(XF+4*a,4)}, {vr(WF+4*t,4)}, {A}')

def pk(op,d,a,b,c=None,sel=''):
    s=f'v_pk_{op}_f32 v[{d}:{d+1}], v[{a}:{a+1}], v[{b}:{b+1}]'
    if c is not None: s+=f', v[{c}:{c+1}]'
    return s+(' '+sel if sel else '')

def gelu_tile(t,a):
    A=acc(t,a); rs,cA=KC+4*a,KC+4*a+2
    L=[]
    for g in range(2):
        b=A+8*g
        R=range(0,8,2)
        for i in R: L.append(pk('mul',T0+i,b+i,b+i))
        for i in R: L.append(pk('fma',T0+i,T0+i,cA,cA,'op_sel:[0,0,1] op_sel_hi:[1,0,1]'))
        for i in R: L.append(pk('mul',T0+i,T0+i,b+i))
        for i in range(8): L.append(f'v_exp_f32 v{T0+i}, v{T0+i}')
        for i in R: L.append(pk('fma',T0+i,T0+i,rs,rs,'op_sel:[0,1,1] op_sel_hi:[1,1,1]'))
        for i in range(8): L.append(f'v_rcp_f32 v{T0+i}, v{T0+i}')
        L.append('s_nop 0')
        for i in R: L.append(pk('mul',T0+i,T0+i,b+i))
        for i in R: L.append(f'v_cvt_pk_bf16_f32 v{OUT+4*g+i//2}, v{T0+i}, v{T0+i+1}')
    return L

def store2(e,so,off,opt,tmp=53):
    fl=opt.get('stflag','')
    if off+1024>4095:
        e(f's_add_u32 s{tmp}, s{so}, {off}')
        so=tmp; off=0
    e(f'buffer_store_dwordx4 v[{OUT}:{OUT+3}], v4, s[16:19], s{so} offen offset:{off} {fl}')
    e(f'buffer_store_dwordx4 v[{OUT+4}:{OUT+7}], v4, s[16:19], s{so} offen offset:{off+1024} {fl}')

def ffn_path(e,opt):
    e('K1_CF:')
    mainloop(e,True,'F',opt)
    post(e,True,opt)
    stamp(e,opt)
    e(f'''
    v_lshlrev_b32 v4, 4, v2
    s_lshl_b32 s48, s4, 2
    s_lshl_b32 s49, s46, 1
    s_add_u32 s48, s48, s49           ; s-tile (a=0)
    s_mul_i32 s48, s48, 86
    s_mul_i32 s49, s47, 3
    s_add_u32 s49, s49, s44
    s_lshl_b32 s50, s49, 1
    s_add_u32 s48, s48, s50
    s_lshl_b32 s48, s48, 10
    s_add_u32 s51, s48, {86*1024}     ; a=1
    s_mul_i32 s52, s47, 3
    s_sub_u32 s52, s45, s52
    ''')
    for t in range(3):
        if t==2:
            e('s_cmp_lt_u32 s52, 3')
            e('s_cbranch_scc1 K1_END')
        for a in range(2):
            for x in gelu_tile(t,a): e(x)
            store2(e, 48 if a==0 else 51, t*2048, opt)
            stamp(e,opt)
    e('s_branch K1_END' if (opt.get('prof') or opt.get('fused')) else 's_endpgm')

def qkv_path(e,opt):
    mainloop(e,False,'Q',opt)
    post(e,False,opt)
    stamp(e,opt)
    RS=48
    e(f'''
    v_lshlrev_b32 v4, 4, v2
    s_lshl_b32 s48, s4, 2
    s_lshl_b32 s49, s46, 1
    s_add_u32 s48, s48, s49           ; s-tile a=0
    s_lshl_b32 s48, s48, 5
    s_lshl_b32 s49, s5, 2
    s_lshl_b32 s50, s47, 1
    s_add_u32 s49, s49, s50
    s_add_u32 s48, s48, s49
    s_lshl_b32 s48, s48, 10
    s_add_u32 s48, s48, {WS_PQ}
    s_add_u32 s51, s48, {32*1024}
    s_mov_b32 s54, {hx(LOG2E)}
    s_mov_b32 s55, {hx(1e-6)}
    v_lshrrev_b32 v5, 5, v2
    v_lshlrev_b32 v5, 4, v5
    s_lshl_b32 s49, s46, 8
    v_add_u32 v5, s49, v5
    v_mul_f32 v6, s54, v{KC}
    v_mul_f32 v7, s54, v{KC+4}        ; a=1
    ''')
    for a in range(2):
        A=acc(0,a); rs=KC+4*a; rl=6+a
        for g in range(2):
            b=A+8*g
            for i in range(8): e(f'v_mul_f32 v{T0+i}, v{b+i}, v{rl}')
            for i in range(8): e(f'v_min_f32 v{T0+i}, 0, v{T0+i}')
            for i in range(8): e(f'v_exp_f32 v{T0+i}, v{T0+i}')
            for i in range(8): e(f'v_max_f32 v{T0+8+i}, 0, v{b+i}')
            for i in range(8): e(f'v_add_f32 v{T0+i}, s55, v{T0+i}')
            for i in range(8): e(f'v_fmac_f32 v{T0+i}, v{T0+8+i}, v{rs}')
            for i in range(0,8,2): e(f'v_cvt_pk_bf16_f32 v{OUT+4*g+i//2}, v{T0+i}, v{T0+i+1}')
        store2(e, 48 if a==0 else 51, 0, opt)
    stamp(e,opt)
    KV=acc(0,0); Z=acc(0,1)
    PK=96; VF=104
    ONE=112
    for r in range(4): e(f'v_mov_b32 v{ONE+r}, 0x3f803f80')
    for a in range(2):
        for g in range(4): e(f'ds_read_b128 v[{RS+4*g}:{RS+4*g+3}], v5 offset:{RSTD+a*128+g*32}')
        e('s_waitcnt lgkmcnt(0)')
        K=acc(1,a); V=acc(2,a)
        for g in range(2):
            b=K+8*g; r0=RS+8*g
            for i in range(8): e(f'v_mul_f32 v{T0+8+i}, v{b+i}, v{r0+i}')
            for i in range(8): e(f'v_mul_f32 v{T0+i}, s54, v{T0+8+i}')
            for i in range(8): e(f'v_min_f32 v{T0+i}, 0, v{T0+i}')
            for i in range(8): e(f'v_exp_f32 v{T0+i}, v{T0+i}')
            for i in range(8): e(f'v_max_f32 v{T0+8+i}, 0, v{T0+8+i}')
            for i in range(8): e(f'v_add_f32 v{T0+i}, s55, v{T0+i}')
            for i in range(8): e(f'v_add_f32 v{T0+i}, v{T0+i}, v{T0+8+i}')
            for i in range(0,8,2): e(f'v_cvt_pk_bf16_f32 v{PK+4*g+i//2}, v{T0+i}, v{T0+i+1}')
            bv=V+8*g
            for i in range(8): e(f'v_mul_f32 v{T0+i}, v{bv+i}, v{r0+i}')
            for i in range(0,8,2): e(f'v_cvt_pk_bf16_f32 v{VF+4*g+i//2}, v{T0+i}, v{T0+i+1}')
        e('s_nop 1')
        for g in range(2):
            c0 = '0' if (a==0 and g==0) else vr(KV,16)
            z0 = '0' if (a==0 and g==0) else vr(Z,16)
            e(f'v_mfma_f32_32x32x16_bf16 {vr(KV,16)}, {vr(PK+4*g,4)}, {vr(VF+4*g,4)}, {c0}')
            e(f'v_mfma_f32_32x32x16_bf16 {vr(Z,16)}, {vr(PK+4*g,4)}, {vr(ONE,4)}, {z0}')
    e(f'''
    v_and_b32 v8, 15, v2
    v_lshrrev_b32 v9, 5, v2
    v_lshl_add_u32 v8, v9, 4, v8
    v_lshlrev_b32 v8, 4, v8           ; (hiD*16+e)*16
    v_bfe_u32 v10, v2, 4, 1
    v_lshl_add_u32 v8, v10, 10, v8
    s_mul_i32 s48, s46, 4352
    s_lshl_b32 s49, s47, 11
    s_add_u32 s49, s48, s49
    v_add_u32 v8, s49, v8
    s_lshl_b32 s49, s47, 7
    s_add_u32 s49, s48, s49
    v_lshl_add_u32 v9, v9, 4, s49
    s_nop 7
    s_mov_b32 exec_lo, 0x0000ffff
    s_mov_b32 exec_hi, 0x0000ffff
    ds_write_b128 v8, v[{KV}:{KV+3}] offset:{KVP}
    ds_write_b128 v8, v[{KV+4}:{KV+7}] offset:{KVP+512}
    s_mov_b32 exec_lo, 0xffff0000
    s_mov_b32 exec_hi, 0xffff0000
    ds_write_b128 v8, v[{KV+8}:{KV+11}] offset:{KVP}
    ds_write_b128 v8, v[{KV+12}:{KV+15}] offset:{KVP+512}
    s_mov_b32 exec_lo, 1
    s_mov_b32 exec_hi, 1
    ds_write_b128 v9, v[{Z}:{Z+3}] offset:{KVP+4096}
    ds_write_b128 v9, v[{Z+4}:{Z+7}] offset:{KVP+4096+32}
    ds_write_b128 v9, v[{Z+8}:{Z+11}] offset:{KVP+4096+64}
    ds_write_b128 v9, v[{Z+12}:{Z+15}] offset:{KVP+4096+64+32}
    s_mov_b64 exec, -1
    ''')
    stamp(e,opt)
    e(f'''
    K1_KVRED:
    s_waitcnt lgkmcnt(0)
    s_barrier
    ''')
    stamp(e,opt)
    e(f'''
    v_lshlrev_b32 v3, 2, v0
    ds_read_b32 v8, v3 offset:{KVP}
    ds_read_b32 v9, v3 offset:{KVP+4352}
    ds_read_b32 v10, v3 offset:{KVP+2048}
    ds_read_b32 v11, v3 offset:{KVP+2048+4352}
    s_lshl_b32 s48, s5, 12
    s_add_u32 s48, s48, {WS_KV}
    s_waitcnt lgkmcnt(0)
    v_add_f32 v8, v8, v9
    v_add_f32 v10, v10, v11
    buffer_atomic_add_f32 v8, v3, s[16:19], s48 offen
    buffer_atomic_add_f32 v10, v3, s[16:19], s48 offen offset:2048
    s_cmp_lg_u32 s3, 0
    s_cbranch_scc1 K1_END
    ds_read_b32 v8, v3 offset:{KVP+4096}
    ds_read_b32 v9, v3 offset:{KVP+4096+4352}
    s_lshl_b32 s48, s5, 8
    s_add_u32 s48, s48, {WS_Z}
    s_waitcnt lgkmcnt(0)
    v_add_f32 v8, v8, v9
    buffer_atomic_add_f32 v8, v3, s[16:19], s48 offen
    ''')

def stamp_end(e):
    e(f'''
    s_memrealtime s[68:69]
    s_waitcnt lgkmcnt(0)
    s_lshl_b32 s70, s2, 3
    s_add_u32 s70, s70, s3
    s_lshl_b32 s70, s70, 3
    s_add_u32 s70, s70, {WS_TS}
    v_mov_b32 v8, s66
    v_mov_b32 v9, s68
    v_mov_b32 v10, 0
    buffer_store_dwordx2 v[8:9], v10, s[72:75], s70 offen
    ''')
def k1(opt):
    e=E()
    if opt.get('ts'):
        e('s_memrealtime s[66:67]')
    prologue(e,opt)
    if opt.get('ts'):
        pass
    loader(e,opt)
    cons_setup(e,opt)
    qkv_path(e,opt)
    e('K1_END:')
    if opt.get('prof'):
        e('s_waitcnt vmcnt(0)')
        stamp(e,opt)
        stamp_flush(e,opt,16,0,8)
    if opt.get('fused'):
        e(f'''
        s_setprio 0
        s_waitcnt vmcnt(0) lgkmcnt(0)
        s_barrier
        s_cmp_lg_u32 s3, 4
        s_cbranch_scc1 K2_ENTRY
        s_mov_b64 exec, 1
        v_mov_b32 v8, 1
        s_lshl_b32 s48, s4, 2
        s_add_u32 s48, s48, {CNT_RB*4}
        v_mov_b32 v9, s48
        buffer_atomic_add v8, v9, s[24:27], 0 offen
        s_cmp_lg_u32 s7, 0
        s_cbranch_scc1 K1_NOKVC
        v_mov_b32 v9, {CNT_KV*4}
        buffer_atomic_add v8, v9, s[24:27], 0 offen
        K1_NOKVC:
        s_mov_b64 exec, -1
        s_branch K2_ENTRY
        ''')
    e('K1_EXIT0:')
    e('s_endpgm')
    ffn_path(e,opt)
    t=e.text()
    if opt.get('fused'):
        t=t.replace('s_cbranch_scc1 K1_END\n    s_load_dwordx4 s[28:31]','s_cbranch_scc1 K1_EXIT0\n    s_load_dwordx4 s[28:31]')
    if opt.get('prof'):
        t=t.replace('s_cbranch_scc1 K1_END\n    s_load_dwordx4 s[28:31]','s_cbranch_scc1 K1_EXIT0\n    s_load_dwordx4 s[28:31]')
    if opt.get('ts'):
        e2=E(); stamp_end(e2); e2('s_endpgm')
        t=t.replace('s_cbranch_scc1 K1_END\n    s_load_dwordx4 s[28:31]','s_cbranch_scc1 K1_EXIT\n    s_load_dwordx4 s[28:31]')
        t=t.replace('K1_END:\nK1_EXIT0:\n    s_endpgm','K1_END:\n'+e2.text()+'K1_EXIT:\n    s_endpgm',1)
        i=t.rindex('s_endpgm'); t=t[:i]+'s_branch K1_END\n'
        e3=E(); srd(e3,72,38,WS_TS+256*8*8)
        t=t.replace('    s_cmp_lt_u32 s3, 4\n    s_cbranch_scc1 K1_CONS', e3.text()+'    s_cmp_lt_u32 s3, 4\n    s_cbranch_scc1 K1_CONS')
    return t
```

```python
from common import *
from k1 import DSQ, pk

NS=3; SLOT=40960
SC=NS*SLOT
NONCE=SC; ZERO=SC+16
REC=SC+1024
RSTD=SC+5120
WFR=SC+5632
KVP=SC+9216
LDS_BYTES=SC+18432
NONCE_IDX=48

ACC=128
FA=64; FB=84
XA=104; WA=108
XF=64; KC=72; WF=80
T0=8; OUT=40
def acc(t,a): return ACC+(t*2+a)*16

def prologue(e,opt):
    e(f'''
    s_cmp_ge_u32 s2, 256
    s_cbranch_scc1 K1_EXIT0
    s_load_dwordx4 s[28:31], s[0:1], 0
    s_load_dwordx4 s[32:35], s[0:1], 32
    s_load_dwordx4 s[36:39], s[0:1], 72
    s_load_dwordx2 s[82:83], s[0:1], 16
    s_load_dwordx2 s[84:85], s[0:1], 48
    v_lshrrev_b32 v1, 6, v0
    v_and_b32 v2, 63, v0
    v_readfirstlane_b32 s3, v1
    s_and_b32 s8, s2, 7
    s_lshr_b32 s9, s2, 3
    s_and_b32 s10, s9, 7              ; rb_local
    s_lshr_b32 s11, s9, 3             ; cb_local
    s_lshr_b32 s4, s8, 2
    s_lshl_b32 s4, s4, 3
    s_add_u32 s4, s4, s10             ; rb
    s_and_b32 s5, s8, 3
    s_lshl_b32 s5, s5, 1
    s_and_b32 s12, s11, 1
    s_add_u32 s5, s5, s12
    s_lshr_b32 s7, s11, 1
    s_lshl_b32 s12, s7, 3
    s_add_u32 s5, s5, s12             ; cb
    s_mul_i32 s6, s11, {opt.get('rotc',2)}
    s_add_u32 s6, s6, s10
    s_and_b32 s6, s6, 7
    s_and_b32 s12, s5, 7
    s_mul_i32 s13, s12, 6
    s_mul_i32 s14, s12, 5
    s_add_u32 s14, s14, 3
    s_min_u32 s44, s13, s14
    s_cmp_lt_u32 s12, 3
    s_cselect_b32 s45, 6, 5
    s_lshl_b32 s13, s12, 7
    s_lshl_b32 s14, s44, 6
    s_mov_b32 s40, 2752
    s_mov_b32 s15, 128
    s_cmp_eq_u32 s7, 0
    s_cselect_b32 s40, 3072, s40
    s_cselect_b32 s41, s13, s14
    s_cselect_b32 s15, 1024, s15
    s_add_u32 s42, s41, s15
    s_add_u32 s43, s42, s15
    s_mov_b32 s64, {SLOT}
    s_mov_b32 s65, {-(NS-1)*SLOT & 0xffffffff:#x}
    s_cmp_lt_u32 s3, 4
    s_cbranch_scc1 K1_CONS
    ''')

def srds_rest(e,opt):
    srd(e,16,38,(WS_PROF+2*256*8*256) if opt.get('prof') else WS_SIZE)
    srd(e,24,36,256)
    if opt.get('ts'): srd(e,72,38,WS_TS+256*8*8)
    stamp_init(e,opt); stamp(e,opt)

def waddr(e,nh,dst,tmp):
    for t in range(3):
        e(f'''
        s_mul_i32 s{tmp}, s{nh}, 3
        s_add_u32 s{tmp}, s{tmp}, {t}
        s_lshr_b32 s{tmp+1}, s{tmp}, 1
        s_and_b32 s{tmp}, s{tmp}, 1
        s_cmp_eq_u32 s7, 0
        s_cselect_b32 s{tmp+1}, {t}, s{tmp+1}
        s_cselect_b32 s{tmp}, s{nh}, s{tmp}
        s_lshl_b32 s{tmp+1}, s{tmp+1}, 13
        s_add_u32 s{tmp+1}, s{tmp+1}, 16384
        s_lshl_b32 s{tmp}, s{tmp}, 6
        v_add_u32 v9, s{tmp}, v7
        v_xor_b32 v9, v9, v8
        v_add3_u32 v{dst+t}, v9, v6, s{tmp+1}
        ''')
def wlane(e):
    e('''
    v_lshrrev_b32 v4, 5, v2          ; hi
    v_and_b32 v6, 15, v2
    v_lshrrev_b32 v6, 2, v6
    v_lshl_add_u32 v6, v4, 3, v6
    v_lshlrev_b32 v6, 7, v6          ; (8hi + i>>2)*128
    v_and_b32 v7, 3, v2
    v_lshlrev_b32 v7, 3, v7
    v_bfe_u32 v8, v2, 4, 1
    v_lshl_add_u32 v7, v8, 5, v7     ; g16*32 + (i&3)*8
    v_bfe_u32 v8, v2, 3, 1
    v_lshlrev_b32 v8, 6, v8          ; 64*bit3
    ''')

def loader(e,opt):
    e('''
    s_and_b32 s46, s3, 3
    v_lshrrev_b32 v3, 3, v2
    v_and_b32 v4, 7, v2
    v_lshrrev_b32 v5, 4, v2
    v_xor_b32 v6, v4, v5
    v_lshlrev_b32 v6, 4, v6
    v_lshl_add_u32 v10, v3, 10, v6
    s_lshl_b32 s47, s4, 17
    s_lshl_b32 s48, s46, 15
    s_add_u32 s47, s47, s48
    v_add_u32 v10, s47, v10
    v_xor_b32 v11, 64, v10
    v_add_u32 v11, 0x2000, v11
    v_add_u32 v12, 0x4000, v10
    v_add_u32 v13, 0x4000, v11
    v_and_b32 v5, 1, v5
    v_lshlrev_b32 v5, 2, v5
    v_xor_b32 v4, v4, v5
    v_lshlrev_b32 v4, 4, v4
    s_lshl_b32 s47, s46, 4
    v_add_u32 v14, s47, v3
    v_mul_lo_u32 v14, v14, s40
    v_add_u32 v14, v14, v4
    s_lshl_b32 s47, s40, 3
    v_add_u32 v15, s47, v14
    s_lshl_b32 s54, s46, 12
    s_lshl_b32 s55, s46, 11
    s_add_u32 s55, s55, 16384
    s_lshl_b32 s56, s40, 6
    s_mov_b32 s48, s6
    s_mov_b32 s53, 0
    ''')
    def stage_addr():
        return ['s_lshl_b32 s49, s48, 7','s_mul_i32 s50, s48, s56','s_add_u32 s51, s50, s42',
                's_add_u32 s52, s50, s43','s_add_u32 s50, s50, s41',
                's_add_u32 s58, s53, s54','s_add_u32 s59, s53, s55',
                's_add_u32 s48, s48, 1','s_and_b32 s48, s48, 7',
                's_add_u32 s53, s53, s64', f's_cmp_eq_u32 s53, {NS*SLOT}','s_cselect_b32 s53, 0, s53']
    def dma():
        L=[]
        if opt.get('x_nodma1'): return L
        for i in range(4):
            L+=[f's_add_u32 m0, s58, {i*1024}', 's_nop 0', f'buffer_load_dwordx4 v{10+i}, s[8:11], s49 offen lds']
        for sub in range(3):
            for h in range(2):
                L+=[f's_add_u32 m0, s59, {sub*8192+h*1024}', 's_nop 0', f'buffer_load_dwordx4 v{14+h}, s[12:15], s{50+sub} offen lds']
        return L
    for x in stage_addr(): e(x)
    e('s_waitcnt lgkmcnt(0)')
    srd(e,8,28,S*D*2)
    e(f'''
    s_cmp_eq_u32 s7, 0
    s_cselect_b32 s12, s30, s32
    s_cselect_b32 s13, s31, s33
    s_mov_b32 s14, {D*F*2}
    s_cselect_b32 s14, {D*3*D*2}, s14
    s_and_b32 s13, s13, 0xffff
    s_mov_b32 s15, 0x20000
    ''')
    for x in dma(): e(x)
    for x in stage_addr(): e(x)
    for x in dma(): e(x)
    srds_rest(e,opt)
    srd(e,20,34,F*2)
    wlane(e)
    waddr(e,46,16,60)
    e(f'''
    s_lshr_b32 s60, s4, 3             ; hf
    s_lshl_b32 s60, s60, 12           ; 2hf*2048
    v_add_u32 v16, s60, v16
    v_add_u32 v17, s60, v17
    v_add_u32 v18, s60, v18
    v_lshrrev_b32 v5, 4, v2
    v_xor_b32 v5, v5, v2
    v_and_b32 v5, 1, v5
    v_cmp_eq_u32 vcc, 0, v5
    v_mov_b32 v6, 0x3f803f80
    v_mov_b32 v19, {NONCE}
    v_cndmask_b32 v20, 0, v6, vcc
    v_mov_b32 v21, v20
    v_mov_b32 v22, v20
    v_mov_b32 v23, v20
    ''')
    for x in stage_addr(): e(x)
    e('s_barrier')
    e('ds_read_b32 v24, v19')
    e('s_waitcnt vmcnt(10) lgkmcnt(0)')
    e('v_readfirstlane_b32 s63, v24')
    stamp(e,opt)
    e('s_barrier')
    for x in dma(): e(x)
    e('s_cmp_ge_u32 s46, 2')
    e('s_cbranch_scc1 K1_NOCS')
    for t in range(3):
        for k in range(2):
            e(f'ds_read_b64_tr_b16 v[{24+8*t+4*k}:{25+8*t+4*k}], v{16+t} offset:{k*2048}')
            e(f'ds_read_b64_tr_b16 v[{26+8*t+4*k}:{27+8*t+4*k}], v{16+t} offset:{k*2048+512}')
    e('s_waitcnt lgkmcnt(0)')
    for t in range(3):
        e(f'v_mfma_f32_16x16x32_bf16 v[{48+4*t}:{51+4*t}], v[20:23], v[{24+8*t}:{27+8*t}], 0')
    for t in range(3):
        e(f'v_mfma_f32_16x16x32_bf16 v[{48+4*t}:{51+4*t}], v[20:23], v[{28+8*t}:{31+8*t}], v[{48+4*t}:{51+4*t}]')
    e(f'''
    v_and_b32 v5, 16, v2
    v_cmp_ne_u32 vcc, 0, v5
    v_lshlrev_b32 v5, 4, v2
    s_lshl_b32 s60, s5, 4
    s_add_u32 s60, s60, s4
    s_lshl_b32 s60, s60, 1
    s_add_u32 s60, s60, s46
    s_lshl_b32 s60, s60, 9
    s_add_u32 s60, s60, {WS_CSG}
    s_nop 1
    v_cndmask_b32 v60, v48, v49, vcc
    v_cndmask_b32 v61, v52, v53, vcc
    v_cndmask_b32 v62, v56, v57, vcc
    v_mov_b32 v63, s63
    s_mov_b32 exec_hi, 0
    buffer_store_dwordx4 v[60:63], v5, s[16:19], s60 offen sc1
    s_mov_b32 exec_hi, -1
    K1_NOCS:
    s_mov_b32 s47, 5
    ''')
    e('K1_LM:')
    for x in stage_addr(): e(x)
    e('s_waitcnt vmcnt(11)' if False else 's_waitcnt vmcnt(10)')
    stamp(e,opt) if opt.get('profloop') else None
    e('s_barrier')
    for x in dma(): e(x)
    e('''
    s_sub_u32 s47, s47, 1
    s_cmp_lg_u32 s47, 0
    s_cbranch_scc1 K1_LM
    ''')
    e('s_waitcnt vmcnt(10)')
    e('s_barrier')
    e('s_cmp_ge_u32 s46, 2')
    e('s_cbranch_scc1 K1_GCOL')
    e(f'''
    s_lshl_b32 s60, s46, 6
    v_add_u32 v3, s60, v2
    s_lshl_b32 s60, s4, 7
    v_add_u32 v4, s60, v3
    v_lshlrev_b32 v4, 4, v4
    s_mov_b32 s60, {WS_STG}
    buffer_load_dwordx4 v[24:27], v4, s[16:19], s60 offen sc1
    s_waitcnt vmcnt(1)
    s_barrier
    s_mov_b32 s61, 0x40000
    K1_GR:
    s_waitcnt vmcnt(0)
    v_cmp_ne_u32 vcc, s63, v26
    s_sub_u32 s61, s61, 1
    s_cmp_eq_u32 s61, 0
    s_cbranch_scc1 K1_GRD
    s_cbranch_vccz K1_GRD
    s_sleep 1
    buffer_load_dwordx4 v[24:27], v4, s[16:19], s60 offen sc1
    s_branch K1_GR
    K1_GRD:
    v_rsq_f32 v44, v25                          ; rstd
    v_cvt_pk_bf16_f32 v40, v24, v24
    v_mul_f32 v45, v25, v44                     ; sigma
    v_lshlrev_b32 v40, 16, v40
    v_sub_f32 v41, v24, v40
    v_cvt_pk_bf16_f32 v40, v40, v41             ; d0
    v_mov_b32 v41, v40                          ; d1
    v_cvt_pk_bf16_f32 v42, v45, v45
    v_lshlrev_b32 v42, 16, v42
    v_sub_f32 v43, v45, v42
    v_cvt_pk_bf16_f32 v42, v42, v43             ; d2
    v_mov_b32 v43, 0
    v_mul_f32 v46, v44, v44
    v_mul_f32 v46, v46, v44
    v_mul_f32 v46, {hx(GC2)}, v46               ; cA
    v_mul_f32 v47, {hx(GC1)}, v44               ; cB
    v_lshlrev_b32 v4, 5, v3
    v_add_u32 v4, {REC}, v4
    ds_write_b128 v4, v[40:43]
    ds_write_b128 v4, v[44:47] offset:16
    v_lshlrev_b32 v4, 2, v3
    v_add_u32 v4, {RSTD}, v4
    ds_write_b32 v4, v44
    v_mov_b32 v4, {ZERO}
    v_mov_b32 v40, 0
    v_mov_b32 v41, 0
    v_mov_b32 v42, 0
    ds_write_b128 v4, v[40:43]
    s_branch K1_GDONE
    ''')
    e(f'''
    K1_GCOL:
    s_and_b32 s47, s46, 1             ; nh
    v_and_b32 v3, 31, v2
    v_lshrrev_b32 v4, 5, v2
    v_lshlrev_b32 v4, 13, v4
    v_lshl_add_u32 v4, v3, 4, v4
    s_lshl_b32 s60, s5, 14
    s_lshl_b32 s61, s47, 9
    s_add_u32 s60, s60, s61
    s_add_u32 s60, s60, {WS_CSG}
    s_mul_i32 s61, s47, 3
    s_add_u32 s61, s61, s44
    s_lshl_b32 s61, s61, 6
    v_lshl_add_u32 v5, v3, 1, s61
    buffer_load_ushort v60, v5, s[20:23], 0 offen
    buffer_load_ushort v61, v5, s[20:23], 0 offen offset:64
    buffer_load_ushort v62, v5, s[20:23], 0 offen offset:128
    ''')
    def colloads():
        for j in range(8):
            if j<4: e(f'buffer_load_dwordx4 v[{24+4*j}:{27+4*j}], v4, s[16:19], s60 offen offset:{j*1024} sc1')
            else: e(f'buffer_load_dwordx4 v[{24+4*j}:{27+4*j}], v4, s[16:19], s62 offen offset:{(j-4)*1024} sc1')
    e('s_add_u32 s62, s60, 4096')
    colloads()
    e('''
    s_waitcnt vmcnt(11)
    s_barrier
    s_mov_b32 s61, 0x40000
    K1_GC:
    s_waitcnt vmcnt(0)
    ''')
    e('v_xor_b32 v6, s63, v27')
    for j in range(1,8):
        e(f'v_xor_b32 v7, s63, v{27+4*j}')
        e('v_or_b32 v6, v6, v7')
    e('''
    v_cmp_ne_u32 vcc, 0, v6
    s_sub_u32 s61, s61, 1
    s_cmp_eq_u32 s61, 0
    s_cbranch_scc1 K1_GCD
    s_cbranch_vccz K1_GCD
    s_sleep 1
    ''')
    colloads()
    e('s_branch K1_GC')
    e('K1_GCD:')
    for c in range(3):
        for j in (1,3,5,7): e(f'v_add_f32 v{24+4*(j-1)+c}, v{24+4*(j-1)+c}, v{24+4*j+c}')
        e(f'v_add_f32 v{24+c}, v{24+c}, v{32+c}')
        e(f'v_add_f32 v{40+c}, v{40+c}, v{48+c}')
        e(f'v_add_f32 v{24+c}, v{24+c}, v{40+c}')
        e(f'v_mov_b32 v{28+c}, v{24+c}')
    e('s_nop 1')
    for c in range(3): e(f'v_permlane32_swap_b32 v{24+c}, v{28+c}')
    e(f'''
    s_mul_i32 s61, s47, 1536
    s_add_u32 s61, s61, {WFR}
    v_lshl_add_u32 v5, v3, 4, s61
    ''')
    for c in range(3):
        e(f'''
        v_add_f32 v8, v{24+c}, v{28+c}
        v_cvt_pk_bf16_f32 v40, v8, v8
        v_lshlrev_b32 v9, 16, v40
        v_sub_f32 v9, v8, v9
        v_cvt_pk_bf16_f32 v41, v9, v9
        v_lshlrev_b32 v42, 16, v{60+c}
        v_or_b32 v42, v42, v{60+c}
        v_mov_b32 v43, 0
        s_cmp_eq_u32 s7, 0
        s_cbranch_scc0 K1_GB{c}
        v_mov_b32 v42, 0
        K1_GB{c}:
        ds_write_b128 v5, v[40:43] offset:{c*512}
        s_nop 1
        ''')
    e('K1_GDONE:')
    e(f'''
    s_cmp_lg_u32 s7, 0
    s_cbranch_scc1 K1_PFW
    s_cmp_lg_u32 s3, 4
    s_cbranch_scc1 K1_PFW
    s_lshl_b32 s47, s5, 2
    v_mov_b32 v4, s47
    s_mov_b32 s48, 0x40000
    K1_POLL:
    buffer_load_dword v5, v4, s[24:27], 0 offen sc1
    s_waitcnt vmcnt(0)
    v_readfirstlane_b32 s47, v5
    s_sub_u32 s48, s48, 1
    s_cmp_lg_u32 s47, 0
    s_cbranch_scc1 K1_PFW
    s_sleep 4
    s_cmp_lg_u32 s48, 0
    s_cbranch_scc1 K1_POLL
    K1_PFW:
    ''')
    if opt.get('pfw'):
        e(f'''
        s_mov_b32 s88, s84
        s_and_b32 s89, s85, 0xffff
        s_mov_b32 s90, {F*D*2}
        s_mov_b32 s91, 0x20000
        s_mov_b32 s76, s82
        s_and_b32 s77, s83, 0xffff
        s_mov_b32 s78, {D*D*2}
        s_mov_b32 s79, 0x20000
        s_lshr_b32 s80, s2, 3
        s_mul_i32 s81, s80, {344*128}
        s_mul_i32 s86, s46, {86*128}
        s_add_u32 s81, s81, s86
        v_lshlrev_b32 v8, 7, v2
        buffer_load_dword v120, v8, s[88:91], s81 offen
        s_add_u32 s81, s81, {64*128}
        s_mov_b32 exec_lo, 0x3fffff
        s_mov_b32 exec_hi, 0
        buffer_load_dword v120, v8, s[88:91], s81 offen
        s_lshl_b32 s81, s80, 14
        s_lshl_b32 s86, s46, 12
        s_add_u32 s81, s81, s86
        s_mov_b32 exec_lo, -1
        buffer_load_dword v120, v8, s[76:79], s81 offen
        s_mov_b64 exec, -1
        ''')
    e(f'''
    K1_LE1:
    s_waitcnt lgkmcnt(0)
    ''')
    stamp(e,opt)
    e('''
    s_barrier
    s_cmp_lg_u32 s7, 0
    s_cbranch_scc1 K1_END
    s_branch K1_KVRED
    ''')

def cons_setup(e,opt):
    e('K1_CONS:')
    e(f'''
    s_and_b32 s46, s3, 1          ; sh
    s_lshr_b32 s47, s3, 1         ; nh
    s_lshl_b32 s48, s4, 7
    s_lshl_b32 s49, s5, 3
    s_add_u32 s48, s48, s49
    s_lshl_b32 s49, s3, 1
    s_add_u32 s57, s48, s49
    s_lshl_b32 s48, s57, 10
    v_lshlrev_b32 v10, 4, v2
    s_waitcnt lgkmcnt(0)
    ''')
    srd(e,8,28,S*D*2)
    e('''
    buffer_load_dwordx4 v[16:19], v10, s[8:11], s48 offen
    buffer_load_dwordx4 v[20:23], v10, s[8:11], s48 offen offset:1024
    ''')
    srds_rest(e,opt)
    if opt.get('pfcode'):
        n=opt['pfcode']
        e(f'''
        s_cmp_ge_u32 s3, {n}
        s_cbranch_scc1 K1_NOPFC
        s_getpc_b64 s[86:87]
        K1_PC:
        s_sub_u32 s86, s86, K1_PC-{opt.get('k1name','k1_kernel')}
        s_subb_u32 s87, s87, 0
        s_lshl_b32 s88, s3, 13
        v_lshlrev_b32 v8, 7, v2
        v_add_u32 v8, s88, v8
        s_mov_b32 s88, K_TEXT_END-{opt.get('k1name','k1_kernel')}-4
        v_min_u32 v8, s88, v8
        global_load_dword v117, v8, s[86:87]
        K1_NOPFC:
        ''')
    e(f'''
    s_cmp_lg_u32 s3, 0
    s_cbranch_scc1 K1_NOZ
    s_cmp_lg_u32 s2, 0
    s_cbranch_scc1 K1_NON
    s_memrealtime s[48:49]
    s_waitcnt lgkmcnt(0)
    s_or_b32 s48, s48, 1
    v_mov_b32 v5, s48
    v_mov_b32 v4, {NONCE_IDX*4}
    s_mov_b64 exec, 1
    buffer_store_dword v5, v4, s[24:27], 0 offen sc1
    s_mov_b64 exec, -1
    K1_NON:
    s_cmp_lg_u32 s7, 0
    s_cbranch_scc1 K1_NOZ
    s_cmp_lg_u32 s4, 0
    s_cbranch_scc1 K1_NOZ
    v_mov_b32 v12, 0
    v_mov_b32 v13, 0
    v_mov_b32 v14, 0
    v_mov_b32 v15, 0
    s_lshl_b32 s48, s5, 12
    s_add_u32 s48, s48, {WS_KV}
    buffer_store_dwordx4 v[12:15], v10, s[16:19], s48 offen sc1
    buffer_store_dwordx4 v[12:15], v10, s[16:19], s48 offen offset:1024 sc1
    buffer_store_dwordx4 v[12:15], v10, s[16:19], s48 offen offset:2048 sc1
    buffer_store_dwordx4 v[12:15], v10, s[16:19], s48 offen offset:3072 sc1
    s_mov_b32 exec_lo, 0xffff
    s_mov_b32 exec_hi, 0
    s_lshl_b32 s48, s5, 8
    s_add_u32 s48, s48, {WS_Z}
    buffer_store_dwordx4 v[12:15], v10, s[16:19], s48 offen sc1
    s_waitcnt vmcnt(0)
    s_mov_b32 exec_lo, 1
    v_mov_b32 v5, 1
    s_lshl_b32 s48, s5, 2
    v_mov_b32 v4, s48
    buffer_store_dword v5, v4, s[24:27], 0 offen sc1
    s_mov_b64 exec, -1
    K1_NOZ:
    v_and_b32 v3, 31, v2             ; r32
    v_lshrrev_b32 v4, 5, v2          ; hi
    v_lshrrev_b32 v5, 1, v3
    v_and_b32 v5, 7, v5
    v_xor_b32 v5, v5, v4
    v_lshlrev_b32 v5, 4, v5
    v_lshl_add_u32 v5, v3, 7, v5
    s_lshl_b32 s49, s46, 13
    v_add_u32 v5, s49, v5
    s_lshl_b32 s49, s46, 5
    v_xor_b32 v{XA}, s49, v5
    v_xor_b32 v{XA+1}, 32, v5
    v_xor_b32 v{XA+1}, s49, v{XA+1}
    v_xor_b32 v{XA+2}, 64, v{XA}
    v_xor_b32 v{XA+3}, 64, v{XA+1}
    ''')
    wlane(e)
    waddr(e,47,WA,50)
    for r in range(ACC,ACC+96): e(f'v_mov_b32 v{r}, 0')
    for r in range(FB,FB+20): e(f'v_mov_b32 v{r}, 0')
    e('s_mov_b32 s60, 0xffff0000')
    e('s_waitcnt vmcnt(0)')
    for r in range(2):
        sA,sB,qA,qB=24+4*r,25+4*r,26+4*r,27+4*r
        for d in range(4):
            x=16+4*r+d
            e(f'v_lshlrev_b32 v32, 16, v{x}')
            e(f'v_and_b32 v33, s60, v{x}')
            if d==0:
                e(f'v_mov_b32 v{sA}, v32'); e(f'v_mov_b32 v{sB}, v33')
                e(f'v_mul_f32 v{qA}, v32, v32'); e(f'v_mul_f32 v{qB}, v33, v33')
            else:
                e(f'v_add_f32 v{sA}, v{sA}, v32'); e(f'v_add_f32 v{sB}, v{sB}, v33')
                e(f'v_fmac_f32 v{qA}, v32, v32'); e(f'v_fmac_f32 v{qB}, v33, v33')
        e(f'v_add_f32 v{sA}, v{sA}, v{sB}')
        e(f'v_add_f32 v{qA}, v{qA}, v{qB}')
    vals=[24,26,28,30]
    for ctl in ('row_shr:1 row_mask:0xf','row_shr:2 row_mask:0xf','row_shr:4 row_mask:0xf','row_shr:8 row_mask:0xf'):
        for v in vals: e(f'v_add_f32_dpp v{v}, v{v}, v{v} {ctl} bank_mask:0xf bound_ctrl:0')
    for ctl in ('row_bcast:15 row_mask:0xa','row_bcast:31 row_mask:0xc'):
        for v in vals: e(f'v_add_f32_dpp v{v}, v{v}, v{v} {ctl} bank_mask:0xf')
    for r in range(2):
        sA,qA=24+4*r,26+4*r; o=32+4*r
        e(f'''
        v_mul_f32 v{o}, {hx(-1.0/512)}, v{sA}
        v_mul_f32 v{o+1}, {hx(1.0/512)}, v{qA}
        v_fma_f32 v{o+1}, -v{o}, v{o}, v{o+1}
        v_max_f32 v{o+1}, 0, v{o+1}
        v_add_f32 v{o+1}, {hx(1e-5)}, v{o+1}
        ''')
    e(f'''
    s_cmp_lg_u32 s3, 0
    s_cbranch_scc1 K1_NP
    v_mov_b32 v4, {NONCE_IDX*4}
    s_mov_b32 s48, 0x40000
    K1_NPL:
    buffer_load_dword v5, v4, s[24:27], 0 offen sc1
    s_waitcnt vmcnt(0)
    v_readfirstlane_b32 s49, v5
    s_sub_u32 s48, s48, 1
    s_cmp_lg_u32 s49, 0
    s_cbranch_scc1 K1_NPD
    s_sleep 2
    s_cmp_lg_u32 s48, 0
    s_cbranch_scc1 K1_NPL
    K1_NPD:
    v_mov_b32 v4, {NONCE}
    ds_write_b32 v4, v5
    s_waitcnt lgkmcnt(0)
    K1_NP:
    s_barrier
    v_mov_b32 v4, {NONCE}
    ds_read_b32 v34, v4
    s_add_u32 s48, s57, 0
    s_lshl_b32 s48, s48, 4
    s_add_u32 s48, s48, {WS_STG}
    v_mov_b32 v4, 0
    s_waitcnt lgkmcnt(0)
    v_mov_b32 v35, v34
    v_mov_b32 v38, v34
    v_mov_b32 v39, v34
    s_mov_b32 exec_lo, 0
    s_mov_b32 exec_hi, 0x80000000
    buffer_store_dwordx4 v[32:35], v4, s[16:19], s48 offen sc1
    buffer_store_dwordx4 v[36:39], v4, s[16:19], s48 offen offset:16 sc1
    s_mov_b64 exec, -1
    ''')
    e('s_lshl_b32 s50, s46, 11')
    for t in (2,1,0):
        e(f'v_subrev_u32 v{WA+2*t+1}, s50, v{WA+t}')
        e(f'v_add_u32 v{WA+2*t}, s50, v{WA+t}')
    e('''
    s_mov_b32 s48, 8
    s_mov_b32 s49, 0
    ''')
    if opt.get('prio',1): e('s_setprio 3')
    e('''
    s_cmp_lg_u32 s7, 0
    s_cbranch_scc1 K1_CF
    ''')

def reads(p,buf):
    par=p&1
    L=[f'ds_read_b128 {vr(buf,4)}, v{XA+p}']
    L+=[f'ds_read_b64_tr_b16 {vr(buf+8,2)}, v{WA+par} offset:{p*2048}', f'ds_read_b64_tr_b16 {vr(buf+10,2)}, v{WA+par} offset:{p*2048+512}']
    L+=[f'ds_read_b128 {vr(buf+4,4)}, v{XA+p} offset:4096']
    for t in (1,2):
        L+=[f'ds_read_b64_tr_b16 {vr(buf+8+4*t,2)}, v{WA+2*t+par} offset:{p*2048}', f'ds_read_b64_tr_b16 {vr(buf+10+4*t,2)}, v{WA+2*t+par} offset:{p*2048+512}']
    return L
def mfmas(buf,ffn):
    L=[]
    for t in range(3):
        for a in range(2):
            X=vr(buf+4*a,4); W=vr(buf+8+4*t,4); A=vr(acc(t,a),16)
            if ffn or t==0: L.append(f'v_mfma_f32_32x32x16_bf16 {A}, {W}, {X}, {A}')
            else: L.append(f'v_mfma_f32_32x32x16_bf16 {A}, {X}, {W}, {A}')
    return L
def reads_t(p,buf,name):
    tags=['x0','w0','w0','x1','w1','w1','w2','w2']
    return [(x,name+t) for x,t in zip(reads(p,buf),tags)]
def mfmas_t(buf,ffn,name):
    L=[]; m=mfmas(buf,ffn); k=0
    for t in range(3):
        for a in range(2):
            L.append((m[k],{name+f'x{a}',name+f'w{t}'})); k+=1
    return L
def segment(e,q,ms,rs,pattern):
    k=0
    for i,(m,nd) in enumerate(ms):
        q.need(e,nd)
        e(m)
        for _ in range(pattern[i] if i<len(pattern) else 0):
            if k<len(rs):
                x,tag=rs[k]; k+=1
                e(x)
                if tag: q.issue(tag)
    assert k==len(rs)
def mainloop(e,ffn,tag,opt={}):
    stamp(e,opt)
    e(f'K1_ML{tag}:')
    e('s_barrier')
    if opt.get('profloop'): stamp(e,opt)
    q=DSQ()
    pat=opt.get('rdpat',[3,3,2])
    segment(e,q,[(m,set()) for m in mfmas(FB,ffn)], reads_t(0,FA,'A'), pat)
    segment(e,q,mfmas_t(FA,ffn,'A'), reads_t(1,FB,'B'), pat)
    segment(e,q,mfmas_t(FB,ffn,'B'), reads_t(2,FA,'A'), pat)
    adv=['s_add_u32 s49, s49, s64', f's_cmp_eq_u32 s49, {NS*SLOT}', 's_cselect_b32 s50, s65, s64', 's_cselect_b32 s49, 0, s49']
    upd=[f'v_add_u32 v{XA+i}, s50, v{XA+i}' for i in range(4)]+[f'v_add_u32 v{WA+i}, s50, v{WA+i}' for i in range(6)]
    rs=reads_t(3,FB,'B')+[(x,None) for x in adv+upd]
    segment(e,q,mfmas_t(FA,ffn,'A'), rs, pat+[4,5,5])
    q.all(e)
    e(f'''
    s_sub_u32 s48, s48, 1
    s_cmp_lg_u32 s48, 0
    s_cbranch_scc1 K1_ML{tag}
    ''')
    for x in mfmas(FB,ffn): e(x)
    stamp(e,opt)

def post(e,ffn,opt={}):
    e(f'''
    v_and_b32 v3, 31, v2
    s_lshl_b32 s48, s46, 6
    v_add_u32 v4, s48, v3
    v_lshlrev_b32 v4, 5, v4
    v_add_u32 v4, {REC}, v4
    v_mov_b32 v5, {ZERO}
    v_cmp_gt_u32 vcc, 32, v2
    s_mul_i32 s49, s47, 1536
    s_add_u32 s49, s49, {WFR}
    v_lshl_add_u32 v6, v3, 4, s49
    v_cndmask_b32 v5, v5, v4, vcc
    v_add_u32 v7, 1024, v4
    v_mov_b32 v8, {ZERO}
    v_cndmask_b32 v7, v8, v7, vcc
    s_barrier
    ''')
    stamp(e,opt)
    e(f'''
    ds_read_b128 v[{WF}:{WF+3}], v6
    ds_read_b128 v[{XF}:{XF+3}], v5
    ds_read_b128 v[{XF+4}:{XF+7}], v7
    ds_read_b128 v[{WF+4}:{WF+7}], v6 offset:512
    ds_read_b128 v[{WF+8}:{WF+11}], v6 offset:1024
    ds_read_b128 v[{KC}:{KC+3}], v4 offset:16
    ds_read_b128 v[{KC+4}:{KC+7}], v4 offset:{1024+16}
    ''')
    waits={(0,0):5,(0,1):4,(1,0):3,(2,0):2}
    for t in range(3):
        for a in range(2):
            if (t,a) in waits: e(f's_waitcnt lgkmcnt({waits[(t,a)]})')
            A=vr(acc(t,a),16)
            if ffn or t==0: e(f'v_mfma_f32_32x32x16_bf16 {A}, {vr(WF+4*t,4)}, {vr(XF+4*a,4)}, {A}')
            else: e(f'v_mfma_f32_32x32x16_bf16 {A}, {vr(XF+4*a,4)}, {vr(WF+4*t,4)}, {A}')
    e('s_waitcnt lgkmcnt(0)')

def gelu_tile(t,a):
    A=acc(t,a); rs,cA=KC+4*a,KC+4*a+2
    L=[]
    R=range(0,16,2)
    for i in R: L.append(pk('mul',T0+i,A+i,A+i))
    for i in R: L.append(pk('fma',T0+i,T0+i,cA,cA,'op_sel:[0,0,1] op_sel_hi:[1,0,1]'))
    for i in R: L.append(pk('mul',T0+i,T0+i,A+i))
    for i in range(16): L.append(f'v_exp_f32 v{T0+i}, v{T0+i}')
    for i in R: L.append(pk('fma',T0+i,T0+i,rs,rs,'op_sel:[0,1,1] op_sel_hi:[1,1,1]'))
    for i in range(16): L.append(f'v_rcp_f32 v{T0+i}, v{T0+i}')
    for i in R: L.append(pk('mul',T0+i,T0+i,A+i))
    for i in R: L.append(f'v_cvt_pk_bf16_f32 v{OUT+i//2}, v{T0+i}, v{T0+i+1}')
    return L

def store2(e,so,off,opt,tmp=53,base=OUT):
    fl=opt.get('stflag','')
    if off+1024>4095:
        e(f's_add_u32 s{tmp}, s{so}, {off}')
        so=tmp; off=0
    e(f'buffer_store_dwordx4 v[{base}:{base+3}], v4, s[16:19], s{so} offen offset:{off} {fl}')
    e(f'buffer_store_dwordx4 v[{base+4}:{base+7}], v4, s[16:19], s{so} offen offset:{off+1024} {fl}')

def ffn_path(e,opt):
    e('K1_CF:')
    mainloop(e,True,'F',opt)
    post(e,True,opt)
    stamp(e,opt)
    e(f'''
    v_lshlrev_b32 v4, 4, v2
    s_lshl_b32 s48, s4, 2
    s_lshl_b32 s49, s46, 1
    s_add_u32 s48, s48, s49           ; s-tile (a=0)
    s_mul_i32 s48, s48, 86
    s_mul_i32 s49, s47, 3
    s_add_u32 s49, s49, s44
    s_lshl_b32 s50, s49, 1
    s_add_u32 s48, s48, s50
    s_lshl_b32 s48, s48, 10
    s_add_u32 s51, s48, {86*1024}     ; a=1
    s_mul_i32 s52, s47, 3
    s_sub_u32 s52, s45, s52
    ''')
    for t in range(3):
        if t==2:
            e('s_cmp_lt_u32 s52, 3')
            e('s_cbranch_scc1 K1_END')
        for a in range(2):
            for x in gelu_tile(t,a): e(x)
            store2(e, 48 if a==0 else 51, t*2048, opt)
            if opt.get('profloop'): stamp(e,opt)
    e('s_branch K1_END')

def qkv_path(e,opt):
    mainloop(e,False,'Q',opt)
    post(e,False,opt)
    stamp(e,opt)
    RS=48
    e(f'''
    v_lshlrev_b32 v4, 4, v2
    s_lshl_b32 s48, s4, 2
    s_lshl_b32 s49, s46, 1
    s_add_u32 s48, s48, s49           ; s-tile a=0
    s_lshl_b32 s48, s48, 5
    s_lshl_b32 s49, s5, 2
    s_lshl_b32 s50, s47, 1
    s_add_u32 s49, s49, s50
    s_add_u32 s48, s48, s49
    s_lshl_b32 s48, s48, 10
    s_add_u32 s48, s48, {WS_PQ}
    s_add_u32 s51, s48, {32*1024}
    v_lshrrev_b32 v5, 5, v2
    v_lshlrev_b32 v5, 4, v5
    s_lshl_b32 s49, s46, 8
    s_add_u32 s49, s49, {RSTD}
    v_add_u32 v5, s49, v5
    v_mov_b32 v116, {hx(LOG2E)}
    v_mov_b32 v118, {hx(1e-6)}
    v_mul_f32 v6, v116, v{KC}
    v_mul_f32 v24, v116, v{KC+4}      ; a=1
    ''')
    B='op_sel_hi:[1,0]'; B3='op_sel_hi:[1,0,0]'
    for g in range(4): e(f'ds_read_b128 v[{RS+4*g}:{RS+4*g+3}], v5 offset:{g*32}')
    for a in range(2):
        A=acc(0,a); rs=KC+4*a; rl=6 if a==0 else 24
        R=range(0,16,2)
        T=T0 if a==0 else 26
        T=T0
        for i in R: e(pk('mul',T+i,A+i,rl,None,B))
        for i in range(16): e(f'v_max_f32 v{A+i}, 0, v{A+i}')
        for i in range(16): e(f'v_exp_f32 v{T+i}, v{T+i} clamp')
        for i in R: e(pk('fma',A+i,A+i,rs,118,B3))
        for i in R: e(pk('add',T+i,T+i,A+i))
        for i in R: e(f'v_cvt_pk_bf16_f32 v{OUT+i//2}, v{T+i}, v{T+i+1}')
        store2(e, 48 if a==0 else 51, 0, opt)
    stamp(e,opt)
    KV=acc(0,0); Z=acc(0,1)
    PK=96; VF=104
    ONE=112
    for r in range(4): e(f'v_mov_b32 v{ONE+r}, 0x3f803f80')
    for a in range(2):
        if a==1:
            for g in range(4): e(f'ds_read_b128 v[{RS+4*g}:{RS+4*g+3}], v5 offset:{128+g*32}')
        e('s_waitcnt lgkmcnt(0)')
        K=acc(1,a); V=acc(2,a)
        R=range(0,16,2)
        for i in R: e(pk('mul',K+i,K+i,RS+i))
        for i in R: e(pk('mul',V+i,V+i,RS+i))
        for i in R: e(pk('mul',T0+i,K+i,116,None,B))
        for i in range(16): e(f'v_max_f32 v{K+i}, v118, v{K+i}' if False else f'v_max_f32 v{K+i}, 0, v{K+i}')
        for i in range(16): e(f'v_exp_f32 v{T0+i}, v{T0+i} clamp')
        for i in R: e(pk('add',K+i,K+i,118,None,B))
        for i in R: e(f'v_cvt_pk_bf16_f32 v{VF+i//2}, v{V+i}, v{V+i+1}')
        for i in R: e(pk('add',T0+i,T0+i,K+i))
        for i in R: e(f'v_cvt_pk_bf16_f32 v{PK+i//2}, v{T0+i}, v{T0+i+1}')
        e('s_nop 1')
        for g in range(2):
            c0 = '0' if (a==0 and g==0) else vr(KV,16)
            z0 = '0' if (a==0 and g==0) else vr(Z,16)
            e(f'v_mfma_f32_32x32x16_bf16 {vr(KV,16)}, {vr(PK+4*g,4)}, {vr(VF+4*g,4)}, {c0}')
            e(f'v_mfma_f32_32x32x16_bf16 {vr(Z,16)}, {vr(PK+4*g,4)}, {vr(ONE,4)}, {z0}')
    e(f'''
    v_and_b32 v8, 15, v2
    v_lshrrev_b32 v9, 5, v2
    v_lshl_add_u32 v8, v9, 4, v8
    v_lshlrev_b32 v8, 4, v8           ; (hiD*16+e)*16
    v_bfe_u32 v10, v2, 4, 1
    v_lshl_add_u32 v8, v10, 10, v8
    s_mul_i32 s48, s46, 4352
    s_add_u32 s48, s48, {KVP}
    s_lshl_b32 s49, s47, 11
    s_add_u32 s49, s48, s49
    v_add_u32 v8, s49, v8
    s_lshl_b32 s49, s47, 7
    s_add_u32 s49, s48, s49
    v_lshl_add_u32 v9, v9, 4, s49
    s_nop 7
    s_mov_b32 exec_lo, 0x0000ffff
    s_mov_b32 exec_hi, 0x0000ffff
    ds_write_b128 v8, v[{KV}:{KV+3}]
    ds_write_b128 v8, v[{KV+4}:{KV+7}] offset:512
    s_mov_b32 exec_lo, 0xffff0000
    s_mov_b32 exec_hi, 0xffff0000
    ds_write_b128 v8, v[{KV+8}:{KV+11}]
    ds_write_b128 v8, v[{KV+12}:{KV+15}] offset:512
    s_mov_b32 exec_lo, 1
    s_mov_b32 exec_hi, 1
    ds_write_b128 v9, v[{Z}:{Z+3}] offset:4096
    ds_write_b128 v9, v[{Z+4}:{Z+7}] offset:{4096+32}
    ds_write_b128 v9, v[{Z+8}:{Z+11}] offset:{4096+64}
    ds_write_b128 v9, v[{Z+12}:{Z+15}] offset:{4096+64+32}
    s_mov_b64 exec, -1
    ''')
    stamp(e,opt)
    e(f'''
    K1_KVRED:
    s_waitcnt lgkmcnt(0)
    s_barrier
    ''')
    stamp(e,opt)
    e(f'''
    v_lshlrev_b32 v3, 2, v0
    v_add_u32 v4, {KVP}, v3
    ds_read_b32 v8, v4
    ds_read_b32 v9, v4 offset:4352
    ds_read_b32 v10, v4 offset:2048
    ds_read_b32 v11, v4 offset:{2048+4352}
    s_lshl_b32 s48, s5, 12
    s_add_u32 s48, s48, {WS_KV}
    s_waitcnt lgkmcnt(0)
    v_add_f32 v8, v8, v9
    v_add_f32 v10, v10, v11
    buffer_atomic_add_f32 v8, v3, s[16:19], s48 offen
    buffer_atomic_add_f32 v10, v3, s[16:19], s48 offen offset:2048
    s_cmp_lg_u32 s3, 0
    s_cbranch_scc1 K1_END
    ds_read_b32 v8, v4 offset:4096
    ds_read_b32 v9, v4 offset:{4096+4352}
    s_lshl_b32 s48, s5, 8
    s_add_u32 s48, s48, {WS_Z}
    s_waitcnt lgkmcnt(0)
    v_add_f32 v8, v8, v9
    buffer_atomic_add_f32 v8, v3, s[16:19], s48 offen
    ''')

def k1(opt):
    e=E()
    if opt.get('ts'): e('s_memrealtime s[66:67]')
    prologue(e,opt)
    loader(e,opt)
    cons_setup(e,opt)
    qkv_path(e,opt)
    e('K1_END:')
    if opt.get('prof'):
        e('s_waitcnt vmcnt(0)')
        stamp(e,opt)
        stamp_flush(e,opt,16,0,8)
    if opt.get('ts'):
        e(f'''
        s_waitcnt vmcnt(0)
        s_memrealtime s[68:69]
        s_waitcnt lgkmcnt(0)
        s_lshl_b32 s70, s2, 3
        s_add_u32 s70, s70, s3
        s_lshl_b32 s70, s70, 3
        s_add_u32 s70, s70, {WS_TS}
        v_mov_b32 v8, s66
        v_mov_b32 v9, s68
        v_mov_b32 v10, 0
        buffer_store_dwordx2 v[8:9], v10, s[72:75], s70 offen
        ''')
    e('K1_EXIT0:')
    e('s_endpgm')
    ffn_path(e,opt)
    return e.text()
```

```python
import sys, json
from common import *
import k1, k2, k2b, k1b
PRE=open('parallel_sum__linear_attn_block__dense_activation_gelu__prompt.s.ref').read().split('; Override launch')[0]
def build_fused(opt):
    opt=dict(opt); opt['fused']=1; opt['k1name']='parallel_sum__linear_attn_block__dense_activation_gelu__prompt_kernel'; opt.setdefault('aflag','sc1'); opt.setdefault('mask2',0x7800)
    KN='parallel_sum__linear_attn_block__dense_activation_gelu__prompt_kernel'
    o=PRE
    o+='; One launch: phase 1 = LN-folded qkv / ffn1 GEMMs (+phi, gelu, kv sums), phase 2 = output GEMM (attention finish, ffn2, residual).\n'
    o+='; @launch grid=(256,1,1) block=(512,1,1) lds=163840\n'
    o+=HEADER+kernel_begin(KN)+k1.k1(opt)+k2b.k2(opt)+'K_TEXT_END:\n    s_endpgm\n'
    nv=248 if opt.get('prof') else 240
    o+=RODATA+kernel_desc(KN,nv,102,nv)
    return o
def build(opt):
    if opt.get('fused'): return build_fused(opt)
    o=PRE
    o+='; Two launches: k1 = LN-folded qkv / ffn1 GEMMs (+phi, gelu, kv sums), k2 = output GEMM (attention finish, ffn2, residual).\n'
    K1=k1b if opt.get('k1b',1) else k1
    o+=f'; @launch kernel=k1_kernel grid=(256,1,1) block=(512,1,1) lds={k1b.LDS_BYTES if opt.get("k1b",1) else 163840}\n'
    o+=f'; @launch kernel=k2_kernel grid=(256,1,1) block=(512,1,1) lds={k2b.LDS_BYTES}\n'
    if opt.get('ts'): o+='; @launch kernel=k3_kernel grid=(1,1,1) block=(256,1,1) lds=0\n'
    o+=HEADER
    o+=kernel_begin('k1_kernel')+K1.k1(opt)
    o+=kernel_begin('k2_kernel')+k2b.k2(opt)
    o+='K_TEXT_END:\n    s_endpgm\n'
    if opt.get('ts'): o+=kernel_begin('k3_kernel')+k2.k3_ts()
    o+=RODATA+kernel_desc('k1_kernel',248 if opt.get('prof') else 240,102,248 if opt.get('prof') else 240)
    o+='.p2align 6\n'+kernel_desc('k2_kernel',248 if opt.get('prof') else 144,102,248 if opt.get('prof') else 144)
    if opt.get('ts'): o+='.p2align 6\n'+kernel_desc('k3_kernel',64,96,64)
    return o
if __name__=='__main__':
    opt=json.loads(sys.argv[2]) if len(sys.argv)>2 else {}
    open(sys.argv[1],'w').write(build(opt))
```

```python
from common import *
from k1 import DSQ, pk

NS=3; SLOT=40960
SC=NS*SLOT
NONCE=SC; ZERO=SC+16
REC=SC+1024
RSTD=SC+5120
WFR=SC+5632
KVP=SC+9216
LDS_BYTES=SC+18432
NONCE_IDX=48

ACC=128
FA=64; FB=84
XA=104; WA=108
XF=64; KC=72; WF=80
T0=8; OUT=40
def acc(t,a): return ACC+(t*2+a)*16

def prologue(e,opt):
    e(f'''
    s_cmp_ge_u32 s2, 256
    s_cbranch_scc1 K1_EXIT0
    s_load_dwordx4 s[28:31], s[0:1], 0
    s_load_dwordx4 s[32:35], s[0:1], 32
    s_load_dwordx4 s[36:39], s[0:1], 72
    s_load_dwordx2 s[82:83], s[0:1], 16
    s_load_dwordx2 s[84:85], s[0:1], 48
    v_lshrrev_b32 v1, 6, v0
    v_and_b32 v2, 63, v0
    v_readfirstlane_b32 s3, v1
    s_and_b32 s8, s2, 7
    s_lshr_b32 s9, s2, 3
    s_and_b32 s10, s9, 7              ; rb_local
    s_lshr_b32 s11, s9, 3             ; cb_local
    s_lshr_b32 s4, s8, 2
    s_lshl_b32 s4, s4, 3
    s_add_u32 s4, s4, s10             ; rb
    s_and_b32 s5, s8, 3
    s_lshl_b32 s5, s5, 1
    s_and_b32 s12, s11, 1
    s_add_u32 s5, s5, s12
    s_lshr_b32 s7, s11, 1
    s_lshl_b32 s12, s7, 3
    s_add_u32 s5, s5, s12             ; cb
    s_mul_i32 s6, s11, {opt.get('rotc',2)}
    s_add_u32 s6, s6, s10
    s_and_b32 s6, s6, 7
    s_and_b32 s12, s5, 7
    s_mul_i32 s13, s12, 6
    s_mul_i32 s14, s12, 5
    s_add_u32 s14, s14, 3
    s_min_u32 s44, s13, s14
    s_cmp_lt_u32 s12, 3
    s_cselect_b32 s45, 6, 5
    s_lshl_b32 s13, s12, 7
    s_lshl_b32 s14, s44, 6
    s_mov_b32 s40, 2752
    s_mov_b32 s15, 128
    s_cmp_eq_u32 s7, 0
    s_cselect_b32 s40, 3072, s40
    s_cselect_b32 s41, s13, s14
    s_cselect_b32 s15, 1024, s15
    s_add_u32 s42, s41, s15
    s_add_u32 s43, s42, s15
    s_mov_b32 s64, {SLOT}
    s_mov_b32 s65, {-(NS-1)*SLOT & 0xffffffff:#x}
    s_cmp_lt_u32 s3, 4
    s_cbranch_scc1 K1_CONS
    ''')

def srds_rest(e,opt):
    srd(e,16,38,(WS_PROF+2*256*8*256) if opt.get('prof') else WS_SIZE)
    srd(e,24,36,256)
    if opt.get('ts'): srd(e,72,38,WS_TS+256*8*8)
    stamp_init(e,opt); stamp(e,opt)

def waddr(e,nh,dst,tmp):
    for t in range(3):
        e(f'''
        s_mul_i32 s{tmp}, s{nh}, 3
        s_add_u32 s{tmp}, s{tmp}, {t}
        s_lshr_b32 s{tmp+1}, s{tmp}, 1
        s_and_b32 s{tmp}, s{tmp}, 1
        s_cmp_eq_u32 s7, 0
        s_cselect_b32 s{tmp+1}, {t}, s{tmp+1}
        s_cselect_b32 s{tmp}, s{nh}, s{tmp}
        s_lshl_b32 s{tmp+1}, s{tmp+1}, 13
        s_add_u32 s{tmp+1}, s{tmp+1}, 16384
        s_lshl_b32 s{tmp}, s{tmp}, 6
        v_add_u32 v9, s{tmp}, v7
        v_xor_b32 v9, v9, v8
        v_add3_u32 v{dst+t}, v9, v6, s{tmp+1}
        ''')
def wlane(e):
    e('''
    v_lshrrev_b32 v4, 5, v2          ; hi
    v_and_b32 v6, 15, v2
    v_lshrrev_b32 v6, 2, v6
    v_lshl_add_u32 v6, v4, 3, v6
    v_lshlrev_b32 v6, 7, v6          ; (8hi + i>>2)*128
    v_and_b32 v7, 3, v2
    v_lshlrev_b32 v7, 3, v7
    v_bfe_u32 v8, v2, 4, 1
    v_lshl_add_u32 v7, v8, 5, v7     ; g16*32 + (i&3)*8
    v_bfe_u32 v8, v2, 3, 1
    v_lshlrev_b32 v8, 6, v8          ; 64*bit3
    ''')

def loader(e,opt):
    e('''
    s_and_b32 s46, s3, 3
    v_lshrrev_b32 v3, 3, v2
    v_and_b32 v4, 7, v2
    v_lshrrev_b32 v5, 4, v2
    v_xor_b32 v6, v4, v5
    v_lshlrev_b32 v6, 4, v6
    v_lshl_add_u32 v10, v3, 10, v6
    s_lshl_b32 s47, s4, 17
    s_lshl_b32 s48, s46, 15
    s_add_u32 s47, s47, s48
    v_add_u32 v10, s47, v10
    v_xor_b32 v11, 64, v10
    v_add_u32 v11, 0x2000, v11
    v_add_u32 v12, 0x4000, v10
    v_add_u32 v13, 0x4000, v11
    v_and_b32 v5, 1, v5
    v_lshlrev_b32 v5, 2, v5
    v_xor_b32 v4, v4, v5
    v_lshlrev_b32 v4, 4, v4
    s_lshl_b32 s47, s46, 4
    v_add_u32 v14, s47, v3
    v_mul_lo_u32 v14, v14, s40
    v_add_u32 v14, v14, v4
    s_lshl_b32 s47, s40, 3
    v_add_u32 v15, s47, v14
    s_lshl_b32 s54, s46, 12
    s_lshl_b32 s55, s46, 11
    s_add_u32 s55, s55, 16384
    s_lshl_b32 s56, s40, 6
    s_mov_b32 s48, s6
    s_mov_b32 s53, 0
    ''')
    def stage_addr():
        return ['s_lshl_b32 s49, s48, 7','s_mul_i32 s50, s48, s56','s_add_u32 s51, s50, s42',
                's_add_u32 s52, s50, s43','s_add_u32 s50, s50, s41',
                's_add_u32 s58, s53, s54','s_add_u32 s59, s53, s55',
                's_add_u32 s48, s48, 1','s_and_b32 s48, s48, 7',
                's_add_u32 s53, s53, s64', f's_cmp_eq_u32 s53, {NS*SLOT}','s_cselect_b32 s53, 0, s53']
    def dma():
        L=[]
        if opt.get('x_nodma1'): return L
        for i in range(4):
            L+=[f's_add_u32 m0, s58, {i*1024}', 's_nop 0', f'buffer_load_dwordx4 v{10+i}, s[8:11], s49 offen lds']
        for sub in range(3):
            for h in range(2):
                L+=[f's_add_u32 m0, s59, {sub*8192+h*1024}', 's_nop 0', f'buffer_load_dwordx4 v{14+h}, s[12:15], s{50+sub} offen lds']
        return L
    for x in stage_addr(): e(x)
    e('s_waitcnt lgkmcnt(0)')
    srd(e,8,28,S*D*2)
    e(f'''
    s_cmp_eq_u32 s7, 0
    s_cselect_b32 s12, s30, s32
    s_cselect_b32 s13, s31, s33
    s_mov_b32 s14, {D*F*2}
    s_cselect_b32 s14, {D*3*D*2}, s14
    s_and_b32 s13, s13, 0xffff
    s_mov_b32 s15, 0x20000
    ''')
    for x in dma(): e(x)
    for x in stage_addr(): e(x)
    for x in dma(): e(x)
    srds_rest(e,opt)
    srd(e,20,34,F*2)
    wlane(e)
    waddr(e,46,16,60)
    e(f'''
    s_lshr_b32 s60, s4, 3             ; hf
    s_lshl_b32 s60, s60, 12           ; 2hf*2048
    v_add_u32 v16, s60, v16
    v_add_u32 v17, s60, v17
    v_add_u32 v18, s60, v18
    v_lshrrev_b32 v5, 4, v2
    v_xor_b32 v5, v5, v2
    v_and_b32 v5, 1, v5
    v_cmp_eq_u32 vcc, 0, v5
    v_mov_b32 v6, 0x3f803f80
    v_mov_b32 v19, {NONCE_IDX*4}
    v_cndmask_b32 v20, 0, v6, vcc
    v_mov_b32 v21, v20
    v_mov_b32 v22, v20
    v_mov_b32 v23, v20
    ''')
    for x in stage_addr(): e(x)
    e('s_waitcnt vmcnt(10)')
    stamp(e,opt)
    e('s_barrier')
    e(f'''
    s_cmp_lg_u32 s46, 3
    s_cbranch_scc1 K1_NNL
    buffer_load_dword v24, v19, s[24:27], 0 offen sc1
    K1_NNL:
    ''')
    for x in dma(): e(x)
    e('s_cmp_ge_u32 s46, 2')
    e('s_cbranch_scc1 K1_NOCS')
    for t in range(3):
        for k in range(2):
            e(f'ds_read_b64_tr_b16 v[{24+8*t+4*k}:{25+8*t+4*k}], v{16+t} offset:{k*2048}')
            e(f'ds_read_b64_tr_b16 v[{26+8*t+4*k}:{27+8*t+4*k}], v{16+t} offset:{k*2048+512}')
    e('s_waitcnt lgkmcnt(0)')
    for t in range(3):
        e(f'v_mfma_f32_16x16x32_bf16 v[{48+4*t}:{51+4*t}], v[20:23], v[{24+8*t}:{27+8*t}], 0')
    for t in range(3):
        e(f'v_mfma_f32_16x16x32_bf16 v[{48+4*t}:{51+4*t}], v[20:23], v[{28+8*t}:{31+8*t}], v[{48+4*t}:{51+4*t}]')
    e(f'''
    v_and_b32 v5, 16, v2
    v_cmp_ne_u32 vcc, 0, v5
    v_lshlrev_b32 v5, 4, v2
    s_lshl_b32 s60, s5, 4
    s_add_u32 s60, s60, s4
    s_lshl_b32 s60, s60, 1
    s_add_u32 s60, s60, s46
    s_lshl_b32 s60, s60, 9
    s_add_u32 s60, s60, {WS_CSG}
    s_mov_b32 s62, s60
    s_nop 1
    v_cndmask_b32 v60, v48, v49, vcc
    v_cndmask_b32 v61, v52, v53, vcc
    v_cndmask_b32 v62, v56, v57, vcc
    K1_NOCS:
    s_mov_b32 s47, 5
    ''')
    e('K1_LM:')
    for x in stage_addr(): e(x)
    e('s_waitcnt vmcnt(10)')
    e(f'''
    s_cmp_lg_u32 s47, 5
    s_cbranch_scc1 K1_NN2
    s_cmp_lg_u32 s46, 3
    s_cbranch_scc1 K1_NN2
    s_mov_b32 s61, 0x40000
    K1_NPL:
    v_readfirstlane_b32 s63, v24
    s_sub_u32 s61, s61, 1
    s_cmp_lg_u32 s63, 0
    s_cbranch_scc1 K1_NPD
    s_cmp_eq_u32 s61, 0
    s_cbranch_scc1 K1_NPD
    s_sleep 2
    buffer_load_dword v24, v19, s[24:27], 0 offen sc1
    s_waitcnt vmcnt(0)
    s_branch K1_NPL
    K1_NPD:
    v_mov_b32 v19, {NONCE}
    ds_write_b32 v19, v24
    s_waitcnt lgkmcnt(0)
    K1_NN2:
    ''')
    stamp(e,opt) if opt.get('profloop') else None
    e('s_barrier')
    for x in dma(): e(x)
    e(f'''
    s_cmp_lg_u32 s47, 5
    s_cbranch_scc1 K1_NN3
    v_mov_b32 v19, {NONCE}
    ds_read_b32 v63, v19
    s_waitcnt lgkmcnt(0)
    v_readfirstlane_b32 s63, v63
    s_cmp_ge_u32 s46, 2
    s_cbranch_scc1 K1_NN3
    v_lshlrev_b32 v5, 4, v2
    s_mov_b32 exec_hi, 0
    buffer_store_dwordx4 v[60:63], v5, s[16:19], s62 offen sc1
    s_mov_b32 exec_hi, -1
    K1_NN3:
    ''')
    e('''
    s_sub_u32 s47, s47, 1
    s_cmp_lg_u32 s47, 0
    s_cbranch_scc1 K1_LM
    ''')
    e('s_waitcnt vmcnt(10)')
    e('s_barrier')
    e('s_cmp_ge_u32 s46, 2')
    e('s_cbranch_scc1 K1_GCOL')
    e(f'''
    s_lshl_b32 s60, s46, 6
    v_add_u32 v3, s60, v2
    s_lshl_b32 s60, s4, 7
    v_add_u32 v4, s60, v3
    v_lshlrev_b32 v4, 4, v4
    s_mov_b32 s60, {WS_STG}
    buffer_load_dwordx4 v[24:27], v4, s[16:19], s60 offen sc1
    s_waitcnt vmcnt(1)
    s_barrier
    s_mov_b32 s61, 0x40000
    K1_GR:
    s_waitcnt vmcnt(0)
    v_cmp_ne_u32 vcc, s63, v26
    s_sub_u32 s61, s61, 1
    s_cmp_eq_u32 s61, 0
    s_cbranch_scc1 K1_GRD
    s_cbranch_vccz K1_GRD
    s_sleep 1
    buffer_load_dwordx4 v[24:27], v4, s[16:19], s60 offen sc1
    s_branch K1_GR
    K1_GRD:
    v_rsq_f32 v44, v25                          ; rstd
    v_cvt_pk_bf16_f32 v40, v24, v24
    v_mul_f32 v45, v25, v44                     ; sigma
    v_lshlrev_b32 v40, 16, v40
    v_sub_f32 v41, v24, v40
    v_cvt_pk_bf16_f32 v40, v40, v41             ; d0
    v_mov_b32 v41, v40                          ; d1
    v_cvt_pk_bf16_f32 v42, v45, v45
    v_lshlrev_b32 v42, 16, v42
    v_sub_f32 v43, v45, v42
    v_cvt_pk_bf16_f32 v42, v42, v43             ; d2
    v_mov_b32 v43, 0
    v_mul_f32 v46, v44, v44
    v_mul_f32 v46, v46, v44
    v_mul_f32 v46, {hx(GC2)}, v46               ; cA
    v_mul_f32 v47, {hx(GC1)}, v44               ; cB
    v_lshlrev_b32 v4, 5, v3
    v_add_u32 v4, {REC}, v4
    ds_write_b128 v4, v[40:43]
    ds_write_b128 v4, v[44:47] offset:16
    v_lshlrev_b32 v4, 2, v3
    v_add_u32 v4, {RSTD}, v4
    ds_write_b32 v4, v44
    v_mov_b32 v4, {ZERO}
    v_mov_b32 v40, 0
    v_mov_b32 v41, 0
    v_mov_b32 v42, 0
    ds_write_b128 v4, v[40:43]
    s_branch K1_GDONE
    ''')
    e(f'''
    K1_GCOL:
    s_and_b32 s47, s46, 1             ; nh
    v_and_b32 v3, 31, v2
    v_lshrrev_b32 v4, 5, v2
    v_lshlrev_b32 v4, 13, v4
    v_lshl_add_u32 v4, v3, 4, v4
    s_lshl_b32 s60, s5, 14
    s_lshl_b32 s61, s47, 9
    s_add_u32 s60, s60, s61
    s_add_u32 s60, s60, {WS_CSG}
    s_mul_i32 s61, s47, 3
    s_add_u32 s61, s61, s44
    s_lshl_b32 s61, s61, 6
    v_lshl_add_u32 v5, v3, 1, s61
    buffer_load_ushort v60, v5, s[20:23], 0 offen
    buffer_load_ushort v61, v5, s[20:23], 0 offen offset:64
    buffer_load_ushort v62, v5, s[20:23], 0 offen offset:128
    ''')
    def colloads():
        for j in range(8):
            if j<4: e(f'buffer_load_dwordx4 v[{24+4*j}:{27+4*j}], v4, s[16:19], s60 offen offset:{j*1024} sc1')
            else: e(f'buffer_load_dwordx4 v[{24+4*j}:{27+4*j}], v4, s[16:19], s62 offen offset:{(j-4)*1024} sc1')
    e('s_add_u32 s62, s60, 4096')
    colloads()
    e('''
    s_waitcnt vmcnt(11)
    s_barrier
    s_mov_b32 s61, 0x40000
    K1_GC:
    s_waitcnt vmcnt(0)
    ''')
    e('v_xor_b32 v6, s63, v27')
    for j in range(1,8):
        e(f'v_xor_b32 v7, s63, v{27+4*j}')
        e('v_or_b32 v6, v6, v7')
    e('''
    v_cmp_ne_u32 vcc, 0, v6
    s_sub_u32 s61, s61, 1
    s_cmp_eq_u32 s61, 0
    s_cbranch_scc1 K1_GCD
    s_cbranch_vccz K1_GCD
    s_sleep 1
    ''')
    colloads()
    e('s_branch K1_GC')
    e('K1_GCD:')
    for c in range(3):
        for j in (1,3,5,7): e(f'v_add_f32 v{24+4*(j-1)+c}, v{24+4*(j-1)+c}, v{24+4*j+c}')
        e(f'v_add_f32 v{24+c}, v{24+c}, v{32+c}')
        e(f'v_add_f32 v{40+c}, v{40+c}, v{48+c}')
        e(f'v_add_f32 v{24+c}, v{24+c}, v{40+c}')
        e(f'v_mov_b32 v{28+c}, v{24+c}')
    e('s_nop 1')
    for c in range(3): e(f'v_permlane32_swap_b32 v{24+c}, v{28+c}')
    e(f'''
    s_mul_i32 s61, s47, 1536
    s_add_u32 s61, s61, {WFR}
    v_lshl_add_u32 v5, v3, 4, s61
    ''')
    for c in range(3):
        e(f'''
        v_add_f32 v8, v{24+c}, v{28+c}
        v_cvt_pk_bf16_f32 v40, v8, v8
        v_lshlrev_b32 v9, 16, v40
        v_sub_f32 v9, v8, v9
        v_cvt_pk_bf16_f32 v41, v9, v9
        v_lshlrev_b32 v42, 16, v{60+c}
        v_or_b32 v42, v42, v{60+c}
        v_mov_b32 v43, 0
        s_cmp_eq_u32 s7, 0
        s_cbranch_scc0 K1_GB{c}
        v_mov_b32 v42, 0
        K1_GB{c}:
        ds_write_b128 v5, v[40:43] offset:{c*512}
        s_nop 1
        ''')
    e('K1_GDONE:')
    e(f'''
    s_cmp_lg_u32 s7, 0
    s_cbranch_scc1 K1_PFW
    s_cmp_lg_u32 s3, 4
    s_cbranch_scc1 K1_PFW
    s_lshl_b32 s47, s5, 2
    v_mov_b32 v4, s47
    s_mov_b32 s48, 0x40000
    K1_POLL:
    buffer_load_dword v5, v4, s[24:27], 0 offen sc1
    s_waitcnt vmcnt(0)
    v_readfirstlane_b32 s47, v5
    s_sub_u32 s48, s48, 1
    s_cmp_lg_u32 s47, 0
    s_cbranch_scc1 K1_PFW
    s_sleep 4
    s_cmp_lg_u32 s48, 0
    s_cbranch_scc1 K1_POLL
    K1_PFW:
    ''')
    if opt.get('pfw'):
        e(f'''
        s_mov_b32 s88, s84
        s_and_b32 s89, s85, 0xffff
        s_mov_b32 s90, {F*D*2}
        s_mov_b32 s91, 0x20000
        s_mov_b32 s76, s82
        s_and_b32 s77, s83, 0xffff
        s_mov_b32 s78, {D*D*2}
        s_mov_b32 s79, 0x20000
        s_lshr_b32 s80, s2, 3
        s_mul_i32 s81, s80, {344*128}
        s_mul_i32 s86, s46, {86*128}
        s_add_u32 s81, s81, s86
        v_lshlrev_b32 v8, 7, v2
        buffer_load_dword v120, v8, s[88:91], s81 offen
        s_add_u32 s81, s81, {64*128}
        s_mov_b32 exec_lo, 0x3fffff
        s_mov_b32 exec_hi, 0
        buffer_load_dword v120, v8, s[88:91], s81 offen
        s_lshl_b32 s81, s80, 14
        s_lshl_b32 s86, s46, 12
        s_add_u32 s81, s81, s86
        s_mov_b32 exec_lo, -1
        buffer_load_dword v120, v8, s[76:79], s81 offen
        s_mov_b64 exec, -1
        ''')
    e(f'''
    K1_LE1:
    s_waitcnt lgkmcnt(0)
    ''')
    stamp(e,opt)
    e('''
    s_barrier
    s_cmp_lg_u32 s7, 0
    s_cbranch_scc1 K1_END
    s_branch K1_KVRED
    ''')

def cons_setup(e,opt):
    e('K1_CONS:')
    e(f'''
    s_and_b32 s46, s3, 1          ; sh
    s_lshr_b32 s47, s3, 1         ; nh
    s_lshl_b32 s48, s4, 7
    s_lshl_b32 s49, s5, 3
    s_add_u32 s48, s48, s49
    s_lshl_b32 s49, s3, 1
    s_add_u32 s57, s48, s49
    s_lshl_b32 s48, s57, 10
    v_lshlrev_b32 v10, 4, v2
    s_waitcnt lgkmcnt(0)
    ''')
    srd(e,8,28,S*D*2)
    e('''
    buffer_load_dwordx4 v[16:19], v10, s[8:11], s48 offen
    buffer_load_dwordx4 v[20:23], v10, s[8:11], s48 offen offset:1024
    ''')
    srds_rest(e,opt)
    if opt.get('pfcode'):
        n=opt['pfcode']
        e(f'''
        s_cmp_ge_u32 s3, {n}
        s_cbranch_scc1 K1_NOPFC
        s_getpc_b64 s[86:87]
        K1_PC:
        s_sub_u32 s86, s86, K1_PC-{opt.get('k1name','k1_kernel')}
        s_subb_u32 s87, s87, 0
        s_lshl_b32 s88, s3, 13
        v_lshlrev_b32 v8, 7, v2
        v_add_u32 v8, s88, v8
        s_mov_b32 s88, K_TEXT_END-{opt.get('k1name','k1_kernel')}-4
        v_min_u32 v8, s88, v8
        global_load_dword v117, v8, s[86:87]
        K1_NOPFC:
        ''')
    e(f'''
    s_cmp_lg_u32 s3, 0
    s_cbranch_scc1 K1_NOZ
    s_cmp_lg_u32 s2, 0
    s_cbranch_scc1 K1_NON
    s_memrealtime s[48:49]
    s_waitcnt lgkmcnt(0)
    s_or_b32 s48, s48, 1
    v_mov_b32 v5, s48
    v_mov_b32 v4, {NONCE_IDX*4}
    s_mov_b64 exec, 1
    buffer_store_dword v5, v4, s[24:27], 0 offen sc1
    s_mov_b64 exec, -1
    K1_NON:
    s_cmp_lg_u32 s7, 0
    s_cbranch_scc1 K1_NOZ
    s_cmp_lg_u32 s4, 0
    s_cbranch_scc1 K1_NOZ
    v_mov_b32 v12, 0
    v_mov_b32 v13, 0
    v_mov_b32 v14, 0
    v_mov_b32 v15, 0
    s_lshl_b32 s48, s5, 12
    s_add_u32 s48, s48, {WS_KV}
    buffer_store_dwordx4 v[12:15], v10, s[16:19], s48 offen sc1
    buffer_store_dwordx4 v[12:15], v10, s[16:19], s48 offen offset:1024 sc1
    buffer_store_dwordx4 v[12:15], v10, s[16:19], s48 offen offset:2048 sc1
    buffer_store_dwordx4 v[12:15], v10, s[16:19], s48 offen offset:3072 sc1
    s_mov_b32 exec_lo, 0xffff
    s_mov_b32 exec_hi, 0
    s_lshl_b32 s48, s5, 8
    s_add_u32 s48, s48, {WS_Z}
    buffer_store_dwordx4 v[12:15], v10, s[16:19], s48 offen sc1
    s_waitcnt vmcnt(0)
    s_mov_b32 exec_lo, 1
    v_mov_b32 v5, 1
    s_lshl_b32 s48, s5, 2
    v_mov_b32 v4, s48
    buffer_store_dword v5, v4, s[24:27], 0 offen sc1
    s_mov_b64 exec, -1
    K1_NOZ:
    v_and_b32 v3, 31, v2             ; r32
    v_lshrrev_b32 v4, 5, v2          ; hi
    v_lshrrev_b32 v5, 1, v3
    v_and_b32 v5, 7, v5
    v_xor_b32 v5, v5, v4
    v_lshlrev_b32 v5, 4, v5
    v_lshl_add_u32 v5, v3, 7, v5
    s_lshl_b32 s49, s46, 13
    v_add_u32 v5, s49, v5
    s_lshl_b32 s49, s46, 5
    v_xor_b32 v{XA}, s49, v5
    v_xor_b32 v{XA+1}, 32, v5
    v_xor_b32 v{XA+1}, s49, v{XA+1}
    v_xor_b32 v{XA+2}, 64, v{XA}
    v_xor_b32 v{XA+3}, 64, v{XA+1}
    ''')
    wlane(e)
    waddr(e,47,WA,50)
    for r in range(ACC,ACC+96): e(f'v_mov_b32 v{r}, 0')
    for r in range(FB,FB+20): e(f'v_mov_b32 v{r}, 0')
    e('v_mov_b32 v12, 0x3f803f80')
    for r in (24,26,28,30): e(f'v_mov_b32 v{r}, 0')
    e('s_waitcnt vmcnt(0)')
    for d in range(4):
        for r in range(2):
            x=16+4*r+d
            e(f'v_dot2_f32_bf16 v{24+4*r}, v{x}, v12, v{24+4*r}')
            e(f'v_dot2_f32_bf16 v{26+4*r}, v{x}, v{x}, v{26+4*r}')
    e('s_nop 2')
    vals=[24,26,28,30]
    for ctl in ('row_shr:1 row_mask:0xf','row_shr:2 row_mask:0xf','row_shr:4 row_mask:0xf','row_shr:8 row_mask:0xf'):
        for v in vals: e(f'v_add_f32_dpp v{v}, v{v}, v{v} {ctl} bank_mask:0xf bound_ctrl:0')
    for ctl in ('row_bcast:15 row_mask:0xa','row_bcast:31 row_mask:0xc'):
        for v in vals: e(f'v_add_f32_dpp v{v}, v{v}, v{v} {ctl} bank_mask:0xf')
    for r in range(2):
        sA,qA=24+4*r,26+4*r; o=32+4*r
        e(f'''
        v_mul_f32 v{o}, {hx(-1.0/512)}, v{sA}
        v_mul_f32 v{o+1}, {hx(1.0/512)}, v{qA}
        v_fma_f32 v{o+1}, -v{o}, v{o}, v{o+1}
        v_max_f32 v{o+1}, 0, v{o+1}
        v_add_f32 v{o+1}, {hx(1e-5)}, v{o+1}
        ''')
    e(f'''
    s_lshl_b32 s56, s57, 4
    s_add_u32 s56, s56, {WS_STG}
    ''')
    e('s_lshl_b32 s50, s46, 11')
    for t in (2,1,0):
        e(f'v_subrev_u32 v{WA+2*t+1}, s50, v{WA+t}')
        e(f'v_add_u32 v{WA+2*t}, s50, v{WA+t}')
    e('''
    s_mov_b32 s48, 8
    s_mov_b32 s49, 0
    ''')
    if opt.get('prio',1): e('s_setprio 3')
    e('''
    s_cmp_lg_u32 s7, 0
    s_cbranch_scc1 K1_CF
    ''')

def reads(p,buf):
    par=p&1
    L=[f'ds_read_b128 {vr(buf,4)}, v{XA+p}']
    L+=[f'ds_read_b64_tr_b16 {vr(buf+8,2)}, v{WA+par} offset:{p*2048}', f'ds_read_b64_tr_b16 {vr(buf+10,2)}, v{WA+par} offset:{p*2048+512}']
    L+=[f'ds_read_b128 {vr(buf+4,4)}, v{XA+p} offset:4096']
    for t in (1,2):
        L+=[f'ds_read_b64_tr_b16 {vr(buf+8+4*t,2)}, v{WA+2*t+par} offset:{p*2048}', f'ds_read_b64_tr_b16 {vr(buf+10+4*t,2)}, v{WA+2*t+par} offset:{p*2048+512}']
    return L
def mfmas(buf,ffn):
    L=[]
    for t in range(3):
        for a in range(2):
            X=vr(buf+4*a,4); W=vr(buf+8+4*t,4); A=vr(acc(t,a),16)
            if ffn or t==0: L.append(f'v_mfma_f32_32x32x16_bf16 {A}, {W}, {X}, {A}')
            else: L.append(f'v_mfma_f32_32x32x16_bf16 {A}, {X}, {W}, {A}')
    return L
def reads_t(p,buf,name):
    tags=['x0','w0','w0','x1','w1','w1','w2','w2']
    return [(x,name+t) for x,t in zip(reads(p,buf),tags)]
def mfmas_t(buf,ffn,name):
    L=[]; m=mfmas(buf,ffn); k=0
    for t in range(3):
        for a in range(2):
            L.append((m[k],{name+f'x{a}',name+f'w{t}'})); k+=1
    return L
def segment(e,q,ms,rs,pattern):
    k=0
    for i,(m,nd) in enumerate(ms):
        q.need(e,nd)
        e(m)
        for _ in range(pattern[i] if i<len(pattern) else 0):
            if k<len(rs):
                x,tag=rs[k]; k+=1
                e(x)
                if tag: q.issue(tag)
    assert k==len(rs)
def mainloop(e,ffn,tag,opt={}):
    stamp(e,opt)
    e(f'K1_ML{tag}:')
    e('s_barrier')
    if opt.get('profloop'): stamp(e,opt)
    q=DSQ()
    pat=opt.get('rdpat',[3,3,2])
    segment(e,q,[(m,set()) for m in mfmas(FB,ffn)], reads_t(0,FA,'A'), pat)
    segment(e,q,mfmas_t(FA,ffn,'A'), reads_t(1,FB,'B'), pat)
    segment(e,q,mfmas_t(FB,ffn,'B'), reads_t(2,FA,'A'), pat)
    adv=['s_add_u32 s49, s49, s64', f's_cmp_eq_u32 s49, {NS*SLOT}', 's_cselect_b32 s50, s65, s64', 's_cselect_b32 s49, 0, s49']
    upd=[f'v_add_u32 v{XA+i}, s50, v{XA+i}' for i in range(4)]+[f'v_add_u32 v{WA+i}, s50, v{WA+i}' for i in range(6)]
    rs=reads_t(3,FB,'B')+[(x,None) for x in adv+upd]
    segment(e,q,mfmas_t(FA,ffn,'A'), rs, pat+[4,5,5])
    q.all(e)
    e(f'''
    s_cmp_lg_u32 s48, 7
    s_cbranch_scc1 K1_NPUB{tag}
    v_mov_b32 v4, {NONCE}
    ds_read_b32 v34, v4
    v_mov_b32 v4, 0
    s_waitcnt lgkmcnt(0)
    v_mov_b32 v35, v34
    v_mov_b32 v38, v34
    v_mov_b32 v39, v34
    s_mov_b32 exec_lo, 0
    s_mov_b32 exec_hi, 0x80000000
    buffer_store_dwordx4 v[32:35], v4, s[16:19], s56 offen sc1
    buffer_store_dwordx4 v[36:39], v4, s[16:19], s56 offen offset:16 sc1
    s_mov_b64 exec, -1
    K1_NPUB{tag}:
    s_sub_u32 s48, s48, 1
    s_cmp_lg_u32 s48, 0
    s_cbranch_scc1 K1_ML{tag}
    ''')
    for x in mfmas(FB,ffn): e(x)
    stamp(e,opt)

def post(e,ffn,opt={}):
    e(f'''
    v_and_b32 v3, 31, v2
    s_lshl_b32 s48, s46, 6
    v_add_u32 v4, s48, v3
    v_lshlrev_b32 v4, 5, v4
    v_add_u32 v4, {REC}, v4
    v_mov_b32 v5, {ZERO}
    v_cmp_gt_u32 vcc, 32, v2
    s_mul_i32 s49, s47, 1536
    s_add_u32 s49, s49, {WFR}
    v_lshl_add_u32 v6, v3, 4, s49
    v_cndmask_b32 v5, v5, v4, vcc
    v_add_u32 v7, 1024, v4
    v_mov_b32 v8, {ZERO}
    v_cndmask_b32 v7, v8, v7, vcc
    s_barrier
    ''')
    stamp(e,opt)
    e(f'''
    ds_read_b128 v[{WF}:{WF+3}], v6
    ds_read_b128 v[{XF}:{XF+3}], v5
    ds_read_b128 v[{XF+4}:{XF+7}], v7
    ds_read_b128 v[{WF+4}:{WF+7}], v6 offset:512
    ds_read_b128 v[{WF+8}:{WF+11}], v6 offset:1024
    ds_read_b128 v[{KC}:{KC+3}], v4 offset:16
    ds_read_b128 v[{KC+4}:{KC+7}], v4 offset:{1024+16}
    ''')
    waits={(0,0):5,(0,1):4,(1,0):3,(2,0):2}
    for t in range(3):
        for a in range(2):
            if (t,a) in waits: e(f's_waitcnt lgkmcnt({waits[(t,a)]})')
            A=vr(acc(t,a),16)
            if ffn or t==0: e(f'v_mfma_f32_32x32x16_bf16 {A}, {vr(WF+4*t,4)}, {vr(XF+4*a,4)}, {A}')
            else: e(f'v_mfma_f32_32x32x16_bf16 {A}, {vr(XF+4*a,4)}, {vr(WF+4*t,4)}, {A}')
    e('s_waitcnt lgkmcnt(0)')

def gelu_tile(t,a,OUT=OUT):
    A=acc(t,a); rs,cA=KC+4*a,KC+4*a+2
    L=[]
    R=range(0,16,2)
    for i in R: L.append(pk('mul',T0+i,A+i,A+i))
    for i in R: L.append(pk('fma',T0+i,T0+i,cA,cA,'op_sel:[0,0,1] op_sel_hi:[1,0,1]'))
    for i in R: L.append(pk('mul',T0+i,T0+i,A+i))
    for i in range(16): L.append(f'v_exp_f32 v{T0+i}, v{T0+i}')
    for i in R: L.append(pk('fma',T0+i,T0+i,rs,rs,'op_sel:[0,1,1] op_sel_hi:[1,1,1]'))
    for i in range(16): L.append(f'v_rcp_f32 v{T0+i}, v{T0+i}')
    for i in R: L.append(pk('mul',T0+i,T0+i,A+i))
    for i in R: L.append(f'v_cvt_pk_bf16_f32 v{OUT+i//2}, v{T0+i}, v{T0+i+1}')
    return L

def store2(e,so,off,opt,tmp=53,base=OUT):
    fl=opt.get('stflag','')
    if off+1024>4095:
        e(f's_add_u32 s{tmp}, s{so}, {off}')
        so=tmp; off=0
    e(f'buffer_store_dwordx4 v[{base}:{base+3}], v4, s[16:19], s{so} offen offset:{off} {fl}')
    e(f'buffer_store_dwordx4 v[{base+4}:{base+7}], v4, s[16:19], s{so} offen offset:{off+1024} {fl}')

def ffn_path(e,opt):
    e('K1_CF:')
    mainloop(e,True,'F',opt)
    post(e,True,opt)
    stamp(e,opt)
    e(f'''
    v_lshlrev_b32 v4, 4, v2
    s_lshl_b32 s48, s4, 2
    s_lshl_b32 s49, s46, 1
    s_add_u32 s48, s48, s49           ; s-tile (a=0)
    s_mul_i32 s48, s48, 86
    s_mul_i32 s49, s47, 3
    s_add_u32 s49, s49, s44
    s_lshl_b32 s50, s49, 1
    s_add_u32 s48, s48, s50
    s_lshl_b32 s48, s48, 10
    s_add_u32 s51, s48, {86*1024}     ; a=1
    s_mul_i32 s52, s47, 3
    s_sub_u32 s52, s45, s52
    ''')
    ndef=opt.get('defer',4)
    OB=[24,32,40,48,56,24]
    k=0
    for t in range(3):
        if t==2:
            e('s_cmp_lt_u32 s52, 3')
            e('s_cbranch_scc1 K1_END')
        for a in range(2):
            for x in gelu_tile(t,a,OB[k] if k<ndef else 56): e(x)
            if k>=ndef: store2(e, 48 if a==0 else 51, t*2048, opt, base=56)
            k+=1
            if k==ndef:
                for kk in range(ndef): store2(e, 48 if kk%2==0 else 51, (kk//2)*2048, opt, base=OB[kk])
            if opt.get('profloop'): stamp(e,opt)
    e('s_branch K1_END')

def qkv_path(e,opt):
    mainloop(e,False,'Q',opt)
    post(e,False,opt)
    stamp(e,opt)
    RS=48
    e(f'''
    v_lshlrev_b32 v4, 4, v2
    s_lshl_b32 s48, s4, 2
    s_lshl_b32 s49, s46, 1
    s_add_u32 s48, s48, s49           ; s-tile a=0
    s_lshl_b32 s48, s48, 5
    s_lshl_b32 s49, s5, 2
    s_lshl_b32 s50, s47, 1
    s_add_u32 s49, s49, s50
    s_add_u32 s48, s48, s49
    s_lshl_b32 s48, s48, 10
    s_add_u32 s48, s48, {WS_PQ}
    s_add_u32 s51, s48, {32*1024}
    v_lshrrev_b32 v5, 5, v2
    v_lshlrev_b32 v5, 4, v5
    s_lshl_b32 s49, s46, 8
    s_add_u32 s49, s49, {RSTD}
    v_add_u32 v5, s49, v5
    v_mov_b32 v116, {hx(LOG2E)}
    v_mov_b32 v118, {hx(1e-6)}
    v_mul_f32 v6, v116, v{KC}
    v_mul_f32 v24, v116, v{KC+4}      ; a=1
    ''')
    B='op_sel_hi:[1,0]'; B3='op_sel_hi:[1,0,0]'
    for g in range(4): e(f'ds_read_b128 v[{RS+4*g}:{RS+4*g+3}], v5 offset:{g*32}')
    for a in range(2):
        A=acc(0,a); rs=KC+4*a; rl=6 if a==0 else 24
        R=range(0,16,2)
        T=T0 if a==0 else 26
        T=T0
        for i in R: e(pk('mul',T+i,A+i,rl,None,B))
        for i in range(16): e(f'v_max_f32 v{A+i}, 0, v{A+i}')
        for i in range(16): e(f'v_exp_f32 v{T+i}, v{T+i} clamp')
        for i in R: e(pk('fma',A+i,A+i,rs,118,B3))
        for i in R: e(pk('add',T+i,T+i,A+i))
        for i in R: e(f'v_cvt_pk_bf16_f32 v{(32 if a==0 else 40)+i//2}, v{T+i}, v{T+i+1}')
    stamp(e,opt)
    KV=acc(0,0); Z=acc(0,1)
    PK=96; VF=104
    ONE=112
    for r in range(4): e(f'v_mov_b32 v{ONE+r}, 0x3f803f80')
    for a in range(2):
        if a==1:
            for g in range(4): e(f'ds_read_b128 v[{RS+4*g}:{RS+4*g+3}], v5 offset:{128+g*32}')
        e('s_waitcnt lgkmcnt(0)')
        K=acc(1,a); V=acc(2,a)
        R=range(0,16,2)
        for i in R: e(pk('mul',K+i,K+i,RS+i))
        for i in R: e(pk('mul',V+i,V+i,RS+i))
        for i in R: e(pk('mul',T0+i,K+i,116,None,B))
        for i in range(16): e(f'v_max_f32 v{K+i}, v118, v{K+i}' if False else f'v_max_f32 v{K+i}, 0, v{K+i}')
        for i in range(16): e(f'v_exp_f32 v{T0+i}, v{T0+i} clamp')
        for i in R: e(pk('add',K+i,K+i,118,None,B))
        for i in R: e(f'v_cvt_pk_bf16_f32 v{VF+i//2}, v{V+i}, v{V+i+1}')
        for i in R: e(pk('add',T0+i,T0+i,K+i))
        for i in R: e(f'v_cvt_pk_bf16_f32 v{PK+i//2}, v{T0+i}, v{T0+i+1}')
        e('s_nop 1')
        for g in range(2):
            c0 = '0' if (a==0 and g==0) else vr(KV,16)
            z0 = '0' if (a==0 and g==0) else vr(Z,16)
            e(f'v_mfma_f32_32x32x16_bf16 {vr(KV,16)}, {vr(PK+4*g,4)}, {vr(VF+4*g,4)}, {c0}')
            e(f'v_mfma_f32_32x32x16_bf16 {vr(Z,16)}, {vr(PK+4*g,4)}, {vr(ONE,4)}, {z0}')
    store2(e, 48, 0, opt, base=32)
    store2(e, 51, 0, opt, base=40)
    e(f'''
    v_and_b32 v8, 15, v2
    v_lshrrev_b32 v9, 5, v2
    v_lshl_add_u32 v8, v9, 4, v8
    v_lshlrev_b32 v8, 4, v8           ; (hiD*16+e)*16
    v_bfe_u32 v10, v2, 4, 1
    v_lshl_add_u32 v8, v10, 10, v8
    s_mul_i32 s48, s46, 4352
    s_add_u32 s48, s48, {KVP}
    s_lshl_b32 s49, s47, 11
    s_add_u32 s49, s48, s49
    v_add_u32 v8, s49, v8
    s_lshl_b32 s49, s47, 7
    s_add_u32 s49, s48, s49
    v_lshl_add_u32 v9, v9, 4, s49
    s_nop 7
    s_mov_b32 exec_lo, 0x0000ffff
    s_mov_b32 exec_hi, 0x0000ffff
    ds_write_b128 v8, v[{KV}:{KV+3}]
    ds_write_b128 v8, v[{KV+4}:{KV+7}] offset:512
    s_mov_b32 exec_lo, 0xffff0000
    s_mov_b32 exec_hi, 0xffff0000
    ds_write_b128 v8, v[{KV+8}:{KV+11}]
    ds_write_b128 v8, v[{KV+12}:{KV+15}] offset:512
    s_mov_b32 exec_lo, 1
    s_mov_b32 exec_hi, 1
    ds_write_b128 v9, v[{Z}:{Z+3}] offset:4096
    ds_write_b128 v9, v[{Z+4}:{Z+7}] offset:{4096+32}
    ds_write_b128 v9, v[{Z+8}:{Z+11}] offset:{4096+64}
    ds_write_b128 v9, v[{Z+12}:{Z+15}] offset:{4096+64+32}
    s_mov_b64 exec, -1
    ''')
    stamp(e,opt)
    e(f'''
    K1_KVRED:
    s_waitcnt lgkmcnt(0)
    s_barrier
    ''')
    stamp(e,opt)
    e(f'''
    v_lshlrev_b32 v3, 2, v0
    v_add_u32 v4, {KVP}, v3
    ds_read_b32 v8, v4
    ds_read_b32 v9, v4 offset:4352
    ds_read_b32 v10, v4 offset:2048
    ds_read_b32 v11, v4 offset:{2048+4352}
    s_lshl_b32 s48, s5, 12
    s_add_u32 s48, s48, {WS_KV}
    s_waitcnt lgkmcnt(0)
    v_add_f32 v8, v8, v9
    v_add_f32 v10, v10, v11
    buffer_atomic_add_f32 v8, v3, s[16:19], s48 offen
    buffer_atomic_add_f32 v10, v3, s[16:19], s48 offen offset:2048
    s_cmp_lg_u32 s3, 0
    s_cbranch_scc1 K1_END
    ds_read_b32 v8, v4 offset:4096
    ds_read_b32 v9, v4 offset:{4096+4352}
    s_lshl_b32 s48, s5, 8
    s_add_u32 s48, s48, {WS_Z}
    s_waitcnt lgkmcnt(0)
    v_add_f32 v8, v8, v9
    buffer_atomic_add_f32 v8, v3, s[16:19], s48 offen
    ''')

def k1(opt):
    e=E()
    if opt.get('ts'): e('s_memrealtime s[66:67]')
    prologue(e,opt)
    loader(e,opt)
    cons_setup(e,opt)
    qkv_path(e,opt)
    e('K1_END:')
    if opt.get('prof'):
        e('s_waitcnt vmcnt(0)')
        stamp(e,opt)
        stamp_flush(e,opt,16,0,8)
    if opt.get('ts'):
        e(f'''
        s_waitcnt vmcnt(0)
        s_memrealtime s[68:69]
        s_waitcnt lgkmcnt(0)
        s_lshl_b32 s70, s2, 3
        s_add_u32 s70, s70, s3
        s_lshl_b32 s70, s70, 3
        s_add_u32 s70, s70, {WS_TS}
        v_mov_b32 v8, s66
        v_mov_b32 v9, s68
        v_mov_b32 v10, 0
        buffer_store_dwordx2 v[8:9], v10, s[72:75], s70 offen
        ''')
    e('K1_EXIT0:')
    e('s_endpgm')
    ffn_path(e,opt)
    return e.text()
```

```python
from common import *
from k1 import DSQ
SLOT=40960; NS=3
AOFF=0; BOFF=16384; KOFF=32768
ZL=NS*SLOT
XL=ZL+2048
B2L=XL+8192
OL=B2L+1024
FL=OL+16384
LDS_BYTES=FL+64
ACC=128
F0=64
MASK=0x4888
NST=15

def k2(opt):
    e=E()
    if opt.get('ts'): e('s_memrealtime s[66:67]')
    fused=opt.get('fused')
    if fused: e('K2_ENTRY:')
    else: e('s_cmp_ge_u32 s2, 256\ns_cbranch_scc1 K2_EXIT')
    e(f'''
    s_load_dwordx2 s[28:29], s[0:1], 0
    s_load_dwordx2 s[30:31], s[0:1], 16
    s_load_dwordx4 s[32:35], s[0:1], 48
    s_load_dwordx2 s[36:37], s[0:1], 64
    s_load_dwordx2 s[38:39], s[0:1], 80
    s_load_dwordx2 s[80:81], s[0:1], 72
    v_lshrrev_b32 v1, 6, v0
    v_and_b32 v2, 63, v0
    v_readfirstlane_b32 s3, v1
    s_and_b32 s8, s2, 7
    s_lshr_b32 s9, s2, 3
    s_and_b32 s4, s9, 3
    s_lshl_b32 s8, s8, 2
    s_add_u32 s4, s4, s8
    s_lshr_b32 s5, s9, 2              ; cb2 0..7
    s_mov_b32 s40, {opt.get('mask2',MASK)}
    s_mov_b32 s64, {SLOT}
    s_mov_b32 s65, {-(NS-1)*SLOT & 0xffffffff:#x}
    s_cmp_lt_u32 s3, 4
    s_cbranch_scc1 K2_COMP
    ''')
    e(f'''
    s_and_b32 s46, s3, 3              ; lw
    ''')
    if opt.get('rot2','on')=='on':
        e('s_and_b32 s42, s4, 3\ns_mul_i32 s41, s42, 3\ns_add_u32 s41, s41, s5\ns_cmp_ge_u32 s41, 11\ns_cselect_b32 s43, 11, 0\ns_sub_u32 s41, s41, s43\ns_add_u32 s42, s42, s5\ns_and_b32 s42, s42, 3')
    else:
        e('s_mov_b32 s41, 0\ns_mov_b32 s42, 0')
    e(f'''
    s_lshl_b32 s45, s4, 1             ; s-tile 0
    s_mul_i32 s47, s45, {86*1024}
    s_lshl_b32 s48, s45, 15
    s_add_u32 s48, s48, {WS_PQ}
    v_lshlrev_b32 v3, 4, v2
    s_lshl_b32 s49, s46, 11
    v_add_u32 v3, s49, v3
    v_lshrrev_b32 v4, 3, v2
    v_and_b32 v5, 7, v2
    v_bfe_u32 v6, v2, 4, 1
    v_lshlrev_b32 v6, 2, v6
    v_xor_b32 v5, v5, v6
    v_lshlrev_b32 v5, 4, v5
    v_lshl_add_u32 v4, v4, 10, v5
    s_lshl_b32 s49, s5, 7
    s_lshl_b32 s50, s46, 15
    s_add_u32 s49, s49, s50
    v_add_u32 v4, s49, v4
    v_add_u32 v5, 0x2000, v4
    v_add_u32 v6, 0x4000, v4
    v_add_u32 v7, 0x6000, v4
    s_lshl_b32 s54, s46, 11           ; lds A base for wave
    s_lshl_b32 s55, s46, 12
    s_add_u32 s55, s55, {BOFF}        ; lds B base for wave
    s_mov_b32 s53, 0                  ; slot
    s_mov_b32 s52, 0
    s_waitcnt lgkmcnt(0)
    ''')
    srd(e,8,38,(WS_PROF+2*256*8*256) if opt.get('prof') else WS_SIZE)
    srd(e,12,32,F*D*2)
    srd(e,16,30,D*D*2)
    srd(e,20,28,S*D*2)
    srd(e,24,34,D*2)
    srd(e,76,80,256)
    if not fused: stamp_init(e,opt)
    stamp(e,opt)
    def poll(idx_expr,target,tag):
        e(f'''
        s_cmp_lg_u32 s3, 4
        s_cbranch_scc1 K2_PE{tag}
        {idx_expr}
        v_mov_b32 v10, s87
        s_mov_b32 s86, 0x40000
        K2_PL{tag}:
        buffer_load_dword v11, v10, s[76:79], 0 offen sc1
        s_waitcnt vmcnt(0)
        v_readfirstlane_b32 s85, v11
        s_sub_u32 s86, s86, 1
        s_cmp_ge_u32 s85, {target}
        s_cbranch_scc1 K2_PE{tag}
        s_sleep 2
        s_cmp_lg_u32 s86, 0
        s_cbranch_scc1 K2_PL{tag}
        K2_PE{tag}:
        ''')
    if fused:
        poll(f's_lshr_b32 s87, s4, 1\ns_lshl_b32 s87, s87, 2\ns_add_u32 s87, s87, {CNT_RB*4}',16,'R')
        stamp(e,opt)
        e('s_barrier')
    af=opt.get('aflag','')
    xa=opt.get('x_skipA'); xb=opt.get('x_skipB')
    def issue(tag):
        la=f'K2_IA{tag}'; lc=f'K2_IC{tag}'
        if opt.get('x_nodma2'):
            e('s_add_u32 s52, s52, 1'); return
        e(f'''
        s_add_u32 s58, s53, s54
        s_add_u32 s59, s53, s55
        s_bitcmp1_b32 s40, s52
        s_cbranch_scc1 {la}
        s_lshl_b32 s56, s41, 13
        s_add_u32 s56, s56, s47
        s_mov_b32 m0, s58
        s_lshl_b32 s60, s41, 17
        buffer_load_dwordx4 v3, s[8:11], s56 offen {af} lds
        buffer_load_dwordx4 v3, s[8:11], s56 offen offset:1024 {af} lds
        s_add_u32 m0, s58, 8192
        s_add_u32 s56, s56, {86*1024}
        buffer_load_dwordx4 v3, s[8:11], s56 offen {af} lds
        buffer_load_dwordx4 v3, s[8:11], s56 offen offset:1024 {af} lds
        s_mov_b32 m0, s59
        s_add_u32 s41, s41, 1
        buffer_load_dwordx4 v4, s[12:15], s60 offen lds
        s_add_u32 m0, s59, 1024
        s_cmp_eq_u32 s41, 11
        buffer_load_dwordx4 v5, s[12:15], s60 offen lds
        s_cselect_b32 s41, 0, s41
        s_add_u32 m0, s59, 2048
        s_nop 0
        buffer_load_dwordx4 v6, s[12:15], s60 offen lds
        s_add_u32 m0, s59, 3072
        s_nop 0
        buffer_load_dwordx4 v7, s[12:15], s60 offen lds
        s_branch {lc}
        {la}:
        s_lshl_b32 s56, s42, 13
        s_add_u32 s57, s56, {WS_KV}
        s_add_u32 s56, s56, s48
        s_mov_b32 m0, s58
        s_lshl_b32 s60, s42, 17
        buffer_load_dwordx4 v3, s[8:11], s56 offen {af} lds
        buffer_load_dwordx4 v3, s[8:11], s56 offen offset:1024 {af} lds
        s_add_u32 m0, s58, 8192
        s_add_u32 s56, s56, {32*1024}
        buffer_load_dwordx4 v3, s[8:11], s56 offen {af} lds
        buffer_load_dwordx4 v3, s[8:11], s56 offen offset:1024 {af} lds
        s_add_u32 m0, s58, {KOFF}
        s_add_u32 s42, s42, 1
        buffer_load_dwordx4 v3, s[8:11], s57 offen {af} lds
        buffer_load_dwordx4 v3, s[8:11], s57 offen offset:1024 {af} lds
        s_mov_b32 m0, s59
        s_and_b32 s42, s42, 3
        buffer_load_dwordx4 v4, s[16:19], s60 offen lds
        s_add_u32 m0, s59, 1024
        s_nop 0
        buffer_load_dwordx4 v5, s[16:19], s60 offen lds
        s_add_u32 m0, s59, 2048
        s_nop 0
        buffer_load_dwordx4 v6, s[16:19], s60 offen lds
        s_add_u32 m0, s59, 3072
        s_nop 0
        buffer_load_dwordx4 v7, s[16:19], s60 offen lds
        {lc}:
        s_add_u32 s52, s52, 1
        s_add_u32 s53, s53, s64
        s_cmp_eq_u32 s53, {NS*SLOT}
        s_cselect_b32 s53, 0, s53
        ''')
    issue('0')
    e(f'''
    v_lshrrev_b32 v8, 3, v2
    v_and_b32 v9, 7, v2
    v_xor_b32 v9, v9, v8
    v_lshlrev_b32 v9, 4, v9
    v_lshl_add_u32 v9, v8, 10, v9
    s_lshl_b32 s56, s4, 16
    s_lshl_b32 s57, s5, 7
    s_add_u32 s56, s56, s57
    s_lshl_b32 s57, s46, 14
    s_add_u32 s56, s56, s57
    s_lshl_b32 s57, s46, 11
    s_add_u32 m0, s57, {XL}
    s_nop 0
    buffer_load_dwordx4 v9, s[20:23], s56 offen lds
    s_add_u32 m0, s57, {XL+1024}
    s_add_u32 s56, s56, 8192
    buffer_load_dwordx4 v9, s[20:23], s56 offen lds
    v_lshlrev_b32 v12, 4, v2
    s_cmp_lt_u32 s46, 2
    s_cbranch_scc0 K2_NZ
    ''')
    if not fused:
        e(f'''
        s_lshl_b32 s57, s46, 10
        s_add_u32 m0, s57, {ZL}
        s_add_u32 s56, s57, {WS_Z}
        buffer_load_dwordx4 v12, s[8:11], s56 offen {af} lds
        ''')
    e(f'''
    s_branch K2_NZE
    K2_NZ:
    v_and_b32 v8, 7, v2
    v_lshlrev_b32 v8, 4, v8
    s_lshl_b32 s56, s5, 7
    s_mov_b32 m0, {B2L}
    s_nop 0
    buffer_load_dwordx4 v8, s[24:27], s56 offen lds
    K2_NZE:
    ''')
    issue('1')
    e(f'''
    s_mov_b32 s51, 0
    K2_LL:
    s_cmp_eq_u32 s51, {NST-1}
    s_cbranch_scc1 K2_LW0
    s_waitcnt vmcnt(8)
    s_branch K2_LW1
    K2_LW0:
    s_waitcnt vmcnt(0)
    K2_LW1:
    ''')
    stamp(e,opt) if opt.get('profloop') else None
    if fused:
        first=min(n for n in range(NST) if (opt.get('mask2',MASK)>>n)&1)
        e(f's_cmp_lg_u32 s51, {first-2}')
        e('s_cbranch_scc1 K2_NKP')
        poll(f's_mov_b32 s87, {CNT_KV*4}',128,'K')
        e('K2_NKP:')
    e('s_barrier')
    if fused:
        e(f'''
        s_cmp_lg_u32 s51, {first-2}
        s_cbranch_scc1 K2_NZL
        s_cmp_lt_u32 s46, 2
        s_cbranch_scc0 K2_NZL
        s_lshl_b32 s57, s46, 10
        s_add_u32 m0, s57, {ZL}
        s_add_u32 s56, s57, {WS_Z}
        buffer_load_dwordx4 v12, s[8:11], s56 offen {af} lds
        K2_NZL:
        ''')
    e(f'''
    s_cmp_ge_u32 s51, {NST-2}
    s_cbranch_scc1 K2_LNI
    ''')
    issue('L')
    e(f'''
    K2_LNI:
    s_add_u32 s51, s51, 1
    s_cmp_lg_u32 s51, {NST}
    s_cbranch_scc1 K2_LL
    s_branch K2_END
    ''')
    e('K2_COMP:')
    e(f'''
    s_and_b32 s46, s3, 1              ; a
    s_lshr_b32 s47, s3, 1             ; b
    v_lshrrev_b32 v7, 5, v2           ; hi
    v_lshlrev_b32 v13, 4, v2
    s_lshl_b32 s48, s46, 13
    v_add_u32 v13, s48, v13
    v_and_b32 v14, 15, v2
    v_lshrrev_b32 v14, 2, v14
    v_lshl_add_u32 v14, v7, 2, v14     ; 4hi + (i>>2)
    v_lshlrev_b32 v14, 7, v14
    v_and_b32 v15, 3, v2
    v_lshlrev_b32 v15, 3, v15
    v_bfe_u32 v8, v2, 4, 1
    v_lshl_add_u32 v15, v8, 5, v15
    s_lshl_b32 s48, s47, 6
    v_add_u32 v15, s48, v15
    v_bfe_u32 v8, v2, 3, 1
    v_lshlrev_b32 v8, 6, v8
    v_xor_b32 v15, v15, v8
    v_add_u32 v14, v14, v15
    v_add_u32 v14, {BOFF}, v14         ; B read
    v_and_b32 v9, 31, v2
    v_lshl_add_u32 v10, v7, 4, v9
    v_lshlrev_b32 v10, 4, v10
    v_add_u32 v10, {KOFF}, v10
    v_lshlrev_b32 v11, 4, v7
    v_add_u32 v11, {ZL}, v11
    v_cmp_gt_u32 vcc, 16, v9
    v_mov_b32 v16, 64
    v_mov_b32 v17, 0x400
    v_mov_b32 v18, 32
    v_mov_b32 v19, 0x200
    v_cndmask_b32 v16, v16, v17, vcc
    v_cndmask_b32 v18, v18, v19, vcc
    s_mov_b64 s[70:71], vcc
    s_mov_b32 s74, {hx(1e-6)}
    s_mov_b32 s52, 0
    s_mov_b32 s53, 0
    ''')
    if opt.get('rot2','on')=='on': e('s_and_b32 s42, s4, 3\ns_add_u32 s42, s42, s5\ns_and_b32 s42, s42, 3')
    else: e('s_mov_b32 s42, 0')
    e(f'''
    v_lshlrev_b32 v23, 4, v2
    s_lshl_b32 s48, s46, 13
    s_lshl_b32 s49, s47, 12
    s_add_u32 s49, s48, s49
    s_add_u32 s49, s49, {OL}
    v_add_u32 v19, s49, v23
    s_xor_b32 s49, s47, 1
    s_lshl_b32 s49, s49, 12
    s_add_u32 s49, s48, s49
    s_add_u32 s49, s49, {OL}
    v_add_u32 v17, s49, v23
    v_mov_b32 v23, v19
    s_lshl_b32 s48, s3, 4
    s_add_u32 s48, s48, {FL}
    v_mov_b32 v28, s48
    s_xor_b32 s48, s3, 2
    s_lshl_b32 s48, s48, 4
    s_add_u32 s48, s48, {FL}
    v_mov_b32 v29, s48
    v_mov_b32 v30, 0
    ds_write_b32 v28, v30
    s_mov_b32 s57, 0
    ''')
    for r in range(ACC,ACC+16): e(f'v_mov_b32 v{r}, 0')
    e('s_waitcnt lgkmcnt(0)')
    srd(e,8,38,(WS_PROF+2*256*8*256) if opt.get('prof') else WS_SIZE)
    srd(e,20,36,S*D*2)
    if not fused: stamp_init(e,opt)
    stamp(e,opt)
    if opt.get('prio',1): e('s_setprio 3')
    if fused: e('s_barrier')
    e('K2_CL:')
    e('s_barrier')
    if opt.get('profloop'): stamp(e,opt)
    if opt.get('x_nocomp2'): e('s_branch K2_CN')
    e('s_bitcmp1_b32 s40, s52')
    e('s_cbranch_scc1 K2_CA')
    q=DSQ()
    def frd(s):
        b=F0+8*s
        return [(f'ds_read_b128 v[{b}:{b+3}], v13 offset:{s*1024}',f'a{s}'),
                (f'ds_read_b64_tr_b16 v[{b+4}:{b+5}], v14 offset:{s*2048}',f'b{s}'),
                (f'ds_read_b64_tr_b16 v[{b+6}:{b+7}], v14 offset:{s*2048+1024}',f'b{s}')]
    for s in range(4):
        for x,t in frd(s): e(x); q.issue(t)
    for s in range(8):
        q.need(e,{f'a{s}',f'b{s}'})
        b=F0+8*s
        e(f'v_mfma_f32_32x32x16_bf16 {vr(ACC,16)}, {vr(b+4,4)}, {vr(b,4)}, {vr(ACC,16)}')
        if s<4:
            for x,t in frd(s+4): e(x); q.issue(t)
    e('s_branch K2_CN')
    e('K2_CA:')
    e(f'''
    v_add_u32 v20, s53, v10
    s_lshl_b32 s48, s42, 9            ; 8 heads * 64 B
    v_add_u32 v21, s48, v11
    s_add_u32 s42, s42, 1
    s_and_b32 s42, s42, 3
    s_lshl_b32 s48, s47, 2            ; 4b
    v_cndmask_b32 v20, v21, v20, s[70:71]
    v_mad_u32_u24 v20, v16, s48, v20  ; + 4b heads
    v_add_u32 v21, v20, v18
    s_lshl_b32 s48, s47, 12
    v_add_u32 v22, s48, v13
    s_lshl_b32 s48, s47, 13
    v_add_u32 v24, s48, v14
    s_xor_b32 s48, s48, 8192
    v_add_u32 v25, s48, v14
    s_add_u32 s57, s57, 1
    ''')
    q=DSQ()
    DB=[32,48]
    KF=192
    OWN=112
    def hb(h): return F0+12*h
    WO=144
    def rd_h(h):
        b=hb(h)
        for x,t in [(f'ds_read_b128 v[{b}:{b+3}], v20',f'k{h}'),(f'ds_read_b128 v[{b+4}:{b+7}], v21',f'k{h}'),
                    (f'ds_read_b128 v[{b+8}:{b+11}], v22 offset:{h*1024}',f'p{h}')]:
            e(x); q.issue(t)
        if h<3: e('v_add_u32 v20, v20, v16'); e('v_add_u32 v21, v21, v16')
    def rd_w(h,base,addr,tag):
        e(f'ds_read_b64_tr_b16 v[{base+4*h}:{base+4*h+1}], v{addr} offset:{h*2048}'); q.issue(f'{tag}{h}')
        e(f'ds_read_b64_tr_b16 v[{base+4*h+2}:{base+4*h+3}], v{addr} offset:{h*2048+1024}'); q.issue(f'{tag}{h}')
    def fin(h):
        Dr=DB[h%2]
        e(f'v_add_f32 v8, s74, v{Dr+8}')
        e(f'v_rcp_f32 v8, v8')
        e('s_nop 0')
        for i in range(8): e(f'v_mul_f32 v{Dr+i}, v{Dr+i}, v8')
        for i in range(4): e(f'v_cvt_pk_bf16_f32 v{OWN+4*h+i}, v{Dr+2*i}, v{Dr+2*i+1}')
        e(f'ds_write_b128 v23, v[{OWN+4*h}:{OWN+4*h+3}] offset:{h*1024}'); q.issue(f'o{h}')
    def own_mfma(h):
        q.need(e,{f'w{h}'})
        e(f'v_mfma_f32_32x32x16_bf16 {vr(ACC,16)}, {vr(WO+4*h,4)}, {vr(OWN+4*h,4)}, {vr(ACC,16)}')
    rd_h(0); rd_h(1); rd_h(2); rd_w(0,WO,24,'w'); rd_w(1,WO,24,'w')
    for h in range(4):
        b=hb(h)
        q.need(e,{f'k{h}',f'p{h}'})
        for i in range(4): e(f'v_cvt_pk_bf16_f32 v{KF+i}, v{b+2*i}, v{b+2*i+1}')
        e('s_nop 1')
        e(f'v_mfma_f32_32x32x16_bf16 {vr(DB[h%2],16)}, {vr(KF,4)}, {vr(b+8,4)}, 0')
        if h==0: rd_h(3); e('s_nop 0')
        if h==1: rd_w(2,WO,24,'w'); e('s_nop 1')
        if h==2: rd_w(3,WO,24,'w')
        if h>0:
            fin(h-1)
            if h>1: own_mfma(h-2)
    fin(3)
    own_mfma(2)
    rd_w(0,WO+16,25,'x'); rd_w(1,WO+16,25,'x')
    q.need(e,{'o3'})
    e('v_mov_b32 v30, s57')
    e('ds_write_b32 v28, v30'); q.issue('f')
    own_mfma(3)
    rd_w(2,WO+16,25,'x'); rd_w(3,WO+16,25,'x')
    e('s_mov_b32 s56, 0x100000')
    e('K2_FP:')
    e('ds_read_b32 v31, v29')
    e('s_waitcnt lgkmcnt(0)')
    e('v_readfirstlane_b32 s48, v31')
    e('s_sub_u32 s56, s56, 1')
    e('s_cmp_ge_u32 s48, s57')
    e('s_cbranch_scc1 K2_FD')
    e('s_cmp_lg_u32 s56, 0')
    e('s_cbranch_scc1 K2_FP')
    e('K2_FD:')
    q=DSQ()
    for h in range(4):
        e(f'ds_read_b128 v[{WO+32+4*h}:{WO+32+4*h+3}], v17 offset:{h*1024}'); q.issue(f'o{h}')
    for h in range(4):
        q.need(e,{f'o{h}'})
        e(f'v_mfma_f32_32x32x16_bf16 {vr(ACC,16)}, {vr(WO+16+4*h,4)}, {vr(WO+32+4*h,4)}, {vr(ACC,16)}')
    e('K2_CN:')
    e(f'''
    s_waitcnt lgkmcnt(0)
    s_add_u32 s53, s53, s64
    s_cmp_eq_u32 s53, {NS*SLOT}
    s_cselect_b32 s50, s65, s64
    s_cselect_b32 s53, 0, s53
    v_add_u32 v13, s50, v13
    v_add_u32 v14, s50, v14
    s_add_u32 s52, s52, 1
    s_cmp_lg_u32 s52, {NST}
    s_cbranch_scc1 K2_CL
    ''')
    stamp(e,opt)
    e(f'''
    v_and_b32 v9, 31, v2
    s_lshl_b32 s48, s46, 5
    v_add_u32 v9, s48, v9
    v_and_b32 v10, 7, v9              ; row&7
    s_lshl_b32 s49, s47, 2
    v_lshlrev_b32 v11, 7, v9
    v_lshl_add_u32 v11, v7, 3, v11
    v_add_u32 v11, {XL}, v11
    v_lshlrev_b32 v12, 3, v7
    s_lshl_b32 s50, s47, 6
    v_add_u32 v12, s50, v12
    v_add_u32 v12, {B2L}, v12         ; b2: b*64 + hi*8
    ''')
    for g in range(4):
        e(f'v_add_u32 v16, s49, {g}' if False else f'v_mov_b32 v16, s49')
        e(f'v_add_u32 v16, {g}, v16')
        e(f'v_xor_b32 v16, v16, v10')
        e(f'v_lshl_add_u32 v16, v16, 4, v11')
        e(f'ds_read_b64 v[{32+2*g}:{33+2*g}], v16')
        e(f'ds_read_b64 v[{40+2*g}:{41+2*g}], v12 offset:{g*16}')
    e(f'''
    s_mov_b32 s70, 0xffff0000
    s_lshl_b32 s48, s4, 6
    v_add_u32 v17, s48, v9
    v_lshlrev_b32 v17, 10, v17
    s_lshl_b32 s48, s5, 7
    s_lshl_b32 s49, s47, 6
    s_add_u32 s48, s48, s49
    v_lshl_add_u32 v17, v7, 4, v17
    v_add_u32 v17, s48, v17
    s_waitcnt lgkmcnt(0)
    ''')
    for g in range(4):
        for c2 in range(2):
            xr=32+2*g+c2; br=40+2*g+c2; a0=ACC+4*g+2*c2
            e(f'''
            v_lshlrev_b32 v20, 16, v{xr}
            v_and_b32 v21, s70, v{xr}
            v_lshlrev_b32 v22, 16, v{br}
            v_and_b32 v23, s70, v{br}
            v_add_f32 v20, v20, v22
            v_add_f32 v21, v21, v23
            v_add_f32 v20, v20, v{a0}
            v_add_f32 v21, v21, v{a0+1}
            v_cvt_pk_bf16_f32 v{48+2*g+c2}, v20, v21
            ''')
    e('''
    s_nop 1
    v_permlane32_swap_b32 v48, v50
    v_permlane32_swap_b32 v49, v51
    v_permlane32_swap_b32 v52, v54
    v_permlane32_swap_b32 v53, v55
    buffer_store_dwordx4 v[48:51], v17, s[20:23], 0 offen
    buffer_store_dwordx4 v[52:55], v17, s[20:23], 0 offen offset:32
    ''')
    e('K2_END:')
    if opt.get('spin'):
        e(f'''
        s_mov_b32 s92, s38
        s_and_b32 s93, s39, 0xffff
        s_mov_b32 s94, {WS_TS+4096}
        s_mov_b32 s95, 0x20000
        v_mov_b32 v9, 0
        s_mov_b32 s89, {WS_TS}
        buffer_load_dword v8, v9, s[92:95], s89 offen sc1
        s_waitcnt vmcnt(0)
        v_readfirstlane_b32 s88, v8
        s_mov_b32 s87, 0x100000
        K2_SPIN:
        s_memrealtime s[90:91]
        s_waitcnt lgkmcnt(0)
        s_sub_u32 s86, s90, s88
        s_sub_u32 s87, s87, 1
        s_cmp_eq_u32 s87, 0
        s_cbranch_scc1 K2_SPINE
        s_cmp_lt_u32 s86, {opt['spin']}
        s_cbranch_scc1 K2_SPIN
        K2_SPINE:
        ''')
    if opt.get('prof'):
        e('s_waitcnt vmcnt(0)')
        stamp(e,opt)
        stamp_flush(e,opt,8,1,8)
    if opt.get('ts'):
        e(f'''
        s_waitcnt vmcnt(0)
        s_memrealtime s[68:69]
        s_mov_b32 s76, s38
        s_and_b32 s77, s39, 0xffff
        s_mov_b32 s78, {WS_TS+2*256*8*8}
        s_mov_b32 s79, 0x20000
        s_waitcnt lgkmcnt(0)
        s_lshl_b32 s70, s2, 3
        s_add_u32 s70, s70, s3
        s_lshl_b32 s70, s70, 3
        s_add_u32 s70, s70, {WS_TS+256*8*8}
        v_mov_b32 v8, s66
        v_mov_b32 v9, s68
        v_mov_b32 v10, 0
        buffer_store_dwordx2 v[8:9], v10, s[76:79], s70 offen
        ''')
    e('K2_EXIT:')
    e('s_endpgm')
    t=e.text()
    if xa: t='\n'.join(('    s_nop 0' if ('v3, s[8:11]' in l and 'lds' in l) else l) for l in t.split('\n'))
    if xb: t='\n'.join(('    s_nop 0' if (('s[12:15]' in l or 's[16:19]' in l) and 'lds' in l) else l) for l in t.split('\n'))
    return t
```

```python
from common import *
from k1 import DSQ
SLOT=32768; NS=3
AOFF=0; BOFF=16384
KVB=NS*SLOT
ZL=KVB+32768
XL=ZL+2048
B2L=XL+8192
LDS_BYTES=B2L+1024
ACC=128
F0=64
MASK=0x4888
NST=15

def k2(opt):
    e=E()
    fused=opt.get('fused')
    if opt.get('ts'): e('s_memrealtime s[66:67]')
    e(f'''
    s_cmp_ge_u32 s2, 256
    s_cbranch_scc1 K2_EXIT
    s_load_dwordx2 s[28:29], s[0:1], 0
    s_load_dwordx2 s[30:31], s[0:1], 16
    s_load_dwordx4 s[32:35], s[0:1], 48
    s_load_dwordx2 s[36:37], s[0:1], 64
    s_load_dwordx2 s[38:39], s[0:1], 80
    v_lshrrev_b32 v1, 6, v0
    v_and_b32 v2, 63, v0
    v_readfirstlane_b32 s3, v1
    s_and_b32 s8, s2, 7
    s_lshr_b32 s9, s2, 3
    s_and_b32 s4, s9, 3
    s_lshl_b32 s8, s8, 2
    s_add_u32 s4, s4, s8
    s_lshr_b32 s5, s9, 2              ; cb2 0..7
    s_mov_b32 s40, {opt.get('mask2',MASK)}
    s_mov_b32 s64, {SLOT}
    s_mov_b32 s65, {-(NS-1)*SLOT & 0xffffffff:#x}
    s_cmp_lt_u32 s3, 4
    s_cbranch_scc1 K2_COMP
    ''')
    e(f'''
    s_and_b32 s46, s3, 3              ; lw
    s_mov_b32 s41, 0
    ''')
    if opt.get('rot2','off')=='on':
        e('s_and_b32 s43, s4, 3\ns_mul_i32 s41, s43, 3\ns_add_u32 s41, s41, s5\ns_cmp_ge_u32 s41, 11\ns_cselect_b32 s43, 11, 0\ns_sub_u32 s41, s41, s43')
    e(f'''
    s_mov_b32 s42, 0                  ; next attention stage
    s_lshl_b32 s45, s4, 1             ; s-tile 0
    s_mul_i32 s47, s45, {86*1024}
    s_lshl_b32 s48, s45, 15
    s_add_u32 s48, s48, {WS_PQ}
    v_lshlrev_b32 v3, 4, v2
    s_lshl_b32 s49, s46, 11
    v_add_u32 v3, s49, v3             ; linear voffset: lane*16 + lw*2048
    v_lshrrev_b32 v4, 3, v2
    v_and_b32 v5, 7, v2
    v_bfe_u32 v6, v2, 4, 1
    v_lshlrev_b32 v6, 2, v6
    v_xor_b32 v5, v5, v6
    v_lshlrev_b32 v5, 4, v5
    v_lshl_add_u32 v4, v4, 10, v5
    s_lshl_b32 s49, s5, 7
    s_lshl_b32 s50, s46, 15
    s_add_u32 s49, s49, s50
    v_add_u32 v4, s49, v4
    v_add_u32 v5, 0x2000, v4
    v_add_u32 v6, 0x4000, v4
    v_add_u32 v7, 0x6000, v4
    s_lshl_b32 s54, s46, 11
    s_lshl_b32 s55, s46, 12
    s_add_u32 s55, s55, {BOFF}
    s_mov_b32 s53, 0                  ; slot
    s_mov_b32 s52, 0
    ''')
    af=opt.get('aflag','')
    def addr():
        t=e.label('K2_AD')
        e(f'''
        s_add_u32 s58, s53, s54
        s_add_u32 s59, s53, s55
        s_bitcmp1_b32 s40, s52
        s_cbranch_scc1 {t}A
        s_lshl_b32 s56, s41, 13
        s_add_u32 s56, s56, s47
        s_add_u32 s57, s56, {86*1024}
        s_lshl_b32 s60, s41, 17
        s_add_u32 s41, s41, 1
        s_cmp_eq_u32 s41, 11
        s_cselect_b32 s41, 0, s41
        s_mov_b32 s12, s32
        s_and_b32 s13, s33, 0xffff
        s_mov_b32 s14, {F*D*2}
        s_branch {t}E
        {t}A:
        s_lshl_b32 s56, s42, 13
        s_add_u32 s56, s56, s48
        s_add_u32 s57, s56, {32*1024}
        s_lshl_b32 s60, s42, 17
        s_add_u32 s42, s42, 1
        s_mov_b32 s12, s30
        s_and_b32 s13, s31, 0xffff
        s_mov_b32 s14, {D*D*2}
        {t}E:
        s_add_u32 s52, s52, 1
        s_add_u32 s53, s53, s64
        s_cmp_eq_u32 s53, {NS*SLOT}
        s_cselect_b32 s53, 0, s53
        ''')
    def dma():
        if opt.get('x_nodma2'): return
        e(f'''
        s_mov_b32 m0, s58
        s_nop 0
        buffer_load_dwordx4 v3, s[8:11], s56 offen {af} lds
        buffer_load_dwordx4 v3, s[8:11], s56 offen offset:1024 {af} lds
        s_add_u32 m0, s58, 8192
        s_nop 0
        buffer_load_dwordx4 v3, s[8:11], s57 offen {af} lds
        buffer_load_dwordx4 v3, s[8:11], s57 offen offset:1024 {af} lds
        s_mov_b32 m0, s59
        s_nop 0
        buffer_load_dwordx4 v4, s[12:15], s60 offen lds
        s_add_u32 m0, s59, 1024
        s_nop 0
        buffer_load_dwordx4 v5, s[12:15], s60 offen lds
        s_add_u32 m0, s59, 2048
        s_nop 0
        buffer_load_dwordx4 v6, s[12:15], s60 offen lds
        s_add_u32 m0, s59, 3072
        s_nop 0
        buffer_load_dwordx4 v7, s[12:15], s60 offen lds
        ''')
    e('s_waitcnt lgkmcnt(0)')
    srd(e,8,38,(WS_PROF+2*256*8*256) if opt.get('prof') else WS_SIZE)
    e('s_mov_b32 s15, 0x20000')
    addr(); dma()
    addr(); dma()
    srd(e,20,28,S*D*2)
    srd(e,24,34,D*2)
    stamp_init(e,opt); stamp(e,opt)
    e(f'''
    v_lshlrev_b32 v12, 4, v2
    s_lshl_b32 s56, s46, 13
    s_add_u32 s57, s56, {WS_KV}
    s_add_u32 s58, s56, {KVB}
    ''')
    for i in range(8):
        if i%4==0:
            e(f's_add_u32 m0, s58, {i*1024}')
            e(f's_add_u32 s59, s57, {i*1024}')
        e(f'buffer_load_dwordx4 v12, s[8:11], s59 offen offset:{(i%4)*1024} {af} lds')
    e(f'''
    v_lshrrev_b32 v8, 3, v2
    v_and_b32 v9, 7, v2
    v_xor_b32 v9, v9, v8
    v_lshlrev_b32 v9, 4, v9
    v_lshl_add_u32 v9, v8, 10, v9
    s_lshl_b32 s56, s4, 16
    s_lshl_b32 s57, s5, 7
    s_add_u32 s56, s56, s57
    s_lshl_b32 s57, s46, 14
    s_add_u32 s56, s56, s57
    s_lshl_b32 s57, s46, 11
    s_add_u32 m0, s57, {XL}
    s_nop 0
    buffer_load_dwordx4 v9, s[20:23], s56 offen lds
    s_add_u32 m0, s57, {XL+1024}
    s_add_u32 s56, s56, 8192
    buffer_load_dwordx4 v9, s[20:23], s56 offen lds
    s_cmp_lt_u32 s46, 2
    s_cbranch_scc0 K2_NZ
    s_lshl_b32 s57, s46, 10
    s_add_u32 m0, s57, {ZL}
    s_add_u32 s56, s57, {WS_Z}
    buffer_load_dwordx4 v12, s[8:11], s56 offen {af} lds
    s_branch K2_NZE
    K2_NZ:
    v_and_b32 v8, 7, v2
    v_lshlrev_b32 v8, 4, v8
    s_lshl_b32 s56, s5, 7
    s_mov_b32 m0, {B2L}
    s_nop 0
    buffer_load_dwordx4 v8, s[24:27], s56 offen lds
    K2_NZE:
    ''')
    addr()
    e('s_waitcnt vmcnt(19)')
    stamp(e,opt) if opt.get('profloop') else None
    e('s_barrier')
    dma()
    addr()
    e('s_waitcnt vmcnt(19)')
    stamp(e,opt) if opt.get('profloop') else None
    e('s_barrier')
    dma()
    e(f'''
    s_mov_b32 s51, 2
    K2_LL:
    s_cmp_ge_u32 s52, {NST}
    s_cbranch_scc1 K2_LNA
    ''')
    addr()
    e(f'''
    K2_LNA:
    s_cmp_eq_u32 s51, {NST-1}
    s_cbranch_scc1 K2_LW0
    s_waitcnt vmcnt(8)
    s_branch K2_LW1
    K2_LW0:
    s_waitcnt vmcnt(0)
    K2_LW1:
    ''')
    stamp(e,opt) if opt.get('profloop') else None
    e(f'''
    s_barrier
    s_cmp_ge_u32 s51, {NST-2}
    s_cbranch_scc1 K2_LNI
    ''')
    dma()
    e(f'''
    K2_LNI:
    s_add_u32 s51, s51, 1
    s_cmp_lg_u32 s51, {NST}
    s_cbranch_scc1 K2_LL
    s_barrier
    s_branch K2_END
    ''')
    e('K2_COMP:')
    e(f'''
    s_and_b32 s46, s3, 1              ; a
    s_lshr_b32 s47, s3, 1             ; kh
    v_lshrrev_b32 v7, 5, v2           ; hi
    v_lshlrev_b32 v12, 4, v2          ; lane*16
    s_lshl_b32 s48, s46, 13
    s_lshl_b32 s49, s47, 12
    s_add_u32 s48, s48, s49
    v_add_u32 v13, s48, v12
    v_and_b32 v14, 15, v2
    v_lshrrev_b32 v14, 2, v14
    v_lshl_add_u32 v14, v7, 2, v14     ; 4hi + (i>>2)
    v_lshlrev_b32 v14, 7, v14
    v_and_b32 v15, 3, v2
    v_lshlrev_b32 v15, 3, v15
    v_bfe_u32 v8, v2, 4, 1
    v_lshl_add_u32 v15, v8, 5, v15
    v_bfe_u32 v8, v2, 3, 1
    v_lshlrev_b32 v8, 6, v8
    v_xor_b32 v15, v15, v8
    s_lshl_b32 s48, s47, 13
    s_add_u32 s48, s48, {BOFF}
    v_add3_u32 v14, v14, v15, s48
    v_xor_b32 v15, 64, v14             ; tile b=1
    s_lshl_b32 s48, s47, 6
    v_xor_b32 v14, s48, v14
    v_xor_b32 v15, s48, v15
    s_lshl_b32 s48, s47, 12
    s_add_u32 s48, s48, {KVB}
    v_add_u32 v16, s48, v12            ; kv fragment read: KVB + kh*4096 + lane*16 (+ 8192 per attention stage)
    ; conversion addresses: wave w converts heads 8j+2w, 8j+2w+1 before attention stage j
    v_and_b32 v9, 31, v2
    v_lshl_add_u32 v10, v7, 4, v9
    v_lshlrev_b32 v10, 4, v10
    s_lshl_b32 s48, s3, 11
    s_add_u32 s48, s48, {KVB}
    v_add_u32 v10, s48, v10
    v_add_u32 v17, s48, v12
    s_lshl_b32 s48, s3, 7
    s_add_u32 s48, s48, {ZL}
    v_lshl_add_u32 v11, v7, 4, s48
    v_cmp_gt_u32 vcc, 16, v9
    v_mov_b32 v18, 64
    v_mov_b32 v19, 0x400
    v_mov_b32 v20, 32
    v_mov_b32 v21, 0x200
    v_cndmask_b32 v18, v18, v19, vcc
    v_cndmask_b32 v20, v20, v21, vcc
    v_cndmask_b32 v10, v11, v10, vcc
    s_mov_b32 s74, {hx(1e-6)}
    s_mov_b32 s52, 0
    s_mov_b32 s53, 0
    ''')
    for r in range(ACC,ACC+32): e(f'v_mov_b32 v{r}, 0')
    e('s_waitcnt lgkmcnt(0)')
    srd(e,8,38,(WS_PROF+2*256*8*256) if opt.get('prof') else WS_SIZE)
    srd(e,20,36,S*D*2)
    stamp_init(e,opt); stamp(e,opt)
    if opt.get('prio',1): e('s_setprio 3')
    def acc(b): return ACC+16*b
    e('K2_CL:')
    e('s_barrier')
    if opt.get('profloop'): stamp(e,opt)
    if opt.get('x_nocomp2'): e('s_branch K2_CN')
    e('s_bitcmp1_b32 s40, s52')
    e('s_cbranch_scc1 K2_CA')
    def frd(s):
        b=F0+12*s
        return [(f'ds_read_b128 v[{b}:{b+3}], v13 offset:{s*1024}',f'a{s}'),
                (f'ds_read_b64_tr_b16 v[{b+4}:{b+5}], v14 offset:{s*2048}',f'b{s}'),
                (f'ds_read_b64_tr_b16 v[{b+6}:{b+7}], v14 offset:{s*2048+1024}',f'b{s}'),
                (f'ds_read_b64_tr_b16 v[{b+8}:{b+9}], v15 offset:{s*2048}',f'c{s}'),
                (f'ds_read_b64_tr_b16 v[{b+10}:{b+11}], v15 offset:{s*2048+1024}',f'c{s}')]
    def ffn_stage(conv):
        q=DSQ(); C=112
        for s in range(3):
            for x,t in frd(s): e(x); q.issue(t)
        if conv:
            e('v_add_u32 v21, v10, v20'); e('v_add_u32 v22, v10, v18'); e('v_add_u32 v23, v21, v18')
        for s in range(4):
            b=F0+12*s
            q.need(e,{f'a{s}',f'b{s}'})
            e(f'v_mfma_f32_32x32x16_bf16 {vr(acc(0),16)}, {vr(b+4,4)}, {vr(b,4)}, {vr(acc(0),16)}')
            if conv and s==2:
                q.need(e,{'k0'})
                for i_ in range(4): e(f'v_cvt_pk_bf16_f32 v{C+i_}, v{C+2*i_}, v{C+2*i_+1}')
            q.need(e,{f'c{s}'})
            e(f'v_mfma_f32_32x32x16_bf16 {vr(acc(1),16)}, {vr(b+8,4)}, {vr(b,4)}, {vr(acc(1),16)}')
            if conv and s==0:
                for x,t in [(f'ds_read_b128 v[{C}:{C+3}], v10','k0'),(f'ds_read_b128 v[{C+4}:{C+7}], v21','k0'),
                            (f'ds_read_b128 v[{C+8}:{C+11}], v22','k1'),(f'ds_read_b128 v[{C+12}:{C+15}], v23','k1')]:
                    e(x); q.issue(t)
                e('v_mad_u32_u24 v10, v18, 8, v10')
            if s==(1 if conv else 0):
                for x,t in frd(3): e(x); q.issue(t)
            if conv and s==2:
                q.need(e,{'k1'})
                for i_ in range(4): e(f'v_cvt_pk_bf16_f32 v{C+8+i_}, v{C+8+2*i_}, v{C+8+2*i_+1}')
                e(f'ds_write_b128 v17, v[{C}:{C+3}]'); q.issue('w')
                e(f'ds_write_b128 v17, v[{C+8}:{C+11}] offset:1024'); q.issue('w')
                e('v_add_u32 v17, 0x2000, v17')
    e('s_add_u32 s48, s52, 1')
    e('s_bitcmp1_b32 s40, s48')
    e('s_cbranch_scc1 K2_CV')
    ffn_stage(False)
    e('s_branch K2_CN')
    e('K2_CV:')
    ffn_stage(True)
    e('s_branch K2_CN')
    e('K2_CA:')
    q=DSQ()
    DB=[32,48]
    def hb(h): return F0+24*(h%2)
    OFR=24
    def rd(h):
        b=hb(h)
        for x,t in [(f'ds_read_b128 v[{b}:{b+3}], v16 offset:{h*1024}',f'k{h}'),
                    (f'ds_read_b128 v[{b+4}:{b+7}], v13 offset:{h*1024}',f'k{h}')]:
            e(x); q.issue(t)
    def rdw(h):
        b=hb(h)+8+ (0)
        for x,t in [(f'ds_read_b64_tr_b16 v[{b}:{b+1}], v14 offset:{h*2048}',f'w{h}'),
                    (f'ds_read_b64_tr_b16 v[{b+2}:{b+3}], v14 offset:{h*2048+1024}',f'w{h}'),
                    (f'ds_read_b64_tr_b16 v[{b+4}:{b+5}], v15 offset:{h*2048}',f'x{h}'),
                    (f'ds_read_b64_tr_b16 v[{b+6}:{b+7}], v15 offset:{h*2048+1024}',f'x{h}')]:
            e(x); q.issue(t)
    def d1(h):
        b=hb(h)
        q.need(e,{f'k{h}'})
        e(f'v_mfma_f32_32x32x16_bf16 {vr(DB[h%2],16)}, {vr(b,4)}, {vr(b+4,4)}, 0')
    def fin(h):
        Dr=DB[h%2]; b=hb(h)+8
        e(f'v_add_f32 v8, s74, v{Dr+8}')
        e(f'v_rcp_f32 v8, v8')
        e('s_nop 0')
        for i in range(8): e(f'v_mul_f32 v{Dr+i}, v{Dr+i}, v8')
        for i in range(4): e(f'v_cvt_pk_bf16_f32 v{OFR+i}, v{Dr+2*i}, v{Dr+2*i+1}')
        q.need(e,{f'w{h}'})
        e('s_nop 1')
        e(f'v_mfma_f32_32x32x16_bf16 {vr(acc(0),16)}, {vr(b,4)}, {vr(OFR,4)}, {vr(acc(0),16)}')
        q.need(e,{f'x{h}'})
        e(f'v_mfma_f32_32x32x16_bf16 {vr(acc(1),16)}, {vr(b+4,4)}, {vr(OFR,4)}, {vr(acc(1),16)}')
    rd(0); rd(1); rdw(0); rdw(1)
    d1(0); d1(1)
    rd(2); rd(3)
    e('s_nop 5')
    fin(0)
    d1(2)
    rdw(2)
    fin(1)
    d1(3)
    rdw(3)
    e('s_nop 1')
    fin(2)
    fin(3)
    e('v_add_u32 v16, 0x2000, v16')
    e('K2_CN:')
    e(f'''
    s_waitcnt lgkmcnt(0)
    s_add_u32 s53, s53, s64
    s_cmp_eq_u32 s53, {NS*SLOT}
    s_cselect_b32 s50, s65, s64
    s_cselect_b32 s53, 0, s53
    v_add_u32 v13, s50, v13
    v_add_u32 v14, s50, v14
    v_add_u32 v15, s50, v15
    s_add_u32 s52, s52, 1
    s_cmp_lg_u32 s52, {NST}
    s_cbranch_scc1 K2_CL
    ''')
    stamp(e,opt)
    e(f'''
    s_lshl_b32 s48, s3, 12
    v_add_u32 v16, s48, v12
    s_xor_b32 s48, s3, 2
    s_lshl_b32 s48, s48, 12
    v_add_u32 v18, s48, v12
    v_and_b32 v9, 31, v2
    s_lshl_b32 s48, s46, 5
    v_add_u32 v9, s48, v9
    v_and_b32 v10, 7, v9              ; row&7
    s_lshl_b32 s49, s47, 2
    v_lshlrev_b32 v11, 7, v9
    v_lshl_add_u32 v11, v7, 3, v11
    v_add_u32 v11, {XL}, v11
    ''')
    for g in range(4): e(f'ds_write_b128 v16, v[{acc(1)+4*g}:{acc(1)+4*g+3}] offset:{g*1024}')
    e(f'''
    v_lshlrev_b32 v12, 3, v7
    s_lshl_b32 s50, s47, 6
    v_add_u32 v12, s50, v12
    v_add_u32 v12, {B2L}, v12         ; b2: b*64 + hi*8
    ''')
    for g in range(4):
        e(f'v_mov_b32 v16, s49')
        e(f'v_add_u32 v16, {g}, v16')
        e(f'v_xor_b32 v16, v16, v10')
        e(f'v_lshl_add_u32 v16, v16, 4, v11')
        e(f'ds_read_b64 v[{32+2*g}:{33+2*g}], v16')
        e(f'ds_read_b64 v[{40+2*g}:{41+2*g}], v12 offset:{g*16}')
    e(f'''
    s_mov_b32 s70, 0xffff0000
    s_lshl_b32 s48, s4, 6
    v_add_u32 v17, s48, v9
    v_lshlrev_b32 v17, 10, v17
    s_lshl_b32 s48, s5, 7
    s_lshl_b32 s49, s47, 6
    s_add_u32 s48, s48, s49
    v_lshl_add_u32 v17, v7, 4, v17
    v_add_u32 v17, s48, v17
    s_waitcnt lgkmcnt(0)
    ''')
    for g in range(4):
        for c2 in range(2):
            xr=32+2*g+c2; br=40+2*g+c2; a0=ACC+4*g+2*c2
            e(f'''
            v_lshlrev_b32 v20, 16, v{xr}
            v_and_b32 v21, s70, v{xr}
            v_lshlrev_b32 v22, 16, v{br}
            v_and_b32 v23, s70, v{br}
            v_add_f32 v20, v20, v22
            v_add_f32 v21, v21, v23
            v_add_f32 v{a0}, v20, v{a0}
            v_add_f32 v{a0+1}, v21, v{a0+1}
            ''')
    e('s_barrier')
    for g in range(4): e(f'ds_read_b128 v[{acc(1)+4*g}:{acc(1)+4*g+3}], v18 offset:{g*1024}')
    for g in range(4):
        e(f's_waitcnt lgkmcnt({3-g})')
        for i in range(4): e(f'v_add_f32 v{ACC+4*g+i}, v{ACC+4*g+i}, v{ACC+16+4*g+i}')
        for c2 in range(2): e(f'v_cvt_pk_bf16_f32 v{48+2*g+c2}, v{ACC+4*g+2*c2}, v{ACC+4*g+2*c2+1}')
    e('''
    s_nop 1
    v_permlane32_swap_b32 v48, v50
    v_permlane32_swap_b32 v49, v51
    v_permlane32_swap_b32 v52, v54
    v_permlane32_swap_b32 v53, v55
    buffer_store_dwordx4 v[48:51], v17, s[20:23], 0 offen
    buffer_store_dwordx4 v[52:55], v17, s[20:23], 0 offen offset:32
    ''')
    e('K2_END:')
    if opt.get('prof'):
        e('s_waitcnt vmcnt(0)')
        stamp(e,opt)
        stamp_flush(e,opt,8,1,8)
    if opt.get('ts'):
        e(f'''
        s_waitcnt vmcnt(0)
        s_memrealtime s[68:69]
        s_mov_b32 s76, s38
        s_and_b32 s77, s39, 0xffff
        s_mov_b32 s78, {WS_TS+2*256*8*8}
        s_mov_b32 s79, 0x20000
        s_waitcnt lgkmcnt(0)
        s_lshl_b32 s70, s2, 3
        s_add_u32 s70, s70, s3
        s_lshl_b32 s70, s70, 3
        s_add_u32 s70, s70, {WS_TS+256*8*8}
        v_mov_b32 v8, s66
        v_mov_b32 v9, s68
        v_mov_b32 v10, 0
        buffer_store_dwordx2 v[8:9], v10, s[76:79], s70 offen
        ''')
    e('K2_EXIT:')
    e('s_endpgm')
    return e.text()
```

```python
import sys, json
from common import *
import k1, k2, k2b, k1b, k2c
PRE=open('parallel_sum__linear_attn_block__dense_activation_gelu__prompt.s.ref').read().split('; Override launch')[0]
def build_fused(opt):
    opt=dict(opt); opt['fused']=1; opt['k1name']='parallel_sum__linear_attn_block__dense_activation_gelu__prompt_kernel'; opt.setdefault('aflag','sc1'); opt.setdefault('mask2',0x7800)
    KN='parallel_sum__linear_attn_block__dense_activation_gelu__prompt_kernel'
    o=PRE
    o+='; One launch: phase 1 = LN-folded qkv / ffn1 GEMMs (+phi, gelu, kv sums), phase 2 = output GEMM (attention finish, ffn2, residual).\n'
    o+='; @launch grid=(256,1,1) block=(512,1,1) lds=163840\n'
    o+=HEADER+kernel_begin(KN)+k1.k1(opt)+k2b.k2(opt)+'K_TEXT_END:\n    s_endpgm\n'
    nv=248 if opt.get('prof') else 240
    o+=RODATA+kernel_desc(KN,nv,102,nv)
    return o
def build(opt):
    if opt.get('fused'): return build_fused(opt)
    o=PRE
    o+='; Two launches: k1 = LN-folded qkv / ffn1 GEMMs (+phi, gelu, kv sums), k2 = output GEMM (attention finish, ffn2, residual).\n'
    K1=k1b if opt.get('k1b',1) else k1
    o+=f'; @launch kernel=k1_kernel grid=(256,1,1) block=(512,1,1) lds={k1b.LDS_BYTES if opt.get("k1b",1) else 163840}\n'
    K2=k2c if opt.get('k2c',1) else k2b
    o+=f'; @launch kernel=k2_kernel grid=(256,1,1) block=(512,1,1) lds={K2.LDS_BYTES}\n'
    if opt.get('ts'): o+='; @launch kernel=k3_kernel grid=(1,1,1) block=(256,1,1) lds=0\n'
    o+=HEADER
    o+=kernel_begin('k1_kernel')+K1.k1(opt)
    o+=kernel_begin('k2_kernel')+K2.k2(opt)
    o+='K_TEXT_END:\n    s_endpgm\n'
    if opt.get('ts'): o+=kernel_begin('k3_kernel')+k2.k3_ts()
    o+=RODATA+kernel_desc('k1_kernel',248 if opt.get('prof') else 240,102,248 if opt.get('prof') else 240)
    o+='.p2align 6\n'+kernel_desc('k2_kernel',248 if opt.get('prof') else 200,102,248 if opt.get('prof') else 200)
    if opt.get('ts'): o+='.p2align 6\n'+kernel_desc('k3_kernel',64,96,64)
    return o
if __name__=='__main__':
    opt=json.loads(sys.argv[2]) if len(sys.argv)>2 else {}
    open(sys.argv[1],'w').write(build(opt))
```

```python
from common import *
from k1 import DSQ, pk

NS=3; SLOT=40960
SC=NS*SLOT
NONCE=SC; ZERO=SC+16
REC=SC+1024
RSTD=SC+5120
WFR=SC+5632
KVP=SC+9216
LDS_BYTES=SC+18432
NONCE_IDX=48

ACC=128
FA=64; FB=84
XA=104; WA=108
XF=64; KC=72; WF=80
T0=8; OUT=40
def acc(t,a): return ACC+(t*2+a)*16

def prologue(e,opt):
    e(f'''
    s_cmp_ge_u32 s2, 256
    s_cbranch_scc1 K1_EXIT0
    s_load_dwordx4 s[28:31], s[0:1], 0
    s_load_dwordx4 s[32:35], s[0:1], 32
    s_load_dwordx4 s[36:39], s[0:1], 72
    s_load_dwordx2 s[82:83], s[0:1], 16
    s_load_dwordx2 s[84:85], s[0:1], 48
    s_load_dwordx4 s[92:95], s[0:1], 56
    v_lshrrev_b32 v1, 6, v0
    v_and_b32 v2, 63, v0
    v_readfirstlane_b32 s3, v1
    s_and_b32 s8, s2, 7
    s_lshr_b32 s9, s2, 3
    s_and_b32 s10, s9, 7              ; rb_local
    s_lshr_b32 s11, s9, 3             ; cb_local
    s_lshr_b32 s4, s8, 2
    s_lshl_b32 s4, s4, 3
    s_add_u32 s4, s4, s10             ; rb
    s_and_b32 s5, s8, 3
    s_lshl_b32 s5, s5, 1
    s_and_b32 s12, s11, 1
    s_add_u32 s5, s5, s12
    s_lshr_b32 s7, s11, 1
    s_lshl_b32 s12, s7, 3
    s_add_u32 s5, s5, s12             ; cb
    s_mul_i32 s6, s11, {opt.get('rotc',2)}
    s_add_u32 s6, s6, s10
    s_and_b32 s6, s6, 7
    s_and_b32 s12, s5, 7
    s_mul_i32 s13, s12, 6
    s_mul_i32 s14, s12, 5
    s_add_u32 s14, s14, 3
    s_min_u32 s44, s13, s14
    s_cmp_lt_u32 s12, 3
    s_cselect_b32 s45, 6, 5
    s_lshl_b32 s13, s12, 7
    s_lshl_b32 s14, s44, 6
    s_mov_b32 s40, 2752
    s_mov_b32 s15, 128
    s_cmp_eq_u32 s7, 0
    s_cselect_b32 s40, 3072, s40
    s_cselect_b32 s41, s13, s14
    s_cselect_b32 s15, 1024, s15
    s_add_u32 s42, s41, s15
    s_add_u32 s43, s42, s15
    s_mov_b32 s64, {SLOT}
    s_mov_b32 s65, {-(NS-1)*SLOT & 0xffffffff:#x}
    s_cmp_lt_u32 s3, 4
    s_cbranch_scc1 K1_CONS
    ''')

def srds_rest(e,opt):
    srd(e,16,38,(WS_PROF+2*256*8*256) if opt.get('prof') else WS_SIZE)
    srd(e,24,36,256)
    if opt.get('ts'): srd(e,72,38,WS_TS+256*8*8)
    stamp_init(e,opt); stamp(e,opt)

def waddr(e,nh,dst,tmp):
    for t in range(3):
        e(f'''
        s_mul_i32 s{tmp}, s{nh}, 3
        s_add_u32 s{tmp}, s{tmp}, {t}
        s_lshr_b32 s{tmp+1}, s{tmp}, 1
        s_and_b32 s{tmp}, s{tmp}, 1
        s_cmp_eq_u32 s7, 0
        s_cselect_b32 s{tmp+1}, {t}, s{tmp+1}
        s_cselect_b32 s{tmp}, s{nh}, s{tmp}
        s_lshl_b32 s{tmp+1}, s{tmp+1}, 13
        s_add_u32 s{tmp+1}, s{tmp+1}, 16384
        s_lshl_b32 s{tmp}, s{tmp}, 6
        v_add_u32 v9, s{tmp}, v7
        v_xor_b32 v9, v9, v8
        v_add3_u32 v{dst+t}, v9, v6, s{tmp+1}
        ''')
def wlane(e):
    e('''
    v_lshrrev_b32 v4, 5, v2          ; hi
    v_and_b32 v6, 15, v2
    v_lshrrev_b32 v6, 2, v6
    v_lshl_add_u32 v6, v4, 3, v6
    v_lshlrev_b32 v6, 7, v6          ; (8hi + i>>2)*128
    v_and_b32 v7, 3, v2
    v_lshlrev_b32 v7, 3, v7
    v_bfe_u32 v8, v2, 4, 1
    v_lshl_add_u32 v7, v8, 5, v7     ; g16*32 + (i&3)*8
    v_bfe_u32 v8, v2, 3, 1
    v_lshlrev_b32 v8, 6, v8          ; 64*bit3
    ''')

def touches(e,opt):
    if opt.get('pfw'):
        e(f'''
        s_mov_b32 s88, s84
        s_and_b32 s89, s85, 0xffff
        s_mov_b32 s90, {F*D*2}
        s_mov_b32 s91, 0x20000
        s_mov_b32 s76, s82
        s_and_b32 s77, s83, 0xffff
        s_mov_b32 s78, {D*D*2}
        s_mov_b32 s79, 0x20000
        s_lshr_b32 s80, s2, 3
        s_mul_i32 s81, s80, {344*128}
        s_mul_i32 s86, s46, {86*128}
        s_add_u32 s81, s81, s86
        v_lshlrev_b32 v8, 7, v2
        buffer_load_dword v120, v8, s[88:91], s81 offen
        s_add_u32 s81, s81, {64*128}
        s_mov_b32 exec_lo, 0x3fffff
        s_mov_b32 exec_hi, 0
        buffer_load_dword v120, v8, s[88:91], s81 offen
        s_lshl_b32 s81, s80, 14
        s_lshl_b32 s86, s46, 12
        s_add_u32 s81, s81, s86
        s_mov_b32 exec_lo, -1
        buffer_load_dword v120, v8, s[76:79], s81 offen
        s_mov_b64 exec, -1
        ''')

def loader(e,opt):
    npf=3 if opt.get('pfw') else 0
    e('''
    s_and_b32 s46, s3, 3
    v_lshrrev_b32 v3, 3, v2
    v_and_b32 v4, 7, v2
    v_lshrrev_b32 v5, 4, v2
    v_xor_b32 v6, v4, v5
    v_lshlrev_b32 v6, 4, v6
    v_lshl_add_u32 v10, v3, 10, v6
    s_lshl_b32 s47, s4, 17
    s_lshl_b32 s48, s46, 15
    s_add_u32 s47, s47, s48
    v_add_u32 v10, s47, v10
    v_xor_b32 v11, 64, v10
    v_add_u32 v11, 0x2000, v11
    v_add_u32 v12, 0x4000, v10
    v_add_u32 v13, 0x4000, v11
    v_and_b32 v5, 1, v5
    v_lshlrev_b32 v5, 2, v5
    v_xor_b32 v4, v4, v5
    v_lshlrev_b32 v4, 4, v4
    s_lshl_b32 s47, s46, 4
    v_add_u32 v14, s47, v3
    v_mul_lo_u32 v14, v14, s40
    v_add_u32 v14, v14, v4
    s_lshl_b32 s47, s40, 3
    v_add_u32 v15, s47, v14
    s_lshl_b32 s54, s46, 12
    s_lshl_b32 s55, s46, 11
    s_add_u32 s55, s55, 16384
    s_lshl_b32 s56, s40, 6
    s_mov_b32 s48, s6
    s_mov_b32 s53, 0
    ''')
    def stage_addr():
        return ['s_lshl_b32 s49, s48, 7','s_mul_i32 s50, s48, s56','s_add_u32 s51, s50, s42',
                's_add_u32 s52, s50, s43','s_add_u32 s50, s50, s41',
                's_add_u32 s58, s53, s54','s_add_u32 s59, s53, s55',
                's_add_u32 s48, s48, 1','s_and_b32 s48, s48, 7',
                's_add_u32 s53, s53, s64', f's_cmp_eq_u32 s53, {NS*SLOT}','s_cselect_b32 s53, 0, s53']
    def dma():
        L=[]
        if opt.get('x_nodma1'): return L
        for i in range(4):
            L+=[f's_add_u32 m0, s58, {i*1024}', 's_nop 0', f'buffer_load_dwordx4 v{10+i}, s[8:11], s49 offen lds']
        for sub in range(3):
            for h in range(2):
                L+=[f's_add_u32 m0, s59, {sub*8192+h*1024}', 's_nop 0', f'buffer_load_dwordx4 v{14+h}, s[12:15], s{50+sub} offen lds']
        return L
    for x in stage_addr(): e(x)
    e('s_waitcnt lgkmcnt(0)')
    srd(e,8,28,S*D*2)
    e(f'''
    s_cmp_eq_u32 s7, 0
    s_cselect_b32 s12, s30, s32
    s_cselect_b32 s13, s31, s33
    s_mov_b32 s14, {D*F*2}
    s_cselect_b32 s14, {D*3*D*2}, s14
    s_and_b32 s13, s13, 0xffff
    s_mov_b32 s15, 0x20000
    ''')
    for x in dma(): e(x)
    for x in stage_addr(): e(x)
    for x in dma(): e(x)
    srds_rest(e,opt)
    srd(e,20,34,F*2)
    wlane(e)
    waddr(e,46,16,60)
    e(f'''
    s_lshr_b32 s60, s4, 3             ; hf
    s_lshl_b32 s60, s60, 12           ; 2hf*2048
    v_add_u32 v16, s60, v16
    v_add_u32 v17, s60, v17
    v_add_u32 v18, s60, v18
    v_lshrrev_b32 v5, 4, v2
    v_xor_b32 v5, v5, v2
    v_and_b32 v5, 1, v5
    v_cmp_eq_u32 vcc, 0, v5
    v_mov_b32 v6, 0x3f803f80
    v_mov_b32 v19, {NONCE_IDX*4}
    s_lshl_b32 s60, s5, 2
    v_mov_b32 v26, s60
    v_mov_b32 v25, 0
    v_cndmask_b32 v20, 0, v6, vcc
    v_mov_b32 v21, v20
    v_mov_b32 v22, v20
    v_mov_b32 v23, v20
    ''')
    for x in stage_addr(): e(x)
    e('s_waitcnt vmcnt(10)')
    stamp(e,opt)
    e('s_barrier')
    e(f'''
    s_cmp_lg_u32 s46, 3
    s_cbranch_scc1 K1_NNL
    buffer_load_dword v24, v19, s[24:27], 0 offen sc1
    K1_NNL:
    ''')
    for x in dma(): e(x)
    e('s_cmp_ge_u32 s46, 2')
    e('s_cbranch_scc1 K1_NOCS')
    for t in range(3):
        for k in range(2):
            e(f'ds_read_b64_tr_b16 v[{24+8*t+4*k}:{25+8*t+4*k}], v{16+t} offset:{k*2048}')
            e(f'ds_read_b64_tr_b16 v[{26+8*t+4*k}:{27+8*t+4*k}], v{16+t} offset:{k*2048+512}')
    e('s_waitcnt lgkmcnt(0)')
    for t in range(3):
        e(f'v_mfma_f32_16x16x32_bf16 v[{48+4*t}:{51+4*t}], v[20:23], v[{24+8*t}:{27+8*t}], 0')
    for t in range(3):
        e(f'v_mfma_f32_16x16x32_bf16 v[{48+4*t}:{51+4*t}], v[20:23], v[{28+8*t}:{31+8*t}], v[{48+4*t}:{51+4*t}]')
    e(f'''
    v_and_b32 v5, 16, v2
    v_cmp_ne_u32 vcc, 0, v5
    v_lshlrev_b32 v5, 4, v2
    s_lshl_b32 s60, s5, 4
    s_add_u32 s60, s60, s4
    s_lshl_b32 s60, s60, 1
    s_add_u32 s60, s60, s46
    s_lshl_b32 s60, s60, 9
    s_add_u32 s60, s60, {WS_CSG}
    s_mov_b32 s62, s60
    s_nop 1
    v_cndmask_b32 v60, v48, v49, vcc
    v_cndmask_b32 v61, v52, v53, vcc
    v_cndmask_b32 v62, v56, v57, vcc
    K1_NOCS:
    s_mov_b32 s47, 5
    ''')
    e('K1_LM:')
    for x in stage_addr(): e(x)
    e('s_waitcnt vmcnt(10)')
    e(f'''
    s_cmp_lg_u32 s47, 5
    s_cbranch_scc1 K1_NN2
    s_cmp_lg_u32 s46, 3
    s_cbranch_scc1 K1_NN2
    s_mov_b32 s61, 0x40000
    K1_NPL:
    v_readfirstlane_b32 s63, v24
    s_sub_u32 s61, s61, 1
    s_cmp_lg_u32 s63, 0
    s_cbranch_scc1 K1_NPD
    s_cmp_eq_u32 s61, 0
    s_cbranch_scc1 K1_NPD
    s_sleep 2
    buffer_load_dword v24, v19, s[24:27], 0 offen sc1
    s_waitcnt vmcnt(0)
    s_branch K1_NPL
    K1_NPD:
    v_mov_b32 v19, {NONCE}
    ds_write_b32 v19, v24
    s_waitcnt lgkmcnt(0)
    K1_NN2:
    ''')
    e(f'''
    s_cmp_lg_u32 s47, 1
    s_cbranch_scc1 K1_NF2
    s_cmp_lg_u32 s46, 2
    s_cbranch_scc1 K1_NF2
    s_cmp_lg_u32 s7, 0
    s_cbranch_scc1 K1_NF2
    s_mov_b32 s61, 0x40000
    K1_FPL:
    v_readfirstlane_b32 s60, v25
    s_sub_u32 s61, s61, 1
    s_cmp_lg_u32 s60, 0
    s_cbranch_scc1 K1_NF2
    s_cmp_eq_u32 s61, 0
    s_cbranch_scc1 K1_NF2
    s_sleep 2
    buffer_load_dword v25, v26, s[24:27], 0 offen sc1
    s_waitcnt vmcnt(0)
    s_branch K1_FPL
    K1_NF2:
    ''')
    stamp(e,opt) if opt.get('profloop') else None
    e('s_barrier')
    e(f'''
    s_cmp_lg_u32 s47, 2
    s_cbranch_scc1 K1_NF1
    s_cmp_lg_u32 s46, 2
    s_cbranch_scc1 K1_NF1
    buffer_load_dword v25, v26, s[24:27], 0 offen sc1
    K1_NF1:
    ''')
    for x in dma(): e(x)
    e(f'''
    s_cmp_lg_u32 s47, 5
    s_cbranch_scc1 K1_NN3
    v_mov_b32 v19, {NONCE}
    ds_read_b32 v63, v19
    s_waitcnt lgkmcnt(0)
    v_readfirstlane_b32 s63, v63
    s_cmp_ge_u32 s46, 2
    s_cbranch_scc1 K1_NN3
    v_lshlrev_b32 v5, 4, v2
    s_mov_b32 exec_hi, 0
    buffer_store_dwordx4 v[60:63], v5, s[16:19], s62 offen sc1
    s_mov_b32 exec_hi, -1
    K1_NN3:
    ''')
    e('''
    s_sub_u32 s47, s47, 1
    s_cmp_lg_u32 s47, 0
    s_cbranch_scc1 K1_LM
    ''')
    e('s_waitcnt vmcnt(10)')
    e('s_barrier')
    e('s_cmp_ge_u32 s46, 2')
    e('s_cbranch_scc1 K1_GCOL')
    e(f'''
    s_lshl_b32 s60, s46, 6
    v_add_u32 v3, s60, v2
    s_lshl_b32 s60, s4, 7
    v_add_u32 v4, s60, v3
    v_lshlrev_b32 v4, 4, v4
    s_mov_b32 s60, {WS_STG}
    buffer_load_dwordx4 v[24:27], v4, s[16:19], s60 offen sc1
    ''')
    touches(e,opt)
    e(f'''
    s_waitcnt vmcnt({1+npf})
    s_barrier
    s_mov_b32 s61, 0x40000
    s_waitcnt vmcnt({npf})
    K1_GR:
    v_cmp_ne_u32 vcc, s63, v26
    s_sub_u32 s61, s61, 1
    s_cmp_eq_u32 s61, 0
    s_cbranch_scc1 K1_GRD
    s_cbranch_vccz K1_GRD
    s_sleep 1
    buffer_load_dwordx4 v[24:27], v4, s[16:19], s60 offen sc1
    s_waitcnt vmcnt(0)
    s_branch K1_GR
    K1_GRD:
    v_rsq_f32 v44, v25                          ; rstd
    v_cvt_pk_bf16_f32 v40, v24, v24
    v_mul_f32 v45, v25, v44                     ; sigma
    v_lshlrev_b32 v40, 16, v40
    v_sub_f32 v41, v24, v40
    v_cvt_pk_bf16_f32 v40, v40, v41             ; d0
    v_mov_b32 v41, v40                          ; d1
    v_cvt_pk_bf16_f32 v42, v45, v45
    v_lshlrev_b32 v42, 16, v42
    v_sub_f32 v43, v45, v42
    v_cvt_pk_bf16_f32 v42, v42, v43             ; d2
    v_mov_b32 v43, 0
    v_mul_f32 v46, v44, v44
    v_mul_f32 v46, v46, v44
    v_mul_f32 v46, {hx(GC2)}, v46               ; cA
    v_mul_f32 v47, {hx(GC1)}, v44               ; cB
    v_lshlrev_b32 v4, 5, v3
    v_add_u32 v4, {REC}, v4
    ds_write_b128 v4, v[40:43]
    ds_write_b128 v4, v[44:47] offset:16
    v_lshlrev_b32 v4, 2, v3
    v_add_u32 v4, {RSTD}, v4
    ds_write_b32 v4, v44
    v_mov_b32 v4, {ZERO}
    v_mov_b32 v40, 0
    v_mov_b32 v41, 0
    v_mov_b32 v42, 0
    ds_write_b128 v4, v[40:43]
    s_branch K1_GDONE
    ''')
    e(f'''
    K1_GCOL:
    s_and_b32 s47, s46, 1             ; nh
    v_and_b32 v3, 31, v2
    v_lshrrev_b32 v4, 5, v2
    v_lshlrev_b32 v4, 13, v4
    v_lshl_add_u32 v4, v3, 4, v4
    s_lshl_b32 s60, s5, 14
    s_lshl_b32 s61, s47, 9
    s_add_u32 s60, s60, s61
    s_add_u32 s60, s60, {WS_CSG}
    s_mul_i32 s61, s47, 3
    s_add_u32 s61, s61, s44
    s_lshl_b32 s61, s61, 6
    v_lshl_add_u32 v5, v3, 1, s61
    buffer_load_ushort v60, v5, s[20:23], 0 offen
    buffer_load_ushort v61, v5, s[20:23], 0 offen offset:64
    buffer_load_ushort v62, v5, s[20:23], 0 offen offset:128
    ''')
    def colloads():
        for j in range(8):
            if j<4: e(f'buffer_load_dwordx4 v[{24+4*j}:{27+4*j}], v4, s[16:19], s60 offen offset:{j*1024} sc1')
            else: e(f'buffer_load_dwordx4 v[{24+4*j}:{27+4*j}], v4, s[16:19], s62 offen offset:{(j-4)*1024} sc1')
    e('s_add_u32 s62, s60, 4096')
    colloads()
    touches(e,opt)
    e(f'''
    s_waitcnt vmcnt({11+npf})
    s_barrier
    s_mov_b32 s61, 0x40000
    s_waitcnt vmcnt({npf})
    K1_GC:
    ''')
    e('v_xor_b32 v6, s63, v27')
    for j in range(1,8):
        e(f'v_xor_b32 v7, s63, v{27+4*j}')
        e('v_or_b32 v6, v6, v7')
    e('''
    v_cmp_ne_u32 vcc, 0, v6
    s_sub_u32 s61, s61, 1
    s_cmp_eq_u32 s61, 0
    s_cbranch_scc1 K1_GCD
    s_cbranch_vccz K1_GCD
    s_sleep 1
    ''')
    colloads()
    e('s_waitcnt vmcnt(0)')
    e('s_branch K1_GC')
    e('K1_GCD:')
    for c in range(3):
        for j in (1,3,5,7): e(f'v_add_f32 v{24+4*(j-1)+c}, v{24+4*(j-1)+c}, v{24+4*j+c}')
        e(f'v_add_f32 v{24+c}, v{24+c}, v{32+c}')
        e(f'v_add_f32 v{40+c}, v{40+c}, v{48+c}')
        e(f'v_add_f32 v{24+c}, v{24+c}, v{40+c}')
        e(f'v_mov_b32 v{28+c}, v{24+c}')
    e('s_nop 1')
    for c in range(3): e(f'v_permlane32_swap_b32 v{24+c}, v{28+c}')
    e(f'''
    s_mul_i32 s61, s47, 1536
    s_add_u32 s61, s61, {WFR}
    v_lshl_add_u32 v5, v3, 4, s61
    ''')
    for c in range(3):
        e(f'''
        v_add_f32 v8, v{24+c}, v{28+c}
        v_cvt_pk_bf16_f32 v40, v8, v8
        v_lshlrev_b32 v9, 16, v40
        v_sub_f32 v9, v8, v9
        v_cvt_pk_bf16_f32 v41, v9, v9
        v_lshlrev_b32 v42, 16, v{60+c}
        v_or_b32 v42, v42, v{60+c}
        v_mov_b32 v43, 0
        s_cmp_eq_u32 s7, 0
        s_cbranch_scc0 K1_GB{c}
        v_mov_b32 v42, 0
        K1_GB{c}:
        ds_write_b128 v5, v[40:43] offset:{c*512}
        s_nop 1
        ''')
    e('K1_GDONE:')
    e('''
    K1_PFW:
    ''')
    e(f'''
    K1_LE1:
    s_waitcnt lgkmcnt(0)
    ''')
    stamp(e,opt)
    e('s_barrier')
    if opt.get('fused') and opt.get('pfb',1):
        e(f'''
        s_mov_b32 s12, s84
        s_and_b32 s13, s85, 0xffff
        s_mov_b32 s14, {F*D*2}
        s_lshr_b32 s60, s2, 5             ; cb2
        v_lshrrev_b32 v4, 3, v2
        v_and_b32 v5, 7, v2
        v_bfe_u32 v6, v2, 4, 1
        v_lshlrev_b32 v6, 2, v6
        v_xor_b32 v5, v5, v6
        v_lshlrev_b32 v5, 4, v5
        v_lshl_add_u32 v4, v4, 10, v5
        s_lshl_b32 s60, s60, 7
        s_lshl_b32 s61, s46, 15
        s_add_u32 s60, s60, s61
        v_add_u32 v4, s60, v4
        v_add_u32 v5, 0x2000, v4
        v_add_u32 v6, 0x4000, v4
        v_add_u32 v7, 0x6000, v4
        s_lshl_b32 s60, s46, 12
        s_add_u32 s60, s60, 16384
        ''')
        for n in range(3):
            e(f's_mov_b32 s61, {n*131072}')
            for k in range(4):
                e(f's_add_u32 m0, s60, {n*32768+k*1024}')
                e('s_nop 0')
                e(f'buffer_load_dwordx4 v{4+k}, s[12:15], s61 offen lds')
    e('''
    s_cmp_lg_u32 s7, 0
    s_cbranch_scc1 K1_END
    s_branch K1_KVRED
    ''')

def cons_setup(e,opt):
    e('K1_CONS:')
    e(f'''
    s_and_b32 s46, s3, 1          ; sh
    s_lshr_b32 s47, s3, 1         ; nh
    s_lshl_b32 s48, s4, 7
    s_lshl_b32 s49, s5, 3
    s_add_u32 s48, s48, s49
    s_lshl_b32 s49, s3, 1
    s_add_u32 s57, s48, s49
    s_lshl_b32 s48, s57, 10
    v_lshlrev_b32 v10, 4, v2
    s_waitcnt lgkmcnt(0)
    ''')
    srd(e,8,28,S*D*2)
    e('''
    buffer_load_dwordx4 v[16:19], v10, s[8:11], s48 offen
    buffer_load_dwordx4 v[20:23], v10, s[8:11], s48 offen offset:1024
    ''')
    srds_rest(e,opt)
    if opt.get('pfcode'):
        n=opt['pfcode']
        e(f'''
        s_cmp_ge_u32 s3, {n}
        s_cbranch_scc1 K1_NOPFC
        s_getpc_b64 s[86:87]
        K1_PC:
        s_sub_u32 s86, s86, K1_PC-{opt.get('k1name','k1_kernel')}
        s_subb_u32 s87, s87, 0
        s_lshl_b32 s88, s3, 13
        v_lshlrev_b32 v8, 7, v2
        v_add_u32 v8, s88, v8
        s_mov_b32 s88, K_TEXT_END-{opt.get('k1name','k1_kernel')}-4
        v_min_u32 v8, s88, v8
        global_load_dword v117, v8, s[86:87]
        K1_NOPFC:
        ''')
    e(f'''
    s_cmp_lg_u32 s3, 0
    s_cbranch_scc1 K1_NOZ
    s_cmp_lg_u32 s2, 0
    s_cbranch_scc1 K1_NON
    s_memrealtime s[48:49]
    s_waitcnt lgkmcnt(0)
    s_or_b32 s48, s48, 1
    v_mov_b32 v5, s48
    v_mov_b32 v4, {NONCE_IDX*4}
    s_mov_b64 exec, 1
    buffer_store_dword v5, v4, s[24:27], 0 offen sc1
    s_mov_b64 exec, -1
    K1_NON:
    s_cmp_lg_u32 s7, 0
    s_cbranch_scc1 K1_NOZ
    s_cmp_lg_u32 s4, 0
    s_cbranch_scc1 K1_NOZ
    v_mov_b32 v12, 0
    v_mov_b32 v13, 0
    v_mov_b32 v14, 0
    v_mov_b32 v15, 0
    s_lshl_b32 s48, s5, 12
    s_add_u32 s48, s48, {WS_KV}
    buffer_store_dwordx4 v[12:15], v10, s[16:19], s48 offen sc1
    buffer_store_dwordx4 v[12:15], v10, s[16:19], s48 offen offset:1024 sc1
    buffer_store_dwordx4 v[12:15], v10, s[16:19], s48 offen offset:2048 sc1
    buffer_store_dwordx4 v[12:15], v10, s[16:19], s48 offen offset:3072 sc1
    s_mov_b32 exec_lo, 0xffff
    s_mov_b32 exec_hi, 0
    s_lshl_b32 s48, s5, 8
    s_add_u32 s48, s48, {WS_Z}
    buffer_store_dwordx4 v[12:15], v10, s[16:19], s48 offen sc1
    s_waitcnt vmcnt(0)
    s_mov_b32 exec_lo, 1
    v_mov_b32 v5, 1
    s_lshl_b32 s48, s5, 2
    v_mov_b32 v4, s48
    buffer_store_dword v5, v4, s[24:27], 0 offen sc1
    s_mov_b64 exec, -1
    K1_NOZ:
    v_and_b32 v3, 31, v2             ; r32
    v_lshrrev_b32 v4, 5, v2          ; hi
    v_lshrrev_b32 v5, 1, v3
    v_and_b32 v5, 7, v5
    v_xor_b32 v5, v5, v4
    v_lshlrev_b32 v5, 4, v5
    v_lshl_add_u32 v5, v3, 7, v5
    s_lshl_b32 s49, s46, 13
    v_add_u32 v5, s49, v5
    s_lshl_b32 s49, s46, 5
    v_xor_b32 v{XA}, s49, v5
    v_xor_b32 v{XA+1}, 32, v5
    v_xor_b32 v{XA+1}, s49, v{XA+1}
    v_xor_b32 v{XA+2}, 64, v{XA}
    v_xor_b32 v{XA+3}, 64, v{XA+1}
    ''')
    wlane(e)
    waddr(e,47,WA,50)
    for r in range(ACC,ACC+96): e(f'v_mov_b32 v{r}, 0')
    for r in range(FB,FB+20): e(f'v_mov_b32 v{r}, 0')
    e('v_mov_b32 v12, 0x3f803f80')
    for r in (24,26,28,30): e(f'v_mov_b32 v{r}, 0')
    e('s_waitcnt vmcnt(0)')
    for d in range(4):
        for r in range(2):
            x=16+4*r+d
            e(f'v_dot2_f32_bf16 v{24+4*r}, v{x}, v12, v{24+4*r}')
            e(f'v_dot2_f32_bf16 v{26+4*r}, v{x}, v{x}, v{26+4*r}')
    e('s_nop 2')
    vals=[24,26,28,30]
    for ctl in ('row_shr:1 row_mask:0xf','row_shr:2 row_mask:0xf','row_shr:4 row_mask:0xf','row_shr:8 row_mask:0xf'):
        for v in vals: e(f'v_add_f32_dpp v{v}, v{v}, v{v} {ctl} bank_mask:0xf bound_ctrl:0')
    for ctl in ('row_bcast:15 row_mask:0xa','row_bcast:31 row_mask:0xc'):
        for v in vals: e(f'v_add_f32_dpp v{v}, v{v}, v{v} {ctl} bank_mask:0xf')
    for r in range(2):
        sA,qA=24+4*r,26+4*r; o=32+4*r
        e(f'''
        v_mul_f32 v{o}, {hx(-1.0/512)}, v{sA}
        v_mul_f32 v{o+1}, {hx(1.0/512)}, v{qA}
        v_fma_f32 v{o+1}, -v{o}, v{o}, v{o+1}
        v_max_f32 v{o+1}, 0, v{o+1}
        v_add_f32 v{o+1}, {hx(1e-5)}, v{o+1}
        ''')
    e(f'''
    s_lshl_b32 s56, s57, 4
    s_add_u32 s56, s56, {WS_STG}
    ''')
    e('s_lshl_b32 s50, s46, 11')
    for t in (2,1,0):
        e(f'v_subrev_u32 v{WA+2*t+1}, s50, v{WA+t}')
        e(f'v_add_u32 v{WA+2*t}, s50, v{WA+t}')
    e('''
    s_mov_b32 s48, 8
    s_mov_b32 s49, 0
    ''')
    if opt.get('prio',1): e('s_setprio 3')
    e('''
    s_cmp_lg_u32 s7, 0
    s_cbranch_scc1 K1_CF
    ''')

def reads(p,buf):
    par=p&1
    L=[f'ds_read_b128 {vr(buf,4)}, v{XA+p}']
    L+=[f'ds_read_b64_tr_b16 {vr(buf+8,2)}, v{WA+par} offset:{p*2048}', f'ds_read_b64_tr_b16 {vr(buf+10,2)}, v{WA+par} offset:{p*2048+512}']
    L+=[f'ds_read_b128 {vr(buf+4,4)}, v{XA+p} offset:4096']
    for t in (1,2):
        L+=[f'ds_read_b64_tr_b16 {vr(buf+8+4*t,2)}, v{WA+2*t+par} offset:{p*2048}', f'ds_read_b64_tr_b16 {vr(buf+10+4*t,2)}, v{WA+2*t+par} offset:{p*2048+512}']
    return L
def mfmas(buf,ffn):
    L=[]
    for t in range(3):
        for a in range(2):
            X=vr(buf+4*a,4); W=vr(buf+8+4*t,4); A=vr(acc(t,a),16)
            if ffn or t==0: L.append(f'v_mfma_f32_32x32x16_bf16 {A}, {W}, {X}, {A}')
            else: L.append(f'v_mfma_f32_32x32x16_bf16 {A}, {X}, {W}, {A}')
    return L
def reads_t(p,buf,name):
    tags=['x0','w0','w0','x1','w1','w1','w2','w2']
    return [(x,name+t) for x,t in zip(reads(p,buf),tags)]
def mfmas_t(buf,ffn,name):
    L=[]; m=mfmas(buf,ffn); k=0
    for t in range(3):
        for a in range(2):
            L.append((m[k],{name+f'x{a}',name+f'w{t}'})); k+=1
    return L
def segment(e,q,ms,rs,pattern):
    k=0
    for i,(m,nd) in enumerate(ms):
        q.need(e,nd)
        e(m)
        for _ in range(pattern[i] if i<len(pattern) else 0):
            if k<len(rs):
                x,tag=rs[k]; k+=1
                e(x)
                if tag: q.issue(tag)
    assert k==len(rs)
def mainloop(e,ffn,tag,opt={}):
    stamp(e,opt)
    e(f'K1_ML{tag}:')
    e('s_barrier')
    if opt.get('profloop'): stamp(e,opt)
    q=DSQ()
    pat=opt.get('rdpat',[3,3,2])
    segment(e,q,[(m,set()) for m in mfmas(FB,ffn)], reads_t(0,FA,'A'), pat)
    segment(e,q,mfmas_t(FA,ffn,'A'), reads_t(1,FB,'B'), pat)
    segment(e,q,mfmas_t(FB,ffn,'B'), reads_t(2,FA,'A'), pat)
    adv=['s_add_u32 s49, s49, s64', f's_cmp_eq_u32 s49, {NS*SLOT}', 's_cselect_b32 s50, s65, s64', 's_cselect_b32 s49, 0, s49']
    upd=[f'v_add_u32 v{XA+i}, s50, v{XA+i}' for i in range(4)]+[f'v_add_u32 v{WA+i}, s50, v{WA+i}' for i in range(6)]
    rs=reads_t(3,FB,'B')+[(x,None) for x in adv+upd]
    segment(e,q,mfmas_t(FA,ffn,'A'), rs, pat+[4,5,5])
    q.all(e)
    e(f'''
    s_cmp_lg_u32 s48, 7
    s_cbranch_scc1 K1_NPUB{tag}
    v_mov_b32 v4, {NONCE}
    ds_read_b32 v34, v4
    v_mov_b32 v4, 0
    s_waitcnt lgkmcnt(0)
    v_mov_b32 v35, v34
    v_mov_b32 v38, v34
    v_mov_b32 v39, v34
    s_mov_b32 exec_lo, 0
    s_mov_b32 exec_hi, 0x80000000
    buffer_store_dwordx4 v[32:35], v4, s[16:19], s56 offen sc1
    buffer_store_dwordx4 v[36:39], v4, s[16:19], s56 offen offset:16 sc1
    s_mov_b64 exec, -1
    K1_NPUB{tag}:
    s_sub_u32 s48, s48, 1
    s_cmp_lg_u32 s48, 0
    s_cbranch_scc1 K1_ML{tag}
    ''')
    for x in mfmas(FB,ffn): e(x)
    stamp(e,opt)

def post(e,ffn,opt={}):
    e(f'''
    v_and_b32 v3, 31, v2
    s_lshl_b32 s48, s46, 6
    v_add_u32 v4, s48, v3
    v_lshlrev_b32 v4, 5, v4
    v_add_u32 v4, {REC}, v4
    v_mov_b32 v5, {ZERO}
    v_cmp_gt_u32 vcc, 32, v2
    s_mul_i32 s49, s47, 1536
    s_add_u32 s49, s49, {WFR}
    v_lshl_add_u32 v6, v3, 4, s49
    v_cndmask_b32 v5, v5, v4, vcc
    v_add_u32 v7, 1024, v4
    v_mov_b32 v8, {ZERO}
    v_cndmask_b32 v7, v8, v7, vcc
    s_barrier
    ''')
    stamp(e,opt)
    e(f'''
    ds_read_b128 v[{WF}:{WF+3}], v6
    ds_read_b128 v[{XF}:{XF+3}], v5
    ds_read_b128 v[{XF+4}:{XF+7}], v7
    ds_read_b128 v[{WF+4}:{WF+7}], v6 offset:512
    ds_read_b128 v[{WF+8}:{WF+11}], v6 offset:1024
    ds_read_b128 v[{KC}:{KC+3}], v4 offset:16
    ds_read_b128 v[{KC+4}:{KC+7}], v4 offset:{1024+16}
    ''')
    waits={(0,0):5,(0,1):4,(1,0):3,(2,0):2}
    for t in range(3):
        for a in range(2):
            if (t,a) in waits: e(f's_waitcnt lgkmcnt({waits[(t,a)]})')
            A=vr(acc(t,a),16)
            if ffn or t==0: e(f'v_mfma_f32_32x32x16_bf16 {A}, {vr(WF+4*t,4)}, {vr(XF+4*a,4)}, {A}')
            else: e(f'v_mfma_f32_32x32x16_bf16 {A}, {vr(XF+4*a,4)}, {vr(WF+4*t,4)}, {A}')
    e('s_waitcnt lgkmcnt(0)')

def gelu_tile(t,a,OUT=OUT):
    A=acc(t,a); rs,cA=KC+4*a,KC+4*a+2
    L=[]
    R=range(0,16,2)
    for i in R: L.append(pk('mul',T0+i,A+i,A+i))
    for i in R: L.append(pk('fma',T0+i,T0+i,cA,cA,'op_sel:[0,0,1] op_sel_hi:[1,0,1]'))
    for i in R: L.append(pk('mul',T0+i,T0+i,A+i))
    for i in range(16): L.append(f'v_exp_f32 v{T0+i}, v{T0+i}')
    for i in R: L.append(pk('fma',T0+i,T0+i,rs,rs,'op_sel:[0,1,1] op_sel_hi:[1,1,1]'))
    for i in range(16): L.append(f'v_rcp_f32 v{T0+i}, v{T0+i}')
    for i in R: L.append(pk('mul',T0+i,T0+i,A+i))
    for i in R: L.append(f'v_cvt_pk_bf16_f32 v{OUT+i//2}, v{T0+i}, v{T0+i+1}')
    return L

def store2(e,so,off,opt,tmp=53,base=OUT):
    fl=opt.get('stflag','')
    if off+1024>4095:
        e(f's_add_u32 s{tmp}, s{so}, {off}')
        so=tmp; off=0
    e(f'buffer_store_dwordx4 v[{base}:{base+3}], v4, s[16:19], s{so} offen offset:{off} {fl}')
    e(f'buffer_store_dwordx4 v[{base+4}:{base+7}], v4, s[16:19], s{so} offen offset:{off+1024} {fl}')

def ffn_path(e,opt):
    e('K1_CF:')
    mainloop(e,True,'F',opt)
    post(e,True,opt)
    stamp(e,opt)
    e(f'''
    v_lshlrev_b32 v4, 4, v2
    s_lshl_b32 s48, s4, 2
    s_lshl_b32 s49, s46, 1
    s_add_u32 s48, s48, s49           ; s-tile (a=0)
    s_mul_i32 s48, s48, 86
    s_mul_i32 s49, s47, 3
    s_add_u32 s49, s49, s44
    s_lshl_b32 s50, s49, 1
    s_add_u32 s48, s48, s50
    s_lshl_b32 s48, s48, 10
    s_add_u32 s51, s48, {86*1024}     ; a=1
    s_mul_i32 s52, s47, 3
    s_sub_u32 s52, s45, s52
    ''')
    ndef=opt.get('defer',4)
    OB=[24,32,40,48,56,24]
    k=0
    for t in range(3):
        if t==2:
            e('s_cmp_lt_u32 s52, 3')
            e('s_cbranch_scc1 K1_END')
        for a in range(2):
            for x in gelu_tile(t,a,OB[k] if k<ndef else 56): e(x)
            if k>=ndef: store2(e, 48 if a==0 else 51, t*2048, opt, base=56)
            k+=1
            if k==ndef:
                for kk in range(ndef): store2(e, 48 if kk%2==0 else 51, (kk//2)*2048, opt, base=OB[kk])
            if opt.get('profloop'): stamp(e,opt)
    e('s_branch K1_END')

def qkv_path(e,opt):
    mainloop(e,False,'Q',opt)
    post(e,False,opt)
    stamp(e,opt)
    RS=48
    e(f'''
    v_lshlrev_b32 v4, 4, v2
    s_lshl_b32 s48, s4, 2
    s_lshl_b32 s49, s46, 1
    s_add_u32 s48, s48, s49           ; s-tile a=0
    s_lshl_b32 s48, s48, 5
    s_lshl_b32 s49, s5, 2
    s_lshl_b32 s50, s47, 1
    s_add_u32 s49, s49, s50
    s_add_u32 s48, s48, s49
    s_lshl_b32 s48, s48, 10
    s_add_u32 s48, s48, {WS_PQ}
    s_add_u32 s51, s48, {32*1024}
    v_lshrrev_b32 v5, 5, v2
    v_lshlrev_b32 v5, 4, v5
    s_lshl_b32 s49, s46, 8
    s_add_u32 s49, s49, {RSTD}
    v_add_u32 v5, s49, v5
    v_mov_b32 v116, {hx(LOG2E)}
    v_mov_b32 v118, {hx(1e-6)}
    v_mul_f32 v6, v116, v{KC}
    v_mul_f32 v24, v116, v{KC+4}      ; a=1
    ''')
    B='op_sel_hi:[1,0]'; B3='op_sel_hi:[1,0,0]'
    for g in range(4): e(f'ds_read_b128 v[{RS+4*g}:{RS+4*g+3}], v5 offset:{g*32}')
    for a in range(2):
        A=acc(0,a); rs=KC+4*a; rl=6 if a==0 else 24
        R=range(0,16,2)
        T=T0 if a==0 else 26
        T=T0
        for i in R: e(pk('mul',T+i,A+i,rl,None,B))
        for i in range(16): e(f'v_max_f32 v{A+i}, 0, v{A+i}')
        for i in range(16): e(f'v_exp_f32 v{T+i}, v{T+i} clamp')
        for i in R: e(pk('fma',A+i,A+i,rs,118,B3))
        for i in R: e(pk('add',T+i,T+i,A+i))
        for i in R: e(f'v_cvt_pk_bf16_f32 v{(32 if a==0 else 40)+i//2}, v{T+i}, v{T+i+1}')
    stamp(e,opt)
    KV=acc(0,0); Z=acc(0,1)
    PK=96; VF=104
    ONE=112
    for r in range(4): e(f'v_mov_b32 v{ONE+r}, 0x3f803f80')
    for a in range(2):
        if a==1:
            for g in range(4): e(f'ds_read_b128 v[{RS+4*g}:{RS+4*g+3}], v5 offset:{128+g*32}')
        e('s_waitcnt lgkmcnt(0)')
        K=acc(1,a); V=acc(2,a)
        R=range(0,16,2)
        for i in R: e(pk('mul',K+i,K+i,RS+i))
        for i in R: e(pk('mul',V+i,V+i,RS+i))
        for i in R: e(pk('mul',T0+i,K+i,116,None,B))
        for i in range(16): e(f'v_max_f32 v{K+i}, v118, v{K+i}' if False else f'v_max_f32 v{K+i}, 0, v{K+i}')
        for i in range(16): e(f'v_exp_f32 v{T0+i}, v{T0+i} clamp')
        for i in R: e(pk('add',K+i,K+i,118,None,B))
        for i in R: e(f'v_cvt_pk_bf16_f32 v{VF+i//2}, v{V+i}, v{V+i+1}')
        for i in R: e(pk('add',T0+i,T0+i,K+i))
        for i in R: e(f'v_cvt_pk_bf16_f32 v{PK+i//2}, v{T0+i}, v{T0+i+1}')
        e('s_nop 1')
        for g in range(2):
            c0 = '0' if (a==0 and g==0) else vr(KV,16)
            z0 = '0' if (a==0 and g==0) else vr(Z,16)
            e(f'v_mfma_f32_32x32x16_bf16 {vr(KV,16)}, {vr(PK+4*g,4)}, {vr(VF+4*g,4)}, {c0}')
            e(f'v_mfma_f32_32x32x16_bf16 {vr(Z,16)}, {vr(PK+4*g,4)}, {vr(ONE,4)}, {z0}')
    store2(e, 48, 0, opt, base=32)
    store2(e, 51, 0, opt, base=40)
    e(f'''
    v_and_b32 v8, 15, v2
    v_lshrrev_b32 v9, 5, v2
    v_lshl_add_u32 v8, v9, 4, v8
    v_lshlrev_b32 v8, 4, v8           ; (hiD*16+e)*16
    v_bfe_u32 v10, v2, 4, 1
    v_lshl_add_u32 v8, v10, 10, v8
    s_mul_i32 s48, s46, 4352
    s_add_u32 s48, s48, {KVP}
    s_lshl_b32 s49, s47, 11
    s_add_u32 s49, s48, s49
    v_add_u32 v8, s49, v8
    s_lshl_b32 s49, s47, 7
    s_add_u32 s49, s48, s49
    v_lshl_add_u32 v9, v9, 4, s49
    s_nop 7
    s_mov_b32 exec_lo, 0x0000ffff
    s_mov_b32 exec_hi, 0x0000ffff
    ds_write_b128 v8, v[{KV}:{KV+3}]
    ds_write_b128 v8, v[{KV+4}:{KV+7}] offset:512
    s_mov_b32 exec_lo, 0xffff0000
    s_mov_b32 exec_hi, 0xffff0000
    ds_write_b128 v8, v[{KV+8}:{KV+11}]
    ds_write_b128 v8, v[{KV+12}:{KV+15}] offset:512
    s_mov_b32 exec_lo, 1
    s_mov_b32 exec_hi, 1
    ds_write_b128 v9, v[{Z}:{Z+3}] offset:4096
    ds_write_b128 v9, v[{Z+4}:{Z+7}] offset:{4096+32}
    ds_write_b128 v9, v[{Z+8}:{Z+11}] offset:{4096+64}
    ds_write_b128 v9, v[{Z+12}:{Z+15}] offset:{4096+64+32}
    s_mov_b64 exec, -1
    ''')
    stamp(e,opt)
    e(f'''
    K1_KVRED:
    s_waitcnt lgkmcnt(0)
    s_barrier
    ''')
    stamp(e,opt)
    e(f'''
    v_lshlrev_b32 v3, 2, v0
    v_add_u32 v4, {KVP}, v3
    ds_read_b32 v8, v4
    ds_read_b32 v9, v4 offset:4352
    ds_read_b32 v10, v4 offset:2048
    ds_read_b32 v11, v4 offset:{2048+4352}
    s_lshl_b32 s48, s5, 12
    s_add_u32 s48, s48, {WS_KV}
    s_waitcnt lgkmcnt(0)
    v_add_f32 v8, v8, v9
    v_add_f32 v10, v10, v11
    buffer_atomic_add_f32 v8, v3, s[16:19], s48 offen
    buffer_atomic_add_f32 v10, v3, s[16:19], s48 offen offset:2048
    s_cmp_lg_u32 s3, 0
    s_cbranch_scc1 K1_END
    ds_read_b32 v8, v4 offset:4096
    ds_read_b32 v9, v4 offset:{4096+4352}
    s_lshl_b32 s48, s5, 8
    s_add_u32 s48, s48, {WS_Z}
    s_waitcnt lgkmcnt(0)
    v_add_f32 v8, v8, v9
    buffer_atomic_add_f32 v8, v3, s[16:19], s48 offen
    ''')

def k1(opt):
    e=E()
    if opt.get('ts'): e('s_memrealtime s[66:67]')
    prologue(e,opt)
    loader(e,opt)
    cons_setup(e,opt)
    qkv_path(e,opt)
    e('K1_END:')
    if opt.get('prof'):
        e('s_waitcnt vmcnt(0)')
        stamp(e,opt)
        stamp_flush(e,opt,16,0,8)
    if opt.get('fused'):
        e(f'''
        s_setprio 0
        s_waitcnt vmcnt(0) lgkmcnt(0)
        s_barrier
        s_cmp_lg_u32 s3, 4
        s_cbranch_scc1 K2_ENTRY
        s_lshl_b32 s48, s4, 4
        s_add_u32 s48, s48, s5
        s_lshl_b32 s48, s48, 2
        s_add_u32 s48, s48, {WS_FLG}
        v_mov_b32 v8, s63
        v_mov_b32 v9, 0
        s_mov_b64 exec, 1
        buffer_store_dword v8, v9, s[16:19], s48 offen sc1
        s_mov_b64 exec, -1
        s_branch K2_ENTRY
        ''')
    if opt.get('ts') and not opt.get('fused'):
        e(f'''
        s_waitcnt vmcnt(0)
        s_memrealtime s[68:69]
        s_waitcnt lgkmcnt(0)
        s_lshl_b32 s70, s2, 3
        s_add_u32 s70, s70, s3
        s_lshl_b32 s70, s70, 3
        s_add_u32 s70, s70, {WS_TS}
        v_mov_b32 v8, s66
        v_mov_b32 v9, s68
        v_mov_b32 v10, 0
        buffer_store_dwordx2 v[8:9], v10, s[72:75], s70 offen
        ''')
    e('K1_EXIT0:')
    e('s_endpgm')
    ffn_path(e,opt)
    return e.text()
```

```python
from common import *
from k1 import DSQ
SLOT=32768; NS=3
AOFF=0; BOFF=16384
KVB=NS*SLOT
ZL=KVB+32768
XL=ZL+2048
B2L=XL+8192
LDS_BYTES=B2L+1024
ACC=128
F0=64
MASK=0x4910
CMASK=0x36CC
NST=15

def k2(opt):
    e=E()
    fused=opt.get('fused')
    if fused:
        e('''
        K2_ENTRY:
        s_mov_b32 s30, s82
        s_mov_b32 s31, s83
        s_mov_b32 s32, s84
        s_mov_b32 s33, s85
        s_mov_b32 s34, s92
        s_mov_b32 s35, s93
        s_mov_b32 s36, s94
        s_mov_b32 s37, s95
        v_and_b32 v2, 63, v0
        ''')
    else:
        if opt.get('ts'): e('s_memrealtime s[66:67]')
        e(f'''
        s_cmp_ge_u32 s2, 256
        s_cbranch_scc1 K2_EXIT
        s_load_dwordx2 s[28:29], s[0:1], 0
        s_load_dwordx2 s[30:31], s[0:1], 16
        s_load_dwordx4 s[32:35], s[0:1], 48
        s_load_dwordx2 s[36:37], s[0:1], 64
        s_load_dwordx2 s[38:39], s[0:1], 80
        v_lshrrev_b32 v1, 6, v0
        v_and_b32 v2, 63, v0
        v_readfirstlane_b32 s3, v1
        ''')
    e(f'''
    s_and_b32 s8, s2, 7
    s_lshr_b32 s9, s2, 3
    s_and_b32 s4, s9, 3
    s_lshl_b32 s8, s8, 2
    s_add_u32 s4, s4, s8
    s_lshr_b32 s5, s9, 2              ; cb2 0..7
    s_mov_b32 s40, {opt.get('mask2',0x4920 if fused else MASK)}
    s_mov_b32 s64, {SLOT}
    s_mov_b32 s65, {-(NS-1)*SLOT & 0xffffffff:#x}
    s_cmp_lt_u32 s3, 4
    s_cbranch_scc1 K2_COMP
    ''')
    e(f'''
    s_and_b32 s46, s3, 3              ; lw
    s_mov_b32 s41, 0
    ''')
    if opt.get('rot2','off')=='on':
        e('s_and_b32 s43, s4, 3\ns_mul_i32 s41, s43, 3\ns_add_u32 s41, s41, s5\ns_cmp_ge_u32 s41, 11\ns_cselect_b32 s43, 11, 0\ns_sub_u32 s41, s41, s43')
    e(f'''
    s_mov_b32 s42, 0                  ; next attention stage
    s_lshl_b32 s45, s4, 1             ; s-tile 0
    s_mul_i32 s47, s45, {86*1024}
    s_lshl_b32 s48, s45, 15
    s_add_u32 s48, s48, {WS_PQ}
    v_lshlrev_b32 v3, 4, v2
    s_lshl_b32 s49, s46, 11
    v_add_u32 v3, s49, v3             ; linear voffset: lane*16 + lw*2048
    v_lshrrev_b32 v4, 3, v2
    v_and_b32 v5, 7, v2
    v_bfe_u32 v6, v2, 4, 1
    v_lshlrev_b32 v6, 2, v6
    v_xor_b32 v5, v5, v6
    v_lshlrev_b32 v5, 4, v5
    v_lshl_add_u32 v4, v4, 10, v5
    s_lshl_b32 s49, s5, 7
    s_lshl_b32 s50, s46, 15
    s_add_u32 s49, s49, s50
    v_add_u32 v4, s49, v4
    v_add_u32 v5, 0x2000, v4
    v_add_u32 v6, 0x4000, v4
    v_add_u32 v7, 0x6000, v4
    s_lshl_b32 s54, s46, 11
    s_lshl_b32 s55, s46, 12
    s_add_u32 s55, s55, {BOFF}
    s_mov_b32 s53, 0                  ; slot
    s_mov_b32 s52, 0
    ''')
    af=opt.get('aflag','')
    def addr():
        t=e.label('K2_AD')
        e(f'''
        s_add_u32 s58, s53, s54
        s_add_u32 s59, s53, s55
        s_bitcmp1_b32 s40, s52
        s_cbranch_scc1 {t}A
        s_lshl_b32 s56, s41, 13
        s_add_u32 s56, s56, s47
        s_add_u32 s57, s56, {86*1024}
        s_lshl_b32 s60, s41, 17
        s_add_u32 s41, s41, 1
        s_cmp_eq_u32 s41, 11
        s_cselect_b32 s41, 0, s41
        s_mov_b32 s12, s32
        s_and_b32 s13, s33, 0xffff
        s_mov_b32 s14, {F*D*2}
        s_branch {t}E
        {t}A:
        s_lshl_b32 s56, s42, 13
        s_add_u32 s56, s56, s48
        s_add_u32 s57, s56, {32*1024}
        s_lshl_b32 s60, s42, 17
        s_add_u32 s42, s42, 1
        s_mov_b32 s12, s30
        s_and_b32 s13, s31, 0xffff
        s_mov_b32 s14, {D*D*2}
        {t}E:
        s_add_u32 s52, s52, 1
        s_add_u32 s53, s53, s64
        s_cmp_eq_u32 s53, {NS*SLOT}
        s_cselect_b32 s53, 0, s53
        ''')
    def dma(a_only=False):
        if opt.get('x_nodma2'): return
        e(f'''
        s_mov_b32 m0, s58
        s_nop 0
        buffer_load_dwordx4 v3, s[8:11], s56 offen {af} lds
        buffer_load_dwordx4 v3, s[8:11], s56 offen offset:1024 {af} lds
        s_add_u32 m0, s58, 8192
        s_nop 0
        buffer_load_dwordx4 v3, s[8:11], s57 offen {af} lds
        buffer_load_dwordx4 v3, s[8:11], s57 offen offset:1024 {af} lds
        ''')
        if a_only: return
        e(f'''
        s_mov_b32 m0, s59
        s_nop 0
        buffer_load_dwordx4 v4, s[12:15], s60 offen lds
        s_add_u32 m0, s59, 1024
        s_nop 0
        buffer_load_dwordx4 v5, s[12:15], s60 offen lds
        s_add_u32 m0, s59, 2048
        s_nop 0
        buffer_load_dwordx4 v6, s[12:15], s60 offen lds
        s_add_u32 m0, s59, 3072
        s_nop 0
        buffer_load_dwordx4 v7, s[12:15], s60 offen lds
        ''')
    pfb = fused and opt.get('pfb',1)
    def xtile_b2(extra_z):
        e(f'''
        v_lshrrev_b32 v8, 3, v2
        v_and_b32 v9, 7, v2
        v_xor_b32 v9, v9, v8
        v_lshlrev_b32 v9, 4, v9
        v_lshl_add_u32 v9, v8, 10, v9
        s_lshl_b32 s56, s4, 16
        s_lshl_b32 s57, s5, 7
        s_add_u32 s56, s56, s57
        s_lshl_b32 s57, s46, 14
        s_add_u32 s56, s56, s57
        s_lshl_b32 s57, s46, 11
        s_add_u32 m0, s57, {XL}
        s_nop 0
        buffer_load_dwordx4 v9, s[20:23], s56 offen lds
        s_add_u32 m0, s57, {XL+1024}
        s_add_u32 s56, s56, 8192
        buffer_load_dwordx4 v9, s[20:23], s56 offen lds
        ''')
        if extra_z:
            e(f'''
            s_cmp_lt_u32 s46, 2
            s_cbranch_scc0 K2_NZ
            s_lshl_b32 s57, s46, 10
            s_add_u32 m0, s57, {ZL}
            s_add_u32 s56, s57, {WS_Z}
            buffer_load_dwordx4 v12, s[8:11], s56 offen {af} lds
            s_branch K2_NZE
            K2_NZ:
            ''')
        e(f'''
        v_and_b32 v8, 7, v2
        v_lshlrev_b32 v8, 4, v8
        s_lshl_b32 s56, s5, 7
        s_mov_b32 m0, {B2L}
        s_nop 0
        buffer_load_dwordx4 v8, s[24:27], s56 offen lds
        ''')
        if extra_z: e('K2_NZE:')
    def kv_loads():
        e(f'''
        s_lshl_b32 s56, s46, 13
        s_add_u32 s57, s56, {WS_KV}
        s_add_u32 s58, s56, {KVB}
        ''')
        for i in range(8):
            if i%4==0:
                e(f's_add_u32 m0, s58, {i*1024}')
                e(f's_add_u32 s59, s57, {i*1024}')
            e(f'buffer_load_dwordx4 v12, s[8:11], s59 offen offset:{(i%4)*1024} {af} lds')
    def poll(tag, load, mask_lo, mask_hi):
        e(f'''
        s_mov_b32 s61, 0x40000
        K2_PL{tag}:
        v_cmp_ne_u32 vcc, s63, v24
        s_sub_u32 s61, s61, 1
        s_cmp_eq_u32 s61, 0
        s_cbranch_scc1 K2_PE{tag}
        s_and_b32 vcc_lo, vcc_lo, {mask_lo}
        s_and_b32 vcc_hi, vcc_hi, {mask_hi}
        s_cmp_eq_u64 vcc, 0
        s_cbranch_scc1 K2_PE{tag}
        s_sleep 1
        {load}
        s_waitcnt vmcnt(0)
        s_branch K2_PL{tag}
        K2_PE{tag}:
        ''')
    if not fused:
        e('s_waitcnt lgkmcnt(0)')
        srd(e,8,38,(WS_PROF+2*256*8*256) if opt.get('prof') else WS_SIZE)
        e('s_mov_b32 s15, 0x20000')
        addr(); dma()
        addr(); dma()
        srd(e,20,28,S*D*2)
        srd(e,24,34,D*2)
        stamp_init(e,opt); stamp(e,opt)
        e('v_lshlrev_b32 v12, 4, v2')
        kv_loads()
        xtile_b2(True)
        addr()
        e('s_waitcnt vmcnt(19)')
        stamp(e,opt) if opt.get('profloop') else None
        e('s_barrier')
        dma()
        addr()
        e('s_waitcnt vmcnt(19)')
        stamp(e,opt) if opt.get('profloop') else None
        e('s_barrier')
        dma()
    else:
        na = 4 if pfb else 8
        srd(e,8,38,(WS_PROF+2*256*8*256) if opt.get('prof') else WS_SIZE)
        e('s_mov_b32 s15, 0x20000')
        srd(e,20,28,S*D*2)
        srd(e,24,34,D*2)
        e('v_lshlrev_b32 v12, 4, v2')
        stamp(e,opt)
        ld1=f'buffer_load_dword v24, v25, s[8:11], s62 offen sc1'
        e(f'''
        s_lshr_b32 s62, s4, 1
        s_lshl_b32 s62, s62, 6
        s_add_u32 s62, s62, {WS_FLG}
        v_and_b32 v25, 15, v2
        v_lshlrev_b32 v25, 2, v25
        s_cmp_lg_u32 s46, 0
        s_cbranch_scc1 K2_PER
        {ld1}
        s_waitcnt vmcnt(0)
        ''')
        poll('R',ld1,'0xffff','0')
        stamp(e,opt)
        e('s_barrier')
        addr(); dma(pfb)
        addr(); dma(pfb)
        xtile_b2(False)
        addr()
        e(f's_waitcnt vmcnt({na+3})')
        stamp(e,opt) if opt.get('profloop') else None
        e('s_barrier')
        ld2=f'buffer_load_dwordx4 v[24:27], v12, s[8:11], s62 offen sc1'
        e(f'''
        s_mov_b32 s62, {WS_FLG}
        s_cmp_lg_u32 s46, 0
        s_cbranch_scc1 K2_NL2
        {ld2}
        K2_NL2:
        ''')
        dma(pfb)
        addr()
        e(f'''
        s_waitcnt vmcnt({na})
        s_cmp_lg_u32 s46, 0
        s_cbranch_scc1 K2_PEK
        s_mov_b32 s61, 0x40000
        K2_PLK:
        v_xor_b32 v28, s63, v24
        v_xor_b32 v29, s63, v25
        v_or_b32 v28, v28, v29
        v_xor_b32 v29, s63, v26
        v_or_b32 v28, v28, v29
        v_xor_b32 v29, s63, v27
        v_or_b32 v28, v28, v29
        v_cmp_ne_u32 vcc, 0, v28
        s_sub_u32 s61, s61, 1
        s_cmp_eq_u32 s61, 0
        s_cbranch_scc1 K2_PEK
        s_cbranch_vccz K2_PEK
        s_sleep 1
        {ld2}
        s_waitcnt vmcnt(0)
        s_branch K2_PLK
        K2_PEK:
        ''')
        stamp(e,opt) if opt.get('profloop') else None
        e('s_barrier')
        e('s_mov_b32 s88, s56\ns_mov_b32 s89, s57\ns_mov_b32 s90, s58\ns_mov_b32 s91, s59')
        kv_loads()
        e(f'''
        s_cmp_lt_u32 s46, 2
        s_cbranch_scc0 K2_NZ2
        s_lshl_b32 s57, s46, 10
        s_add_u32 m0, s57, {ZL}
        s_add_u32 s56, s57, {WS_Z}
        buffer_load_dwordx4 v12, s[8:11], s56 offen {af} lds
        K2_NZ2:
        s_mov_b32 s56, s88
        s_mov_b32 s57, s89
        s_mov_b32 s58, s90
        s_mov_b32 s59, s91
        ''')
        dma()
        addr()
        e('s_waitcnt vmcnt(16)')
        stamp(e,opt) if opt.get('profloop') else None
        e('s_barrier')
        dma()
    e(f'''
    s_mov_b32 s51, {3 if fused else 2}
    K2_LL:
    s_cmp_ge_u32 s52, {NST}
    s_cbranch_scc1 K2_LNA
    ''')
    addr()
    e(f'''
    K2_LNA:
    s_cmp_eq_u32 s51, {NST-1}
    s_cbranch_scc1 K2_LW0
    s_waitcnt vmcnt(8)
    s_branch K2_LW1
    K2_LW0:
    s_waitcnt vmcnt(0)
    K2_LW1:
    ''')
    stamp(e,opt) if opt.get('profloop') else None
    e(f'''
    s_barrier
    s_cmp_ge_u32 s51, {NST-2}
    s_cbranch_scc1 K2_LNI
    ''')
    dma()
    e(f'''
    K2_LNI:
    s_add_u32 s51, s51, 1
    s_cmp_lg_u32 s51, {NST}
    s_cbranch_scc1 K2_LL
    s_barrier
    s_branch K2_END
    ''')
    e('K2_COMP:')
    e(f'''
    s_and_b32 s46, s3, 1              ; a
    s_lshr_b32 s47, s3, 1             ; kh
    v_lshrrev_b32 v7, 5, v2           ; hi
    v_lshlrev_b32 v12, 4, v2          ; lane*16
    s_lshl_b32 s48, s46, 13
    s_lshl_b32 s49, s47, 12
    s_add_u32 s48, s48, s49
    v_add_u32 v13, s48, v12
    v_and_b32 v14, 15, v2
    v_lshrrev_b32 v14, 2, v14
    v_lshl_add_u32 v14, v7, 2, v14     ; 4hi + (i>>2)
    v_lshlrev_b32 v14, 7, v14
    v_and_b32 v15, 3, v2
    v_lshlrev_b32 v15, 3, v15
    v_bfe_u32 v8, v2, 4, 1
    v_lshl_add_u32 v15, v8, 5, v15
    v_bfe_u32 v8, v2, 3, 1
    v_lshlrev_b32 v8, 6, v8
    v_xor_b32 v15, v15, v8
    s_lshl_b32 s48, s47, 13
    s_add_u32 s48, s48, {BOFF}
    v_add3_u32 v14, v14, v15, s48
    v_xor_b32 v15, 64, v14             ; tile b=1
    s_lshl_b32 s48, s47, 6
    v_xor_b32 v14, s48, v14
    v_xor_b32 v15, s48, v15
    s_lshl_b32 s48, s47, 12
    s_add_u32 s48, s48, {KVB}
    v_add_u32 v16, s48, v12            ; kv fragment read: KVB + kh*4096 + lane*16 (+ 8192 per attention stage)
    ; conversion addresses: wave w converts heads 8j+2w, 8j+2w+1 before attention stage j
    v_and_b32 v9, 31, v2
    v_lshl_add_u32 v10, v7, 4, v9
    v_lshlrev_b32 v10, 4, v10
    s_lshl_b32 s48, s47, 12
    s_add_u32 s48, s48, {KVB}
    v_add_u32 v10, s48, v10
    s_lshl_b32 s48, s47, 8
    s_add_u32 s48, s48, {ZL}
    v_lshl_add_u32 v11, v7, 4, s48
    v_cmp_gt_u32 vcc, 16, v9
    v_mov_b32 v18, 64
    v_mov_b32 v19, 0x400
    v_mov_b32 v20, 32
    v_mov_b32 v21, 0x200
    v_cndmask_b32 v18, v18, v19, vcc
    v_cndmask_b32 v20, v20, v21, vcc
    v_cndmask_b32 v10, v11, v10, vcc
    v_lshlrev_b32 v22, 1, v18
    v_lshlrev_b32 v23, 3, v18
    s_mov_b32 s41, {opt.get('cmask',0x36D8 if fused else CMASK)}
    s_mov_b32 s74, {hx(1e-6)}
    s_mov_b32 s52, 0
    s_mov_b32 s53, 0
    ''')
    for r in range(ACC,ACC+32): e(f'v_mov_b32 v{r}, 0')
    e('s_waitcnt lgkmcnt(0)')
    srd(e,8,38,(WS_PROF+2*256*8*256) if opt.get('prof') else WS_SIZE)
    srd(e,20,36,S*D*2)
    if not fused: stamp_init(e,opt)
    stamp(e,opt)
    if opt.get('prio',1): e('s_setprio 3')
    if fused: e('s_barrier')
    def acc(b): return ACC+16*b
    e('K2_CL:')
    e('s_barrier')
    if opt.get('profloop'): stamp(e,opt)
    if opt.get('x_nocomp2'): e('s_branch K2_CN')
    e('s_bitcmp1_b32 s40, s52')
    e('s_cbranch_scc1 K2_CA')
    def frd(s):
        b=F0+12*s
        return [(f'ds_read_b128 v[{b}:{b+3}], v13 offset:{s*1024}',f'a{s}'),
                (f'ds_read_b64_tr_b16 v[{b+4}:{b+5}], v14 offset:{s*2048}',f'b{s}'),
                (f'ds_read_b64_tr_b16 v[{b+6}:{b+7}], v14 offset:{s*2048+1024}',f'b{s}'),
                (f'ds_read_b64_tr_b16 v[{b+8}:{b+9}], v15 offset:{s*2048}',f'c{s}'),
                (f'ds_read_b64_tr_b16 v[{b+10}:{b+11}], v15 offset:{s*2048+1024}',f'c{s}')]
    KF=224
    def ffn_stage(conv):
        q=DSQ(); C=112
        if conv:
            e('v_add_u32 v21, v10, v20'); e('v_add_u32 v26, v10, v18'); e('v_add_u32 v27, v21, v18')
            for x,t in [(f'ds_read_b128 v[{C}:{C+3}], v10','k0'),(f'ds_read_b128 v[{C+4}:{C+7}], v21','k0'),
                        (f'ds_read_b128 v[{C+8}:{C+11}], v26','k1'),(f'ds_read_b128 v[{C+12}:{C+15}], v27','k1')]:
                e(x); q.issue(t)
            e('v_add_u32 v10, v10, v22')
            e('v_sub_u32 v22, v23, v22')
        for s in range(2):
            for x,t in frd(s): e(x); q.issue(t)
        if conv:
            for i_ in range(8): e(f'v_mov_b32 v{KF+i_}, v{KF+8+i_}')
        else:
            for x,t in frd(2): e(x); q.issue(t)
        for s in range(4):
            b=F0+12*s
            q.need(e,{f'a{s}',f'b{s}'})
            e(f'v_mfma_f32_32x32x16_bf16 {vr(acc(0),16)}, {vr(b+4,4)}, {vr(b,4)}, {vr(acc(0),16)}')
            if conv and s==0:
                for i_ in range(4): e(f'v_cvt_pk_bf16_f32 v{KF+8+i_}, v{C+2*i_}, v{C+2*i_+1}')
            q.need(e,{f'c{s}'})
            e(f'v_mfma_f32_32x32x16_bf16 {vr(acc(1),16)}, {vr(b+8,4)}, {vr(b,4)}, {vr(acc(1),16)}')
            if s==0:
                if conv:
                    for x,t in frd(2): e(x); q.issue(t)
                    for i_ in range(4): e(f'v_cvt_pk_bf16_f32 v{KF+12+i_}, v{C+8+2*i_}, v{C+8+2*i_+1}')
                else:
                    for x,t in frd(3): e(x); q.issue(t)
            if s==1 and conv:
                for x,t in frd(3): e(x); q.issue(t)
    e('s_bitcmp1_b32 s41, s52')
    e('s_cbranch_scc1 K2_CV')
    ffn_stage(False)
    e('s_branch K2_CN')
    e('K2_CV:')
    ffn_stage(True)
    e('s_branch K2_CN')
    e('K2_CA:')
    q=DSQ()
    DB=[160,176,192,208]
    def kb(h): return F0+8*h
    def wb(h): return 96+8*h
    def ofr(h): return 32+4*(h%2)
    def rd(h):
        b=kb(h)
        for x,t in [(f'ds_read_b128 v[{b+4}:{b+7}], v13 offset:{h*1024}',f'k{h}')]:
            e(x); q.issue(t)
    def rdw(h):
        b=wb(h)
        for x,t in [(f'ds_read_b64_tr_b16 v[{b}:{b+1}], v14 offset:{h*2048}',f'w{h}'),
                    (f'ds_read_b64_tr_b16 v[{b+2}:{b+3}], v14 offset:{h*2048+1024}',f'w{h}'),
                    (f'ds_read_b64_tr_b16 v[{b+4}:{b+5}], v15 offset:{h*2048}',f'x{h}'),
                    (f'ds_read_b64_tr_b16 v[{b+6}:{b+7}], v15 offset:{h*2048+1024}',f'x{h}')]:
            e(x); q.issue(t)
    def d1(h):
        b=kb(h)
        q.need(e,{f'k{h}'})
        e(f'v_mfma_f32_32x32x16_bf16 {vr(DB[h],16)}, {vr(KF+4*h,4)}, {vr(b+4,4)}, 0')
    def fin_valu(h):
        Dr=DB[h]; r=8+(h%2)
        L=[f'v_add_f32 v{r}, s74, v{Dr+8}', f'v_rcp_f32 v{r}, v{r}']
        M=[f'v_mul_f32 v{Dr+i}, v{Dr+i}, v{r}' for i in range(8)]
        C=[f'v_cvt_pk_bf16_f32 v{ofr(h)+i}, v{Dr+2*i}, v{Dr+2*i+1}' for i in range(4)]
        return L,M,C
    def mm(h,t):
        q.need(e,{f'{"wx"[t]}{h}'})
        e(f'v_mfma_f32_32x32x16_bf16 {vr(acc(t),16)}, {vr(wb(h)+4*t,4)}, {vr(ofr(h),4)}, {vr(acc(t),16)}')
    for h in range(4): rd(h)
    rdw(0); rdw(1)
    d1(0); d1(1); d1(2); d1(3)
    rdw(2)
    L0,M0,C0=fin_valu(0); L1,M1,C1=fin_valu(1); L2,M2,C2=fin_valu(2); L3,M3,C3=fin_valu(3)
    e('s_nop 3')
    for x in [L0[0],L0[1],L1[0],L1[1]]: e(x)
    for x in M0+C0: e(x)
    e('s_nop 1')
    mm(0,0)
    for x in M1[:4]: e(x)
    mm(0,1)
    rdw(3)
    for x in M1[4:]+C1+[L2[0],L2[1]]: e(x)
    mm(1,0)
    for x in [L3[0]]+M2[:4]: e(x)
    mm(1,1)
    for x in [L3[1]]+M2[4:]+C2: e(x)
    e('s_nop 0')
    mm(2,0)
    for x in M3[:4]: e(x)
    mm(2,1)
    for x in M3[4:]+C3: e(x)
    e('s_nop 1')
    mm(3,0); mm(3,1)
    e('K2_CN:')
    e(f'''
    s_waitcnt lgkmcnt(0)
    s_add_u32 s53, s53, s64
    s_cmp_eq_u32 s53, {NS*SLOT}
    s_cselect_b32 s50, s65, s64
    s_cselect_b32 s53, 0, s53
    v_add_u32 v13, s50, v13
    v_add_u32 v14, s50, v14
    v_add_u32 v15, s50, v15
    s_add_u32 s52, s52, 1
    s_cmp_lg_u32 s52, {NST}
    s_cbranch_scc1 K2_CL
    ''')
    stamp(e,opt)
    e(f'''
    s_lshl_b32 s48, s3, 12
    v_add_u32 v16, s48, v12
    s_xor_b32 s48, s3, 2
    s_lshl_b32 s48, s48, 12
    v_add_u32 v18, s48, v12
    v_and_b32 v9, 31, v2
    s_lshl_b32 s48, s46, 5
    v_add_u32 v9, s48, v9
    v_and_b32 v10, 7, v9              ; row&7
    s_lshl_b32 s49, s47, 2
    v_lshlrev_b32 v11, 7, v9
    v_lshl_add_u32 v11, v7, 3, v11
    v_add_u32 v11, {XL}, v11
    ''')
    for g in range(4): e(f'ds_write_b128 v16, v[{acc(1)+4*g}:{acc(1)+4*g+3}] offset:{g*1024}')
    e(f'''
    v_lshlrev_b32 v12, 3, v7
    s_lshl_b32 s50, s47, 6
    v_add_u32 v12, s50, v12
    v_add_u32 v12, {B2L}, v12         ; b2: b*64 + hi*8
    ''')
    for g in range(4):
        e(f'v_mov_b32 v16, s49')
        e(f'v_add_u32 v16, {g}, v16')
        e(f'v_xor_b32 v16, v16, v10')
        e(f'v_lshl_add_u32 v16, v16, 4, v11')
        e(f'ds_read_b64 v[{32+2*g}:{33+2*g}], v16')
        e(f'ds_read_b64 v[{40+2*g}:{41+2*g}], v12 offset:{g*16}')
    e(f'''
    s_mov_b32 s70, 0xffff0000
    s_lshl_b32 s48, s4, 6
    v_add_u32 v17, s48, v9
    v_lshlrev_b32 v17, 10, v17
    s_lshl_b32 s48, s5, 7
    s_lshl_b32 s49, s47, 6
    s_add_u32 s48, s48, s49
    v_lshl_add_u32 v17, v7, 4, v17
    v_add_u32 v17, s48, v17
    s_waitcnt lgkmcnt(0)
    ''')
    for g in range(4):
        for c2 in range(2):
            xr=32+2*g+c2; br=40+2*g+c2; a0=ACC+4*g+2*c2
            e(f'''
            v_lshlrev_b32 v20, 16, v{xr}
            v_and_b32 v21, s70, v{xr}
            v_lshlrev_b32 v22, 16, v{br}
            v_and_b32 v23, s70, v{br}
            v_add_f32 v20, v20, v22
            v_add_f32 v21, v21, v23
            v_add_f32 v{a0}, v20, v{a0}
            v_add_f32 v{a0+1}, v21, v{a0+1}
            ''')
    e('s_barrier')
    for g in range(4): e(f'ds_read_b128 v[{acc(1)+4*g}:{acc(1)+4*g+3}], v18 offset:{g*1024}')
    for g in range(4):
        e(f's_waitcnt lgkmcnt({3-g})')
        for i in range(4): e(f'v_add_f32 v{ACC+4*g+i}, v{ACC+4*g+i}, v{ACC+16+4*g+i}')
        for c2 in range(2): e(f'v_cvt_pk_bf16_f32 v{48+2*g+c2}, v{ACC+4*g+2*c2}, v{ACC+4*g+2*c2+1}')
    e('''
    s_nop 1
    v_permlane32_swap_b32 v48, v50
    v_permlane32_swap_b32 v49, v51
    v_permlane32_swap_b32 v52, v54
    v_permlane32_swap_b32 v53, v55
    buffer_store_dwordx4 v[48:51], v17, s[20:23], 0 offen
    buffer_store_dwordx4 v[52:55], v17, s[20:23], 0 offen offset:32
    ''')
    e('K2_END:')
    if opt.get('prof'):
        e('s_waitcnt vmcnt(0)')
        stamp(e,opt)
        stamp_flush(e,opt,8,1,8)
    if opt.get('ts'):
        e(f'''
        s_waitcnt vmcnt(0)
        s_memrealtime s[68:69]
        s_mov_b32 s76, s38
        s_and_b32 s77, s39, 0xffff
        s_mov_b32 s78, {WS_TS+2*256*8*8}
        s_mov_b32 s79, 0x20000
        s_waitcnt lgkmcnt(0)
        s_lshl_b32 s70, s2, 3
        s_add_u32 s70, s70, s3
        s_lshl_b32 s70, s70, 3
        s_add_u32 s70, s70, {WS_TS+256*8*8}
        v_mov_b32 v8, s66
        v_mov_b32 v9, s68
        v_mov_b32 v10, 0
        buffer_store_dwordx2 v[8:9], v10, s[76:79], s70 offen
        ''')
    e('K2_EXIT:')
    e('s_endpgm')
    return e.text()
```

```python
from common import *
from k1 import DSQ
SLOT=32768; NS=4
AOFF=0; BOFF=16384
KVB=NS*SLOT
ZL=KVB+16384
XL=ZL+2048
B2L=XL+8192
LDS_BYTES=B2L+1024
ACC=128
F0=64
MASK=0x4888
NST=15

def k2(opt):
    e=E()
    fused=opt.get('fused')
    if opt.get('ts'): e('s_memrealtime s[66:67]')
    e(f'''
    s_cmp_ge_u32 s2, 256
    s_cbranch_scc1 K2_EXIT
    s_load_dwordx2 s[28:29], s[0:1], 0
    s_load_dwordx2 s[30:31], s[0:1], 16
    s_load_dwordx4 s[32:35], s[0:1], 48
    s_load_dwordx2 s[36:37], s[0:1], 64
    s_load_dwordx2 s[38:39], s[0:1], 80
    v_lshrrev_b32 v1, 6, v0
    v_and_b32 v2, 63, v0
    v_readfirstlane_b32 s3, v1
    s_and_b32 s8, s2, 7
    s_lshr_b32 s9, s2, 3
    s_and_b32 s4, s9, 3
    s_lshl_b32 s8, s8, 2
    s_add_u32 s4, s4, s8
    s_lshr_b32 s5, s9, 2              ; cb2 0..7
    s_mov_b32 s40, {opt.get('mask2',MASK)}
    s_mov_b32 s64, {SLOT}
    s_mov_b32 s65, {-(NS-1)*SLOT & 0xffffffff:#x}
    s_cmp_lt_u32 s3, 4
    s_cbranch_scc1 K2_COMP
    ''')
    e(f'''
    s_and_b32 s46, s3, 3              ; lw
    s_mov_b32 s41, 0
    ''')
    if opt.get('rot2','off')=='on':
        e('s_and_b32 s43, s4, 3\ns_mul_i32 s41, s43, 3\ns_add_u32 s41, s41, s5\ns_cmp_ge_u32 s41, 11\ns_cselect_b32 s43, 11, 0\ns_sub_u32 s41, s41, s43')
    e(f'''
    s_mov_b32 s42, 0                  ; next attention stage
    s_lshl_b32 s45, s4, 1             ; s-tile 0
    s_mul_i32 s47, s45, {86*1024}
    s_lshl_b32 s48, s45, 15
    s_add_u32 s48, s48, {WS_PQ}
    v_lshlrev_b32 v3, 4, v2
    s_lshl_b32 s49, s46, 11
    v_add_u32 v3, s49, v3             ; linear voffset: lane*16 + lw*2048
    v_lshrrev_b32 v4, 3, v2
    v_and_b32 v5, 7, v2
    v_bfe_u32 v6, v2, 4, 1
    v_lshlrev_b32 v6, 2, v6
    v_xor_b32 v5, v5, v6
    v_lshlrev_b32 v5, 4, v5
    v_lshl_add_u32 v4, v4, 10, v5
    s_lshl_b32 s49, s5, 7
    s_lshl_b32 s50, s46, 15
    s_add_u32 s49, s49, s50
    v_add_u32 v4, s49, v4
    v_add_u32 v5, 0x2000, v4
    v_add_u32 v6, 0x4000, v4
    v_add_u32 v7, 0x6000, v4
    s_lshl_b32 s54, s46, 11
    s_lshl_b32 s55, s46, 12
    s_add_u32 s55, s55, {BOFF}
    s_mov_b32 s53, 0                  ; slot
    s_mov_b32 s52, 0
    s_add_u32 s63, s54, {KVB}
    ''')
    af=opt.get('aflag','')
    def addr():
        t=e.label('K2_AD')
        e(f'''
        s_add_u32 s58, s53, s54
        s_add_u32 s59, s53, s55
        s_bitcmp1_b32 s40, s52
        s_cbranch_scc1 {t}A
        s_lshl_b32 s56, s41, 13
        s_add_u32 s56, s56, s47
        s_add_u32 s57, s56, {86*1024}
        s_lshl_b32 s60, s41, 17
        s_add_u32 s41, s41, 1
        s_cmp_eq_u32 s41, 11
        s_cselect_b32 s41, 0, s41
        s_mov_b32 s12, s32
        s_and_b32 s13, s33, 0xffff
        s_mov_b32 s14, {F*D*2}
        s_mov_b32 s62, 0
        s_branch {t}E
        {t}A:
        s_lshl_b32 s61, s42, 13
        s_add_u32 s61, s61, {WS_KV}       ; kv records of this attention stage
        s_and_b32 s62, s42, 1
        s_lshl_b32 s62, s62, 13
        s_add_u32 s62, s62, s63
        s_lshl_b32 s56, s42, 13
        s_add_u32 s56, s56, s48
        s_add_u32 s57, s56, {32*1024}
        s_lshl_b32 s60, s42, 17
        s_add_u32 s42, s42, 1
        s_mov_b32 s12, s30
        s_and_b32 s13, s31, 0xffff
        s_mov_b32 s14, {D*D*2}
        {t}E:
        s_add_u32 s52, s52, 1
        s_add_u32 s53, s53, s64
        s_cmp_eq_u32 s53, {NS*SLOT}
        s_cselect_b32 s53, 0, s53
        ''')
    def dma():
        if opt.get('x_nodma2'): return
        t=e.label('K2_DK')
        e(f'''
        s_cmp_eq_u32 s62, 0
        s_cbranch_scc1 {t}
        s_mov_b32 m0, s62
        s_nop 0
        buffer_load_dwordx4 v3, s[8:11], s61 offen {af} lds
        buffer_load_dwordx4 v3, s[8:11], s61 offen offset:1024 {af} lds
        {t}:
        s_mov_b32 m0, s58
        s_nop 0
        buffer_load_dwordx4 v3, s[8:11], s56 offen {af} lds
        buffer_load_dwordx4 v3, s[8:11], s56 offen offset:1024 {af} lds
        s_add_u32 m0, s58, 8192
        s_nop 0
        buffer_load_dwordx4 v3, s[8:11], s57 offen {af} lds
        buffer_load_dwordx4 v3, s[8:11], s57 offen offset:1024 {af} lds
        s_mov_b32 m0, s59
        s_nop 0
        buffer_load_dwordx4 v4, s[12:15], s60 offen lds
        s_add_u32 m0, s59, 1024
        s_nop 0
        buffer_load_dwordx4 v5, s[12:15], s60 offen lds
        s_add_u32 m0, s59, 2048
        s_nop 0
        buffer_load_dwordx4 v6, s[12:15], s60 offen lds
        s_add_u32 m0, s59, 3072
        s_nop 0
        buffer_load_dwordx4 v7, s[12:15], s60 offen lds
        ''')
    e('s_waitcnt lgkmcnt(0)')
    srd(e,8,38,(WS_PROF+2*256*8*256) if opt.get('prof') else WS_SIZE)
    e('s_mov_b32 s15, 0x20000')
    addr(); dma()
    addr(); dma()
    srd(e,20,28,S*D*2)
    srd(e,24,34,D*2)
    stamp_init(e,opt); stamp(e,opt)
    e('v_lshlrev_b32 v12, 4, v2')
    e(f'''
    v_lshrrev_b32 v8, 3, v2
    v_and_b32 v9, 7, v2
    v_xor_b32 v9, v9, v8
    v_lshlrev_b32 v9, 4, v9
    v_lshl_add_u32 v9, v8, 10, v9
    s_lshl_b32 s56, s4, 16
    s_lshl_b32 s57, s5, 7
    s_add_u32 s56, s56, s57
    s_lshl_b32 s57, s46, 14
    s_add_u32 s56, s56, s57
    s_lshl_b32 s57, s46, 11
    s_add_u32 m0, s57, {XL}
    s_nop 0
    buffer_load_dwordx4 v9, s[20:23], s56 offen lds
    s_add_u32 m0, s57, {XL+1024}
    s_add_u32 s56, s56, 8192
    buffer_load_dwordx4 v9, s[20:23], s56 offen lds
    s_cmp_lt_u32 s46, 2
    s_cbranch_scc0 K2_NZ
    s_lshl_b32 s57, s46, 10
    s_add_u32 m0, s57, {ZL}
    s_add_u32 s56, s57, {WS_Z}
    buffer_load_dwordx4 v12, s[8:11], s56 offen {af} lds
    s_branch K2_NZE
    K2_NZ:
    v_and_b32 v8, 7, v2
    v_lshlrev_b32 v8, 4, v8
    s_lshl_b32 s56, s5, 7
    s_mov_b32 m0, {B2L}
    s_nop 0
    buffer_load_dwordx4 v8, s[24:27], s56 offen lds
    K2_NZE:
    ''')
    addr()
    e('s_waitcnt vmcnt(11)')
    stamp(e,opt) if opt.get('profloop') else None
    e('s_barrier')
    dma()
    addr(); dma()
    e(f'''
    s_mov_b32 s51, 1
    K2_LL:
    s_cmp_ge_u32 s52, {NST}
    s_cbranch_scc1 K2_LNA
    ''')
    addr()
    e(f'''
    K2_LNA:
    s_cmp_ge_u32 s51, {NST-2}
    s_cbranch_scc1 K2_LW0
    s_waitcnt vmcnt(16)
    s_branch K2_LW1
    K2_LW0:
    s_cmp_eq_u32 s51, {NST-1}
    s_cbranch_scc1 K2_LW2
    s_waitcnt vmcnt(8)
    s_branch K2_LW1
    K2_LW2:
    s_waitcnt vmcnt(0)
    K2_LW1:
    ''')
    stamp(e,opt) if opt.get('profloop') else None
    e(f'''
    s_barrier
    s_cmp_ge_u32 s51, {NST-3}
    s_cbranch_scc1 K2_LNI
    ''')
    dma()
    e(f'''
    K2_LNI:
    s_add_u32 s51, s51, 1
    s_cmp_lg_u32 s51, {NST}
    s_cbranch_scc1 K2_LL
    s_barrier
    s_branch K2_END
    ''')
    e('K2_COMP:')
    e(f'''
    s_and_b32 s46, s3, 1              ; a
    s_lshr_b32 s47, s3, 1             ; kh
    v_lshrrev_b32 v7, 5, v2           ; hi
    v_lshlrev_b32 v12, 4, v2          ; lane*16
    s_lshl_b32 s48, s46, 13
    s_lshl_b32 s49, s47, 12
    s_add_u32 s48, s48, s49
    v_add_u32 v13, s48, v12
    v_and_b32 v14, 15, v2
    v_lshrrev_b32 v14, 2, v14
    v_lshl_add_u32 v14, v7, 2, v14     ; 4hi + (i>>2)
    v_lshlrev_b32 v14, 7, v14
    v_and_b32 v15, 3, v2
    v_lshlrev_b32 v15, 3, v15
    v_bfe_u32 v8, v2, 4, 1
    v_lshl_add_u32 v15, v8, 5, v15
    v_bfe_u32 v8, v2, 3, 1
    v_lshlrev_b32 v8, 6, v8
    v_xor_b32 v15, v15, v8
    s_lshl_b32 s48, s47, 13
    s_add_u32 s48, s48, {BOFF}
    v_add3_u32 v14, v14, v15, s48
    v_xor_b32 v15, 64, v14             ; tile b=1
    s_lshl_b32 s48, s47, 6
    v_xor_b32 v14, s48, v14
    v_xor_b32 v15, s48, v15
    s_lshl_b32 s48, s47, 12
    s_add_u32 s48, s48, {KVB}
    v_add_u32 v16, s48, v12            ; kv fragment read: KVB + kh*4096 + lane*16 (+ 8192 per attention stage)
    ; conversion addresses: wave w converts heads 8j+2w, 8j+2w+1 before attention stage j
    v_and_b32 v9, 31, v2
    v_lshl_add_u32 v10, v7, 4, v9
    v_lshlrev_b32 v10, 4, v10
    s_lshl_b32 s48, s3, 11
    s_add_u32 s48, s48, {KVB}
    v_add_u32 v10, s48, v10
    v_add_u32 v17, s48, v12
    s_lshl_b32 s48, s3, 7
    s_add_u32 s48, s48, {ZL}
    v_lshl_add_u32 v11, v7, 4, s48
    v_cmp_gt_u32 vcc, 16, v9
    v_mov_b32 v18, 64
    v_mov_b32 v19, 0x400
    v_mov_b32 v20, 32
    v_mov_b32 v21, 0x200
    v_cndmask_b32 v18, v18, v19, vcc
    v_cndmask_b32 v20, v20, v21, vcc
    v_cndmask_b32 v10, v11, v10, vcc
    v_mov_b32 v19, 0x2000
    v_mov_b32 v26, 0x200
    v_cndmask_b32 v19, 0, v19, vcc
    v_cndmask_b32 v26, v26, 0, vcc
    s_mov_b32 s74, {hx(1e-6)}
    s_mov_b32 s52, 0
    s_mov_b32 s53, 0
    ''')
    for r in range(ACC,ACC+32): e(f'v_mov_b32 v{r}, 0')
    e('s_waitcnt lgkmcnt(0)')
    srd(e,8,38,(WS_PROF+2*256*8*256) if opt.get('prof') else WS_SIZE)
    srd(e,20,36,S*D*2)
    stamp_init(e,opt); stamp(e,opt)
    if opt.get('prio',1): e('s_setprio 3')
    def acc(b): return ACC+16*b
    e('K2_CL:')
    e('s_barrier')
    if opt.get('profloop'): stamp(e,opt)
    if opt.get('x_nocomp2'): e('s_branch K2_CN')
    e('s_bitcmp1_b32 s40, s52')
    e('s_cbranch_scc1 K2_CA')
    def frd(s):
        b=F0+12*s
        return [(f'ds_read_b128 v[{b}:{b+3}], v13 offset:{s*1024}',f'a{s}'),
                (f'ds_read_b64_tr_b16 v[{b+4}:{b+5}], v14 offset:{s*2048}',f'b{s}'),
                (f'ds_read_b64_tr_b16 v[{b+6}:{b+7}], v14 offset:{s*2048+1024}',f'b{s}'),
                (f'ds_read_b64_tr_b16 v[{b+8}:{b+9}], v15 offset:{s*2048}',f'c{s}'),
                (f'ds_read_b64_tr_b16 v[{b+10}:{b+11}], v15 offset:{s*2048+1024}',f'c{s}')]
    def ffn_stage(conv):
        q=DSQ(); C=112
        for s in range(3):
            for x,t in frd(s): e(x); q.issue(t)
        if conv:
            e('v_add_u32 v21, v10, v20'); e('v_add_u32 v22, v10, v18'); e('v_add_u32 v23, v21, v18')
        for s in range(4):
            b=F0+12*s
            q.need(e,{f'a{s}',f'b{s}'})
            e(f'v_mfma_f32_32x32x16_bf16 {vr(acc(0),16)}, {vr(b+4,4)}, {vr(b,4)}, {vr(acc(0),16)}')
            if conv and s==2:
                q.need(e,{'k0'})
                for i_ in range(4): e(f'v_cvt_pk_bf16_f32 v{C+i_}, v{C+2*i_}, v{C+2*i_+1}')
            q.need(e,{f'c{s}'})
            e(f'v_mfma_f32_32x32x16_bf16 {vr(acc(1),16)}, {vr(b+8,4)}, {vr(b,4)}, {vr(acc(1),16)}')
            if conv and s==0:
                for x,t in [(f'ds_read_b128 v[{C}:{C+3}], v10','k0'),(f'ds_read_b128 v[{C+4}:{C+7}], v21','k0'),
                            (f'ds_read_b128 v[{C+8}:{C+11}], v22','k1'),(f'ds_read_b128 v[{C+12}:{C+15}], v23','k1')]:
                    e(x); q.issue(t)
                e('v_xor_b32 v10, v10, v19')
                e('v_add_u32 v10, v10, v26')
            if s==(1 if conv else 0):
                for x,t in frd(3): e(x); q.issue(t)
            if conv and s==2:
                q.need(e,{'k1'})
                for i_ in range(4): e(f'v_cvt_pk_bf16_f32 v{C+8+i_}, v{C+8+2*i_}, v{C+8+2*i_+1}')
                e(f'ds_write_b128 v17, v[{C}:{C+3}]'); q.issue('w')
                e(f'ds_write_b128 v17, v[{C+8}:{C+11}] offset:1024'); q.issue('w')
                e('v_xor_b32 v17, 0x2000, v17')
    e('s_add_u32 s48, s52, 1')
    e('s_bitcmp1_b32 s40, s48')
    e('s_cbranch_scc1 K2_CV')
    ffn_stage(False)
    e('s_branch K2_CN')
    e('K2_CV:')
    ffn_stage(True)
    e('s_branch K2_CN')
    e('K2_CA:')
    q=DSQ()
    DB=[32,48]
    def hb(h): return F0+24*(h%2)
    OFR=24
    def rd(h):
        b=hb(h)
        for x,t in [(f'ds_read_b128 v[{b}:{b+3}], v16 offset:{h*1024}',f'k{h}'),
                    (f'ds_read_b128 v[{b+4}:{b+7}], v13 offset:{h*1024}',f'k{h}')]:
            e(x); q.issue(t)
    def rdw(h):
        b=hb(h)+8+ (0)
        for x,t in [(f'ds_read_b64_tr_b16 v[{b}:{b+1}], v14 offset:{h*2048}',f'w{h}'),
                    (f'ds_read_b64_tr_b16 v[{b+2}:{b+3}], v14 offset:{h*2048+1024}',f'w{h}'),
                    (f'ds_read_b64_tr_b16 v[{b+4}:{b+5}], v15 offset:{h*2048}',f'x{h}'),
                    (f'ds_read_b64_tr_b16 v[{b+6}:{b+7}], v15 offset:{h*2048+1024}',f'x{h}')]:
            e(x); q.issue(t)
    def d1(h):
        b=hb(h)
        q.need(e,{f'k{h}'})
        e(f'v_mfma_f32_32x32x16_bf16 {vr(DB[h%2],16)}, {vr(b,4)}, {vr(b+4,4)}, 0')
    def fin(h):
        Dr=DB[h%2]; b=hb(h)+8
        e(f'v_add_f32 v8, s74, v{Dr+8}')
        e(f'v_rcp_f32 v8, v8')
        e('s_nop 0')
        for i in range(8): e(f'v_mul_f32 v{Dr+i}, v{Dr+i}, v8')
        for i in range(4): e(f'v_cvt_pk_bf16_f32 v{OFR+i}, v{Dr+2*i}, v{Dr+2*i+1}')
        q.need(e,{f'w{h}'})
        e('s_nop 1')
        e(f'v_mfma_f32_32x32x16_bf16 {vr(acc(0),16)}, {vr(b,4)}, {vr(OFR,4)}, {vr(acc(0),16)}')
        q.need(e,{f'x{h}'})
        e(f'v_mfma_f32_32x32x16_bf16 {vr(acc(1),16)}, {vr(b+4,4)}, {vr(OFR,4)}, {vr(acc(1),16)}')
    rd(0); rd(1); rdw(0); rdw(1)
    d1(0); d1(1)
    rd(2); rd(3)
    e('s_nop 5')
    fin(0)
    d1(2)
    rdw(2)
    fin(1)
    d1(3)
    rdw(3)
    e('s_nop 1')
    fin(2)
    fin(3)
    e('v_xor_b32 v16, 0x2000, v16')
    e('K2_CN:')
    e(f'''
    s_waitcnt lgkmcnt(0)
    s_add_u32 s53, s53, s64
    s_cmp_eq_u32 s53, {NS*SLOT}
    s_cselect_b32 s50, s65, s64
    s_cselect_b32 s53, 0, s53
    v_add_u32 v13, s50, v13
    v_add_u32 v14, s50, v14
    v_add_u32 v15, s50, v15
    s_add_u32 s52, s52, 1
    s_cmp_lg_u32 s52, {NST}
    s_cbranch_scc1 K2_CL
    ''')
    stamp(e,opt)
    e(f'''
    s_lshl_b32 s48, s3, 12
    v_add_u32 v16, s48, v12
    s_xor_b32 s48, s3, 2
    s_lshl_b32 s48, s48, 12
    v_add_u32 v18, s48, v12
    v_and_b32 v9, 31, v2
    s_lshl_b32 s48, s46, 5
    v_add_u32 v9, s48, v9
    v_and_b32 v10, 7, v9              ; row&7
    s_lshl_b32 s49, s47, 2
    v_lshlrev_b32 v11, 7, v9
    v_lshl_add_u32 v11, v7, 3, v11
    v_add_u32 v11, {XL}, v11
    ''')
    for g in range(4): e(f'ds_write_b128 v16, v[{acc(1)+4*g}:{acc(1)+4*g+3}] offset:{g*1024}')
    e(f'''
    v_lshlrev_b32 v12, 3, v7
    s_lshl_b32 s50, s47, 6
    v_add_u32 v12, s50, v12
    v_add_u32 v12, {B2L}, v12         ; b2: b*64 + hi*8
    ''')
    for g in range(4):
        e(f'v_mov_b32 v16, s49')
        e(f'v_add_u32 v16, {g}, v16')
        e(f'v_xor_b32 v16, v16, v10')
        e(f'v_lshl_add_u32 v16, v16, 4, v11')
        e(f'ds_read_b64 v[{32+2*g}:{33+2*g}], v16')
        e(f'ds_read_b64 v[{40+2*g}:{41+2*g}], v12 offset:{g*16}')
    e(f'''
    s_mov_b32 s70, 0xffff0000
    s_lshl_b32 s48, s4, 6
    v_add_u32 v17, s48, v9
    v_lshlrev_b32 v17, 10, v17
    s_lshl_b32 s48, s5, 7
    s_lshl_b32 s49, s47, 6
    s_add_u32 s48, s48, s49
    v_lshl_add_u32 v17, v7, 4, v17
    v_add_u32 v17, s48, v17
    s_waitcnt lgkmcnt(0)
    ''')
    for g in range(4):
        for c2 in range(2):
            xr=32+2*g+c2; br=40+2*g+c2; a0=ACC+4*g+2*c2
            e(f'''
            v_lshlrev_b32 v20, 16, v{xr}
            v_and_b32 v21, s70, v{xr}
            v_lshlrev_b32 v22, 16, v{br}
            v_and_b32 v23, s70, v{br}
            v_add_f32 v20, v20, v22
            v_add_f32 v21, v21, v23
            v_add_f32 v{a0}, v20, v{a0}
            v_add_f32 v{a0+1}, v21, v{a0+1}
            ''')
    e('s_barrier')
    for g in range(4): e(f'ds_read_b128 v[{acc(1)+4*g}:{acc(1)+4*g+3}], v18 offset:{g*1024}')
    for g in range(4):
        e(f's_waitcnt lgkmcnt({3-g})')
        for i in range(4): e(f'v_add_f32 v{ACC+4*g+i}, v{ACC+4*g+i}, v{ACC+16+4*g+i}')
        for c2 in range(2): e(f'v_cvt_pk_bf16_f32 v{48+2*g+c2}, v{ACC+4*g+2*c2}, v{ACC+4*g+2*c2+1}')
    e('''
    s_nop 1
    v_permlane32_swap_b32 v48, v50
    v_permlane32_swap_b32 v49, v51
    v_permlane32_swap_b32 v52, v54
    v_permlane32_swap_b32 v53, v55
    buffer_store_dwordx4 v[48:51], v17, s[20:23], 0 offen
    buffer_store_dwordx4 v[52:55], v17, s[20:23], 0 offen offset:32
    ''')
    e('K2_END:')
    if opt.get('prof'):
        e('s_waitcnt vmcnt(0)')
        stamp(e,opt)
        stamp_flush(e,opt,8,1,8)
    if opt.get('ts'):
        e(f'''
        s_waitcnt vmcnt(0)
        s_memrealtime s[68:69]
        s_mov_b32 s76, s38
        s_and_b32 s77, s39, 0xffff
        s_mov_b32 s78, {WS_TS+2*256*8*8}
        s_mov_b32 s79, 0x20000
        s_waitcnt lgkmcnt(0)
        s_lshl_b32 s70, s2, 3
        s_add_u32 s70, s70, s3
        s_lshl_b32 s70, s70, 3
        s_add_u32 s70, s70, {WS_TS+256*8*8}
        v_mov_b32 v8, s66
        v_mov_b32 v9, s68
        v_mov_b32 v10, 0
        buffer_store_dwordx2 v[8:9], v10, s[76:79], s70 offen
        ''')
    e('K2_EXIT:')
    e('s_endpgm')
    return e.text()
```

```python
import sys, json
from common import *
import k1, k2, k2b, k1b, k2c, k2d
PRE=open('parallel_sum__linear_attn_block__dense_activation_gelu__prompt.s.ref').read().split('; Override launch')[0]
def build_fused(opt):
    opt=dict(opt); opt['fused']=1; opt['k1name']='parallel_sum__linear_attn_block__dense_activation_gelu__prompt_kernel'; opt.setdefault('aflag','sc1')
    KN=opt['k1name']
    o=PRE
    o+='; One launch: phase 1 = LN-folded qkv / ffn1 GEMMs (+phi, gelu, kv sums), phase 2 = output GEMM (attention finish, ffn2, residual).\n'
    o+=f'; @launch grid=(256,1,1) block=(512,1,1) lds={max(k1b.LDS_BYTES,k2c.LDS_BYTES)}\n'
    o+=HEADER+kernel_begin(KN)+k1b.k1(opt)+k2c.k2(opt)+'K_TEXT_END:\n    s_endpgm\n'
    nv=248 if opt.get('prof') else 240
    o+=RODATA+kernel_desc(KN,nv,102,nv)
    return o
def build(opt):
    if opt.get('fused'): return build_fused(opt)
    o=PRE
    o+='; Two launches: k1 = LN-folded qkv / ffn1 GEMMs (+phi, gelu, kv sums), k2 = output GEMM (attention finish, ffn2, residual).\n'
    K1=k1b if opt.get('k1b',1) else k1
    o+=f'; @launch kernel=k1_kernel grid=(256,1,1) block=(512,1,1) lds={k1b.LDS_BYTES if opt.get("k1b",1) else 163840}\n'
    K2={'b':k2b,'c':k2c,'d':k2d}[opt.get('k2','c')]
    o+=f'; @launch kernel=k2_kernel grid=(256,1,1) block=(512,1,1) lds={K2.LDS_BYTES}\n'
    if opt.get('ts'): o+='; @launch kernel=k3_kernel grid=(1,1,1) block=(256,1,1) lds=0\n'
    o+=HEADER
    o+=kernel_begin('k1_kernel')+K1.k1(opt)
    o+=kernel_begin('k2_kernel')+K2.k2(opt)
    o+='K_TEXT_END:\n    s_endpgm\n'
    if opt.get('ts'): o+=kernel_begin('k3_kernel')+k2.k3_ts()
    o+=RODATA+kernel_desc('k1_kernel',248 if opt.get('prof') else 240,102,248 if opt.get('prof') else 240)
    o+='.p2align 6\n'+kernel_desc('k2_kernel',248 if opt.get('prof') else 240,102,248 if opt.get('prof') else 240)
    if opt.get('ts'): o+='.p2align 6\n'+kernel_desc('k3_kernel',64,96,64)
    return o
if __name__=='__main__':
    opt=json.loads(sys.argv[2]) if len(sys.argv)>2 else {}
    open(sys.argv[1],'w').write(build(opt))
```

```python
from common import *
from k1 import DSQ, pk

NS=3; SLOT=40960
SC=NS*SLOT
NONCE=SC; ZERO=SC+16
REC=SC+1024
RSTD=SC+5120
WFR=SC+5632
KVP=SC+9216
LDS_BYTES=SC+18432
NONCE_IDX=48

ACC=128
FA=64; FB=84
XA=104; WA=108
XF=64; KC=72; WF=80
T0=8; OUT=40
def acc(t,a): return ACC+(t*2+a)*16

def prologue(e,opt):
    e(f'''
    s_cmp_ge_u32 s2, 256
    s_cbranch_scc1 K1_EXIT0
    s_load_dwordx4 s[28:31], s[0:1], 0
    s_load_dwordx4 s[32:35], s[0:1], 32
    s_load_dwordx4 s[36:39], s[0:1], 72
    s_load_dwordx2 s[82:83], s[0:1], 16
    s_load_dwordx2 s[84:85], s[0:1], 48
    s_load_dwordx4 s[92:95], s[0:1], 56
    v_lshrrev_b32 v1, 6, v0
    v_and_b32 v2, 63, v0
    v_readfirstlane_b32 s3, v1
    s_and_b32 s8, s2, 7
    s_lshr_b32 s9, s2, 3
    s_and_b32 s10, s9, 7              ; rb_local
    s_lshr_b32 s11, s9, 3             ; cb_local
    s_lshr_b32 s4, s8, 2
    s_lshl_b32 s4, s4, 3
    s_add_u32 s4, s4, s10             ; rb
    s_and_b32 s5, s8, 3
    s_lshl_b32 s5, s5, 1
    s_and_b32 s12, s11, 1
    s_add_u32 s5, s5, s12
    s_lshr_b32 s7, s11, 1
    s_lshl_b32 s12, s7, 3
    s_add_u32 s5, s5, s12             ; cb
    s_mul_i32 s6, s11, {opt.get('rotc',2)}
    s_add_u32 s6, s6, s10
    s_and_b32 s6, s6, 7
    s_and_b32 s12, s5, 7
    s_mul_i32 s13, s12, 6
    s_mul_i32 s14, s12, 5
    s_add_u32 s14, s14, 3
    s_min_u32 s44, s13, s14
    s_cmp_lt_u32 s12, 3
    s_cselect_b32 s45, 6, 5
    s_lshl_b32 s13, s12, 7
    s_lshl_b32 s14, s44, 6
    s_mov_b32 s40, 2752
    s_mov_b32 s15, 128
    s_cmp_eq_u32 s7, 0
    s_cselect_b32 s40, 3072, s40
    s_cselect_b32 s41, s13, s14
    s_cselect_b32 s15, 1024, s15
    s_add_u32 s42, s41, s15
    s_add_u32 s43, s42, s15
    s_mov_b32 s64, {SLOT}
    s_mov_b32 s65, {-(NS-1)*SLOT & 0xffffffff:#x}
    s_cmp_lt_u32 s3, 4
    s_cbranch_scc1 K1_CONS
    ''')

def srds_rest(e,opt):
    srd(e,16,38,(WS_PROF+2*256*8*256) if opt.get('prof') else WS_SIZE)
    srd(e,24,36,256)
    if opt.get('ts'): srd(e,72,38,WS_TS+256*8*8)
    stamp_init(e,opt); stamp(e,opt)

def waddr(e,nh,dst,tmp):
    for t in range(3):
        e(f'''
        s_mul_i32 s{tmp}, s{nh}, 3
        s_add_u32 s{tmp}, s{tmp}, {t}
        s_lshr_b32 s{tmp+1}, s{tmp}, 1
        s_and_b32 s{tmp}, s{tmp}, 1
        s_cmp_eq_u32 s7, 0
        s_cselect_b32 s{tmp+1}, {t}, s{tmp+1}
        s_cselect_b32 s{tmp}, s{nh}, s{tmp}
        s_lshl_b32 s{tmp+1}, s{tmp+1}, 13
        s_add_u32 s{tmp+1}, s{tmp+1}, 16384
        s_lshl_b32 s{tmp}, s{tmp}, 6
        v_add_u32 v9, s{tmp}, v7
        v_xor_b32 v9, v9, v8
        v_add3_u32 v{dst+t}, v9, v6, s{tmp+1}
        ''')
def wlane(e):
    e('''
    v_lshrrev_b32 v4, 5, v2          ; hi
    v_and_b32 v6, 15, v2
    v_lshrrev_b32 v6, 2, v6
    v_lshl_add_u32 v6, v4, 3, v6
    v_lshlrev_b32 v6, 7, v6          ; (8hi + i>>2)*128
    v_and_b32 v7, 3, v2
    v_lshlrev_b32 v7, 3, v7
    v_bfe_u32 v8, v2, 4, 1
    v_lshl_add_u32 v7, v8, 5, v7     ; g16*32 + (i&3)*8
    v_bfe_u32 v8, v2, 3, 1
    v_lshlrev_b32 v8, 6, v8          ; 64*bit3
    ''')

def touches(e,opt):
    if opt.get('pfw'):
        e(f'''
        s_mov_b32 s88, s84
        s_and_b32 s89, s85, 0xffff
        s_mov_b32 s90, {F*D*2}
        s_mov_b32 s91, 0x20000
        s_mov_b32 s76, s82
        s_and_b32 s77, s83, 0xffff
        s_mov_b32 s78, {D*D*2}
        s_mov_b32 s79, 0x20000
        s_lshr_b32 s80, s2, 3
        s_mul_i32 s81, s80, {344*128}
        s_mul_i32 s86, s46, {86*128}
        s_add_u32 s81, s81, s86
        v_lshlrev_b32 v8, 7, v2
        buffer_load_dword v120, v8, s[88:91], s81 offen
        s_add_u32 s81, s81, {64*128}
        s_mov_b32 exec_lo, 0x3fffff
        s_mov_b32 exec_hi, 0
        buffer_load_dword v120, v8, s[88:91], s81 offen
        s_lshl_b32 s81, s80, 14
        s_lshl_b32 s86, s46, 12
        s_add_u32 s81, s81, s86
        s_mov_b32 exec_lo, -1
        buffer_load_dword v120, v8, s[76:79], s81 offen
        s_mov_b64 exec, -1
        ''')

def loader(e,opt):
    npf=3 if opt.get('pfw') else 0
    e('''
    s_and_b32 s46, s3, 3
    v_lshrrev_b32 v3, 3, v2
    v_and_b32 v4, 7, v2
    v_lshrrev_b32 v5, 4, v2
    v_xor_b32 v6, v4, v5
    v_lshlrev_b32 v6, 4, v6
    v_lshl_add_u32 v10, v3, 10, v6
    s_lshl_b32 s47, s4, 17
    s_lshl_b32 s48, s46, 15
    s_add_u32 s47, s47, s48
    v_add_u32 v10, s47, v10
    v_xor_b32 v11, 64, v10
    v_add_u32 v11, 0x2000, v11
    v_add_u32 v12, 0x4000, v10
    v_add_u32 v13, 0x4000, v11
    v_and_b32 v5, 1, v5
    v_lshlrev_b32 v5, 2, v5
    v_xor_b32 v4, v4, v5
    v_lshlrev_b32 v4, 4, v4
    s_lshl_b32 s47, s46, 4
    v_add_u32 v14, s47, v3
    v_mul_lo_u32 v14, v14, s40
    v_add_u32 v14, v14, v4
    s_lshl_b32 s47, s40, 3
    v_add_u32 v15, s47, v14
    s_lshl_b32 s54, s46, 12
    s_lshl_b32 s55, s46, 11
    s_add_u32 s55, s55, 16384
    s_lshl_b32 s56, s40, 6
    s_mov_b32 s48, s6
    s_mov_b32 s53, 0
    ''')
    def stage_addr():
        return ['s_lshl_b32 s49, s48, 7','s_mul_i32 s50, s48, s56','s_add_u32 s51, s50, s42',
                's_add_u32 s52, s50, s43','s_add_u32 s50, s50, s41',
                's_add_u32 s58, s53, s54','s_add_u32 s59, s53, s55',
                's_add_u32 s48, s48, 1','s_and_b32 s48, s48, 7',
                's_add_u32 s53, s53, s64', f's_cmp_eq_u32 s53, {NS*SLOT}','s_cselect_b32 s53, 0, s53']
    def dma():
        L=[]
        if opt.get('x_nodma1'): return L
        for i in range(4):
            L+=[f's_add_u32 m0, s58, {i*1024}', 's_nop 0', f'buffer_load_dwordx4 v{10+i}, s[8:11], s49 offen lds']
        for sub in range(3):
            for h in range(2):
                L+=[f's_add_u32 m0, s59, {sub*8192+h*1024}', 's_nop 0', f'buffer_load_dwordx4 v{14+h}, s[12:15], s{50+sub} offen lds']
        return L
    for x in stage_addr(): e(x)
    e('s_waitcnt lgkmcnt(0)')
    srd(e,8,28,S*D*2)
    e(f'''
    s_cmp_eq_u32 s7, 0
    s_cselect_b32 s12, s30, s32
    s_cselect_b32 s13, s31, s33
    s_mov_b32 s14, {D*F*2}
    s_cselect_b32 s14, {D*3*D*2}, s14
    s_and_b32 s13, s13, 0xffff
    s_mov_b32 s15, 0x20000
    ''')
    for x in dma(): e(x)
    for x in stage_addr(): e(x)
    for x in dma(): e(x)
    srds_rest(e,opt)
    srd(e,20,34,F*2)
    wlane(e)
    waddr(e,46,16,60)
    e(f'''
    s_lshr_b32 s60, s4, 3             ; hf
    s_lshl_b32 s60, s60, 12           ; 2hf*2048
    v_add_u32 v16, s60, v16
    v_add_u32 v17, s60, v17
    v_add_u32 v18, s60, v18
    v_lshrrev_b32 v5, 4, v2
    v_xor_b32 v5, v5, v2
    v_and_b32 v5, 1, v5
    v_cmp_eq_u32 vcc, 0, v5
    v_mov_b32 v6, 0x3f803f80
    v_mov_b32 v19, {NONCE_IDX*4}
    s_lshl_b32 s60, s5, 2
    v_mov_b32 v26, s60
    v_mov_b32 v25, 0
    v_cndmask_b32 v20, 0, v6, vcc
    v_mov_b32 v21, v20
    v_mov_b32 v22, v20
    v_mov_b32 v23, v20
    ''')
    for x in stage_addr(): e(x)
    e('s_waitcnt vmcnt(10)')
    stamp(e,opt)
    e('s_barrier')
    e(f'''
    s_cmp_lg_u32 s46, 3
    s_cbranch_scc1 K1_NNL
    buffer_load_dword v24, v19, s[24:27], 0 offen sc1
    K1_NNL:
    ''')
    for x in dma(): e(x)
    e('s_cmp_ge_u32 s46, 2')
    e('s_cbranch_scc1 K1_NOCS')
    for t in range(3):
        for k in range(2):
            e(f'ds_read_b64_tr_b16 v[{24+8*t+4*k}:{25+8*t+4*k}], v{16+t} offset:{k*2048}')
            e(f'ds_read_b64_tr_b16 v[{26+8*t+4*k}:{27+8*t+4*k}], v{16+t} offset:{k*2048+512}')
    e('s_waitcnt lgkmcnt(0)')
    for t in range(3):
        e(f'v_mfma_f32_16x16x32_bf16 v[{48+4*t}:{51+4*t}], v[20:23], v[{24+8*t}:{27+8*t}], 0')
    for t in range(3):
        e(f'v_mfma_f32_16x16x32_bf16 v[{48+4*t}:{51+4*t}], v[20:23], v[{28+8*t}:{31+8*t}], v[{48+4*t}:{51+4*t}]')
    e(f'''
    v_and_b32 v5, 16, v2
    v_cmp_ne_u32 vcc, 0, v5
    v_lshlrev_b32 v5, 4, v2
    s_lshl_b32 s60, s5, 4
    s_add_u32 s60, s60, s4
    s_lshl_b32 s60, s60, 1
    s_add_u32 s60, s60, s46
    s_lshl_b32 s60, s60, 9
    s_add_u32 s60, s60, {WS_CSG}
    s_mov_b32 s62, s60
    s_nop 1
    v_cndmask_b32 v60, v48, v49, vcc
    v_cndmask_b32 v61, v52, v53, vcc
    v_cndmask_b32 v62, v56, v57, vcc
    K1_NOCS:
    s_mov_b32 s47, 5
    ''')
    e('K1_LM:')
    for x in stage_addr(): e(x)
    e('s_waitcnt vmcnt(10)')
    e(f'''
    s_cmp_lg_u32 s47, 5
    s_cbranch_scc1 K1_NN2
    s_cmp_lg_u32 s46, 3
    s_cbranch_scc1 K1_NN2
    s_mov_b32 s61, 0x40000
    K1_NPL:
    v_readfirstlane_b32 s63, v24
    s_sub_u32 s61, s61, 1
    s_cmp_lg_u32 s63, 0
    s_cbranch_scc1 K1_NPD
    s_cmp_eq_u32 s61, 0
    s_cbranch_scc1 K1_NPD
    s_sleep 2
    buffer_load_dword v24, v19, s[24:27], 0 offen sc1
    s_waitcnt vmcnt(0)
    s_branch K1_NPL
    K1_NPD:
    v_mov_b32 v19, {NONCE}
    ds_write_b32 v19, v24
    s_waitcnt lgkmcnt(0)
    K1_NN2:
    ''')
    e(f'''
    s_cmp_lg_u32 s47, 1
    s_cbranch_scc1 K1_NF2
    s_cmp_lg_u32 s46, 2
    s_cbranch_scc1 K1_NF2
    s_cmp_lg_u32 s7, 0
    s_cbranch_scc1 K1_NF2
    s_mov_b32 s61, 0x40000
    K1_FPL:
    v_readfirstlane_b32 s60, v25
    s_sub_u32 s61, s61, 1
    s_cmp_lg_u32 s60, 0
    s_cbranch_scc1 K1_NF2
    s_cmp_eq_u32 s61, 0
    s_cbranch_scc1 K1_NF2
    s_sleep 2
    buffer_load_dword v25, v26, s[24:27], 0 offen sc1
    s_waitcnt vmcnt(0)
    s_branch K1_FPL
    K1_NF2:
    ''')
    stamp(e,opt) if opt.get('profloop') else None
    e('s_barrier')
    e(f'''
    s_cmp_lg_u32 s47, 2
    s_cbranch_scc1 K1_NF1
    s_cmp_lg_u32 s46, 2
    s_cbranch_scc1 K1_NF1
    buffer_load_dword v25, v26, s[24:27], 0 offen sc1
    K1_NF1:
    ''')
    for x in dma(): e(x)
    e(f'''
    s_cmp_lg_u32 s47, 5
    s_cbranch_scc1 K1_NN3
    v_mov_b32 v19, {NONCE}
    ds_read_b32 v63, v19
    s_waitcnt lgkmcnt(0)
    v_readfirstlane_b32 s63, v63
    s_cmp_ge_u32 s46, 2
    s_cbranch_scc1 K1_NN3
    v_lshlrev_b32 v5, 4, v2
    s_mov_b32 exec_hi, 0
    buffer_store_dwordx4 v[60:63], v5, s[16:19], s62 offen sc1
    s_mov_b32 exec_hi, -1
    K1_NN3:
    ''')
    e('''
    s_sub_u32 s47, s47, 1
    s_cmp_lg_u32 s47, 0
    s_cbranch_scc1 K1_LM
    ''')
    e('s_waitcnt vmcnt(10)')
    e('s_barrier')
    e('s_cmp_ge_u32 s46, 2')
    e('s_cbranch_scc1 K1_GCOL')
    e(f'''
    s_lshl_b32 s60, s46, 6
    v_add_u32 v3, s60, v2
    s_lshl_b32 s60, s4, 7
    v_add_u32 v4, s60, v3
    v_lshlrev_b32 v4, 4, v4
    s_mov_b32 s60, {WS_STG}
    buffer_load_dwordx4 v[24:27], v4, s[16:19], s60 offen sc1
    ''')
    touches(e,opt)
    e(f'''
    s_waitcnt vmcnt({1+npf})
    s_barrier
    s_mov_b32 s61, 0x40000
    s_waitcnt vmcnt({npf})
    K1_GR:
    v_cmp_ne_u32 vcc, s63, v26
    s_sub_u32 s61, s61, 1
    s_cmp_eq_u32 s61, 0
    s_cbranch_scc1 K1_GRD
    s_cbranch_vccz K1_GRD
    s_sleep 1
    buffer_load_dwordx4 v[24:27], v4, s[16:19], s60 offen sc1
    s_waitcnt vmcnt(0)
    s_branch K1_GR
    K1_GRD:
    v_rsq_f32 v44, v25                          ; rstd
    v_cvt_pk_bf16_f32 v40, v24, v24
    v_mul_f32 v45, v25, v44                     ; sigma
    v_lshlrev_b32 v40, 16, v40
    v_sub_f32 v41, v24, v40
    v_cvt_pk_bf16_f32 v40, v40, v41             ; d0
    v_mov_b32 v41, v40                          ; d1
    v_cvt_pk_bf16_f32 v42, v45, v45
    v_lshlrev_b32 v42, 16, v42
    v_sub_f32 v43, v45, v42
    v_cvt_pk_bf16_f32 v42, v42, v43             ; d2
    v_mov_b32 v43, 0
    v_mul_f32 v46, v44, v44
    v_mul_f32 v46, v46, v44
    v_mul_f32 v46, {hx(GC2)}, v46               ; cA
    v_mul_f32 v47, {hx(GC1)}, v44               ; cB
    v_lshlrev_b32 v4, 5, v3
    v_add_u32 v4, {REC}, v4
    ds_write_b128 v4, v[40:43]
    ds_write_b128 v4, v[44:47] offset:16
    v_lshlrev_b32 v4, 2, v3
    v_add_u32 v4, {RSTD}, v4
    ds_write_b32 v4, v44
    v_mov_b32 v4, {ZERO}
    v_mov_b32 v40, 0
    v_mov_b32 v41, 0
    v_mov_b32 v42, 0
    ds_write_b128 v4, v[40:43]
    s_branch K1_GDONE
    ''')
    e(f'''
    K1_GCOL:
    s_and_b32 s47, s46, 1             ; nh
    v_and_b32 v3, 31, v2
    v_lshrrev_b32 v4, 5, v2
    v_lshlrev_b32 v4, 13, v4
    v_lshl_add_u32 v4, v3, 4, v4
    s_lshl_b32 s60, s5, 14
    s_lshl_b32 s61, s47, 9
    s_add_u32 s60, s60, s61
    s_add_u32 s60, s60, {WS_CSG}
    s_mul_i32 s61, s47, 3
    s_add_u32 s61, s61, s44
    s_lshl_b32 s61, s61, 6
    v_lshl_add_u32 v5, v3, 1, s61
    buffer_load_ushort v60, v5, s[20:23], 0 offen
    buffer_load_ushort v61, v5, s[20:23], 0 offen offset:64
    buffer_load_ushort v62, v5, s[20:23], 0 offen offset:128
    ''')
    def colloads():
        for j in range(8):
            if j<4: e(f'buffer_load_dwordx4 v[{24+4*j}:{27+4*j}], v4, s[16:19], s60 offen offset:{j*1024} sc1')
            else: e(f'buffer_load_dwordx4 v[{24+4*j}:{27+4*j}], v4, s[16:19], s62 offen offset:{(j-4)*1024} sc1')
    e('s_add_u32 s62, s60, 4096')
    colloads()
    touches(e,opt)
    e(f'''
    s_waitcnt vmcnt({11+npf})
    s_barrier
    s_mov_b32 s61, 0x40000
    s_waitcnt vmcnt({npf})
    K1_GC:
    ''')
    e('v_xor_b32 v6, s63, v27')
    for j in range(1,8):
        e(f'v_xor_b32 v7, s63, v{27+4*j}')
        e('v_or_b32 v6, v6, v7')
    e('''
    v_cmp_ne_u32 vcc, 0, v6
    s_sub_u32 s61, s61, 1
    s_cmp_eq_u32 s61, 0
    s_cbranch_scc1 K1_GCD
    s_cbranch_vccz K1_GCD
    s_sleep 1
    ''')
    colloads()
    e('s_waitcnt vmcnt(0)')
    e('s_branch K1_GC')
    e('K1_GCD:')
    for c in range(3):
        for j in (1,3,5,7): e(f'v_add_f32 v{24+4*(j-1)+c}, v{24+4*(j-1)+c}, v{24+4*j+c}')
        e(f'v_add_f32 v{24+c}, v{24+c}, v{32+c}')
        e(f'v_add_f32 v{40+c}, v{40+c}, v{48+c}')
        e(f'v_add_f32 v{24+c}, v{24+c}, v{40+c}')
        e(f'v_mov_b32 v{28+c}, v{24+c}')
    e('s_nop 1')
    for c in range(3): e(f'v_permlane32_swap_b32 v{24+c}, v{28+c}')
    e(f'''
    s_mul_i32 s61, s47, 1536
    s_add_u32 s61, s61, {WFR}
    v_lshl_add_u32 v5, v3, 4, s61
    ''')
    for c in range(3):
        e(f'''
        v_add_f32 v8, v{24+c}, v{28+c}
        v_cvt_pk_bf16_f32 v40, v8, v8
        v_lshlrev_b32 v9, 16, v40
        v_sub_f32 v9, v8, v9
        v_cvt_pk_bf16_f32 v41, v9, v9
        v_lshlrev_b32 v42, 16, v{60+c}
        v_or_b32 v42, v42, v{60+c}
        v_mov_b32 v43, 0
        s_cmp_eq_u32 s7, 0
        s_cbranch_scc0 K1_GB{c}
        v_mov_b32 v42, 0
        K1_GB{c}:
        ds_write_b128 v5, v[40:43] offset:{c*512}
        s_nop 1
        ''')
    e('K1_GDONE:')
    e('''
    K1_PFW:
    ''')
    e(f'''
    K1_LE1:
    s_waitcnt lgkmcnt(0)
    ''')
    stamp(e,opt)
    e('s_barrier')
    e(f'''
    s_lshl_b32 s87, s4, 4
    s_add_u32 s87, s87, s5
    s_lshl_b32 s87, s87, 2
    s_add_u32 s87, s87, {WS_FLG}
    s_branch K2_LENTRY
    ''')

def cons_setup(e,opt):
    e('K1_CONS:')
    e(f'''
    s_and_b32 s46, s3, 1          ; sh
    s_lshr_b32 s47, s3, 1         ; nh
    s_lshl_b32 s48, s4, 7
    s_lshl_b32 s49, s5, 3
    s_add_u32 s48, s48, s49
    s_lshl_b32 s49, s3, 1
    s_add_u32 s57, s48, s49
    s_lshl_b32 s48, s57, 10
    v_lshlrev_b32 v10, 4, v2
    s_waitcnt lgkmcnt(0)
    ''')
    srd(e,8,28,S*D*2)
    e('''
    buffer_load_dwordx4 v[16:19], v10, s[8:11], s48 offen
    buffer_load_dwordx4 v[20:23], v10, s[8:11], s48 offen offset:1024
    ''')
    srds_rest(e,opt)
    if opt.get('pfcode'):
        n=opt['pfcode']
        e(f'''
        s_cmp_ge_u32 s3, {n}
        s_cbranch_scc1 K1_NOPFC
        s_getpc_b64 s[86:87]
        K1_PC:
        s_sub_u32 s86, s86, K1_PC-{opt.get('k1name','k1_kernel')}
        s_subb_u32 s87, s87, 0
        s_lshl_b32 s88, s3, 13
        v_lshlrev_b32 v8, 7, v2
        v_add_u32 v8, s88, v8
        s_mov_b32 s88, K_TEXT_END-{opt.get('k1name','k1_kernel')}-4
        v_min_u32 v8, s88, v8
        global_load_dword v117, v8, s[86:87]
        K1_NOPFC:
        ''')
    e(f'''
    s_cmp_lg_u32 s3, 0
    s_cbranch_scc1 K1_NOZ
    s_cmp_lg_u32 s2, 0
    s_cbranch_scc1 K1_NON
    s_memrealtime s[48:49]
    s_waitcnt lgkmcnt(0)
    s_or_b32 s48, s48, 1
    v_mov_b32 v5, s48
    v_mov_b32 v4, {NONCE_IDX*4}
    s_mov_b64 exec, 1
    buffer_store_dword v5, v4, s[24:27], 0 offen sc1
    s_mov_b64 exec, -1
    K1_NON:
    s_cmp_lg_u32 s7, 0
    s_cbranch_scc1 K1_NOZ
    s_cmp_lg_u32 s4, 0
    s_cbranch_scc1 K1_NOZ
    v_mov_b32 v12, 0
    v_mov_b32 v13, 0
    v_mov_b32 v14, 0
    v_mov_b32 v15, 0
    s_lshl_b32 s48, s5, 12
    s_add_u32 s48, s48, {WS_KV}
    buffer_store_dwordx4 v[12:15], v10, s[16:19], s48 offen sc1
    buffer_store_dwordx4 v[12:15], v10, s[16:19], s48 offen offset:1024 sc1
    buffer_store_dwordx4 v[12:15], v10, s[16:19], s48 offen offset:2048 sc1
    buffer_store_dwordx4 v[12:15], v10, s[16:19], s48 offen offset:3072 sc1
    s_mov_b32 exec_lo, 0xffff
    s_mov_b32 exec_hi, 0
    s_lshl_b32 s48, s5, 8
    s_add_u32 s48, s48, {WS_Z}
    buffer_store_dwordx4 v[12:15], v10, s[16:19], s48 offen sc1
    s_waitcnt vmcnt(0)
    s_mov_b32 exec_lo, 1
    v_mov_b32 v5, 1
    s_lshl_b32 s48, s5, 2
    v_mov_b32 v4, s48
    buffer_store_dword v5, v4, s[24:27], 0 offen sc1
    s_mov_b64 exec, -1
    K1_NOZ:
    v_and_b32 v3, 31, v2             ; r32
    v_lshrrev_b32 v4, 5, v2          ; hi
    v_lshrrev_b32 v5, 1, v3
    v_and_b32 v5, 7, v5
    v_xor_b32 v5, v5, v4
    v_lshlrev_b32 v5, 4, v5
    v_lshl_add_u32 v5, v3, 7, v5
    s_lshl_b32 s49, s46, 13
    v_add_u32 v5, s49, v5
    s_lshl_b32 s49, s46, 5
    v_xor_b32 v{XA}, s49, v5
    v_xor_b32 v{XA+1}, 32, v5
    v_xor_b32 v{XA+1}, s49, v{XA+1}
    v_xor_b32 v{XA+2}, 64, v{XA}
    v_xor_b32 v{XA+3}, 64, v{XA+1}
    ''')
    wlane(e)
    waddr(e,47,WA,50)
    for r in range(ACC,ACC+96): e(f'v_mov_b32 v{r}, 0')
    for r in range(FB,FB+20): e(f'v_mov_b32 v{r}, 0')
    e('v_mov_b32 v12, 0x3f803f80')
    for r in (24,26,28,30): e(f'v_mov_b32 v{r}, 0')
    e('s_waitcnt vmcnt(0)')
    for d in range(4):
        for r in range(2):
            x=16+4*r+d
            e(f'v_dot2_f32_bf16 v{24+4*r}, v{x}, v12, v{24+4*r}')
            e(f'v_dot2_f32_bf16 v{26+4*r}, v{x}, v{x}, v{26+4*r}')
    e('s_nop 2')
    vals=[24,26,28,30]
    for ctl in ('row_shr:1 row_mask:0xf','row_shr:2 row_mask:0xf','row_shr:4 row_mask:0xf','row_shr:8 row_mask:0xf'):
        for v in vals: e(f'v_add_f32_dpp v{v}, v{v}, v{v} {ctl} bank_mask:0xf bound_ctrl:0')
    for ctl in ('row_bcast:15 row_mask:0xa','row_bcast:31 row_mask:0xc'):
        for v in vals: e(f'v_add_f32_dpp v{v}, v{v}, v{v} {ctl} bank_mask:0xf')
    for r in range(2):
        sA,qA=24+4*r,26+4*r; o=32+4*r
        e(f'''
        v_mul_f32 v{o}, {hx(-1.0/512)}, v{sA}
        v_mul_f32 v{o+1}, {hx(1.0/512)}, v{qA}
        v_fma_f32 v{o+1}, -v{o}, v{o}, v{o+1}
        v_max_f32 v{o+1}, 0, v{o+1}
        v_add_f32 v{o+1}, {hx(1e-5)}, v{o+1}
        ''')
    e(f'''
    s_lshl_b32 s56, s57, 4
    s_add_u32 s56, s56, {WS_STG}
    ''')
    e('s_lshl_b32 s50, s46, 11')
    for t in (2,1,0):
        e(f'v_subrev_u32 v{WA+2*t+1}, s50, v{WA+t}')
        e(f'v_add_u32 v{WA+2*t}, s50, v{WA+t}')
    e('''
    s_mov_b32 s48, 8
    s_mov_b32 s49, 0
    ''')
    if opt.get('prio',1): e('s_setprio 3')
    e('''
    s_cmp_lg_u32 s7, 0
    s_cbranch_scc1 K1_CF
    ''')

def reads(p,buf):
    par=p&1
    L=[f'ds_read_b128 {vr(buf,4)}, v{XA+p}']
    L+=[f'ds_read_b64_tr_b16 {vr(buf+8,2)}, v{WA+par} offset:{p*2048}', f'ds_read_b64_tr_b16 {vr(buf+10,2)}, v{WA+par} offset:{p*2048+512}']
    L+=[f'ds_read_b128 {vr(buf+4,4)}, v{XA+p} offset:4096']
    for t in (1,2):
        L+=[f'ds_read_b64_tr_b16 {vr(buf+8+4*t,2)}, v{WA+2*t+par} offset:{p*2048}', f'ds_read_b64_tr_b16 {vr(buf+10+4*t,2)}, v{WA+2*t+par} offset:{p*2048+512}']
    return L
def mfmas(buf,ffn):
    L=[]
    for t in range(3):
        for a in range(2):
            X=vr(buf+4*a,4); W=vr(buf+8+4*t,4); A=vr(acc(t,a),16)
            if ffn or t==0: L.append(f'v_mfma_f32_32x32x16_bf16 {A}, {W}, {X}, {A}')
            else: L.append(f'v_mfma_f32_32x32x16_bf16 {A}, {X}, {W}, {A}')
    return L
def reads_t(p,buf,name):
    tags=['x0','w0','w0','x1','w1','w1','w2','w2']
    return [(x,name+t) for x,t in zip(reads(p,buf),tags)]
def mfmas_t(buf,ffn,name):
    L=[]; m=mfmas(buf,ffn); k=0
    for t in range(3):
        for a in range(2):
            L.append((m[k],{name+f'x{a}',name+f'w{t}'})); k+=1
    return L
def segment(e,q,ms,rs,pattern):
    k=0
    for i,(m,nd) in enumerate(ms):
        q.need(e,nd)
        e(m)
        for _ in range(pattern[i] if i<len(pattern) else 0):
            if k<len(rs):
                x,tag=rs[k]; k+=1
                e(x)
                if tag: q.issue(tag)
    assert k==len(rs)
def mainloop(e,ffn,tag,opt={}):
    stamp(e,opt)
    e(f'K1_ML{tag}:')
    e('s_barrier')
    if opt.get('profloop'): stamp(e,opt)
    q=DSQ()
    pat=opt.get('rdpat',[3,3,2])
    segment(e,q,[(m,set()) for m in mfmas(FB,ffn)], reads_t(0,FA,'A'), pat)
    segment(e,q,mfmas_t(FA,ffn,'A'), reads_t(1,FB,'B'), pat)
    segment(e,q,mfmas_t(FB,ffn,'B'), reads_t(2,FA,'A'), pat)
    adv=['s_add_u32 s49, s49, s64', f's_cmp_eq_u32 s49, {NS*SLOT}', 's_cselect_b32 s50, s65, s64', 's_cselect_b32 s49, 0, s49']
    upd=[f'v_add_u32 v{XA+i}, s50, v{XA+i}' for i in range(4)]+[f'v_add_u32 v{WA+i}, s50, v{WA+i}' for i in range(6)]
    rs=reads_t(3,FB,'B')+[(x,None) for x in adv+upd]
    segment(e,q,mfmas_t(FA,ffn,'A'), rs, pat+[4,5,5])
    q.all(e)
    e(f'''
    s_cmp_lg_u32 s48, 7
    s_cbranch_scc1 K1_NPUB{tag}
    v_mov_b32 v4, {NONCE}
    ds_read_b32 v34, v4
    v_mov_b32 v4, 0
    s_waitcnt lgkmcnt(0)
    v_readfirstlane_b32 s59, v34
    v_mov_b32 v35, v34
    v_mov_b32 v38, v34
    v_mov_b32 v39, v34
    s_mov_b32 exec_lo, 0
    s_mov_b32 exec_hi, 0x80000000
    buffer_store_dwordx4 v[32:35], v4, s[16:19], s56 offen sc1
    buffer_store_dwordx4 v[36:39], v4, s[16:19], s56 offen offset:16 sc1
    s_mov_b64 exec, -1
    K1_NPUB{tag}:
    s_sub_u32 s48, s48, 1
    s_cmp_lg_u32 s48, 0
    s_cbranch_scc1 K1_ML{tag}
    ''')
    for x in mfmas(FB,ffn): e(x)
    stamp(e,opt)

def post(e,ffn,opt={}):
    e(f'''
    v_and_b32 v3, 31, v2
    s_lshl_b32 s48, s46, 6
    v_add_u32 v4, s48, v3
    v_lshlrev_b32 v4, 5, v4
    v_add_u32 v4, {REC}, v4
    v_mov_b32 v5, {ZERO}
    v_cmp_gt_u32 vcc, 32, v2
    s_mul_i32 s49, s47, 1536
    s_add_u32 s49, s49, {WFR}
    v_lshl_add_u32 v6, v3, 4, s49
    v_cndmask_b32 v5, v5, v4, vcc
    v_add_u32 v7, 1024, v4
    v_mov_b32 v8, {ZERO}
    v_cndmask_b32 v7, v8, v7, vcc
    s_barrier
    ''')
    stamp(e,opt)
    e(f'''
    ds_read_b128 v[{WF}:{WF+3}], v6
    ds_read_b128 v[{XF}:{XF+3}], v5
    ds_read_b128 v[{XF+4}:{XF+7}], v7
    ds_read_b128 v[{WF+4}:{WF+7}], v6 offset:512
    ds_read_b128 v[{WF+8}:{WF+11}], v6 offset:1024
    ds_read_b128 v[{KC}:{KC+3}], v4 offset:16
    ds_read_b128 v[{KC+4}:{KC+7}], v4 offset:{1024+16}
    ''')
    waits={(0,0):5,(0,1):4,(1,0):3,(2,0):2}
    for t in range(3):
        for a in range(2):
            if (t,a) in waits: e(f's_waitcnt lgkmcnt({waits[(t,a)]})')
            A=vr(acc(t,a),16)
            if ffn or t==0: e(f'v_mfma_f32_32x32x16_bf16 {A}, {vr(WF+4*t,4)}, {vr(XF+4*a,4)}, {A}')
            else: e(f'v_mfma_f32_32x32x16_bf16 {A}, {vr(XF+4*a,4)}, {vr(WF+4*t,4)}, {A}')
    e('s_waitcnt lgkmcnt(0)')

def gelu_tile(t,a,OUT=OUT):
    A=acc(t,a); rs,cA=KC+4*a,KC+4*a+2
    L=[]
    R=range(0,16,2)
    for i in R: L.append(pk('mul',T0+i,A+i,A+i))
    for i in R: L.append(pk('fma',T0+i,T0+i,cA,cA,'op_sel:[0,0,1] op_sel_hi:[1,0,1]'))
    for i in R: L.append(pk('mul',T0+i,T0+i,A+i))
    for i in range(16): L.append(f'v_exp_f32 v{T0+i}, v{T0+i}')
    for i in R: L.append(pk('fma',T0+i,T0+i,rs,rs,'op_sel:[0,1,1] op_sel_hi:[1,1,1]'))
    for i in range(16): L.append(f'v_rcp_f32 v{T0+i}, v{T0+i}')
    for i in R: L.append(pk('mul',T0+i,T0+i,A+i))
    for i in R: L.append(f'v_cvt_pk_bf16_f32 v{OUT+i//2}, v{T0+i}, v{T0+i+1}')
    return L

def store2(e,so,off,opt,tmp=53,base=OUT):
    fl=opt.get('stflag','')
    if off+1024>4095:
        e(f's_add_u32 s{tmp}, s{so}, {off}')
        so=tmp; off=0
    e(f'buffer_store_dwordx4 v[{base}:{base+3}], v4, s[16:19], s{so} offen offset:{off} {fl}')
    e(f'buffer_store_dwordx4 v[{base+4}:{base+7}], v4, s[16:19], s{so} offen offset:{off+1024} {fl}')

def ffn_path(e,opt):
    e('K1_CF:')
    mainloop(e,True,'F',opt)
    post(e,True,opt)
    stamp(e,opt)
    e(f'''
    v_lshlrev_b32 v4, 4, v2
    s_lshl_b32 s48, s4, 2
    s_lshl_b32 s49, s46, 1
    s_add_u32 s48, s48, s49           ; s-tile (a=0)
    s_mul_i32 s48, s48, 86
    s_mul_i32 s49, s47, 3
    s_add_u32 s49, s49, s44
    s_lshl_b32 s50, s49, 1
    s_add_u32 s48, s48, s50
    s_lshl_b32 s48, s48, 10
    s_add_u32 s51, s48, {86*1024}     ; a=1
    s_mul_i32 s52, s47, 3
    s_sub_u32 s52, s45, s52
    ''')
    for t in range(3):
        if t==2:
            e(f'''
            s_lshl_b32 s53, s4, 5
            s_and_b32 s54, s5, 7
            s_lshl_b32 s54, s54, 2
            s_add_u32 s53, s53, s54
            s_add_u32 s53, s53, s3
            s_lshl_b32 s53, s53, 2
            s_add_u32 s53, s53, {WS_FLG0}
            v_mov_b32 v24, s59
            v_mov_b32 v25, 0
            s_waitcnt vmcnt(4)
            s_mov_b64 exec, 1
            buffer_store_dword v24, v25, s[16:19], s53 offen sc1
            s_mov_b64 exec, -1
            s_cmp_lt_u32 s52, 3
            s_cbranch_scc1 K1_END
            ''')
        for a in range(2):
            for x in gelu_tile(t,a,56 if a else 48): e(x)
            store2(e, 48 if a==0 else 51, t*2048, opt, base=56 if a else 48)
            if opt.get('profloop'): stamp(e,opt)
    e('s_branch K1_END')

def qkv_path(e,opt):
    mainloop(e,False,'Q',opt)
    post(e,False,opt)
    stamp(e,opt)
    RS=48
    e(f'''
    v_lshlrev_b32 v4, 4, v2
    s_lshl_b32 s48, s4, 2
    s_lshl_b32 s49, s46, 1
    s_add_u32 s48, s48, s49           ; s-tile a=0
    s_lshl_b32 s48, s48, 5
    s_lshl_b32 s49, s5, 2
    s_lshl_b32 s50, s47, 1
    s_add_u32 s49, s49, s50
    s_add_u32 s48, s48, s49
    s_lshl_b32 s48, s48, 10
    s_add_u32 s48, s48, {WS_PQ}
    s_add_u32 s51, s48, {32*1024}
    v_lshrrev_b32 v5, 5, v2
    v_lshlrev_b32 v5, 4, v5
    s_lshl_b32 s49, s46, 8
    s_add_u32 s49, s49, {RSTD}
    v_add_u32 v5, s49, v5
    v_mov_b32 v116, {hx(LOG2E)}
    v_mov_b32 v118, {hx(1e-6)}
    v_mul_f32 v6, v116, v{KC}
    v_mul_f32 v24, v116, v{KC+4}      ; a=1
    ''')
    B='op_sel_hi:[1,0]'; B3='op_sel_hi:[1,0,0]'
    for g in range(4): e(f'ds_read_b128 v[{RS+4*g}:{RS+4*g+3}], v5 offset:{g*32}')
    for a in range(2):
        A=acc(0,a); rs=KC+4*a; rl=6 if a==0 else 24
        R=range(0,16,2)
        T=T0 if a==0 else 26
        T=T0
        for i in R: e(pk('mul',T+i,A+i,rl,None,B))
        for i in range(16): e(f'v_max_f32 v{A+i}, 0, v{A+i}')
        for i in range(16): e(f'v_exp_f32 v{T+i}, v{T+i} clamp')
        for i in R: e(pk('fma',A+i,A+i,rs,118,B3))
        for i in R: e(pk('add',T+i,T+i,A+i))
        for i in R: e(f'v_cvt_pk_bf16_f32 v{(32 if a==0 else 40)+i//2}, v{T+i}, v{T+i+1}')
    stamp(e,opt)
    KV=acc(0,0); Z=acc(0,1)
    PK=96; VF=104
    ONE=112
    for r in range(4): e(f'v_mov_b32 v{ONE+r}, 0x3f803f80')
    for a in range(2):
        if a==1:
            for g in range(4): e(f'ds_read_b128 v[{RS+4*g}:{RS+4*g+3}], v5 offset:{128+g*32}')
        e('s_waitcnt lgkmcnt(0)')
        K=acc(1,a); V=acc(2,a)
        R=range(0,16,2)
        for i in R: e(pk('mul',K+i,K+i,RS+i))
        for i in R: e(pk('mul',V+i,V+i,RS+i))
        for i in R: e(pk('mul',T0+i,K+i,116,None,B))
        for i in range(16): e(f'v_max_f32 v{K+i}, v118, v{K+i}' if False else f'v_max_f32 v{K+i}, 0, v{K+i}')
        for i in range(16): e(f'v_exp_f32 v{T0+i}, v{T0+i} clamp')
        for i in R: e(pk('add',K+i,K+i,118,None,B))
        for i in R: e(f'v_cvt_pk_bf16_f32 v{VF+i//2}, v{V+i}, v{V+i+1}')
        for i in R: e(pk('add',T0+i,T0+i,K+i))
        for i in R: e(f'v_cvt_pk_bf16_f32 v{PK+i//2}, v{T0+i}, v{T0+i+1}')
        e('s_nop 1')
        for g in range(2):
            c0 = '0' if (a==0 and g==0) else vr(KV,16)
            z0 = '0' if (a==0 and g==0) else vr(Z,16)
            e(f'v_mfma_f32_32x32x16_bf16 {vr(KV,16)}, {vr(PK+4*g,4)}, {vr(VF+4*g,4)}, {c0}')
            e(f'v_mfma_f32_32x32x16_bf16 {vr(Z,16)}, {vr(PK+4*g,4)}, {vr(ONE,4)}, {z0}')
    store2(e, 48, 0, opt, base=32)
    store2(e, 51, 0, opt, base=40)
    e(f'''
    v_and_b32 v8, 15, v2
    v_lshrrev_b32 v9, 5, v2
    v_lshl_add_u32 v8, v9, 4, v8
    v_lshlrev_b32 v8, 4, v8           ; (hiD*16+e)*16
    v_bfe_u32 v10, v2, 4, 1
    v_lshl_add_u32 v8, v10, 10, v8
    s_mul_i32 s48, s46, 4352
    s_add_u32 s48, s48, {KVP}
    s_lshl_b32 s49, s47, 11
    s_add_u32 s49, s48, s49
    v_add_u32 v8, s49, v8
    s_lshl_b32 s49, s47, 7
    s_add_u32 s49, s48, s49
    v_lshl_add_u32 v9, v9, 4, s49
    s_nop 7
    s_mov_b32 exec_lo, 0x0000ffff
    s_mov_b32 exec_hi, 0x0000ffff
    ds_write_b128 v8, v[{KV}:{KV+3}]
    ds_write_b128 v8, v[{KV+4}:{KV+7}] offset:512
    s_mov_b32 exec_lo, 0xffff0000
    s_mov_b32 exec_hi, 0xffff0000
    ds_write_b128 v8, v[{KV+8}:{KV+11}]
    ds_write_b128 v8, v[{KV+12}:{KV+15}] offset:512
    s_mov_b32 exec_lo, 1
    s_mov_b32 exec_hi, 1
    ds_write_b128 v9, v[{Z}:{Z+3}] offset:4096
    ds_write_b128 v9, v[{Z+4}:{Z+7}] offset:{4096+32}
    ds_write_b128 v9, v[{Z+8}:{Z+11}] offset:{4096+64}
    ds_write_b128 v9, v[{Z+12}:{Z+15}] offset:{4096+64+32}
    s_mov_b64 exec, -1
    ''')
    stamp(e,opt)
    e(f'''
    s_mul_i32 s48, s46, 4352
    s_add_u32 s48, s48, {KVP}
    s_lshl_b32 s49, s47, 11
    s_add_u32 s49, s48, s49
    v_lshlrev_b32 v3, 2, v2
    v_add_u32 v4, s49, v3
    s_lshl_b32 s49, s47, 7
    s_add_u32 s49, s48, s49
    s_add_u32 s49, s49, 4096
    v_add_u32 v5, s49, v3             ; z image
    s_waitcnt lgkmcnt(0)
    ''')
    for i_ in range(8): e(f'ds_read_b32 v{8+i_}, v4 offset:{i_*256}')
    e(f'''
    ds_read_b32 v16, v5
    s_lshl_b32 s48, s5, 12
    s_lshl_b32 s49, s47, 11
    s_add_u32 s48, s48, s49
    s_add_u32 s48, s48, {WS_KV}
    s_lshl_b32 s50, s5, 8
    s_lshl_b32 s49, s47, 7
    s_add_u32 s50, s50, s49
    s_add_u32 s50, s50, {WS_Z}
    ''')
    for i_ in range(8):
        e(f's_waitcnt lgkmcnt({8-i_})')
        e(f'buffer_atomic_add_f32 v{8+i_}, v3, s[16:19], s48 offen offset:{i_*256}')
    e('''
    s_waitcnt lgkmcnt(0)
    s_mov_b32 exec_hi, 0
    buffer_atomic_add_f32 v16, v3, s[16:19], s50 offen
    s_mov_b32 exec_hi, -1
    ''')

def k1(opt):
    e=E()
    if opt.get('ts'): e('s_memrealtime s[66:67]')
    prologue(e,opt)
    loader(e,opt)
    cons_setup(e,opt)
    qkv_path(e,opt)
    e('K1_END:')
    stamp(e,opt)
    e(f'''
    s_xor_b32 s53, s7, 1
    s_lshl_b32 s53, s53, 4
    s_add_u32 s53, s53, s4
    s_lshl_b32 s53, s53, 3
    s_and_b32 s54, s5, 7
    s_add_u32 s53, s53, s54
    s_lshl_b32 s53, s53, 2
    s_add_u32 s53, s53, s3
    s_lshl_b32 s53, s53, 2
    s_add_u32 s53, s53, {WS_FLGF}
    v_mov_b32 v24, s59
    v_mov_b32 v25, 0
    s_waitcnt vmcnt(0)
    s_mov_b64 exec, 1
    buffer_store_dword v24, v25, s[16:19], s53 offen sc1
    s_mov_b64 exec, -1
    s_branch K2_CENTRY
    ''')
    e('K1_EXIT0:')
    e('s_endpgm')
    ffn_path(e,opt)
    return e.text()
```

```python
from common import *
from k1 import DSQ
import k1b
SLOT=32768; NS=3
BOFF=16384
KVB=NS*SLOT
ZL=KVB+32768
XL=ZL+2048
B2L=XL+8192
LDS_BYTES=B2L+1024
GOL=k1b.NONCE+32
ACC=128; F0=64; KF=224
AMASK=0x5500
CMASK=0x2AC0
SMASK=0x1500
NST=15

def shuffle(e):
    e('''
    s_mov_b32 s30, s82
    s_mov_b32 s31, s83
    s_mov_b32 s32, s84
    s_mov_b32 s33, s85
    s_mov_b32 s34, s92
    s_mov_b32 s35, s93
    s_mov_b32 s36, s94
    s_mov_b32 s37, s95
    s_and_b32 s8, s2, 7
    s_lshr_b32 s9, s2, 3
    s_and_b32 s4, s9, 3
    s_lshl_b32 s8, s8, 2
    s_add_u32 s4, s4, s8
    s_lshr_b32 s5, s9, 2              ; cb2 0..7
    ''')
    e(f'''
    s_mov_b32 s40, {AMASK}
    s_mov_b32 s64, {SLOT}
    s_mov_b32 s65, {-(NS-1)*SLOT & 0xffffffff:#x}
    ''')

def k2(opt):
    e=E()
    af=opt.get('af','sc1')
    wssz=(WS_PROF+2*256*8*256) if opt.get('prof') else WS_SIZE
    e('K2_LENTRY:')
    shuffle(e)
    e(f'''
    s_and_b32 s46, s3, 3              ; lw
    s_lshl_b32 s45, s4, 1             ; s-tile 0
    s_mul_i32 s47, s45, {86*1024}
    s_lshl_b32 s48, s45, 15
    s_add_u32 s48, s48, {WS_PQ}
    s_lshl_b32 s49, s46, 11
    s_add_u32 s48, s48, s49
    v_lshlrev_b32 v3, 4, v2           ; lane*16
    v_lshrrev_b32 v4, 3, v2
    v_and_b32 v5, 7, v2
    v_bfe_u32 v6, v2, 4, 1
    v_lshlrev_b32 v6, 2, v6
    v_xor_b32 v5, v5, v6
    v_lshlrev_b32 v5, 4, v5
    v_lshl_add_u32 v4, v4, 10, v5
    s_lshl_b32 s49, s5, 7
    v_add_u32 v4, s49, v4
    v_add_u32 v5, 0x2000, v4
    v_add_u32 v6, 0x4000, v4
    v_add_u32 v7, 0x6000, v4
    s_lshl_b32 s54, s46, 11
    s_lshl_b32 s55, s46, 12
    s_add_u32 s55, s55, {BOFF}
    s_mov_b32 s15, 0x20000
    ''')
    srd(e,8,38,wssz)
    srd(e,20,28,S*D*2)
    srd(e,24,34,D*2)
    def reset():
        e('s_mov_b32 s41, 0\ns_mov_b32 s42, 0\ns_mov_b32 s52, 0\ns_mov_b32 s53, 0')
    def addr():
        t=e.label('K2_AD')
        e(f'''
        s_add_u32 s58, s53, s54
        s_add_u32 s59, s53, s55
        s_bitcmp1_b32 s40, s52
        s_cbranch_scc1 {t}A
        s_lshl_b32 s56, s41, 2
        s_add_u32 s56, s56, s46           ; m
        s_and_b32 s57, s56, 1
        s_mul_i32 s57, s57, 3             ; 3*(m&1)
        s_lshr_b32 s60, s56, 4            ; group t = m>>4
        s_add_u32 s57, s57, s60           ; tt = t + 3*(m&1)
        s_and_b32 s61, s56, 15
        s_lshr_b32 s61, s61, 1            ; c
        s_cmp_lt_u32 s56, 38
        s_cbranch_scc1 {t}T
        s_sub_u32 s61, s56, 35            ; m-32 >= 6 : c = m-32-3, tt = 2
        s_mov_b32 s57, 2
        {t}T:
        s_mul_i32 s62, s61, 6
        s_mul_i32 s61, s61, 5
        s_add_u32 s61, s61, 3
        s_min_u32 s61, s61, s62
        s_add_u32 s61, s61, s57           ; n-tile
        s_cmp_eq_u32 s56, 43
        s_cselect_b32 s61, 43, s61
        s_lshl_b32 s56, s61, 11
        s_add_u32 s56, s56, s47
        s_add_u32 s57, s56, {86*1024}
        s_lshl_b32 s60, s61, 15
        s_add_u32 s41, s41, 1
        s_mov_b32 s12, s32
        s_and_b32 s13, s33, 0xffff
        s_mov_b32 s14, {F*D*2}
        s_branch {t}E
        {t}A:
        s_lshl_b32 s56, s42, 13
        s_add_u32 s56, s56, s48
        s_add_u32 s57, s56, {32*1024}
        s_lshl_b32 s60, s42, 17
        s_lshl_b32 s61, s46, 15
        s_add_u32 s60, s60, s61
        s_add_u32 s42, s42, 1
        s_mov_b32 s12, s30
        s_and_b32 s13, s31, 0xffff
        s_mov_b32 s14, {D*D*2}
        {t}E:
        s_add_u32 s52, s52, 1
        s_add_u32 s53, s53, s64
        s_cmp_eq_u32 s53, {NS*SLOT}
        s_cselect_b32 s53, 0, s53
        ''')
    def dmaA():
        e(f'''
        s_mov_b32 m0, s58
        s_nop 0
        buffer_load_dwordx4 v3, s[8:11], s56 offen {af} lds
        buffer_load_dwordx4 v3, s[8:11], s56 offen offset:1024 {af} lds
        s_add_u32 m0, s58, 8192
        s_nop 0
        buffer_load_dwordx4 v3, s[8:11], s57 offen {af} lds
        buffer_load_dwordx4 v3, s[8:11], s57 offen offset:1024 {af} lds
        ''')
    def dmaB():
        e(f'''
        s_mov_b32 m0, s59
        s_nop 0
        buffer_load_dwordx4 v4, s[12:15], s60 offen lds
        s_add_u32 m0, s59, 1024
        s_nop 0
        buffer_load_dwordx4 v5, s[12:15], s60 offen lds
        s_add_u32 m0, s59, 2048
        s_nop 0
        buffer_load_dwordx4 v6, s[12:15], s60 offen lds
        s_add_u32 m0, s59, 3072
        s_nop 0
        buffer_load_dwordx4 v7, s[12:15], s60 offen lds
        ''')
    def dma(): dmaA(); dmaB()
    def loop3(tag,body):
        e(f's_mov_b32 s51, 3\nK2_{tag}:')
        addr(); body()
        e(f's_sub_u32 s51, s51, 1\ns_cmp_lg_u32 s51, 0\ns_cbranch_scc1 K2_{tag}')
    reset(); loop3('PB',dmaB)
    stamp(e,opt)
    ld0='buffer_load_dword v24, v25, s[8:11], s62 offen sc1'
    e(f'''
    v_mov_b32 v26, {GOL}
    s_mov_b32 s61, 0x40000
    s_cmp_lg_u32 s46, 0
    s_cbranch_scc1 K2_GW
    s_lshr_b32 s62, s4, 1
    s_lshl_b32 s62, s62, 7
    s_add_u32 s62, s62, {WS_FLG0}
    v_and_b32 v25, 31, v2
    v_lshlrev_b32 v25, 2, v25
    s_sleep {opt.get('sl0',36)}
    buffer_load_dword v24, v25, s[8:11], s62 offen sc1
    s_sleep {opt.get('sl1',5)}
    buffer_load_dword v27, v25, s[8:11], s62 offen sc1
    s_sleep {opt.get('sl1',5)}
    buffer_load_dword v28, v25, s[8:11], s62 offen sc1
    K2_GP:
    s_waitcnt vmcnt(2)
    v_cmp_ne_u32 vcc, s63, v24
    s_sub_u32 s61, s61, 1
    s_cmp_eq_u32 s61, 0
    s_cbranch_scc1 K2_GD
    s_cbranch_vccz K2_GD
    buffer_load_dword v24, v25, s[8:11], s62 offen sc1
    s_waitcnt vmcnt(2)
    v_cmp_ne_u32 vcc, s63, v27
    s_nop 2
    s_cbranch_vccz K2_GD
    buffer_load_dword v27, v25, s[8:11], s62 offen sc1
    s_waitcnt vmcnt(2)
    v_cmp_ne_u32 vcc, s63, v28
    s_nop 2
    s_cbranch_vccz K2_GD
    buffer_load_dword v28, v25, s[8:11], s62 offen sc1
    s_branch K2_GP
    K2_GD:
    v_mov_b32 v29, s63
    ds_write_b32 v26, v29
    s_branch K2_GE
    K2_GW:
    ds_read_b32 v24, v26
    s_waitcnt lgkmcnt(0)
    v_readfirstlane_b32 s62, v24
    s_sub_u32 s61, s61, 1
    s_cmp_eq_u32 s62, s63
    s_cbranch_scc1 K2_GE
    s_sleep 2
    s_cmp_lg_u32 s61, 0
    s_cbranch_scc1 K2_GW
    K2_GE:
    ''')
    stamp(e,opt)
    reset(); loop3('PA',dmaA)
    addr()
    e('s_waitcnt vmcnt(8)')
    stamp(e,opt) if opt.get('profloop') else None
    e('s_barrier')
    ldr='buffer_load_dword v24, v25, s[8:11], s86 offen sc1'
    e(f'''
    s_lshr_b32 s86, s4, 1
    s_lshl_b32 s86, s86, 7
    s_add_u32 s86, s86, {WS_FLGF}
    v_and_b32 v25, 31, v2
    v_lshlrev_b32 v25, 2, v25
    s_cmp_lg_u32 s46, 0
    s_cbranch_scc1 K2_NL1
    {ldr}
    K2_NL1:
    ''')
    e(f'''
    s_mov_b32 s88, s56
    s_mov_b32 s89, s57
    v_lshrrev_b32 v8, 3, v2
    v_and_b32 v9, 7, v2
    v_xor_b32 v9, v9, v8
    v_lshlrev_b32 v9, 4, v9
    v_lshl_add_u32 v9, v8, 10, v9
    s_lshl_b32 s56, s4, 16
    s_lshl_b32 s57, s5, 7
    s_add_u32 s56, s56, s57
    s_lshl_b32 s57, s46, 14
    s_add_u32 s56, s56, s57
    s_lshl_b32 s57, s46, 11
    s_add_u32 m0, s57, {XL}
    s_nop 0
    buffer_load_dwordx4 v9, s[20:23], s56 offen lds
    s_add_u32 m0, s57, {XL+1024}
    s_add_u32 s56, s56, 8192
    buffer_load_dwordx4 v9, s[20:23], s56 offen lds
    v_and_b32 v8, 7, v2
    v_lshlrev_b32 v8, 4, v8
    s_lshl_b32 s56, s5, 7
    s_mov_b32 m0, {B2L}
    s_nop 0
    buffer_load_dwordx4 v8, s[24:27], s56 offen lds
    s_mov_b32 s56, s88
    s_mov_b32 s57, s89
    s_waitcnt vmcnt(7)
    ''')
    stamp(e,opt) if opt.get('profloop') else None
    e('s_barrier')
    dma()
    addr()
    e(f'''
    s_waitcnt vmcnt(8)
    s_cmp_lg_u32 s46, 0
    s_cbranch_scc1 K2_RD
    s_mov_b32 s61, 0x40000
    K2_RP:
    v_cmp_ne_u32 vcc, s63, v24
    s_sub_u32 s61, s61, 1
    s_cmp_eq_u32 s61, 0
    s_cbranch_scc1 K2_RD
    s_cbranch_vccz K2_RD
    s_sleep {opt.get('sl1',4)}
    {ldr}
    s_waitcnt vmcnt(0)
    s_branch K2_RP
    K2_RD:
    ''')
    stamp(e,opt) if opt.get('profloop') else None
    e('s_barrier')
    ld2='buffer_load_dwordx4 v[36:39], v3, s[8:11], s85 offen sc1\n    buffer_load_dwordx4 v[40:43], v3, s[8:11], s85 offen offset:1024 sc1'
    e(f'''
    s_mov_b32 s85, {WS_FLGF+2048}
    s_cmp_lg_u32 s46, 0
    s_cbranch_scc1 K2_NL2
    {ld2}
    K2_NL2:
    ''')
    dma()
    addr()
    e('s_waitcnt vmcnt(8)')
    stamp(e,opt) if opt.get('profloop') else None
    e('s_barrier')
    dma()
    addr()
    e(f'''
    s_waitcnt vmcnt(8)
    s_cmp_lg_u32 s46, 0
    s_cbranch_scc1 K2_PEK
    s_mov_b32 s61, 0x40000
    K2_PLK:
    v_xor_b32 v32, s63, v36
    v_xor_b32 v33, s63, v37
    v_or_b32 v32, v32, v33
    v_xor_b32 v33, s63, v38
    v_or_b32 v32, v32, v33
    v_xor_b32 v33, s63, v39
    v_or_b32 v32, v32, v33
    v_xor_b32 v33, s63, v40
    v_or_b32 v32, v32, v33
    v_xor_b32 v33, s63, v41
    v_or_b32 v32, v32, v33
    v_xor_b32 v33, s63, v42
    v_or_b32 v32, v32, v33
    v_xor_b32 v33, s63, v43
    v_or_b32 v32, v32, v33
    v_cmp_ne_u32 vcc, 0, v32
    s_sub_u32 s61, s61, 1
    s_cmp_eq_u32 s61, 0
    s_cbranch_scc1 K2_PEK
    s_cbranch_vccz K2_PEK
    s_sleep {opt.get('sl1',4)}
    {ld2}
    s_waitcnt vmcnt(0)
    s_branch K2_PLK
    K2_PEK:
    ''')
    stamp(e,opt) if opt.get('profloop') else None
    e('s_barrier')
    e(f'''
    s_lshl_b32 s61, s46, 13
    s_add_u32 s62, s61, {WS_KV}
    s_add_u32 s61, s61, {KVB}
    ''')
    for i in range(8):
        if i%4==0:
            e(f's_add_u32 m0, s61, {i*1024}')
            e(f's_add_u32 s88, s62, {i*1024}')
        e(f'buffer_load_dwordx4 v3, s[8:11], s88 offen offset:{(i%4)*1024} {af} lds')
    e(f'''
    s_cmp_lt_u32 s46, 2
    s_cbranch_scc0 K2_NZ2
    s_lshl_b32 s61, s46, 10
    s_add_u32 m0, s61, {ZL}
    s_add_u32 s88, s61, {WS_Z}
    buffer_load_dwordx4 v3, s[8:11], s88 offen {af} lds
    K2_NZ2:
    ''')
    dma()
    addr()
    e('s_waitcnt vmcnt(16)')
    stamp(e,opt) if opt.get('profloop') else None
    e('s_barrier')
    dma()
    e(f'''
    s_mov_b32 s51, 6
    K2_LL:
    s_cmp_ge_u32 s52, {NST}
    s_cbranch_scc1 K2_LNA
    ''')
    addr()
    e(f'''
    K2_LNA:
    s_cmp_eq_u32 s51, {NST-1}
    s_cbranch_scc1 K2_LW0
    s_waitcnt vmcnt(8)
    s_branch K2_LW1
    K2_LW0:
    s_waitcnt vmcnt(0)
    K2_LW1:
    ''')
    stamp(e,opt) if opt.get('profloop') else None
    e(f'''
    s_barrier
    s_cmp_ge_u32 s51, {NST-2}
    s_cbranch_scc1 K2_LNI
    ''')
    dma()
    e(f'''
    K2_LNI:
    s_add_u32 s51, s51, 1
    s_cmp_lg_u32 s51, {NST}
    s_cbranch_scc1 K2_LL
    s_barrier
    s_branch K2_END
    ''')
    e('K2_CENTRY:')
    shuffle(e)
    e(f'''
    s_and_b32 s46, s3, 1              ; a
    s_lshr_b32 s47, s3, 1             ; kh
    v_lshrrev_b32 v7, 5, v2           ; hi
    v_lshlrev_b32 v12, 4, v2          ; lane*16
    s_lshl_b32 s48, s46, 13
    s_lshl_b32 s49, s47, 12
    s_add_u32 s48, s48, s49
    v_add_u32 v13, s48, v12
    v_and_b32 v14, 15, v2
    v_lshrrev_b32 v14, 2, v14
    v_lshl_add_u32 v14, v7, 2, v14     ; 4hi + (i>>2)
    v_lshlrev_b32 v14, 7, v14
    v_and_b32 v15, 3, v2
    v_lshlrev_b32 v15, 3, v15
    v_bfe_u32 v8, v2, 4, 1
    v_lshl_add_u32 v15, v8, 5, v15
    v_bfe_u32 v8, v2, 3, 1
    v_lshlrev_b32 v8, 6, v8
    v_xor_b32 v15, v15, v8
    s_lshl_b32 s48, s47, 13
    s_add_u32 s48, s48, {BOFF}
    v_add3_u32 v14, v14, v15, s48
    v_xor_b32 v15, 64, v14             ; tile b=1
    s_lshl_b32 s48, s47, 6
    v_xor_b32 v14, s48, v14
    v_xor_b32 v15, s48, v15
    v_and_b32 v9, 31, v2
    v_lshl_add_u32 v10, v7, 4, v9
    v_lshlrev_b32 v10, 4, v10
    s_lshl_b32 s48, s47, 12
    s_add_u32 s48, s48, {KVB}
    v_add_u32 v10, s48, v10
    s_lshl_b32 s48, s47, 8
    s_add_u32 s48, s48, {ZL}
    v_lshl_add_u32 v11, v7, 4, s48
    v_cmp_gt_u32 vcc, 16, v9
    v_mov_b32 v18, 64
    v_mov_b32 v19, 0x400
    v_mov_b32 v20, 32
    v_mov_b32 v21, 0x200
    v_cndmask_b32 v18, v18, v19, vcc
    v_cndmask_b32 v20, v20, v21, vcc
    v_cndmask_b32 v10, v11, v10, vcc
    v_lshlrev_b32 v22, 1, v18
    v_lshlrev_b32 v23, 3, v18
    s_mov_b32 s41, {CMASK}
    s_mov_b32 s74, {hx(1e-6)}
    s_mov_b32 s52, 0
    s_mov_b32 s53, 0
    ''')
    for r in range(ACC,ACC+32): e(f'v_mov_b32 v{r}, 0')
    srd(e,8,38,wssz)
    srd(e,20,36,S*D*2)
    stamp(e,opt)
    if opt.get('prio',1): e('s_setprio 3')
    def acc(b): return ACC+16*b
    e('K2_CL:')
    e('s_barrier')
    if opt.get('profloop'): stamp(e,opt)
    e('s_bitcmp1_b32 s40, s52')
    e('s_cbranch_scc1 K2_CA')
    def frd(s):
        b=F0+12*s
        return [(f'ds_read_b128 v[{b}:{b+3}], v13 offset:{s*1024}',f'a{s}'),
                (f'ds_read_b64_tr_b16 v[{b+4}:{b+5}], v14 offset:{s*2048}',f'b{s}'),
                (f'ds_read_b64_tr_b16 v[{b+6}:{b+7}], v14 offset:{s*2048+1024}',f'b{s}'),
                (f'ds_read_b64_tr_b16 v[{b+8}:{b+9}], v15 offset:{s*2048}',f'c{s}'),
                (f'ds_read_b64_tr_b16 v[{b+10}:{b+11}], v15 offset:{s*2048+1024}',f'c{s}')]
    C=112
    def conv_reads(q):
        e('v_add_u32 v21, v10, v20'); e('v_add_u32 v26, v10, v18'); e('v_add_u32 v27, v21, v18')
        for x,t in [(f'ds_read_b128 v[{C}:{C+3}], v10','k0'),(f'ds_read_b128 v[{C+4}:{C+7}], v21','k0'),
                    (f'ds_read_b128 v[{C+8}:{C+11}], v26','k1'),(f'ds_read_b128 v[{C+12}:{C+15}], v27','k1')]:
            e(x); q.issue(t)
        e('v_add_u32 v10, v10, v22')
        e('v_sub_u32 v22, v23, v22')
    def ffn_stage(conv):
        q=DSQ()
        if conv: conv_reads(q)
        for s in range(2):
            for x,t in frd(s): e(x); q.issue(t)
        if conv:
            for i_ in range(8): e(f'v_mov_b32 v{KF+i_}, v{KF+8+i_}')
        else:
            for x,t in frd(2): e(x); q.issue(t)
        for s in range(4):
            b=F0+12*s
            q.need(e,{f'a{s}',f'b{s}'})
            e(f'v_mfma_f32_32x32x16_bf16 {vr(acc(0),16)}, {vr(b+4,4)}, {vr(b,4)}, {vr(acc(0),16)}')
            if conv and s==0:
                for i_ in range(4): e(f'v_cvt_pk_bf16_f32 v{KF+8+i_}, v{C+2*i_}, v{C+2*i_+1}')
            q.need(e,{f'c{s}'})
            e(f'v_mfma_f32_32x32x16_bf16 {vr(acc(1),16)}, {vr(b+8,4)}, {vr(b,4)}, {vr(acc(1),16)}')
            if s==0:
                if conv:
                    for x,t in frd(2): e(x); q.issue(t)
                    for i_ in range(4): e(f'v_cvt_pk_bf16_f32 v{KF+12+i_}, v{C+8+2*i_}, v{C+8+2*i_+1}')
                else:
                    for x,t in frd(3): e(x); q.issue(t)
            if s==1 and conv:
                for x,t in frd(3): e(x); q.issue(t)
    e('s_bitcmp1_b32 s41, s52')
    e('s_cbranch_scc1 K2_CV')
    ffn_stage(False)
    e('s_branch K2_CN')
    e('K2_CV:')
    ffn_stage(True)
    e('s_branch K2_CN')
    e('K2_CA:')
    q=DSQ()
    DB=[160,176,192,208]
    def kb(h): return F0+4*h
    def wb(h): return 80+8*h
    def ofr(h): return 32+4*(h%2)
    def rd(h):
        e(f'ds_read_b128 v[{kb(h)}:{kb(h)+3}], v13 offset:{h*1024}'); q.issue(f'k{h}q')
    def rdw(h):
        b=wb(h)
        for x,t in [(f'ds_read_b64_tr_b16 v[{b}:{b+1}], v14 offset:{h*2048}',f'w{h}'),
                    (f'ds_read_b64_tr_b16 v[{b+2}:{b+3}], v14 offset:{h*2048+1024}',f'w{h}'),
                    (f'ds_read_b64_tr_b16 v[{b+4}:{b+5}], v15 offset:{h*2048}',f'x{h}'),
                    (f'ds_read_b64_tr_b16 v[{b+6}:{b+7}], v15 offset:{h*2048+1024}',f'x{h}')]:
            e(x); q.issue(t)
    def d1(h):
        q.need(e,{f'k{h}q'})
        e(f'v_mfma_f32_32x32x16_bf16 {vr(DB[h],16)}, {vr(KF+4*h,4)}, {vr(kb(h),4)}, 0')
    def fin_valu(h):
        Dr=DB[h]; r=8+(h%2)
        L=[f'v_add_f32 v{r}, s74, v{Dr+8}', f'v_rcp_f32 v{r}, v{r}']
        M=[f'v_mul_f32 v{Dr+i}, v{Dr+i}, v{r}' for i in range(8)]
        Cc=[f'v_cvt_pk_bf16_f32 v{ofr(h)+i}, v{Dr+2*i}, v{Dr+2*i+1}' for i in range(4)]
        return L,M,Cc
    def mm(h,t):
        q.need(e,{f'{"wx"[t]}{h}'})
        e(f'v_mfma_f32_32x32x16_bf16 {vr(acc(t),16)}, {vr(wb(h)+4*t,4)}, {vr(ofr(h),4)}, {vr(acc(t),16)}')
    for h in range(4): rd(h)
    rdw(0); rdw(1)
    d1(0); d1(1); d1(2); d1(3)
    rdw(2)
    L0,M0,C0=fin_valu(0); L1,M1,C1=fin_valu(1); L2,M2,C2=fin_valu(2); L3,M3,C3=fin_valu(3)
    e('s_nop 3')
    for x in [L0[0],L0[1],L1[0],L1[1]]: e(x)
    for x in M0+C0: e(x)
    e('s_nop 1')
    mm(0,0)
    for x in M1[:4]: e(x)
    mm(0,1)
    rdw(3)
    for x in M1[4:]+C1+[L2[0],L2[1]]: e(x)
    mm(1,0)
    for x in [L3[0]]+M2[:4]: e(x)
    mm(1,1)
    conv_reads(q)
    for x in [L3[1]]+M2[4:]+C2: e(x)
    e('s_nop 0')
    mm(2,0)
    for x in M3[:4]: e(x)
    mm(2,1)
    for x in M3[4:]+C3: e(x)
    e('s_nop 1')
    mm(3,0); mm(3,1)
    q.need(e,{'k0'})
    for i_ in range(4): e(f'v_cvt_pk_bf16_f32 v{KF+8+i_}, v{C+2*i_}, v{C+2*i_+1}')
    q.need(e,{'k1'})
    for i_ in range(4): e(f'v_cvt_pk_bf16_f32 v{KF+12+i_}, v{C+8+2*i_}, v{C+8+2*i_+1}')
    e('K2_CN:')
    e(f'''
    s_waitcnt lgkmcnt(0)
    s_add_u32 s53, s53, s64
    s_cmp_eq_u32 s53, {NS*SLOT}
    s_cselect_b32 s50, s65, s64
    s_cselect_b32 s53, 0, s53
    v_add_u32 v13, s50, v13
    v_add_u32 v14, s50, v14
    v_add_u32 v15, s50, v15
    s_add_u32 s52, s52, 1
    s_cmp_lg_u32 s52, {NST}
    s_cbranch_scc1 K2_CL
    ''')
    stamp(e,opt)
    e(f'''
    s_lshl_b32 s48, s3, 12
    v_add_u32 v16, s48, v12
    s_xor_b32 s48, s3, 2
    s_lshl_b32 s48, s48, 12
    v_add_u32 v18, s48, v12
    v_and_b32 v9, 31, v2
    s_lshl_b32 s48, s46, 5
    v_add_u32 v9, s48, v9
    v_and_b32 v10, 7, v9              ; row&7
    s_lshl_b32 s49, s47, 2
    v_lshlrev_b32 v11, 7, v9
    v_lshl_add_u32 v11, v7, 3, v11
    v_add_u32 v11, {XL}, v11
    ''')
    for g in range(4): e(f'ds_write_b128 v16, v[{acc(1)+4*g}:{acc(1)+4*g+3}] offset:{g*1024}')
    e(f'''
    v_lshlrev_b32 v12, 3, v7
    s_lshl_b32 s50, s47, 6
    v_add_u32 v12, s50, v12
    v_add_u32 v12, {B2L}, v12         ; b2: b*64 + hi*8
    ''')
    for g in range(4):
        e(f'v_mov_b32 v16, s49')
        e(f'v_add_u32 v16, {g}, v16')
        e(f'v_xor_b32 v16, v16, v10')
        e(f'v_lshl_add_u32 v16, v16, 4, v11')
        e(f'ds_read_b64 v[{32+2*g}:{33+2*g}], v16')
        e(f'ds_read_b64 v[{40+2*g}:{41+2*g}], v12 offset:{g*16}')
    e(f'''
    s_mov_b32 s70, 0xffff0000
    s_lshl_b32 s48, s4, 6
    v_add_u32 v17, s48, v9
    v_lshlrev_b32 v17, 10, v17
    s_lshl_b32 s48, s5, 7
    s_lshl_b32 s49, s47, 6
    s_add_u32 s48, s48, s49
    v_lshl_add_u32 v17, v7, 4, v17
    v_add_u32 v17, s48, v17
    s_waitcnt lgkmcnt(0)
    ''')
    for g in range(4):
        for c2 in range(2):
            xr=32+2*g+c2; br=40+2*g+c2; a0=ACC+4*g+2*c2
            e(f'''
            v_lshlrev_b32 v20, 16, v{xr}
            v_and_b32 v21, s70, v{xr}
            v_lshlrev_b32 v22, 16, v{br}
            v_and_b32 v23, s70, v{br}
            v_add_f32 v20, v20, v22
            v_add_f32 v21, v21, v23
            v_add_f32 v{a0}, v20, v{a0}
            v_add_f32 v{a0+1}, v21, v{a0+1}
            ''')
    e('s_barrier')
    for g in range(4): e(f'ds_read_b128 v[{acc(1)+4*g}:{acc(1)+4*g+3}], v18 offset:{g*1024}')
    for g in range(4):
        e(f's_waitcnt lgkmcnt({3-g})')
        for i in range(4): e(f'v_add_f32 v{ACC+4*g+i}, v{ACC+4*g+i}, v{ACC+16+4*g+i}')
        for c2 in range(2): e(f'v_cvt_pk_bf16_f32 v{48+2*g+c2}, v{ACC+4*g+2*c2}, v{ACC+4*g+2*c2+1}')
    e('''
    s_nop 1
    v_permlane32_swap_b32 v48, v50
    v_permlane32_swap_b32 v49, v51
    v_permlane32_swap_b32 v52, v54
    v_permlane32_swap_b32 v53, v55
    buffer_store_dwordx4 v[48:51], v17, s[20:23], 0 offen
    buffer_store_dwordx4 v[52:55], v17, s[20:23], 0 offen offset:32
    ''')
    e('K2_END:')
    if opt.get('prof'):
        e('s_waitcnt vmcnt(0)')
        stamp(e,opt)
        stamp_flush(e,opt,8,1,8)
    if opt.get('ts'):
        e(f'''
        s_waitcnt vmcnt(0)
        s_memrealtime s[68:69]
        s_mov_b32 s76, s38
        s_and_b32 s77, s39, 0xffff
        s_mov_b32 s78, {WS_TS+2*256*8*8}
        s_mov_b32 s79, 0x20000
        s_waitcnt lgkmcnt(0)
        s_lshl_b32 s70, s2, 3
        s_add_u32 s70, s70, s3
        s_lshl_b32 s70, s70, 3
        s_add_u32 s70, s70, {WS_TS+256*8*8}
        v_mov_b32 v8, s66
        v_mov_b32 v9, s68
        v_mov_b32 v10, 0
        buffer_store_dwordx2 v[8:9], v10, s[76:79], s70 offen
        ''')
    e('s_endpgm')
    return e.text()
```

```python
import sys, json
from common import *
import k1, k2, k2b, k1b, k2c, k2d, k1c, k2e
PRE=open('parallel_sum__linear_attn_block__dense_activation_gelu__prompt.s.ref').read().split('; Override launch')[0]
def build_fused(opt):
    opt=dict(opt); opt['k1name']='parallel_sum__linear_attn_block__dense_activation_gelu__prompt_kernel'; opt.setdefault('aflag','sc1')
    KN=opt['k1name']
    o=PRE
    o+='; One launch: phase 1 = LN-folded qkv / ffn1 GEMMs (+phi, gelu, kv sums), phase 2 = output GEMM (attention finish, ffn2, residual).\n'
    A,B=(k1c,k2e) if opt['fused']==2 else (k1b,k2c)
    o+=f'; @launch grid=(256,1,1) block=(512,1,1) lds={max(A.LDS_BYTES,B.LDS_BYTES)}\n'
    o+=HEADER+kernel_begin(KN)+A.k1(opt)+B.k2(opt)+'K_TEXT_END:\n    s_endpgm\n'
    nv=248 if opt.get('prof') else 240
    o+=RODATA+kernel_desc(KN,nv,102,nv)
    return o
def build(opt):
    if opt.get('fused'): return build_fused(opt)
    o=PRE
    o+='; Two launches: k1 = LN-folded qkv / ffn1 GEMMs (+phi, gelu, kv sums), k2 = output GEMM (attention finish, ffn2, residual).\n'
    K1=k1b if opt.get('k1b',1) else k1
    o+=f'; @launch kernel=k1_kernel grid=(256,1,1) block=(512,1,1) lds={k1b.LDS_BYTES if opt.get("k1b",1) else 163840}\n'
    K2={'b':k2b,'c':k2c,'d':k2d}[opt.get('k2','c')]
    o+=f'; @launch kernel=k2_kernel grid=(256,1,1) block=(512,1,1) lds={K2.LDS_BYTES}\n'
    if opt.get('ts'): o+='; @launch kernel=k3_kernel grid=(1,1,1) block=(256,1,1) lds=0\n'
    o+=HEADER
    o+=kernel_begin('k1_kernel')+K1.k1(opt)
    o+=kernel_begin('k2_kernel')+K2.k2(opt)
    o+='K_TEXT_END:\n    s_endpgm\n'
    if opt.get('ts'): o+=kernel_begin('k3_kernel')+k2.k3_ts()
    o+=RODATA+kernel_desc('k1_kernel',248 if opt.get('prof') else 240,102,248 if opt.get('prof') else 240)
    o+='.p2align 6\n'+kernel_desc('k2_kernel',248 if opt.get('prof') else 240,102,248 if opt.get('prof') else 240)
    if opt.get('ts'): o+='.p2align 6\n'+kernel_desc('k3_kernel',64,96,64)
    return o
if __name__=='__main__':
    opt=json.loads(sys.argv[2]) if len(sys.argv)>2 else {}
    open(sys.argv[1],'w').write(build(opt))
```

```python
from common import *
from k1 import DSQ, pk

NS=3; SLOT=40960
SC=NS*SLOT
NONCE=SC; ZERO=SC+16
REC=SC+1024
RSTD=SC+5120
WFR=SC+5632
KVP=SC+9216
LDS_BYTES=SC+18432
NONCE_IDX=48

ACC=128
FA=64; FB=84
XA=104; WA=108
XF=64; KC=72; WF=80
T0=8; OUT=40
def acc(t,a): return ACC+(t*2+a)*16

def prologue(e,opt):
    e(f'''
    s_cmp_ge_u32 s2, 256
    s_cbranch_scc1 K1_EXIT0
    s_load_dwordx4 s[28:31], s[0:1], 0
    s_load_dwordx4 s[32:35], s[0:1], 32
    s_load_dwordx4 s[36:39], s[0:1], 72
    s_load_dwordx2 s[82:83], s[0:1], 16
    s_load_dwordx2 s[84:85], s[0:1], 48
    s_load_dwordx4 s[92:95], s[0:1], 56
    v_lshrrev_b32 v1, 6, v0
    v_and_b32 v2, 63, v0
    v_readfirstlane_b32 s3, v1
    s_and_b32 s8, s2, 7
    s_lshr_b32 s9, s2, 3
    s_and_b32 s10, s9, 7              ; rb_local
    s_lshr_b32 s11, s9, 3             ; cb_local
    s_lshr_b32 s4, s8, 2
    s_lshl_b32 s4, s4, 3
    s_add_u32 s4, s4, s10             ; rb
    s_and_b32 s5, s8, 3
    s_lshl_b32 s5, s5, 1
    s_and_b32 s12, s11, 1
    s_add_u32 s5, s5, s12
    s_lshr_b32 s7, s11, 1
    s_lshl_b32 s12, s7, 3
    s_add_u32 s5, s5, s12             ; cb
    s_mul_i32 s6, s11, {opt.get('rotc',2)}
    s_add_u32 s6, s6, s10
    s_and_b32 s6, s6, 7
    s_and_b32 s12, s5, 7
    s_mul_i32 s13, s12, 6
    s_mul_i32 s14, s12, 5
    s_add_u32 s14, s14, 3
    s_min_u32 s44, s13, s14
    s_cmp_lt_u32 s12, 3
    s_cselect_b32 s45, 6, 5
    s_lshl_b32 s13, s12, 7
    s_lshl_b32 s14, s44, 6
    s_mov_b32 s40, 2752
    s_mov_b32 s15, 128
    s_cmp_eq_u32 s7, 0
    s_cselect_b32 s40, 3072, s40
    s_cselect_b32 s41, s13, s14
    s_cselect_b32 s15, 1024, s15
    s_add_u32 s42, s41, s15
    s_add_u32 s43, s42, s15
    s_mov_b32 s64, {SLOT}
    s_mov_b32 s65, {-(NS-1)*SLOT & 0xffffffff:#x}
    s_cmp_lt_u32 s3, 4
    s_cbranch_scc1 K1_CONS
    ''')

def srds_rest(e,opt):
    srd(e,16,38,(WS_PROF+2*256*8*256) if opt.get('prof') else WS_SIZE)
    srd(e,24,36,256)
    if opt.get('ts'): srd(e,72,38,WS_TS+256*8*8)
    stamp_init(e,opt); stamp(e,opt)

def waddr(e,nh,dst,tmp):
    for t in range(3):
        e(f'''
        s_mul_i32 s{tmp}, s{nh}, 3
        s_add_u32 s{tmp}, s{tmp}, {t}
        s_lshr_b32 s{tmp+1}, s{tmp}, 1
        s_and_b32 s{tmp}, s{tmp}, 1
        s_cmp_eq_u32 s7, 0
        s_cselect_b32 s{tmp+1}, {t}, s{tmp+1}
        s_cselect_b32 s{tmp}, s{nh}, s{tmp}
        s_lshl_b32 s{tmp+1}, s{tmp+1}, 13
        s_add_u32 s{tmp+1}, s{tmp+1}, 16384
        s_lshl_b32 s{tmp}, s{tmp}, 6
        v_add_u32 v9, s{tmp}, v7
        v_xor_b32 v9, v9, v8
        v_add3_u32 v{dst+t}, v9, v6, s{tmp+1}
        ''')
def wlane(e):
    e('''
    v_lshrrev_b32 v4, 5, v2          ; hi
    v_and_b32 v6, 15, v2
    v_lshrrev_b32 v6, 2, v6
    v_lshl_add_u32 v6, v4, 3, v6
    v_lshlrev_b32 v6, 7, v6          ; (8hi + i>>2)*128
    v_and_b32 v7, 3, v2
    v_lshlrev_b32 v7, 3, v7
    v_bfe_u32 v8, v2, 4, 1
    v_lshl_add_u32 v7, v8, 5, v7     ; g16*32 + (i&3)*8
    v_bfe_u32 v8, v2, 3, 1
    v_lshlrev_b32 v8, 6, v8          ; 64*bit3
    ''')

def pfcode(e,opt,w):
    n=opt['pfcode']; lab=e.label('K1_PFC')
    e(f'''
    s_cmp_ge_u32 {w}, {n}
    s_cbranch_scc1 {lab}E
    s_getpc_b64 s[96:97]
    {lab}P:
    s_sub_u32 s96, s96, {lab}P-{opt.get('k1name','k1_kernel')}
    s_subb_u32 s97, s97, 0
    s_lshl_b32 s98, {w}, 13
    v_lshlrev_b32 v8, 7, v2
    v_add_u32 v8, s98, v8
    s_mov_b32 s98, K_TEXT_END-{opt.get('k1name','k1_kernel')}-4
    v_min_u32 v8, s98, v8
    global_load_dword v117, v8, s[96:97]
    {lab}E:
    ''')
def touches(e,opt):
    if opt.get('pfcode') and not opt.get('pfearly'):
        n=opt['pfcode']; lab=e.label('K1_PFL')
        e(f'''
        s_getpc_b64 s[80:81]
        {lab}P:
        s_sub_u32 s80, s80, {lab}P-{opt.get('k1name','k1_kernel')}
        s_subb_u32 s81, s81, 0
        s_lshl_b32 s86, s46, 13
        v_lshlrev_b32 v8, 7, v2
        v_add_u32 v8, s86, v8
        s_mov_b32 s86, K_TEXT_END-{opt.get('k1name','k1_kernel')}-4
        v_min_u32 v8, s86, v8
        global_load_dword v121, v8, s[80:81]
        ''')
    if opt.get('pfw'):
        e(f'''
        s_mov_b32 s88, s84
        s_and_b32 s89, s85, 0xffff
        s_mov_b32 s90, {F*D*2}
        s_mov_b32 s91, 0x20000
        s_mov_b32 s76, s82
        s_and_b32 s77, s83, 0xffff
        s_mov_b32 s78, {D*D*2}
        s_mov_b32 s79, 0x20000
        s_lshr_b32 s80, s2, 3
        s_mul_i32 s81, s80, {344*128}
        s_mul_i32 s86, s46, {86*128}
        s_add_u32 s81, s81, s86
        v_lshlrev_b32 v8, 7, v2
        buffer_load_dword v120, v8, s[88:91], s81 offen
        s_add_u32 s81, s81, {64*128}
        s_mov_b32 exec_lo, 0x3fffff
        s_mov_b32 exec_hi, 0
        buffer_load_dword v120, v8, s[88:91], s81 offen
        s_lshl_b32 s81, s80, 14
        s_lshl_b32 s86, s46, 12
        s_add_u32 s81, s81, s86
        s_mov_b32 exec_lo, -1
        buffer_load_dword v120, v8, s[76:79], s81 offen
        s_mov_b64 exec, -1
        ''')

def loader(e,opt):
    npf=(3 if opt.get('pfw') else 0)+(1 if opt.get('pfcode') and not opt.get('pfearly') else 0)
    e('''
    s_and_b32 s46, s3, 3
    v_lshrrev_b32 v3, 3, v2
    v_and_b32 v4, 7, v2
    v_lshrrev_b32 v5, 4, v2
    v_xor_b32 v6, v4, v5
    v_lshlrev_b32 v6, 4, v6
    v_lshl_add_u32 v10, v3, 10, v6
    s_lshl_b32 s47, s4, 17
    s_lshl_b32 s48, s46, 15
    s_add_u32 s47, s47, s48
    v_add_u32 v10, s47, v10
    v_xor_b32 v11, 64, v10
    v_add_u32 v11, 0x2000, v11
    v_add_u32 v12, 0x4000, v10
    v_add_u32 v13, 0x4000, v11
    v_and_b32 v5, 1, v5
    v_lshlrev_b32 v5, 2, v5
    v_xor_b32 v4, v4, v5
    v_lshlrev_b32 v4, 4, v4
    s_lshl_b32 s47, s46, 4
    v_add_u32 v14, s47, v3
    v_mul_lo_u32 v14, v14, s40
    v_add_u32 v14, v14, v4
    s_lshl_b32 s47, s40, 3
    v_add_u32 v15, s47, v14
    s_lshl_b32 s54, s46, 12
    s_lshl_b32 s55, s46, 11
    s_add_u32 s55, s55, 16384
    s_lshl_b32 s56, s40, 6
    s_mov_b32 s48, s6
    s_mov_b32 s53, 0
    ''')
    def stage_addr():
        return ['s_lshl_b32 s49, s48, 7','s_mul_i32 s50, s48, s56','s_add_u32 s51, s50, s42',
                's_add_u32 s52, s50, s43','s_add_u32 s50, s50, s41',
                's_add_u32 s58, s53, s54','s_add_u32 s59, s53, s55',
                's_add_u32 s48, s48, 1','s_and_b32 s48, s48, 7',
                's_add_u32 s53, s53, s64', f's_cmp_eq_u32 s53, {NS*SLOT}','s_cselect_b32 s53, 0, s53']
    def dma():
        L=[]
        if opt.get('x_nodma1'): return L
        for i in range(4):
            L+=[f's_add_u32 m0, s58, {i*1024}', 's_nop 0', f'buffer_load_dwordx4 v{10+i}, s[8:11], s49 offen lds']
        for sub in range(3):
            for h in range(2):
                L+=[f's_add_u32 m0, s59, {sub*8192+h*1024}', 's_nop 0', f'buffer_load_dwordx4 v{14+h}, s[12:15], s{50+sub} offen lds']
        return L
    for x in stage_addr(): e(x)
    e('s_waitcnt lgkmcnt(0)')
    srd(e,8,28,S*D*2)
    e(f'''
    s_cmp_eq_u32 s7, 0
    s_cselect_b32 s12, s30, s32
    s_cselect_b32 s13, s31, s33
    s_mov_b32 s14, {D*F*2}
    s_cselect_b32 s14, {D*3*D*2}, s14
    s_and_b32 s13, s13, 0xffff
    s_mov_b32 s15, 0x20000
    ''')
    for x in dma(): e(x)
    for x in stage_addr(): e(x)
    for x in dma(): e(x)
    srds_rest(e,opt)
    srd(e,20,34,F*2)
    wlane(e)
    waddr(e,46,16,60)
    e(f'''
    s_lshr_b32 s60, s4, 3             ; hf
    s_lshl_b32 s60, s60, 12           ; 2hf*2048
    v_add_u32 v16, s60, v16
    v_add_u32 v17, s60, v17
    v_add_u32 v18, s60, v18
    v_lshrrev_b32 v5, 4, v2
    v_xor_b32 v5, v5, v2
    v_and_b32 v5, 1, v5
    v_cmp_eq_u32 vcc, 0, v5
    v_mov_b32 v6, 0x3f803f80
    v_mov_b32 v19, {NONCE_IDX*4}
    s_lshl_b32 s60, s5, 2
    v_mov_b32 v26, s60
    v_mov_b32 v25, 0
    v_cndmask_b32 v20, 0, v6, vcc
    v_mov_b32 v21, v20
    v_mov_b32 v22, v20
    v_mov_b32 v23, v20
    ''')
    for x in stage_addr(): e(x)
    e('s_waitcnt vmcnt(10)')
    stamp(e,opt)
    e('s_barrier')
    e(f'''
    s_cmp_lg_u32 s46, 3
    s_cbranch_scc1 K1_NNL
    buffer_load_dword v24, v19, s[24:27], 0 offen sc1
    K1_NNL:
    ''')
    for x in dma(): e(x)
    e('s_cmp_ge_u32 s46, 2')
    e('s_cbranch_scc1 K1_NOCS')
    for t in range(3):
        for k in range(2):
            e(f'ds_read_b64_tr_b16 v[{24+8*t+4*k}:{25+8*t+4*k}], v{16+t} offset:{k*2048}')
            e(f'ds_read_b64_tr_b16 v[{26+8*t+4*k}:{27+8*t+4*k}], v{16+t} offset:{k*2048+512}')
    e('s_waitcnt lgkmcnt(0)')
    for t in range(3):
        e(f'v_mfma_f32_16x16x32_bf16 v[{48+4*t}:{51+4*t}], v[20:23], v[{24+8*t}:{27+8*t}], 0')
    for t in range(3):
        e(f'v_mfma_f32_16x16x32_bf16 v[{48+4*t}:{51+4*t}], v[20:23], v[{28+8*t}:{31+8*t}], v[{48+4*t}:{51+4*t}]')
    e(f'''
    v_and_b32 v5, 16, v2
    v_cmp_ne_u32 vcc, 0, v5
    v_lshlrev_b32 v5, 4, v2
    s_lshl_b32 s60, s5, 4
    s_add_u32 s60, s60, s4
    s_lshl_b32 s60, s60, 1
    s_add_u32 s60, s60, s46
    s_lshl_b32 s60, s60, 9
    s_add_u32 s60, s60, {WS_CSG}
    s_mov_b32 s62, s60
    s_nop 1
    v_cndmask_b32 v60, v48, v49, vcc
    v_cndmask_b32 v61, v52, v53, vcc
    v_cndmask_b32 v62, v56, v57, vcc
    K1_NOCS:
    s_mov_b32 s47, 5
    ''')
    e('K1_LM:')
    for x in stage_addr(): e(x)
    e('s_waitcnt vmcnt(10)')
    e(f'''
    s_cmp_lg_u32 s47, 5
    s_cbranch_scc1 K1_NN2
    s_cmp_lg_u32 s46, 3
    s_cbranch_scc1 K1_NN2
    s_mov_b32 s61, 0x40000
    K1_NPL:
    v_readfirstlane_b32 s63, v24
    s_sub_u32 s61, s61, 1
    s_cmp_lg_u32 s63, 0
    s_cbranch_scc1 K1_NPD
    s_cmp_eq_u32 s61, 0
    s_cbranch_scc1 K1_NPD
    s_sleep 2
    buffer_load_dword v24, v19, s[24:27], 0 offen sc1
    s_waitcnt vmcnt(0)
    s_branch K1_NPL
    K1_NPD:
    v_mov_b32 v19, {NONCE}
    ds_write_b32 v19, v24
    s_waitcnt lgkmcnt(0)
    K1_NN2:
    ''')
    e(f'''
    s_cmp_lg_u32 s47, 1
    s_cbranch_scc1 K1_NF2
    s_cmp_lg_u32 s46, 2
    s_cbranch_scc1 K1_NF2
    s_cmp_lg_u32 s7, 0
    s_cbranch_scc1 K1_NF2
    s_mov_b32 s61, 0x40000
    K1_FPL:
    v_readfirstlane_b32 s60, v25
    s_sub_u32 s61, s61, 1
    s_cmp_lg_u32 s60, 0
    s_cbranch_scc1 K1_NF2
    s_cmp_eq_u32 s61, 0
    s_cbranch_scc1 K1_NF2
    s_sleep 2
    buffer_load_dword v25, v26, s[24:27], 0 offen sc1
    s_waitcnt vmcnt(0)
    s_branch K1_FPL
    K1_NF2:
    ''')
    stamp(e,opt) if opt.get('profloop') else None
    e('s_barrier')
    e(f'''
    s_cmp_lg_u32 s47, 2
    s_cbranch_scc1 K1_NF1
    s_cmp_lg_u32 s46, 2
    s_cbranch_scc1 K1_NF1
    buffer_load_dword v25, v26, s[24:27], 0 offen sc1
    K1_NF1:
    ''')
    for x in dma(): e(x)
    e(f'''
    s_cmp_lg_u32 s47, 5
    s_cbranch_scc1 K1_NN3
    v_mov_b32 v19, {NONCE}
    ds_read_b32 v63, v19
    s_waitcnt lgkmcnt(0)
    v_readfirstlane_b32 s63, v63
    s_cmp_ge_u32 s46, 2
    s_cbranch_scc1 K1_NN3
    v_lshlrev_b32 v5, 4, v2
    s_mov_b32 exec_hi, 0
    buffer_store_dwordx4 v[60:63], v5, s[16:19], s62 offen sc1
    s_mov_b32 exec_hi, -1
    K1_NN3:
    ''')
    e('''
    s_sub_u32 s47, s47, 1
    s_cmp_lg_u32 s47, 0
    s_cbranch_scc1 K1_LM
    ''')
    e('s_waitcnt vmcnt(10)')
    e('s_barrier')
    e('s_cmp_ge_u32 s46, 2')
    e('s_cbranch_scc1 K1_GCOL')
    e(f'''
    s_lshl_b32 s60, s46, 6
    v_add_u32 v3, s60, v2
    s_lshl_b32 s60, s4, 7
    v_add_u32 v4, s60, v3
    v_lshlrev_b32 v4, 4, v4
    s_mov_b32 s60, {WS_STG}
    buffer_load_dwordx4 v[24:27], v4, s[16:19], s60 offen sc1
    ''')
    touches(e,opt)
    e(f'''
    s_waitcnt vmcnt({1+npf})
    s_barrier
    s_mov_b32 s61, 0x40000
    s_waitcnt vmcnt({npf})
    K1_GR:
    v_cmp_ne_u32 vcc, s63, v26
    s_sub_u32 s61, s61, 1
    s_cmp_eq_u32 s61, 0
    s_cbranch_scc1 K1_GRD
    s_cbranch_vccz K1_GRD
    s_sleep 1
    buffer_load_dwordx4 v[24:27], v4, s[16:19], s60 offen sc1
    s_waitcnt vmcnt(0)
    s_branch K1_GR
    K1_GRD:
    v_rsq_f32 v44, v25                          ; rstd
    v_cvt_pk_bf16_f32 v40, v24, v24
    v_mul_f32 v45, v25, v44                     ; sigma
    v_lshlrev_b32 v40, 16, v40
    v_sub_f32 v41, v24, v40
    v_cvt_pk_bf16_f32 v40, v40, v41             ; d0
    v_mov_b32 v41, v40                          ; d1
    v_cvt_pk_bf16_f32 v42, v45, v45
    v_lshlrev_b32 v42, 16, v42
    v_sub_f32 v43, v45, v42
    v_cvt_pk_bf16_f32 v42, v42, v43             ; d2
    v_mov_b32 v43, 0
    v_mul_f32 v46, v44, v44
    v_mul_f32 v46, v46, v44
    v_mul_f32 v46, {hx(GC2)}, v46               ; cA
    v_mul_f32 v47, {hx(GC1)}, v44               ; cB
    v_lshlrev_b32 v4, 5, v3
    v_add_u32 v4, {REC}, v4
    ds_write_b128 v4, v[40:43]
    ds_write_b128 v4, v[44:47] offset:16
    v_lshlrev_b32 v4, 2, v3
    v_add_u32 v4, {RSTD}, v4
    ds_write_b32 v4, v44
    v_mov_b32 v4, {ZERO}
    v_mov_b32 v40, 0
    v_mov_b32 v41, 0
    v_mov_b32 v42, 0
    ds_write_b128 v4, v[40:43]
    s_branch K1_GDONE
    ''')
    e(f'''
    K1_GCOL:
    s_and_b32 s47, s46, 1             ; nh
    v_and_b32 v3, 31, v2
    v_lshrrev_b32 v4, 5, v2
    v_lshlrev_b32 v4, 13, v4
    v_lshl_add_u32 v4, v3, 4, v4
    s_lshl_b32 s60, s5, 14
    s_lshl_b32 s61, s47, 9
    s_add_u32 s60, s60, s61
    s_add_u32 s60, s60, {WS_CSG}
    s_mul_i32 s61, s47, 3
    s_add_u32 s61, s61, s44
    s_lshl_b32 s61, s61, 6
    v_lshl_add_u32 v5, v3, 1, s61
    buffer_load_ushort v60, v5, s[20:23], 0 offen
    buffer_load_ushort v61, v5, s[20:23], 0 offen offset:64
    buffer_load_ushort v62, v5, s[20:23], 0 offen offset:128
    ''')
    def colloads():
        for j in range(8):
            if j<4: e(f'buffer_load_dwordx4 v[{24+4*j}:{27+4*j}], v4, s[16:19], s60 offen offset:{j*1024} sc1')
            else: e(f'buffer_load_dwordx4 v[{24+4*j}:{27+4*j}], v4, s[16:19], s62 offen offset:{(j-4)*1024} sc1')
    e('s_add_u32 s62, s60, 4096')
    colloads()
    touches(e,opt)
    e(f'''
    s_waitcnt vmcnt({11+npf})
    s_barrier
    s_mov_b32 s61, 0x40000
    s_waitcnt vmcnt({npf})
    K1_GC:
    ''')
    e('v_xor_b32 v6, s63, v27')
    for j in range(1,8):
        e(f'v_xor_b32 v7, s63, v{27+4*j}')
        e('v_or_b32 v6, v6, v7')
    e('''
    v_cmp_ne_u32 vcc, 0, v6
    s_sub_u32 s61, s61, 1
    s_cmp_eq_u32 s61, 0
    s_cbranch_scc1 K1_GCD
    s_cbranch_vccz K1_GCD
    s_sleep 1
    ''')
    colloads()
    e('s_waitcnt vmcnt(0)')
    e('s_branch K1_GC')
    e('K1_GCD:')
    for c in range(3):
        for j in (1,3,5,7): e(f'v_add_f32 v{24+4*(j-1)+c}, v{24+4*(j-1)+c}, v{24+4*j+c}')
        e(f'v_add_f32 v{24+c}, v{24+c}, v{32+c}')
        e(f'v_add_f32 v{40+c}, v{40+c}, v{48+c}')
        e(f'v_add_f32 v{24+c}, v{24+c}, v{40+c}')
        e(f'v_mov_b32 v{28+c}, v{24+c}')
    e('s_nop 1')
    for c in range(3): e(f'v_permlane32_swap_b32 v{24+c}, v{28+c}')
    e(f'''
    s_mul_i32 s61, s47, 1536
    s_add_u32 s61, s61, {WFR}
    v_lshl_add_u32 v5, v3, 4, s61
    ''')
    for c in range(3):
        e(f'''
        v_add_f32 v8, v{24+c}, v{28+c}
        v_cvt_pk_bf16_f32 v40, v8, v8
        v_lshlrev_b32 v9, 16, v40
        v_sub_f32 v9, v8, v9
        v_cvt_pk_bf16_f32 v41, v9, v9
        v_lshlrev_b32 v42, 16, v{60+c}
        v_or_b32 v42, v42, v{60+c}
        v_mov_b32 v43, 0
        s_cmp_eq_u32 s7, 0
        s_cbranch_scc0 K1_GB{c}
        v_mov_b32 v42, 0
        K1_GB{c}:
        ds_write_b128 v5, v[40:43] offset:{c*512}
        s_nop 1
        ''')
    e('K1_GDONE:')
    e('''
    K1_PFW:
    ''')
    e(f'''
    K1_LE1:
    s_waitcnt lgkmcnt(0)
    ''')
    stamp(e,opt)
    e('s_barrier')
    e(f'''
    s_lshl_b32 s87, s4, 4
    s_add_u32 s87, s87, s5
    s_lshl_b32 s87, s87, 2
    s_add_u32 s87, s87, {WS_FLG}
    s_branch K2_LENTRY
    ''')

def cons_setup(e,opt):
    e('K1_CONS:')
    e(f'''
    s_and_b32 s46, s3, 1          ; sh
    s_lshr_b32 s47, s3, 1         ; nh
    s_lshl_b32 s48, s4, 7
    s_lshl_b32 s49, s5, 3
    s_add_u32 s48, s48, s49
    s_lshl_b32 s49, s3, 1
    s_add_u32 s57, s48, s49
    s_lshl_b32 s48, s57, 10
    v_lshlrev_b32 v10, 4, v2
    s_waitcnt lgkmcnt(0)
    ''')
    srd(e,8,28,S*D*2)
    e('''
    buffer_load_dwordx4 v[16:19], v10, s[8:11], s48 offen
    buffer_load_dwordx4 v[20:23], v10, s[8:11], s48 offen offset:1024
    ''')
    srds_rest(e,opt)
    if opt.get('pfcode') and opt.get('pfearly'):
        pfcode(e,opt,'s3')
    e(f'''
    s_cmp_lg_u32 s3, 0
    s_cbranch_scc1 K1_NOZ
    s_cmp_lg_u32 s2, 0
    s_cbranch_scc1 K1_NON
    s_memrealtime s[48:49]
    s_waitcnt lgkmcnt(0)
    s_or_b32 s48, s48, 1
    v_mov_b32 v5, s48
    v_mov_b32 v4, {NONCE_IDX*4}
    s_mov_b64 exec, 1
    buffer_store_dword v5, v4, s[24:27], 0 offen sc1
    s_mov_b64 exec, -1
    K1_NON:
    s_cmp_lg_u32 s7, 0
    s_cbranch_scc1 K1_NOZ
    s_cmp_lg_u32 s4, 0
    s_cbranch_scc1 K1_NOZ
    v_mov_b32 v12, 0
    v_mov_b32 v13, 0
    v_mov_b32 v14, 0
    v_mov_b32 v15, 0
    s_lshl_b32 s48, s5, 12
    s_add_u32 s48, s48, {WS_KV}
    buffer_store_dwordx4 v[12:15], v10, s[16:19], s48 offen sc1
    buffer_store_dwordx4 v[12:15], v10, s[16:19], s48 offen offset:1024 sc1
    buffer_store_dwordx4 v[12:15], v10, s[16:19], s48 offen offset:2048 sc1
    buffer_store_dwordx4 v[12:15], v10, s[16:19], s48 offen offset:3072 sc1
    s_mov_b32 exec_lo, 0xffff
    s_mov_b32 exec_hi, 0
    s_lshl_b32 s48, s5, 8
    s_add_u32 s48, s48, {WS_Z}
    buffer_store_dwordx4 v[12:15], v10, s[16:19], s48 offen sc1
    s_waitcnt vmcnt(0)
    s_mov_b32 exec_lo, 1
    v_mov_b32 v5, 1
    s_lshl_b32 s48, s5, 2
    v_mov_b32 v4, s48
    buffer_store_dword v5, v4, s[24:27], 0 offen sc1
    s_mov_b64 exec, -1
    K1_NOZ:
    v_and_b32 v3, 31, v2             ; r32
    v_lshrrev_b32 v4, 5, v2          ; hi
    v_lshrrev_b32 v5, 1, v3
    v_and_b32 v5, 7, v5
    v_xor_b32 v5, v5, v4
    v_lshlrev_b32 v5, 4, v5
    v_lshl_add_u32 v5, v3, 7, v5
    s_lshl_b32 s49, s46, 13
    v_add_u32 v5, s49, v5
    s_lshl_b32 s49, s46, 5
    v_xor_b32 v{XA}, s49, v5
    v_xor_b32 v{XA+1}, 32, v5
    v_xor_b32 v{XA+1}, s49, v{XA+1}
    v_xor_b32 v{XA+2}, 64, v{XA}
    v_xor_b32 v{XA+3}, 64, v{XA+1}
    ''')
    wlane(e)
    waddr(e,47,WA,50)
    for r in range(ACC,ACC+96): e(f'v_mov_b32 v{r}, 0')
    for r in range(FB,FB+20): e(f'v_mov_b32 v{r}, 0')
    e('v_mov_b32 v12, 0x3f803f80')
    for r in (24,26,28,30): e(f'v_mov_b32 v{r}, 0')
    e('s_waitcnt vmcnt(0)')
    for d in range(4):
        for r in range(2):
            x=16+4*r+d
            e(f'v_dot2_f32_bf16 v{24+4*r}, v{x}, v12, v{24+4*r}')
            e(f'v_dot2_f32_bf16 v{26+4*r}, v{x}, v{x}, v{26+4*r}')
    e('s_nop 2')
    vals=[24,26,28,30]
    for ctl in ('row_shr:1 row_mask:0xf','row_shr:2 row_mask:0xf','row_shr:4 row_mask:0xf','row_shr:8 row_mask:0xf'):
        for v in vals: e(f'v_add_f32_dpp v{v}, v{v}, v{v} {ctl} bank_mask:0xf bound_ctrl:0')
    for ctl in ('row_bcast:15 row_mask:0xa','row_bcast:31 row_mask:0xc'):
        for v in vals: e(f'v_add_f32_dpp v{v}, v{v}, v{v} {ctl} bank_mask:0xf')
    for r in range(2):
        sA,qA=24+4*r,26+4*r; o=32+4*r
        e(f'''
        v_mul_f32 v{o}, {hx(-1.0/512)}, v{sA}
        v_mul_f32 v{o+1}, {hx(1.0/512)}, v{qA}
        v_fma_f32 v{o+1}, -v{o}, v{o}, v{o+1}
        v_max_f32 v{o+1}, 0, v{o+1}
        v_add_f32 v{o+1}, {hx(1e-5)}, v{o+1}
        ''')
    e(f'''
    s_lshl_b32 s56, s57, 4
    s_add_u32 s56, s56, {WS_STG}
    ''')
    e('s_lshl_b32 s50, s46, 11')
    for t in (2,1,0):
        e(f'v_subrev_u32 v{WA+2*t+1}, s50, v{WA+t}')
        e(f'v_add_u32 v{WA+2*t}, s50, v{WA+t}')
    e('''
    s_mov_b32 s48, 8
    s_mov_b32 s49, 0
    ''')
    if opt.get('prio',1): e('s_setprio 3')
    e('''
    s_cmp_lg_u32 s7, 0
    s_cbranch_scc1 K1_CF
    ''')

def reads(p,buf):
    par=p&1
    L=[f'ds_read_b128 {vr(buf,4)}, v{XA+p}']
    L+=[f'ds_read_b64_tr_b16 {vr(buf+8,2)}, v{WA+par} offset:{p*2048}', f'ds_read_b64_tr_b16 {vr(buf+10,2)}, v{WA+par} offset:{p*2048+512}']
    L+=[f'ds_read_b128 {vr(buf+4,4)}, v{XA+p} offset:4096']
    for t in (1,2):
        L+=[f'ds_read_b64_tr_b16 {vr(buf+8+4*t,2)}, v{WA+2*t+par} offset:{p*2048}', f'ds_read_b64_tr_b16 {vr(buf+10+4*t,2)}, v{WA+2*t+par} offset:{p*2048+512}']
    return L
def mfmas(buf,ffn):
    L=[]
    for t in range(3):
        for a in range(2):
            X=vr(buf+4*a,4); W=vr(buf+8+4*t,4); A=vr(acc(t,a),16)
            if ffn or t==0: L.append(f'v_mfma_f32_32x32x16_bf16 {A}, {W}, {X}, {A}')
            else: L.append(f'v_mfma_f32_32x32x16_bf16 {A}, {X}, {W}, {A}')
    return L
def reads_t(p,buf,name):
    tags=['x0','w0','w0','x1','w1','w1','w2','w2']
    return [(x,name+t) for x,t in zip(reads(p,buf),tags)]
def mfmas_t(buf,ffn,name):
    L=[]; m=mfmas(buf,ffn); k=0
    for t in range(3):
        for a in range(2):
            L.append((m[k],{name+f'x{a}',name+f'w{t}'})); k+=1
    return L
def segment(e,q,ms,rs,pattern):
    k=0
    for i,(m,nd) in enumerate(ms):
        q.need(e,nd)
        e(m)
        for _ in range(pattern[i] if i<len(pattern) else 0):
            if k<len(rs):
                x,tag=rs[k]; k+=1
                e(x)
                if tag: q.issue(tag)
    assert k==len(rs)
def mainloop(e,ffn,tag,opt={}):
    stamp(e,opt)
    e(f'K1_ML{tag}:')
    e('s_barrier')
    if opt.get('profloop'): stamp(e,opt)
    q=DSQ()
    pat=opt.get('rdpat',[3,3,2])
    segment(e,q,[(m,set()) for m in mfmas(FB,ffn)], reads_t(0,FA,'A'), pat)
    segment(e,q,mfmas_t(FA,ffn,'A'), reads_t(1,FB,'B'), pat)
    segment(e,q,mfmas_t(FB,ffn,'B'), reads_t(2,FA,'A'), pat)
    adv=['s_add_u32 s49, s49, s64', f's_cmp_eq_u32 s49, {NS*SLOT}', 's_cselect_b32 s50, s65, s64', 's_cselect_b32 s49, 0, s49']
    upd=[f'v_add_u32 v{XA+i}, s50, v{XA+i}' for i in range(4)]+[f'v_add_u32 v{WA+i}, s50, v{WA+i}' for i in range(6)]
    rs=reads_t(3,FB,'B')+[(x,None) for x in adv+upd]
    segment(e,q,mfmas_t(FA,ffn,'A'), rs, pat+[4,5,5])
    q.all(e)
    e(f'''
    s_cmp_lg_u32 s48, 7
    s_cbranch_scc1 K1_NPUB{tag}
    v_mov_b32 v4, {NONCE}
    ds_read_b32 v34, v4
    v_mov_b32 v4, 0
    s_waitcnt lgkmcnt(0)
    v_readfirstlane_b32 s59, v34
    v_mov_b32 v35, v34
    v_mov_b32 v38, v34
    v_mov_b32 v39, v34
    s_mov_b32 exec_lo, 0
    s_mov_b32 exec_hi, 0x80000000
    buffer_store_dwordx4 v[32:35], v4, s[16:19], s56 offen sc1
    buffer_store_dwordx4 v[36:39], v4, s[16:19], s56 offen offset:16 sc1
    s_mov_b64 exec, -1
    K1_NPUB{tag}:
    s_sub_u32 s48, s48, 1
    s_cmp_lg_u32 s48, 0
    s_cbranch_scc1 K1_ML{tag}
    ''')
    for x in mfmas(FB,ffn): e(x)
    stamp(e,opt)

def post(e,ffn,opt={}):
    e(f'''
    v_and_b32 v3, 31, v2
    s_lshl_b32 s48, s46, 6
    v_add_u32 v4, s48, v3
    v_lshlrev_b32 v4, 5, v4
    v_add_u32 v4, {REC}, v4
    v_mov_b32 v5, {ZERO}
    v_cmp_gt_u32 vcc, 32, v2
    s_mul_i32 s49, s47, 1536
    s_add_u32 s49, s49, {WFR}
    v_lshl_add_u32 v6, v3, 4, s49
    v_cndmask_b32 v5, v5, v4, vcc
    v_add_u32 v7, 1024, v4
    v_mov_b32 v8, {ZERO}
    v_cndmask_b32 v7, v8, v7, vcc
    s_barrier
    ''')
    stamp(e,opt)
    e(f'''
    ds_read_b128 v[{WF}:{WF+3}], v6
    ds_read_b128 v[{XF}:{XF+3}], v5
    ds_read_b128 v[{XF+4}:{XF+7}], v7
    ds_read_b128 v[{WF+4}:{WF+7}], v6 offset:512
    ds_read_b128 v[{WF+8}:{WF+11}], v6 offset:1024
    ds_read_b128 v[{KC}:{KC+3}], v4 offset:16
    ds_read_b128 v[{KC+4}:{KC+7}], v4 offset:{1024+16}
    ''')
    waits={(0,0):5,(0,1):4,(1,0):3,(2,0):2}
    for t in range(3):
        for a in range(2):
            if (t,a) in waits: e(f's_waitcnt lgkmcnt({waits[(t,a)]})')
            A=vr(acc(t,a),16)
            if ffn or t==0: e(f'v_mfma_f32_32x32x16_bf16 {A}, {vr(WF+4*t,4)}, {vr(XF+4*a,4)}, {A}')
            else: e(f'v_mfma_f32_32x32x16_bf16 {A}, {vr(XF+4*a,4)}, {vr(WF+4*t,4)}, {A}')
    e('s_waitcnt lgkmcnt(0)')

def gelu_tile(t,a,OUT=OUT):
    A=acc(t,a); rs,cA=KC+4*a,KC+4*a+2
    L=[]
    R=range(0,16,2)
    for i in R: L.append(pk('mul',T0+i,A+i,A+i))
    for i in R: L.append(pk('fma',T0+i,T0+i,cA,cA,'op_sel:[0,0,1] op_sel_hi:[1,0,1]'))
    for i in R: L.append(pk('mul',T0+i,T0+i,A+i))
    for i in range(16): L.append(f'v_exp_f32 v{T0+i}, v{T0+i}')
    for i in R: L.append(pk('fma',T0+i,T0+i,rs,rs,'op_sel:[0,1,1] op_sel_hi:[1,1,1]'))
    for i in range(16): L.append(f'v_rcp_f32 v{T0+i}, v{T0+i}')
    for i in R: L.append(pk('mul',T0+i,T0+i,A+i))
    for i in R: L.append(f'v_cvt_pk_bf16_f32 v{OUT+i//2}, v{T0+i}, v{T0+i+1}')
    return L

def store2(e,so,off,opt,tmp=53,base=OUT):
    fl=opt.get('stflag','')
    if off+1024>4095:
        e(f's_add_u32 s{tmp}, s{so}, {off}')
        so=tmp; off=0
    e(f'buffer_store_dwordx4 v[{base}:{base+3}], v4, s[16:19], s{so} offen offset:{off} {fl}')
    e(f'buffer_store_dwordx4 v[{base+4}:{base+7}], v4, s[16:19], s{so} offen offset:{off+1024} {fl}')

def ffn_path(e,opt):
    e('K1_CF:')
    mainloop(e,True,'F',opt)
    post(e,True,opt)
    stamp(e,opt)
    e(f'''
    v_lshlrev_b32 v4, 4, v2
    s_lshl_b32 s48, s4, 2
    s_lshl_b32 s49, s46, 1
    s_add_u32 s48, s48, s49           ; s-tile (a=0)
    s_mul_i32 s48, s48, 86
    s_mul_i32 s49, s47, 3
    s_add_u32 s49, s49, s44
    s_lshl_b32 s50, s49, 1
    s_add_u32 s48, s48, s50
    s_lshl_b32 s48, s48, 10
    s_add_u32 s51, s48, {86*1024}     ; a=1
    s_mul_i32 s52, s47, 3
    s_sub_u32 s52, s45, s52
    ''')
    for t in range(3):
        if t==2:
            e(f'''
            s_lshl_b32 s53, s4, 5
            s_and_b32 s54, s5, 7
            s_lshl_b32 s54, s54, 2
            s_add_u32 s53, s53, s54
            s_add_u32 s53, s53, s3
            s_lshl_b32 s53, s53, 2
            s_add_u32 s53, s53, {WS_FLG0}
            v_mov_b32 v24, s59
            v_mov_b32 v25, 0
            s_waitcnt vmcnt(4)
            s_mov_b64 exec, 1
            buffer_store_dword v24, v25, s[16:19], s53 offen sc1
            s_mov_b64 exec, -1
            s_cmp_lt_u32 s52, 3
            s_cbranch_scc1 K1_END
            ''')
        for a in range(2):
            for x in gelu_tile(t,a,56 if a else 48): e(x)
            store2(e, 48 if a==0 else 51, t*2048, opt, base=56 if a else 48)
            if opt.get('profloop'): stamp(e,opt)
    e('s_branch K1_END')

def qkv_path(e,opt):
    mainloop(e,False,'Q',opt)
    post(e,False,opt)
    stamp(e,opt)
    RS=48
    e(f'''
    v_lshlrev_b32 v4, 4, v2
    s_lshl_b32 s48, s4, 2
    s_lshl_b32 s49, s46, 1
    s_add_u32 s48, s48, s49           ; s-tile a=0
    s_lshl_b32 s48, s48, 5
    s_lshl_b32 s49, s5, 2
    s_lshl_b32 s50, s47, 1
    s_add_u32 s49, s49, s50
    s_add_u32 s48, s48, s49
    s_lshl_b32 s48, s48, 10
    s_add_u32 s48, s48, {WS_PQ}
    s_add_u32 s51, s48, {32*1024}
    v_lshrrev_b32 v5, 5, v2
    v_lshlrev_b32 v5, 4, v5
    s_lshl_b32 s49, s46, 8
    s_add_u32 s49, s49, {RSTD}
    v_add_u32 v5, s49, v5
    v_mov_b32 v116, {hx(LOG2E)}
    v_mov_b32 v118, {hx(1e-6)}
    v_mul_f32 v6, v116, v{KC}
    v_mul_f32 v24, v116, v{KC+4}      ; a=1
    ''')
    B='op_sel_hi:[1,0]'; B3='op_sel_hi:[1,0,0]'
    for g in range(4): e(f'ds_read_b128 v[{RS+4*g}:{RS+4*g+3}], v5 offset:{g*32}')
    for a in range(2):
        A=acc(0,a); rs=KC+4*a; rl=6 if a==0 else 24
        R=range(0,16,2)
        T=T0 if a==0 else 26
        T=T0
        for i in R: e(pk('mul',T+i,A+i,rl,None,B))
        for i in range(16): e(f'v_max_f32 v{A+i}, 0, v{A+i}')
        for i in range(16): e(f'v_exp_f32 v{T+i}, v{T+i} clamp')
        for i in R: e(pk('fma',A+i,A+i,rs,118,B3))
        for i in R: e(pk('add',T+i,T+i,A+i))
        for i in R: e(f'v_cvt_pk_bf16_f32 v{(32 if a==0 else 40)+i//2}, v{T+i}, v{T+i+1}')
    stamp(e,opt)
    KV=acc(0,0); Z=acc(0,1)
    PK=96; VF=104
    ONE=112
    for r in range(4): e(f'v_mov_b32 v{ONE+r}, 0x3f803f80')
    for a in range(2):
        if a==1:
            for g in range(4): e(f'ds_read_b128 v[{RS+4*g}:{RS+4*g+3}], v5 offset:{128+g*32}')
        e('s_waitcnt lgkmcnt(0)')
        K=acc(1,a); V=acc(2,a)
        R=range(0,16,2)
        for i in R: e(pk('mul',K+i,K+i,RS+i))
        for i in R: e(pk('mul',V+i,V+i,RS+i))
        for i in R: e(pk('mul',T0+i,K+i,116,None,B))
        for i in range(16): e(f'v_max_f32 v{K+i}, v118, v{K+i}' if False else f'v_max_f32 v{K+i}, 0, v{K+i}')
        for i in range(16): e(f'v_exp_f32 v{T0+i}, v{T0+i} clamp')
        for i in R: e(pk('add',K+i,K+i,118,None,B))
        for i in R: e(f'v_cvt_pk_bf16_f32 v{VF+i//2}, v{V+i}, v{V+i+1}')
        for i in R: e(pk('add',T0+i,T0+i,K+i))
        for i in R: e(f'v_cvt_pk_bf16_f32 v{PK+i//2}, v{T0+i}, v{T0+i+1}')
        e('s_nop 1')
        for g in range(2):
            c0 = '0' if (a==0 and g==0) else vr(KV,16)
            z0 = '0' if (a==0 and g==0) else vr(Z,16)
            e(f'v_mfma_f32_32x32x16_bf16 {vr(KV,16)}, {vr(PK+4*g,4)}, {vr(VF+4*g,4)}, {c0}')
            e(f'v_mfma_f32_32x32x16_bf16 {vr(Z,16)}, {vr(PK+4*g,4)}, {vr(ONE,4)}, {z0}')
    store2(e, 48, 0, opt, base=32)
    store2(e, 51, 0, opt, base=40)
    e(f'''
    v_and_b32 v8, 15, v2
    v_lshrrev_b32 v9, 5, v2
    v_lshl_add_u32 v8, v9, 4, v8
    v_lshlrev_b32 v8, 4, v8           ; (hiD*16+e)*16
    v_bfe_u32 v10, v2, 4, 1
    v_lshl_add_u32 v8, v10, 10, v8
    s_mul_i32 s48, s46, 4352
    s_add_u32 s48, s48, {KVP}
    s_lshl_b32 s49, s47, 11
    s_add_u32 s49, s48, s49
    v_add_u32 v8, s49, v8
    s_lshl_b32 s49, s47, 7
    s_add_u32 s49, s48, s49
    v_lshl_add_u32 v9, v9, 4, s49
    s_nop 7
    s_mov_b32 exec_lo, 0x0000ffff
    s_mov_b32 exec_hi, 0x0000ffff
    ds_write_b128 v8, v[{KV}:{KV+3}]
    ds_write_b128 v8, v[{KV+4}:{KV+7}] offset:512
    s_mov_b32 exec_lo, 0xffff0000
    s_mov_b32 exec_hi, 0xffff0000
    ds_write_b128 v8, v[{KV+8}:{KV+11}]
    ds_write_b128 v8, v[{KV+12}:{KV+15}] offset:512
    s_mov_b32 exec_lo, 1
    s_mov_b32 exec_hi, 1
    ds_write_b128 v9, v[{Z}:{Z+3}] offset:4096
    ds_write_b128 v9, v[{Z+4}:{Z+7}] offset:{4096+32}
    ds_write_b128 v9, v[{Z+8}:{Z+11}] offset:{4096+64}
    ds_write_b128 v9, v[{Z+12}:{Z+15}] offset:{4096+64+32}
    s_mov_b64 exec, -1
    ''')
    stamp(e,opt)
    e(f'''
    s_mul_i32 s48, s46, 4352
    s_add_u32 s48, s48, {KVP}
    s_lshl_b32 s49, s47, 11
    s_add_u32 s49, s48, s49
    v_lshlrev_b32 v3, 2, v2
    v_add_u32 v4, s49, v3
    s_lshl_b32 s49, s47, 7
    s_add_u32 s49, s48, s49
    s_add_u32 s49, s49, 4096
    v_add_u32 v5, s49, v3             ; z image
    s_waitcnt lgkmcnt(0)
    ''')
    for i_ in range(8): e(f'ds_read_b32 v{8+i_}, v4 offset:{i_*256}')
    e(f'''
    ds_read_b32 v16, v5
    s_lshl_b32 s48, s5, 12
    s_lshl_b32 s49, s47, 11
    s_add_u32 s48, s48, s49
    s_add_u32 s48, s48, {WS_KV}
    s_lshl_b32 s50, s5, 8
    s_lshl_b32 s49, s47, 7
    s_add_u32 s50, s50, s49
    s_add_u32 s50, s50, {WS_Z}
    ''')
    for i_ in range(8):
        e(f's_waitcnt lgkmcnt({8-i_})')
        e(f'buffer_atomic_add_f32 v{8+i_}, v3, s[16:19], s48 offen offset:{i_*256}')
    e('''
    s_waitcnt lgkmcnt(0)
    s_mov_b32 exec_hi, 0
    buffer_atomic_add_f32 v16, v3, s[16:19], s50 offen
    s_mov_b32 exec_hi, -1
    ''')

def k1(opt):
    e=E()
    if opt.get('ts'): e('s_memrealtime s[66:67]')
    prologue(e,opt)
    loader(e,opt)
    cons_setup(e,opt)
    qkv_path(e,opt)
    e('K1_END:')
    stamp(e,opt)
    e(f'''
    s_xor_b32 s53, s7, 1
    s_lshl_b32 s53, s53, 4
    s_add_u32 s53, s53, s4
    s_lshl_b32 s53, s53, 3
    s_and_b32 s54, s5, 7
    s_add_u32 s53, s53, s54
    s_lshl_b32 s53, s53, 2
    s_add_u32 s53, s53, s3
    s_lshl_b32 s53, s53, 2
    s_add_u32 s53, s53, {WS_FLGF}
    v_mov_b32 v24, s59
    v_mov_b32 v25, 0
    s_waitcnt vmcnt(0)
    s_mov_b64 exec, 1
    buffer_store_dword v24, v25, s[16:19], s53 offen sc1
    s_mov_b64 exec, -1
    s_branch K2_CENTRY
    ''')
    e('K1_EXIT0:')
    e('s_endpgm')
    ffn_path(e,opt)
    return e.text()
```

```python
from common import *
from k1 import DSQ, pk

NS=3; SLOT=40960
SC=NS*SLOT
NONCE=SC; ZERO=SC+16
REC=SC+1024
RSTD=SC+5120
WFR=SC+5632
KVP=SC+9216
LDS_BYTES=SC+18432
NONCE_IDX=48

ACC=128
FA=64; FB=84
XA=104; WA=108
XF=64; KC=72; WF=80
T0=8; OUT=40
def acc(t,a): return ACC+(t*2+a)*16

def prologue(e,opt):
    e(f'''
    s_cmp_ge_u32 s2, 256
    s_cbranch_scc1 K1_EXIT0
    s_load_dwordx4 s[28:31], s[0:1], 0
    s_load_dwordx4 s[32:35], s[0:1], 32
    s_load_dwordx4 s[36:39], s[0:1], 72
    s_load_dwordx2 s[82:83], s[0:1], 16
    s_load_dwordx2 s[84:85], s[0:1], 48
    s_load_dwordx4 s[92:95], s[0:1], 56
    v_lshrrev_b32 v1, 6, v0
    v_and_b32 v2, 63, v0
    v_readfirstlane_b32 s3, v1
    s_and_b32 s8, s2, 7
    s_lshr_b32 s9, s2, 3
    s_and_b32 s10, s9, 7              ; rb_local
    s_lshr_b32 s11, s9, 3             ; cb_local
    s_lshr_b32 s4, s8, 2
    s_lshl_b32 s4, s4, 3
    s_add_u32 s4, s4, s10             ; rb
    s_and_b32 s5, s8, 3
    s_lshl_b32 s5, s5, 1
    s_and_b32 s12, s11, 1
    s_add_u32 s5, s5, s12
    s_lshr_b32 s7, s11, 1
    s_lshl_b32 s12, s7, 3
    s_add_u32 s5, s5, s12             ; cb
    s_mul_i32 s6, s11, {opt.get('rotc',2)}
    s_add_u32 s6, s6, s10
    s_and_b32 s6, s6, 7
    s_and_b32 s12, s5, 7
    s_mul_i32 s13, s12, 6
    s_mul_i32 s14, s12, 5
    s_add_u32 s14, s14, 3
    s_min_u32 s44, s13, s14
    s_cmp_lt_u32 s12, 3
    s_cselect_b32 s45, 6, 5
    s_lshl_b32 s13, s12, 7
    s_lshl_b32 s14, s44, 6
    s_mov_b32 s40, 2752
    s_mov_b32 s15, 128
    s_cmp_eq_u32 s7, 0
    s_cselect_b32 s40, 3072, s40
    s_cselect_b32 s41, s13, s14
    s_cselect_b32 s15, 1024, s15
    s_add_u32 s42, s41, s15
    s_add_u32 s43, s42, s15
    s_mov_b32 s64, {SLOT}
    s_mov_b32 s65, {-(NS-1)*SLOT & 0xffffffff:#x}
    s_cmp_lt_u32 s3, 4
    s_cbranch_scc1 K1_CONS
    ''')

def srds_rest(e,opt):
    srd(e,16,38,(WS_PROF+2*256*8*256) if opt.get('prof') else WS_SIZE)
    srd(e,24,36,256)
    if opt.get('ts'): srd(e,72,38,WS_TS+256*8*8)
    stamp_init(e,opt); stamp(e,opt)

def waddr(e,nh,dst,tmp):
    for t in range(3):
        e(f'''
        s_mul_i32 s{tmp}, s{nh}, 3
        s_add_u32 s{tmp}, s{tmp}, {t}
        s_lshr_b32 s{tmp+1}, s{tmp}, 1
        s_and_b32 s{tmp}, s{tmp}, 1
        s_cmp_eq_u32 s7, 0
        s_cselect_b32 s{tmp+1}, {t}, s{tmp+1}
        s_cselect_b32 s{tmp}, s{nh}, s{tmp}
        s_lshl_b32 s{tmp+1}, s{tmp+1}, 13
        s_add_u32 s{tmp+1}, s{tmp+1}, 16384
        s_lshl_b32 s{tmp}, s{tmp}, 6
        v_add_u32 v9, s{tmp}, v7
        v_xor_b32 v9, v9, v8
        v_add3_u32 v{dst+t}, v9, v6, s{tmp+1}
        ''')
def wlane(e):
    e('''
    v_lshrrev_b32 v4, 5, v2          ; hi
    v_and_b32 v6, 15, v2
    v_lshrrev_b32 v6, 2, v6
    v_lshl_add_u32 v6, v4, 3, v6
    v_lshlrev_b32 v6, 7, v6          ; (8hi + i>>2)*128
    v_and_b32 v7, 3, v2
    v_lshlrev_b32 v7, 3, v7
    v_bfe_u32 v8, v2, 4, 1
    v_lshl_add_u32 v7, v8, 5, v7     ; g16*32 + (i&3)*8
    v_bfe_u32 v8, v2, 3, 1
    v_lshlrev_b32 v8, 6, v8          ; 64*bit3
    ''')

def pfcode(e,opt,w):
    n=opt['pfcode']; lab=e.label('K1_PFC')
    e(f'''
    s_cmp_ge_u32 {w}, {n}
    s_cbranch_scc1 {lab}E
    s_getpc_b64 s[96:97]
    {lab}P:
    s_sub_u32 s96, s96, {lab}P-{opt.get('k1name','k1_kernel')}
    s_subb_u32 s97, s97, 0
    s_lshl_b32 s98, {w}, 13
    v_lshlrev_b32 v8, 7, v2
    v_add_u32 v8, s98, v8
    s_mov_b32 s98, K_TEXT_END-{opt.get('k1name','k1_kernel')}-4
    v_min_u32 v8, s98, v8
    global_load_dword v117, v8, s[96:97]
    {lab}E:
    ''')
def touches(e,opt):
    if opt.get('pfcode') and not opt.get('pfearly'):
        n=opt['pfcode']; lab=e.label('K1_PFL')
        e(f'''
        s_getpc_b64 s[80:81]
        {lab}P:
        s_sub_u32 s80, s80, {lab}P-{opt.get('k1name','k1_kernel')}
        s_subb_u32 s81, s81, 0
        s_lshl_b32 s86, s46, 13
        v_lshlrev_b32 v8, 7, v2
        v_add_u32 v8, s86, v8
        s_mov_b32 s86, K_TEXT_END-{opt.get('k1name','k1_kernel')}-4
        v_min_u32 v8, s86, v8
        global_load_dword v121, v8, s[80:81]
        ''')
    if opt.get('pfw'):
        e(f'''
        s_mov_b32 s88, s84
        s_and_b32 s89, s85, 0xffff
        s_mov_b32 s90, {F*D*2}
        s_mov_b32 s91, 0x20000
        s_mov_b32 s76, s82
        s_and_b32 s77, s83, 0xffff
        s_mov_b32 s78, {D*D*2}
        s_mov_b32 s79, 0x20000
        s_lshr_b32 s80, s2, 3
        s_mul_i32 s81, s80, {344*128}
        s_mul_i32 s86, s46, {86*128}
        s_add_u32 s81, s81, s86
        v_lshlrev_b32 v8, 7, v2
        buffer_load_dword v120, v8, s[88:91], s81 offen
        s_add_u32 s81, s81, {64*128}
        s_mov_b32 exec_lo, 0x3fffff
        s_mov_b32 exec_hi, 0
        buffer_load_dword v120, v8, s[88:91], s81 offen
        s_lshl_b32 s81, s80, 14
        s_lshl_b32 s86, s46, 12
        s_add_u32 s81, s81, s86
        s_mov_b32 exec_lo, -1
        buffer_load_dword v120, v8, s[76:79], s81 offen
        s_mov_b64 exec, -1
        ''')

def loader(e,opt):
    npf=(3 if opt.get('pfw') else 0)+(1 if opt.get('pfcode') and not opt.get('pfearly') else 0)
    e('''
    s_and_b32 s46, s3, 3
    v_lshrrev_b32 v3, 3, v2
    v_and_b32 v4, 7, v2
    v_lshrrev_b32 v5, 4, v2
    v_xor_b32 v6, v4, v5
    v_lshlrev_b32 v6, 4, v6
    v_lshl_add_u32 v10, v3, 10, v6
    s_lshl_b32 s47, s4, 17
    s_lshl_b32 s48, s46, 15
    s_add_u32 s47, s47, s48
    v_add_u32 v10, s47, v10
    v_xor_b32 v11, 64, v10
    v_add_u32 v11, 0x2000, v11
    v_add_u32 v12, 0x4000, v10
    v_add_u32 v13, 0x4000, v11
    v_and_b32 v5, 1, v5
    v_lshlrev_b32 v5, 2, v5
    v_xor_b32 v4, v4, v5
    v_lshlrev_b32 v4, 4, v4
    s_lshl_b32 s47, s46, 4
    v_add_u32 v14, s47, v3
    v_mul_lo_u32 v14, v14, s40
    v_add_u32 v14, v14, v4
    s_lshl_b32 s47, s40, 3
    v_add_u32 v15, s47, v14
    s_lshl_b32 s54, s46, 12
    s_lshl_b32 s55, s46, 11
    s_add_u32 s55, s55, 16384
    s_lshl_b32 s56, s40, 6
    s_mov_b32 s48, s6
    s_mov_b32 s53, 0
    ''')
    def stage_addr():
        return ['s_lshl_b32 s49, s48, 7','s_mul_i32 s50, s48, s56','s_add_u32 s51, s50, s42',
                's_add_u32 s52, s50, s43','s_add_u32 s50, s50, s41',
                's_add_u32 s58, s53, s54','s_add_u32 s59, s53, s55',
                's_add_u32 s48, s48, 1','s_and_b32 s48, s48, 7',
                's_add_u32 s53, s53, s64', f's_cmp_eq_u32 s53, {NS*SLOT}','s_cselect_b32 s53, 0, s53']
    def dma():
        L=[]
        if opt.get('x_nodma1'): return L
        for i in range(4):
            L+=[f's_add_u32 m0, s58, {i*1024}', 's_nop 0', f'buffer_load_dwordx4 v{10+i}, s[8:11], s49 offen lds']
        for sub in range(3):
            for h in range(2):
                L+=[f's_add_u32 m0, s59, {sub*8192+h*1024}', 's_nop 0', f'buffer_load_dwordx4 v{14+h}, s[12:15], s{50+sub} offen lds']
        return L
    for x in stage_addr(): e(x)
    e('s_waitcnt lgkmcnt(0)')
    srd(e,8,28,S*D*2)
    e(f'''
    s_cmp_eq_u32 s7, 0
    s_cselect_b32 s12, s30, s32
    s_cselect_b32 s13, s31, s33
    s_mov_b32 s14, {D*F*2}
    s_cselect_b32 s14, {D*3*D*2}, s14
    s_and_b32 s13, s13, 0xffff
    s_mov_b32 s15, 0x20000
    ''')
    for x in dma(): e(x)
    for x in stage_addr(): e(x)
    for x in dma(): e(x)
    srds_rest(e,opt)
    srd(e,20,34,F*2)
    wlane(e)
    waddr(e,46,16,60)
    e(f'''
    s_lshr_b32 s60, s4, 3             ; hf
    s_lshl_b32 s60, s60, 12           ; 2hf*2048
    v_add_u32 v16, s60, v16
    v_add_u32 v17, s60, v17
    v_add_u32 v18, s60, v18
    v_lshrrev_b32 v5, 4, v2
    v_xor_b32 v5, v5, v2
    v_and_b32 v5, 1, v5
    v_cmp_eq_u32 vcc, 0, v5
    v_mov_b32 v6, 0x3f803f80
    v_mov_b32 v19, {NONCE_IDX*4}
    s_lshl_b32 s60, s5, 2
    v_mov_b32 v26, s60
    v_mov_b32 v25, 0
    v_cndmask_b32 v20, 0, v6, vcc
    v_mov_b32 v21, v20
    v_mov_b32 v22, v20
    v_mov_b32 v23, v20
    ''')
    for x in stage_addr(): e(x)
    e('s_waitcnt vmcnt(10)')
    stamp(e,opt)
    e('s_barrier')
    e(f'''
    s_cmp_lg_u32 s46, 3
    s_cbranch_scc1 K1_NNL
    buffer_load_dword v24, v19, s[24:27], 0 offen sc1
    K1_NNL:
    ''')
    for x in dma(): e(x)
    e('s_cmp_ge_u32 s46, 2')
    e('s_cbranch_scc1 K1_NOCS')
    for t in range(3):
        for k in range(2):
            e(f'ds_read_b64_tr_b16 v[{24+8*t+4*k}:{25+8*t+4*k}], v{16+t} offset:{k*2048}')
            e(f'ds_read_b64_tr_b16 v[{26+8*t+4*k}:{27+8*t+4*k}], v{16+t} offset:{k*2048+512}')
    e('s_waitcnt lgkmcnt(0)')
    for t in range(3):
        e(f'v_mfma_f32_16x16x32_bf16 v[{48+4*t}:{51+4*t}], v[20:23], v[{24+8*t}:{27+8*t}], 0')
    for t in range(3):
        e(f'v_mfma_f32_16x16x32_bf16 v[{48+4*t}:{51+4*t}], v[20:23], v[{28+8*t}:{31+8*t}], v[{48+4*t}:{51+4*t}]')
    e(f'''
    v_and_b32 v5, 16, v2
    v_cmp_ne_u32 vcc, 0, v5
    v_lshlrev_b32 v5, 4, v2
    s_lshl_b32 s60, s5, 4
    s_add_u32 s60, s60, s4
    s_lshl_b32 s60, s60, 1
    s_add_u32 s60, s60, s46
    s_lshl_b32 s60, s60, 9
    s_add_u32 s60, s60, {WS_CSG}
    s_mov_b32 s62, s60
    s_nop 1
    v_cndmask_b32 v60, v48, v49, vcc
    v_cndmask_b32 v61, v52, v53, vcc
    v_cndmask_b32 v62, v56, v57, vcc
    K1_NOCS:
    s_mov_b32 s47, 5
    ''')
    e('K1_LM:')
    for x in stage_addr(): e(x)
    e('s_waitcnt vmcnt(10)')
    e(f'''
    s_cmp_lg_u32 s47, 5
    s_cbranch_scc1 K1_NN2
    s_cmp_lg_u32 s46, 3
    s_cbranch_scc1 K1_NN2
    s_mov_b32 s61, 0x40000
    K1_NPL:
    v_readfirstlane_b32 s63, v24
    s_sub_u32 s61, s61, 1
    s_cmp_lg_u32 s63, 0
    s_cbranch_scc1 K1_NPD
    s_cmp_eq_u32 s61, 0
    s_cbranch_scc1 K1_NPD
    s_sleep 2
    buffer_load_dword v24, v19, s[24:27], 0 offen sc1
    s_waitcnt vmcnt(0)
    s_branch K1_NPL
    K1_NPD:
    v_mov_b32 v19, {NONCE}
    ds_write_b32 v19, v24
    s_waitcnt lgkmcnt(0)
    K1_NN2:
    ''')
    e(f'''
    s_cmp_lg_u32 s47, 1
    s_cbranch_scc1 K1_NF2
    s_cmp_lg_u32 s46, 2
    s_cbranch_scc1 K1_NF2
    s_cmp_lg_u32 s7, 0
    s_cbranch_scc1 K1_NF2
    s_mov_b32 s61, 0x40000
    K1_FPL:
    v_readfirstlane_b32 s60, v25
    s_sub_u32 s61, s61, 1
    s_cmp_lg_u32 s60, 0
    s_cbranch_scc1 K1_NF2
    s_cmp_eq_u32 s61, 0
    s_cbranch_scc1 K1_NF2
    s_sleep 2
    buffer_load_dword v25, v26, s[24:27], 0 offen sc1
    s_waitcnt vmcnt(0)
    s_branch K1_FPL
    K1_NF2:
    ''')
    stamp(e,opt) if opt.get('profloop') else None
    e('s_barrier')
    e(f'''
    s_cmp_lg_u32 s47, 2
    s_cbranch_scc1 K1_NF1
    s_cmp_lg_u32 s46, 2
    s_cbranch_scc1 K1_NF1
    buffer_load_dword v25, v26, s[24:27], 0 offen sc1
    K1_NF1:
    ''')
    for x in dma(): e(x)
    e(f'''
    s_cmp_lg_u32 s47, 5
    s_cbranch_scc1 K1_NN3
    v_mov_b32 v19, {NONCE}
    ds_read_b32 v63, v19
    s_waitcnt lgkmcnt(0)
    v_readfirstlane_b32 s63, v63
    s_cmp_ge_u32 s46, 2
    s_cbranch_scc1 K1_NN3
    v_lshlrev_b32 v5, 4, v2
    s_mov_b32 exec_hi, 0
    buffer_store_dwordx4 v[60:63], v5, s[16:19], s62 offen sc1
    s_mov_b32 exec_hi, -1
    K1_NN3:
    ''')
    e('''
    s_sub_u32 s47, s47, 1
    s_cmp_lg_u32 s47, 0
    s_cbranch_scc1 K1_LM
    ''')
    e('s_waitcnt vmcnt(10)')
    e('s_barrier')
    e('s_cmp_ge_u32 s46, 2')
    e('s_cbranch_scc1 K1_GCOL')
    e(f'''
    s_lshl_b32 s60, s46, 6
    v_add_u32 v3, s60, v2
    s_lshl_b32 s60, s4, 7
    v_add_u32 v4, s60, v3
    v_lshlrev_b32 v4, 4, v4
    s_mov_b32 s60, {WS_STG}
    buffer_load_dwordx4 v[24:27], v4, s[16:19], s60 offen sc1
    ''')
    touches(e,opt)
    e(f'''
    s_waitcnt vmcnt({1+npf})
    s_barrier
    s_mov_b32 s61, 0x40000
    s_waitcnt vmcnt({npf})
    K1_GR:
    v_cmp_ne_u32 vcc, s63, v26
    s_sub_u32 s61, s61, 1
    s_cmp_eq_u32 s61, 0
    s_cbranch_scc1 K1_GRD
    s_cbranch_vccz K1_GRD
    s_sleep 1
    buffer_load_dwordx4 v[24:27], v4, s[16:19], s60 offen sc1
    s_waitcnt vmcnt(0)
    s_branch K1_GR
    K1_GRD:
    v_rsq_f32 v44, v25                          ; rstd
    v_cvt_pk_bf16_f32 v40, v24, v24
    v_mul_f32 v45, v25, v44                     ; sigma
    v_lshlrev_b32 v40, 16, v40
    v_sub_f32 v41, v24, v40
    v_cvt_pk_bf16_f32 v40, v40, v41             ; d0
    v_mov_b32 v41, v40                          ; d1
    v_cvt_pk_bf16_f32 v42, v45, v45
    v_lshlrev_b32 v42, 16, v42
    v_sub_f32 v43, v45, v42
    v_cvt_pk_bf16_f32 v42, v42, v43             ; d2
    v_mov_b32 v43, 0
    v_mul_f32 v46, v44, v44
    v_mul_f32 v46, v46, v44
    v_mul_f32 v46, {hx(GC2)}, v46               ; cA
    v_mul_f32 v47, {hx(GC1)}, v44               ; cB
    v_lshlrev_b32 v4, 5, v3
    v_add_u32 v4, {REC}, v4
    ds_write_b128 v4, v[40:43]
    ds_write_b128 v4, v[44:47] offset:16
    v_lshlrev_b32 v4, 2, v3
    v_add_u32 v4, {RSTD}, v4
    ds_write_b32 v4, v44
    v_mov_b32 v4, {ZERO}
    v_mov_b32 v40, 0
    v_mov_b32 v41, 0
    v_mov_b32 v42, 0
    ds_write_b128 v4, v[40:43]
    s_branch K1_GDONE
    ''')
    e(f'''
    K1_GCOL:
    s_and_b32 s47, s46, 1             ; nh
    v_and_b32 v3, 31, v2
    v_lshrrev_b32 v4, 5, v2
    v_lshlrev_b32 v4, 13, v4
    v_lshl_add_u32 v4, v3, 4, v4
    s_lshl_b32 s60, s5, 14
    s_lshl_b32 s61, s47, 9
    s_add_u32 s60, s60, s61
    s_add_u32 s60, s60, {WS_CSG}
    s_mul_i32 s61, s47, 3
    s_add_u32 s61, s61, s44
    s_lshl_b32 s61, s61, 6
    v_lshl_add_u32 v5, v3, 1, s61
    buffer_load_ushort v60, v5, s[20:23], 0 offen
    buffer_load_ushort v61, v5, s[20:23], 0 offen offset:64
    buffer_load_ushort v62, v5, s[20:23], 0 offen offset:128
    ''')
    def colloads():
        for j in range(8):
            if j<4: e(f'buffer_load_dwordx4 v[{24+4*j}:{27+4*j}], v4, s[16:19], s60 offen offset:{j*1024} sc1')
            else: e(f'buffer_load_dwordx4 v[{24+4*j}:{27+4*j}], v4, s[16:19], s62 offen offset:{(j-4)*1024} sc1')
    e('s_add_u32 s62, s60, 4096')
    colloads()
    touches(e,opt)
    e(f'''
    s_waitcnt vmcnt({11+npf})
    s_barrier
    s_mov_b32 s61, 0x40000
    s_waitcnt vmcnt({npf})
    K1_GC:
    ''')
    e('v_xor_b32 v6, s63, v27')
    for j in range(1,8):
        e(f'v_xor_b32 v7, s63, v{27+4*j}')
        e('v_or_b32 v6, v6, v7')
    e('''
    v_cmp_ne_u32 vcc, 0, v6
    s_sub_u32 s61, s61, 1
    s_cmp_eq_u32 s61, 0
    s_cbranch_scc1 K1_GCD
    s_cbranch_vccz K1_GCD
    s_sleep 1
    ''')
    colloads()
    e('s_waitcnt vmcnt(0)')
    e('s_branch K1_GC')
    e('K1_GCD:')
    for c in range(3):
        for j in (1,3,5,7): e(f'v_add_f32 v{24+4*(j-1)+c}, v{24+4*(j-1)+c}, v{24+4*j+c}')
        e(f'v_add_f32 v{24+c}, v{24+c}, v{32+c}')
        e(f'v_add_f32 v{40+c}, v{40+c}, v{48+c}')
        e(f'v_add_f32 v{24+c}, v{24+c}, v{40+c}')
        e(f'v_mov_b32 v{28+c}, v{24+c}')
    e('s_nop 1')
    for c in range(3): e(f'v_permlane32_swap_b32 v{24+c}, v{28+c}')
    e(f'''
    s_mul_i32 s61, s47, 1536
    s_add_u32 s61, s61, {WFR}
    v_lshl_add_u32 v5, v3, 4, s61
    ''')
    for c in range(3):
        e(f'''
        v_add_f32 v8, v{24+c}, v{28+c}
        v_cvt_pk_bf16_f32 v40, v8, v8
        v_lshlrev_b32 v9, 16, v40
        v_sub_f32 v9, v8, v9
        v_cvt_pk_bf16_f32 v41, v9, v9
        v_lshlrev_b32 v42, 16, v{60+c}
        v_or_b32 v42, v42, v{60+c}
        v_mov_b32 v43, 0
        s_cmp_eq_u32 s7, 0
        s_cbranch_scc0 K1_GB{c}
        v_mov_b32 v42, 0
        K1_GB{c}:
        ds_write_b128 v5, v[40:43] offset:{c*512}
        s_nop 1
        ''')
    e('K1_GDONE:')
    e('''
    K1_PFW:
    ''')
    e(f'''
    K1_LE1:
    s_waitcnt lgkmcnt(0)
    ''')
    stamp(e,opt)
    e('s_barrier')
    e(f'''
    s_lshl_b32 s87, s4, 4
    s_add_u32 s87, s87, s5
    s_lshl_b32 s87, s87, 2
    s_add_u32 s87, s87, {WS_FLG}
    s_branch K2_LENTRY
    ''')

def rowstats(e):
    e('v_mov_b32 v12, 0x3f803f80')
    for r in (24,26,28,30): e(f'v_mov_b32 v{r}, 0')
    e('s_waitcnt vmcnt(0)')
    for d in range(4):
        for r in range(2):
            x=16+4*r+d
            e(f'v_dot2_f32_bf16 v{24+4*r}, v{x}, v12, v{24+4*r}')
            e(f'v_dot2_f32_bf16 v{26+4*r}, v{x}, v{x}, v{26+4*r}')
    e('s_nop 2')
    vals=[24,26,28,30]
    for ctl in ('row_shr:1 row_mask:0xf','row_shr:2 row_mask:0xf','row_shr:4 row_mask:0xf','row_shr:8 row_mask:0xf'):
        for v in vals: e(f'v_add_f32_dpp v{v}, v{v}, v{v} {ctl} bank_mask:0xf bound_ctrl:0')
    for ctl in ('row_bcast:15 row_mask:0xa','row_bcast:31 row_mask:0xc'):
        for v in vals: e(f'v_add_f32_dpp v{v}, v{v}, v{v} {ctl} bank_mask:0xf')
    for r in range(2):
        sA,qA=24+4*r,26+4*r; o=32+4*r
        e(f'''
        v_mul_f32 v{o}, {hx(-1.0/512)}, v{sA}
        v_mul_f32 v{o+1}, {hx(1.0/512)}, v{qA}
        v_fma_f32 v{o+1}, -v{o}, v{o}, v{o+1}
        v_max_f32 v{o+1}, 0, v{o+1}
        v_add_f32 v{o+1}, {hx(1e-5)}, v{o+1}
        ''')

def cons_setup(e,opt):
    e('K1_CONS:')
    e(f'''
    s_and_b32 s46, s3, 1          ; sh
    s_lshr_b32 s47, s3, 1         ; nh
    s_lshl_b32 s48, s4, 7
    s_lshl_b32 s49, s5, 3
    s_add_u32 s48, s48, s49
    s_lshl_b32 s49, s3, 1
    s_add_u32 s57, s48, s49
    s_lshl_b32 s48, s57, 10
    v_lshlrev_b32 v10, 4, v2
    s_waitcnt lgkmcnt(0)
    ''')
    srd(e,8,28,S*D*2)
    e('s_mov_b32 s58, s48')
    if not opt.get('rowlate',1):
        e('''
        buffer_load_dwordx4 v[16:19], v10, s[8:11], s58 offen
        buffer_load_dwordx4 v[20:23], v10, s[8:11], s58 offen offset:1024
        ''')
    srds_rest(e,opt)
    if opt.get('pfcode') and opt.get('pfearly'):
        pfcode(e,opt,'s3')
    e(f'''
    s_cmp_lg_u32 s3, 0
    s_cbranch_scc1 K1_NOZ
    s_cmp_lg_u32 s2, 0
    s_cbranch_scc1 K1_NON
    s_memrealtime s[48:49]
    s_waitcnt lgkmcnt(0)
    s_or_b32 s48, s48, 1
    v_mov_b32 v5, s48
    v_mov_b32 v4, {NONCE_IDX*4}
    s_mov_b64 exec, 1
    buffer_store_dword v5, v4, s[24:27], 0 offen sc1
    s_mov_b64 exec, -1
    K1_NON:
    s_cmp_lg_u32 s7, 0
    s_cbranch_scc1 K1_NOZ
    s_cmp_lg_u32 s4, 0
    s_cbranch_scc1 K1_NOZ
    v_mov_b32 v12, 0
    v_mov_b32 v13, 0
    v_mov_b32 v14, 0
    v_mov_b32 v15, 0
    s_lshl_b32 s48, s5, 12
    s_add_u32 s48, s48, {WS_KV}
    buffer_store_dwordx4 v[12:15], v10, s[16:19], s48 offen sc1
    buffer_store_dwordx4 v[12:15], v10, s[16:19], s48 offen offset:1024 sc1
    buffer_store_dwordx4 v[12:15], v10, s[16:19], s48 offen offset:2048 sc1
    buffer_store_dwordx4 v[12:15], v10, s[16:19], s48 offen offset:3072 sc1
    s_mov_b32 exec_lo, 0xffff
    s_mov_b32 exec_hi, 0
    s_lshl_b32 s48, s5, 8
    s_add_u32 s48, s48, {WS_Z}
    buffer_store_dwordx4 v[12:15], v10, s[16:19], s48 offen sc1
    s_waitcnt vmcnt(0)
    s_mov_b32 exec_lo, 1
    v_mov_b32 v5, 1
    s_lshl_b32 s48, s5, 2
    v_mov_b32 v4, s48
    buffer_store_dword v5, v4, s[24:27], 0 offen sc1
    s_mov_b64 exec, -1
    K1_NOZ:
    v_and_b32 v3, 31, v2             ; r32
    v_lshrrev_b32 v4, 5, v2          ; hi
    v_lshrrev_b32 v5, 1, v3
    v_and_b32 v5, 7, v5
    v_xor_b32 v5, v5, v4
    v_lshlrev_b32 v5, 4, v5
    v_lshl_add_u32 v5, v3, 7, v5
    s_lshl_b32 s49, s46, 13
    v_add_u32 v5, s49, v5
    s_lshl_b32 s49, s46, 5
    v_xor_b32 v{XA}, s49, v5
    v_xor_b32 v{XA+1}, 32, v5
    v_xor_b32 v{XA+1}, s49, v{XA+1}
    v_xor_b32 v{XA+2}, 64, v{XA}
    v_xor_b32 v{XA+3}, 64, v{XA+1}
    ''')
    wlane(e)
    waddr(e,47,WA,50)
    for r in range(ACC,ACC+96): e(f'v_mov_b32 v{r}, 0')
    for r in range(FB,FB+20): e(f'v_mov_b32 v{r}, 0')
    if opt.get('rowlate',1):
        e('''
        v_lshlrev_b32 v10, 4, v2
        buffer_load_dwordx4 v[16:19], v10, s[8:11], s58 offen
        buffer_load_dwordx4 v[20:23], v10, s[8:11], s58 offen offset:1024
        ''')
    else:
        rowstats(e)
    e(f'''
    s_lshl_b32 s56, s57, 4
    s_add_u32 s56, s56, {WS_STG}
    ''')
    e('s_lshl_b32 s50, s46, 11')
    for t in (2,1,0):
        e(f'v_subrev_u32 v{WA+2*t+1}, s50, v{WA+t}')
        e(f'v_add_u32 v{WA+2*t}, s50, v{WA+t}')
    e('''
    s_mov_b32 s48, 8
    s_mov_b32 s49, 0
    ''')
    if opt.get('prio',1): e('s_setprio 3')
    e('''
    s_cmp_lg_u32 s7, 0
    s_cbranch_scc1 K1_CF
    ''')

def reads(p,buf):
    par=p&1
    L=[f'ds_read_b128 {vr(buf,4)}, v{XA+p}']
    L+=[f'ds_read_b64_tr_b16 {vr(buf+8,2)}, v{WA+par} offset:{p*2048}', f'ds_read_b64_tr_b16 {vr(buf+10,2)}, v{WA+par} offset:{p*2048+512}']
    L+=[f'ds_read_b128 {vr(buf+4,4)}, v{XA+p} offset:4096']
    for t in (1,2):
        L+=[f'ds_read_b64_tr_b16 {vr(buf+8+4*t,2)}, v{WA+2*t+par} offset:{p*2048}', f'ds_read_b64_tr_b16 {vr(buf+10+4*t,2)}, v{WA+2*t+par} offset:{p*2048+512}']
    return L
def mfmas(buf,ffn):
    L=[]
    for t in range(3):
        for a in range(2):
            X=vr(buf+4*a,4); W=vr(buf+8+4*t,4); A=vr(acc(t,a),16)
            if ffn or t==0: L.append(f'v_mfma_f32_32x32x16_bf16 {A}, {W}, {X}, {A}')
            else: L.append(f'v_mfma_f32_32x32x16_bf16 {A}, {X}, {W}, {A}')
    return L
def reads_t(p,buf,name):
    tags=['x0','w0','w0','x1','w1','w1','w2','w2']
    return [(x,name+t) for x,t in zip(reads(p,buf),tags)]
def mfmas_t(buf,ffn,name):
    L=[]; m=mfmas(buf,ffn); k=0
    for t in range(3):
        for a in range(2):
            L.append((m[k],{name+f'x{a}',name+f'w{t}'})); k+=1
    return L
def segment(e,q,ms,rs,pattern):
    k=0
    for i,(m,nd) in enumerate(ms):
        q.need(e,nd)
        e(m)
        for _ in range(pattern[i] if i<len(pattern) else 0):
            if k<len(rs):
                x,tag=rs[k]; k+=1
                e(x)
                if tag: q.issue(tag)
    assert k==len(rs)
def mainloop(e,ffn,tag,opt={}):
    stamp(e,opt)
    e(f'K1_ML{tag}:')
    e('s_barrier')
    if opt.get('profloop'): stamp(e,opt)
    q=DSQ()
    pat=opt.get('rdpat',[3,3,2])
    segment(e,q,[(m,set()) for m in mfmas(FB,ffn)], reads_t(0,FA,'A'), pat)
    segment(e,q,mfmas_t(FA,ffn,'A'), reads_t(1,FB,'B'), pat)
    segment(e,q,mfmas_t(FB,ffn,'B'), reads_t(2,FA,'A'), pat)
    adv=['s_add_u32 s49, s49, s64', f's_cmp_eq_u32 s49, {NS*SLOT}', 's_cselect_b32 s50, s65, s64', 's_cselect_b32 s49, 0, s49']
    upd=[f'v_add_u32 v{XA+i}, s50, v{XA+i}' for i in range(4)]+[f'v_add_u32 v{WA+i}, s50, v{WA+i}' for i in range(6)]
    rs=reads_t(3,FB,'B')+[(x,None) for x in adv+upd]
    segment(e,q,mfmas_t(FA,ffn,'A'), rs, pat+[4,5,5])
    q.all(e)
    if opt.get('rowlate',1):
        e(f's_cmp_lg_u32 s48, 8\ns_cbranch_scc1 K1_NST{tag}')
        rowstats(e)
        e(f'K1_NST{tag}:')
    e(f'''
    s_cmp_lg_u32 s48, 7
    s_cbranch_scc1 K1_NPUB{tag}
    v_mov_b32 v4, {NONCE}
    ds_read_b32 v34, v4
    v_mov_b32 v4, 0
    s_waitcnt lgkmcnt(0)
    v_readfirstlane_b32 s59, v34
    v_mov_b32 v35, v34
    v_mov_b32 v38, v34
    v_mov_b32 v39, v34
    s_mov_b32 exec_lo, 0
    s_mov_b32 exec_hi, 0x80000000
    buffer_store_dwordx4 v[32:35], v4, s[16:19], s56 offen sc1
    buffer_store_dwordx4 v[36:39], v4, s[16:19], s56 offen offset:16 sc1
    s_mov_b64 exec, -1
    K1_NPUB{tag}:
    s_sub_u32 s48, s48, 1
    s_cmp_lg_u32 s48, 0
    s_cbranch_scc1 K1_ML{tag}
    ''')
    for x in mfmas(FB,ffn): e(x)
    stamp(e,opt)

def post(e,ffn,opt={}):
    e(f'''
    v_and_b32 v3, 31, v2
    s_lshl_b32 s48, s46, 6
    v_add_u32 v4, s48, v3
    v_lshlrev_b32 v4, 5, v4
    v_add_u32 v4, {REC}, v4
    v_mov_b32 v5, {ZERO}
    v_cmp_gt_u32 vcc, 32, v2
    s_mul_i32 s49, s47, 1536
    s_add_u32 s49, s49, {WFR}
    v_lshl_add_u32 v6, v3, 4, s49
    v_cndmask_b32 v5, v5, v4, vcc
    v_add_u32 v7, 1024, v4
    v_mov_b32 v8, {ZERO}
    v_cndmask_b32 v7, v8, v7, vcc
    s_barrier
    ''')
    stamp(e,opt)
    e(f'''
    ds_read_b128 v[{WF}:{WF+3}], v6
    ds_read_b128 v[{XF}:{XF+3}], v5
    ds_read_b128 v[{XF+4}:{XF+7}], v7
    ds_read_b128 v[{WF+4}:{WF+7}], v6 offset:512
    ds_read_b128 v[{WF+8}:{WF+11}], v6 offset:1024
    ds_read_b128 v[{KC}:{KC+3}], v4 offset:16
    ds_read_b128 v[{KC+4}:{KC+7}], v4 offset:{1024+16}
    ''')
    waits={(0,0):5,(0,1):4,(1,0):3,(2,0):2}
    for t in range(3):
        for a in range(2):
            if (t,a) in waits: e(f's_waitcnt lgkmcnt({waits[(t,a)]})')
            A=vr(acc(t,a),16)
            if ffn or t==0: e(f'v_mfma_f32_32x32x16_bf16 {A}, {vr(WF+4*t,4)}, {vr(XF+4*a,4)}, {A}')
            else: e(f'v_mfma_f32_32x32x16_bf16 {A}, {vr(XF+4*a,4)}, {vr(WF+4*t,4)}, {A}')
    e('s_waitcnt lgkmcnt(0)')

def gelu_tile(t,a,OUT=OUT):
    A=acc(t,a); rs,cA=KC+4*a,KC+4*a+2
    L=[]
    R=range(0,16,2)
    for i in R: L.append(pk('mul',T0+i,A+i,A+i))
    for i in R: L.append(pk('fma',T0+i,T0+i,cA,cA,'op_sel:[0,0,1] op_sel_hi:[1,0,1]'))
    for i in R: L.append(pk('mul',T0+i,T0+i,A+i))
    for i in range(16): L.append(f'v_exp_f32 v{T0+i}, v{T0+i}')
    for i in R: L.append(pk('fma',T0+i,T0+i,rs,rs,'op_sel:[0,1,1] op_sel_hi:[1,1,1]'))
    for i in range(16): L.append(f'v_rcp_f32 v{T0+i}, v{T0+i}')
    for i in R: L.append(pk('mul',T0+i,T0+i,A+i))
    for i in R: L.append(f'v_cvt_pk_bf16_f32 v{OUT+i//2}, v{T0+i}, v{T0+i+1}')
    return L

def store2(e,so,off,opt,tmp=53,base=OUT):
    fl=opt.get('stflag','')
    if off+1024>4095:
        e(f's_add_u32 s{tmp}, s{so}, {off}')
        so=tmp; off=0
    e(f'buffer_store_dwordx4 v[{base}:{base+3}], v4, s[16:19], s{so} offen offset:{off} {fl}')
    e(f'buffer_store_dwordx4 v[{base+4}:{base+7}], v4, s[16:19], s{so} offen offset:{off+1024} {fl}')

def ffn_path(e,opt):
    e('K1_CF:')
    mainloop(e,True,'F',opt)
    post(e,True,opt)
    stamp(e,opt)
    e(f'''
    v_lshlrev_b32 v4, 4, v2
    s_lshl_b32 s48, s4, 2
    s_lshl_b32 s49, s46, 1
    s_add_u32 s48, s48, s49           ; s-tile (a=0)
    s_mul_i32 s48, s48, 86
    s_mul_i32 s49, s47, 3
    s_add_u32 s49, s49, s44
    s_lshl_b32 s50, s49, 1
    s_add_u32 s48, s48, s50
    s_lshl_b32 s48, s48, 10
    s_add_u32 s51, s48, {86*1024}     ; a=1
    s_mul_i32 s52, s47, 3
    s_sub_u32 s52, s45, s52
    ''')
    for t in range(3):
        if t==2:
            e(f'''
            s_lshl_b32 s53, s4, 5
            s_and_b32 s54, s5, 7
            s_lshl_b32 s54, s54, 2
            s_add_u32 s53, s53, s54
            s_add_u32 s53, s53, s3
            s_lshl_b32 s53, s53, 2
            s_add_u32 s53, s53, {WS_FLG0}
            v_mov_b32 v24, s59
            v_mov_b32 v25, 0
            s_waitcnt vmcnt(4)
            s_mov_b64 exec, 1
            buffer_store_dword v24, v25, s[16:19], s53 offen sc1
            s_mov_b64 exec, -1
            s_cmp_lt_u32 s52, 3
            s_cbranch_scc1 K1_END
            ''')
        for a in range(2):
            for x in gelu_tile(t,a,56 if a else 48): e(x)
            store2(e, 48 if a==0 else 51, t*2048, opt, base=56 if a else 48)
            if opt.get('profloop'): stamp(e,opt)
    e('s_branch K1_END')

def qkv_path(e,opt):
    mainloop(e,False,'Q',opt)
    post(e,False,opt)
    stamp(e,opt)
    RS=48
    e(f'''
    v_lshlrev_b32 v4, 4, v2
    s_lshl_b32 s48, s4, 2
    s_lshl_b32 s49, s46, 1
    s_add_u32 s48, s48, s49           ; s-tile a=0
    s_lshl_b32 s48, s48, 5
    s_lshl_b32 s49, s5, 2
    s_lshl_b32 s50, s47, 1
    s_add_u32 s49, s49, s50
    s_add_u32 s48, s48, s49
    s_lshl_b32 s48, s48, 10
    s_add_u32 s48, s48, {WS_PQ}
    s_add_u32 s51, s48, {32*1024}
    v_lshrrev_b32 v5, 5, v2
    v_lshlrev_b32 v5, 4, v5
    s_lshl_b32 s49, s46, 8
    s_add_u32 s49, s49, {RSTD}
    v_add_u32 v5, s49, v5
    v_mov_b32 v116, {hx(LOG2E)}
    v_mov_b32 v118, {hx(1e-6)}
    v_mul_f32 v6, v116, v{KC}
    v_mul_f32 v24, v116, v{KC+4}      ; a=1
    ''')
    B='op_sel_hi:[1,0]'; B3='op_sel_hi:[1,0,0]'
    for g in range(4): e(f'ds_read_b128 v[{RS+4*g}:{RS+4*g+3}], v5 offset:{g*32}')
    for a in range(2):
        A=acc(0,a); rs=KC+4*a; rl=6 if a==0 else 24
        R=range(0,16,2)
        T=T0 if a==0 else 26
        T=T0
        for i in R: e(pk('mul',T+i,A+i,rl,None,B))
        for i in range(16): e(f'v_max_f32 v{A+i}, 0, v{A+i}')
        for i in range(16): e(f'v_exp_f32 v{T+i}, v{T+i} clamp')
        for i in R: e(pk('fma',A+i,A+i,rs,118,B3))
        for i in R: e(pk('add',T+i,T+i,A+i))
        for i in R: e(f'v_cvt_pk_bf16_f32 v{(32 if a==0 else 40)+i//2}, v{T+i}, v{T+i+1}')
    stamp(e,opt)
    KV=acc(0,0); Z=acc(0,1)
    PK=96; VF=104
    ONE=112
    for r in range(4): e(f'v_mov_b32 v{ONE+r}, 0x3f803f80')
    for a in range(2):
        if a==1:
            for g in range(4): e(f'ds_read_b128 v[{RS+4*g}:{RS+4*g+3}], v5 offset:{128+g*32}')
        e('s_waitcnt lgkmcnt(0)')
        K=acc(1,a); V=acc(2,a)
        R=range(0,16,2)
        for i in R: e(pk('mul',K+i,K+i,RS+i))
        for i in R: e(pk('mul',V+i,V+i,RS+i))
        for i in R: e(pk('mul',T0+i,K+i,116,None,B))
        for i in range(16): e(f'v_max_f32 v{K+i}, v118, v{K+i}' if False else f'v_max_f32 v{K+i}, 0, v{K+i}')
        for i in range(16): e(f'v_exp_f32 v{T0+i}, v{T0+i} clamp')
        for i in R: e(pk('add',K+i,K+i,118,None,B))
        for i in R: e(f'v_cvt_pk_bf16_f32 v{VF+i//2}, v{V+i}, v{V+i+1}')
        for i in R: e(pk('add',T0+i,T0+i,K+i))
        for i in R: e(f'v_cvt_pk_bf16_f32 v{PK+i//2}, v{T0+i}, v{T0+i+1}')
        e('s_nop 1')
        for g in range(2):
            c0 = '0' if (a==0 and g==0) else vr(KV,16)
            z0 = '0' if (a==0 and g==0) else vr(Z,16)
            e(f'v_mfma_f32_32x32x16_bf16 {vr(KV,16)}, {vr(PK+4*g,4)}, {vr(VF+4*g,4)}, {c0}')
            e(f'v_mfma_f32_32x32x16_bf16 {vr(Z,16)}, {vr(PK+4*g,4)}, {vr(ONE,4)}, {z0}')
    store2(e, 48, 0, opt, base=32)
    store2(e, 51, 0, opt, base=40)
    e(f'''
    v_and_b32 v8, 15, v2
    v_lshrrev_b32 v9, 5, v2
    v_lshl_add_u32 v8, v9, 4, v8
    v_lshlrev_b32 v8, 4, v8           ; (hiD*16+e)*16
    v_bfe_u32 v10, v2, 4, 1
    v_lshl_add_u32 v8, v10, 10, v8
    s_mul_i32 s48, s46, 4352
    s_add_u32 s48, s48, {KVP}
    s_lshl_b32 s49, s47, 11
    s_add_u32 s49, s48, s49
    v_add_u32 v8, s49, v8
    s_lshl_b32 s49, s47, 7
    s_add_u32 s49, s48, s49
    v_lshl_add_u32 v9, v9, 4, s49
    s_nop 7
    s_mov_b32 exec_lo, 0x0000ffff
    s_mov_b32 exec_hi, 0x0000ffff
    ds_write_b128 v8, v[{KV}:{KV+3}]
    ds_write_b128 v8, v[{KV+4}:{KV+7}] offset:512
    s_mov_b32 exec_lo, 0xffff0000
    s_mov_b32 exec_hi, 0xffff0000
    ds_write_b128 v8, v[{KV+8}:{KV+11}]
    ds_write_b128 v8, v[{KV+12}:{KV+15}] offset:512
    s_mov_b32 exec_lo, 1
    s_mov_b32 exec_hi, 1
    ds_write_b128 v9, v[{Z}:{Z+3}] offset:4096
    ds_write_b128 v9, v[{Z+4}:{Z+7}] offset:{4096+32}
    ds_write_b128 v9, v[{Z+8}:{Z+11}] offset:{4096+64}
    ds_write_b128 v9, v[{Z+12}:{Z+15}] offset:{4096+64+32}
    s_mov_b64 exec, -1
    ''')
    stamp(e,opt)
    e(f'''
    s_mul_i32 s48, s46, 4352
    s_add_u32 s48, s48, {KVP}
    s_lshl_b32 s49, s47, 11
    s_add_u32 s49, s48, s49
    v_lshlrev_b32 v3, 2, v2
    v_add_u32 v4, s49, v3
    s_lshl_b32 s49, s47, 7
    s_add_u32 s49, s48, s49
    s_add_u32 s49, s49, 4096
    v_add_u32 v5, s49, v3             ; z image
    s_waitcnt lgkmcnt(0)
    ''')
    for i_ in range(8): e(f'ds_read_b32 v{8+i_}, v4 offset:{i_*256}')
    e(f'''
    ds_read_b32 v16, v5
    s_lshl_b32 s48, s5, 12
    s_lshl_b32 s49, s47, 11
    s_add_u32 s48, s48, s49
    s_add_u32 s48, s48, {WS_KV}
    s_lshl_b32 s50, s5, 8
    s_lshl_b32 s49, s47, 7
    s_add_u32 s50, s50, s49
    s_add_u32 s50, s50, {WS_Z}
    ''')
    for i_ in range(8):
        e(f's_waitcnt lgkmcnt({8-i_})')
        e(f'buffer_atomic_add_f32 v{8+i_}, v3, s[16:19], s48 offen offset:{i_*256}')
    e('''
    s_waitcnt lgkmcnt(0)
    s_mov_b32 exec_hi, 0
    buffer_atomic_add_f32 v16, v3, s[16:19], s50 offen
    s_mov_b32 exec_hi, -1
    ''')

def k1(opt):
    e=E()
    if opt.get('ts'): e('s_memrealtime s[66:67]')
    prologue(e,opt)
    loader(e,opt)
    cons_setup(e,opt)
    qkv_path(e,opt)
    e('K1_END:')
    stamp(e,opt)
    e(f'''
    s_xor_b32 s53, s7, 1
    s_lshl_b32 s53, s53, 4
    s_add_u32 s53, s53, s4
    s_lshl_b32 s53, s53, 3
    s_and_b32 s54, s5, 7
    s_add_u32 s53, s53, s54
    s_lshl_b32 s53, s53, 2
    s_add_u32 s53, s53, s3
    s_lshl_b32 s53, s53, 2
    s_add_u32 s53, s53, {WS_FLGF}
    v_mov_b32 v24, s59
    v_mov_b32 v25, 0
    s_waitcnt vmcnt(0)
    s_mov_b64 exec, 1
    buffer_store_dword v24, v25, s[16:19], s53 offen sc1
    s_mov_b64 exec, -1
    s_branch K2_CENTRY
    ''')
    e('K1_EXIT0:')
    e('s_endpgm')
    ffn_path(e,opt)
    return e.text()
```

```python
from common import *
from k1 import DSQ
import k1b
SLOT=32768; NS=3
BOFF=16384
KVB=NS*SLOT
ZL=KVB+32768
XL=ZL+2048
B2L=XL+8192
LDS_BYTES=B2L+1024
GOL=k1b.NONCE+32
ACC=128; F0=64; KF=224
AMASK=0x5500
CMASK=0x2AC0
SMASK=0x1500
NST=15

def shuffle(e):
    e('''
    s_mov_b32 s30, s82
    s_mov_b32 s31, s83
    s_mov_b32 s32, s84
    s_mov_b32 s33, s85
    s_mov_b32 s34, s92
    s_mov_b32 s35, s93
    s_mov_b32 s36, s94
    s_mov_b32 s37, s95
    s_and_b32 s8, s2, 7
    s_lshr_b32 s9, s2, 3
    s_and_b32 s4, s9, 3
    s_lshl_b32 s8, s8, 2
    s_add_u32 s4, s4, s8
    s_lshr_b32 s5, s9, 2              ; cb2 0..7
    ''')
    e(f'''
    s_mov_b32 s40, {AMASK}
    s_mov_b32 s64, {SLOT}
    s_mov_b32 s65, {-(NS-1)*SLOT & 0xffffffff:#x}
    ''')

def k2(opt):
    e=E()
    af=opt.get('af','sc1')
    wssz=(WS_PROF+2*256*8*256) if opt.get('prof') else WS_SIZE
    e('K2_LENTRY:')
    shuffle(e)
    e(f'''
    s_and_b32 s46, s3, 3              ; lw
    s_lshl_b32 s45, s4, 1             ; s-tile 0
    s_mul_i32 s47, s45, {86*1024}
    s_lshl_b32 s48, s45, 15
    s_add_u32 s48, s48, {WS_PQ}
    s_lshl_b32 s49, s46, 11
    s_add_u32 s48, s48, s49
    v_lshlrev_b32 v3, 4, v2           ; lane*16
    v_lshrrev_b32 v4, 3, v2
    v_and_b32 v5, 7, v2
    v_bfe_u32 v6, v2, 4, 1
    v_lshlrev_b32 v6, 2, v6
    v_xor_b32 v5, v5, v6
    v_lshlrev_b32 v5, 4, v5
    v_lshl_add_u32 v4, v4, 10, v5
    s_lshl_b32 s49, s5, 7
    v_add_u32 v4, s49, v4
    v_add_u32 v5, 0x2000, v4
    v_add_u32 v6, 0x4000, v4
    v_add_u32 v7, 0x6000, v4
    s_lshl_b32 s54, s46, 11
    s_lshl_b32 s55, s46, 12
    s_add_u32 s55, s55, {BOFF}
    s_mov_b32 s15, 0x20000
    ''')
    srd(e,8,38,wssz)
    srd(e,20,28,S*D*2)
    srd(e,24,34,D*2)
    def reset():
        e('s_mov_b32 s41, 0\ns_mov_b32 s42, 0\ns_mov_b32 s52, 0\ns_mov_b32 s53, 0')
    def addr():
        t=e.label('K2_AD')
        e(f'''
        s_add_u32 s58, s53, s54
        s_add_u32 s59, s53, s55
        s_bitcmp1_b32 s40, s52
        s_cbranch_scc1 {t}A
        s_lshl_b32 s56, s41, 2
        s_add_u32 s56, s56, s46           ; m
        s_and_b32 s57, s56, 1
        s_mul_i32 s57, s57, 3             ; 3*(m&1)
        s_lshr_b32 s60, s56, 4            ; group t = m>>4
        s_add_u32 s57, s57, s60           ; tt = t + 3*(m&1)
        s_and_b32 s61, s56, 15
        s_lshr_b32 s61, s61, 1            ; c
        s_cmp_lt_u32 s56, 38
        s_cbranch_scc1 {t}T
        s_sub_u32 s61, s56, 35            ; m-32 >= 6 : c = m-32-3, tt = 2
        s_mov_b32 s57, 2
        {t}T:
        s_mul_i32 s62, s61, 6
        s_mul_i32 s61, s61, 5
        s_add_u32 s61, s61, 3
        s_min_u32 s61, s61, s62
        s_add_u32 s61, s61, s57           ; n-tile
        s_cmp_eq_u32 s56, 43
        s_cselect_b32 s61, 43, s61
        s_lshl_b32 s56, s61, 11
        s_add_u32 s56, s56, s47
        s_add_u32 s57, s56, {86*1024}
        s_lshl_b32 s60, s61, 15
        s_add_u32 s41, s41, 1
        s_mov_b32 s12, s32
        s_and_b32 s13, s33, 0xffff
        s_mov_b32 s14, {F*D*2}
        s_branch {t}E
        {t}A:
        s_lshl_b32 s56, s42, 13
        s_add_u32 s56, s56, s48
        s_add_u32 s57, s56, {32*1024}
        s_lshl_b32 s60, s42, 17
        s_lshl_b32 s61, s46, 15
        s_add_u32 s60, s60, s61
        s_add_u32 s42, s42, 1
        s_mov_b32 s12, s30
        s_and_b32 s13, s31, 0xffff
        s_mov_b32 s14, {D*D*2}
        {t}E:
        s_add_u32 s52, s52, 1
        s_add_u32 s53, s53, s64
        s_cmp_eq_u32 s53, {NS*SLOT}
        s_cselect_b32 s53, 0, s53
        ''')
    def dmaA():
        e(f'''
        s_mov_b32 m0, s58
        s_nop 0
        buffer_load_dwordx4 v3, s[8:11], s56 offen {af} lds
        buffer_load_dwordx4 v3, s[8:11], s56 offen offset:1024 {af} lds
        s_add_u32 m0, s58, 8192
        s_nop 0
        buffer_load_dwordx4 v3, s[8:11], s57 offen {af} lds
        buffer_load_dwordx4 v3, s[8:11], s57 offen offset:1024 {af} lds
        ''')
    def dmaB():
        e(f'''
        s_mov_b32 m0, s59
        s_nop 0
        buffer_load_dwordx4 v4, s[12:15], s60 offen lds
        s_add_u32 m0, s59, 1024
        s_nop 0
        buffer_load_dwordx4 v5, s[12:15], s60 offen lds
        s_add_u32 m0, s59, 2048
        s_nop 0
        buffer_load_dwordx4 v6, s[12:15], s60 offen lds
        s_add_u32 m0, s59, 3072
        s_nop 0
        buffer_load_dwordx4 v7, s[12:15], s60 offen lds
        ''')
    def dma(): dmaA(); dmaB()
    def loop3(tag,body):
        e(f's_mov_b32 s51, 3\nK2_{tag}:')
        addr(); body()
        e(f's_sub_u32 s51, s51, 1\ns_cmp_lg_u32 s51, 0\ns_cbranch_scc1 K2_{tag}')
    reset(); loop3('PB',dmaB)
    stamp(e,opt)
    ld0='buffer_load_dword v24, v25, s[8:11], s62 offen sc1'
    e(f'''
    v_mov_b32 v26, {GOL}
    s_mov_b32 s61, 0x40000
    s_cmp_lg_u32 s46, 0
    s_cbranch_scc1 K2_GW
    s_lshr_b32 s62, s4, 1
    s_lshl_b32 s62, s62, 7
    s_add_u32 s62, s62, {WS_FLG0}
    v_and_b32 v25, 31, v2
    v_lshlrev_b32 v25, 2, v25
    s_sleep {opt.get('sl0',36)}
    buffer_load_dword v24, v25, s[8:11], s62 offen sc1
    s_sleep {opt.get('sl1',5)}
    buffer_load_dword v27, v25, s[8:11], s62 offen sc1
    s_sleep {opt.get('sl1',5)}
    buffer_load_dword v28, v25, s[8:11], s62 offen sc1
    K2_GP:
    s_waitcnt vmcnt(2)
    v_cmp_ne_u32 vcc, s63, v24
    s_sub_u32 s61, s61, 1
    s_cmp_eq_u32 s61, 0
    s_cbranch_scc1 K2_GD
    s_cbranch_vccz K2_GD
    buffer_load_dword v24, v25, s[8:11], s62 offen sc1
    s_waitcnt vmcnt(2)
    v_cmp_ne_u32 vcc, s63, v27
    s_nop 2
    s_cbranch_vccz K2_GD
    buffer_load_dword v27, v25, s[8:11], s62 offen sc1
    s_waitcnt vmcnt(2)
    v_cmp_ne_u32 vcc, s63, v28
    s_nop 2
    s_cbranch_vccz K2_GD
    buffer_load_dword v28, v25, s[8:11], s62 offen sc1
    s_branch K2_GP
    K2_GD:
    v_mov_b32 v29, s63
    ds_write_b32 v26, v29
    s_branch K2_GE
    K2_GW:
    ds_read_b32 v24, v26
    s_waitcnt lgkmcnt(0)
    v_readfirstlane_b32 s62, v24
    s_sub_u32 s61, s61, 1
    s_cmp_eq_u32 s62, s63
    s_cbranch_scc1 K2_GE
    s_sleep 2
    s_cmp_lg_u32 s61, 0
    s_cbranch_scc1 K2_GW
    K2_GE:
    ''')
    stamp(e,opt)
    reset(); loop3('PA',dmaA)
    addr()
    e('s_waitcnt vmcnt(8)')
    stamp(e,opt) if opt.get('profloop') else None
    e('s_barrier')
    ldr='buffer_load_dword v24, v25, s[8:11], s86 offen sc1'
    e(f'''
    s_lshr_b32 s86, s4, 1
    s_lshl_b32 s86, s86, 7
    s_add_u32 s86, s86, {WS_FLGF}
    v_and_b32 v25, 31, v2
    v_lshlrev_b32 v25, 2, v25
    s_cmp_lg_u32 s46, 0
    s_cbranch_scc1 K2_NL1
    {ldr}
    K2_NL1:
    ''')
    e(f'''
    s_mov_b32 s88, s56
    s_mov_b32 s89, s57
    v_lshrrev_b32 v8, 3, v2
    v_and_b32 v9, 7, v2
    v_xor_b32 v9, v9, v8
    v_lshlrev_b32 v9, 4, v9
    v_lshl_add_u32 v9, v8, 10, v9
    s_lshl_b32 s56, s4, 16
    s_lshl_b32 s57, s5, 7
    s_add_u32 s56, s56, s57
    s_lshl_b32 s57, s46, 14
    s_add_u32 s56, s56, s57
    s_lshl_b32 s57, s46, 11
    s_add_u32 m0, s57, {XL}
    s_nop 0
    buffer_load_dwordx4 v9, s[20:23], s56 offen lds
    s_add_u32 m0, s57, {XL+1024}
    s_add_u32 s56, s56, 8192
    buffer_load_dwordx4 v9, s[20:23], s56 offen lds
    v_and_b32 v8, 7, v2
    v_lshlrev_b32 v8, 4, v8
    s_lshl_b32 s56, s5, 7
    s_mov_b32 m0, {B2L}
    s_nop 0
    buffer_load_dwordx4 v8, s[24:27], s56 offen lds
    s_mov_b32 s56, s88
    s_mov_b32 s57, s89
    s_waitcnt vmcnt(7)
    ''')
    stamp(e,opt) if opt.get('profloop') else None
    e('s_barrier')
    dma()
    addr()
    e(f'''
    s_waitcnt vmcnt(8)
    s_cmp_lg_u32 s46, 0
    s_cbranch_scc1 K2_RD
    s_mov_b32 s61, 0x40000
    K2_RP:
    v_cmp_ne_u32 vcc, s63, v24
    s_sub_u32 s61, s61, 1
    s_cmp_eq_u32 s61, 0
    s_cbranch_scc1 K2_RD
    s_cbranch_vccz K2_RD
    s_sleep {opt.get('sl1',4)}
    {ldr}
    s_waitcnt vmcnt(0)
    s_branch K2_RP
    K2_RD:
    ''')
    stamp(e,opt) if opt.get('profloop') else None
    e('s_barrier')
    ld2='buffer_load_dwordx4 v[36:39], v3, s[8:11], s85 offen sc1\n    buffer_load_dwordx4 v[40:43], v3, s[8:11], s85 offen offset:1024 sc1'
    e(f'''
    s_mov_b32 s85, {WS_FLGF+2048}
    s_cmp_lg_u32 s46, 0
    s_cbranch_scc1 K2_NL2
    {ld2}
    K2_NL2:
    ''')
    dma()
    addr()
    e('s_waitcnt vmcnt(8)')
    stamp(e,opt) if opt.get('profloop') else None
    e('s_barrier')
    dma()
    addr()
    e(f'''
    s_waitcnt vmcnt(8)
    s_cmp_lg_u32 s46, 0
    s_cbranch_scc1 K2_PEK
    s_mov_b32 s61, 0x40000
    K2_PLK:
    v_xor_b32 v32, s63, v36
    v_xor_b32 v33, s63, v37
    v_or_b32 v32, v32, v33
    v_xor_b32 v33, s63, v38
    v_or_b32 v32, v32, v33
    v_xor_b32 v33, s63, v39
    v_or_b32 v32, v32, v33
    v_xor_b32 v33, s63, v40
    v_or_b32 v32, v32, v33
    v_xor_b32 v33, s63, v41
    v_or_b32 v32, v32, v33
    v_xor_b32 v33, s63, v42
    v_or_b32 v32, v32, v33
    v_xor_b32 v33, s63, v43
    v_or_b32 v32, v32, v33
    v_cmp_ne_u32 vcc, 0, v32
    s_sub_u32 s61, s61, 1
    s_cmp_eq_u32 s61, 0
    s_cbranch_scc1 K2_PEK
    s_cbranch_vccz K2_PEK
    s_sleep {opt.get('sl1',4)}
    {ld2}
    s_waitcnt vmcnt(0)
    s_branch K2_PLK
    K2_PEK:
    ''')
    stamp(e,opt) if opt.get('profloop') else None
    e('s_barrier')
    e(f'''
    s_lshl_b32 s61, s46, 13
    s_add_u32 s62, s61, {WS_KV}
    s_add_u32 s61, s61, {KVB}
    ''')
    for i in range(8):
        if i%4==0:
            e(f's_add_u32 m0, s61, {i*1024}')
            e(f's_add_u32 s88, s62, {i*1024}')
        e(f'buffer_load_dwordx4 v3, s[8:11], s88 offen offset:{(i%4)*1024} {af} lds')
    e(f'''
    s_cmp_lt_u32 s46, 2
    s_cbranch_scc0 K2_NZ2
    s_lshl_b32 s61, s46, 10
    s_add_u32 m0, s61, {ZL}
    s_add_u32 s88, s61, {WS_Z}
    buffer_load_dwordx4 v3, s[8:11], s88 offen {af} lds
    K2_NZ2:
    ''')
    dma()
    addr()
    e('s_waitcnt vmcnt(16)')
    stamp(e,opt) if opt.get('profloop') else None
    e('s_barrier')
    dma()
    e(f'''
    s_mov_b32 s51, 6
    K2_LL:
    s_cmp_ge_u32 s52, {NST}
    s_cbranch_scc1 K2_LNA
    ''')
    addr()
    e(f'''
    K2_LNA:
    s_cmp_eq_u32 s51, {NST-1}
    s_cbranch_scc1 K2_LW0
    s_waitcnt vmcnt(8)
    s_branch K2_LW1
    K2_LW0:
    s_waitcnt vmcnt(0)
    K2_LW1:
    ''')
    stamp(e,opt) if opt.get('profloop') else None
    e(f'''
    s_barrier
    s_cmp_ge_u32 s51, {NST-2}
    s_cbranch_scc1 K2_LNI
    ''')
    dma()
    e(f'''
    K2_LNI:
    s_add_u32 s51, s51, 1
    s_cmp_lg_u32 s51, {NST}
    s_cbranch_scc1 K2_LL
    s_barrier
    s_branch K2_END
    ''')
    e('K2_CENTRY:')
    shuffle(e)
    e(f'''
    s_and_b32 s46, s3, 1              ; a
    s_lshr_b32 s47, s3, 1             ; kh
    v_lshrrev_b32 v7, 5, v2           ; hi
    v_lshlrev_b32 v12, 4, v2          ; lane*16
    s_lshl_b32 s48, s46, 13
    s_lshl_b32 s49, s47, 12
    s_add_u32 s48, s48, s49
    v_add_u32 v13, s48, v12
    v_and_b32 v14, 15, v2
    v_lshrrev_b32 v14, 2, v14
    v_lshl_add_u32 v14, v7, 2, v14     ; 4hi + (i>>2)
    v_lshlrev_b32 v14, 7, v14
    v_and_b32 v15, 3, v2
    v_lshlrev_b32 v15, 3, v15
    v_bfe_u32 v8, v2, 4, 1
    v_lshl_add_u32 v15, v8, 5, v15
    v_bfe_u32 v8, v2, 3, 1
    v_lshlrev_b32 v8, 6, v8
    v_xor_b32 v15, v15, v8
    s_lshl_b32 s48, s47, 13
    s_add_u32 s48, s48, {BOFF}
    v_add3_u32 v14, v14, v15, s48
    v_xor_b32 v15, 64, v14             ; tile b=1
    s_lshl_b32 s48, s47, 6
    v_xor_b32 v14, s48, v14
    v_xor_b32 v15, s48, v15
    v_and_b32 v9, 31, v2
    v_lshl_add_u32 v10, v7, 4, v9
    v_lshlrev_b32 v10, 4, v10
    s_lshl_b32 s48, s47, 12
    s_add_u32 s48, s48, {KVB}
    v_add_u32 v10, s48, v10
    s_lshl_b32 s48, s47, 8
    s_add_u32 s48, s48, {ZL}
    v_lshl_add_u32 v11, v7, 4, s48
    v_cmp_gt_u32 vcc, 16, v9
    v_mov_b32 v18, 64
    v_mov_b32 v19, 0x400
    v_mov_b32 v20, 32
    v_mov_b32 v21, 0x200
    v_cndmask_b32 v18, v18, v19, vcc
    v_cndmask_b32 v20, v20, v21, vcc
    v_cndmask_b32 v10, v11, v10, vcc
    v_lshlrev_b32 v22, 1, v18
    v_lshlrev_b32 v23, 3, v18
    s_mov_b32 s41, {CMASK}
    s_mov_b32 s74, {hx(1e-6)}
    s_mov_b32 s52, 0
    s_mov_b32 s53, 0
    ''')
    for r in range(ACC,ACC+32): e(f'v_mov_b32 v{r}, 0')
    srd(e,8,38,wssz)
    srd(e,20,36,S*D*2)
    stamp(e,opt)
    if opt.get('prio',1): e('s_setprio 3')
    def acc(b): return ACC+16*b
    e('K2_CL:')
    e('s_barrier')
    if opt.get('profloop'): stamp(e,opt)
    e('s_bitcmp1_b32 s40, s52')
    e('s_cbranch_scc1 K2_CA')
    def frd(s):
        b=F0+12*s
        return [(f'ds_read_b128 v[{b}:{b+3}], v13 offset:{s*1024}',f'a{s}'),
                (f'ds_read_b64_tr_b16 v[{b+4}:{b+5}], v14 offset:{s*2048}',f'b{s}'),
                (f'ds_read_b64_tr_b16 v[{b+6}:{b+7}], v14 offset:{s*2048+1024}',f'b{s}'),
                (f'ds_read_b64_tr_b16 v[{b+8}:{b+9}], v15 offset:{s*2048}',f'c{s}'),
                (f'ds_read_b64_tr_b16 v[{b+10}:{b+11}], v15 offset:{s*2048+1024}',f'c{s}')]
    C=112
    def conv_reads(q):
        e('v_add_u32 v21, v10, v20'); e('v_add_u32 v26, v10, v18'); e('v_add_u32 v27, v21, v18')
        for x,t in [(f'ds_read_b128 v[{C}:{C+3}], v10','k0'),(f'ds_read_b128 v[{C+4}:{C+7}], v21','k0'),
                    (f'ds_read_b128 v[{C+8}:{C+11}], v26','k1'),(f'ds_read_b128 v[{C+12}:{C+15}], v27','k1')]:
            e(x); q.issue(t)
        e('v_add_u32 v10, v10, v22')
        e('v_sub_u32 v22, v23, v22')
    def ffn_stage(conv):
        q=DSQ()
        if conv: conv_reads(q)
        for s in range(2):
            for x,t in frd(s): e(x); q.issue(t)
        if conv:
            for i_ in range(8): e(f'v_mov_b32 v{KF+i_}, v{KF+8+i_}')
        else:
            for x,t in frd(2): e(x); q.issue(t)
        for s in range(4):
            b=F0+12*s
            q.need(e,{f'a{s}',f'b{s}'})
            e(f'v_mfma_f32_32x32x16_bf16 {vr(acc(0),16)}, {vr(b+4,4)}, {vr(b,4)}, {vr(acc(0),16)}')
            if conv and s==0:
                for i_ in range(4): e(f'v_cvt_pk_bf16_f32 v{KF+8+i_}, v{C+2*i_}, v{C+2*i_+1}')
            q.need(e,{f'c{s}'})
            e(f'v_mfma_f32_32x32x16_bf16 {vr(acc(1),16)}, {vr(b+8,4)}, {vr(b,4)}, {vr(acc(1),16)}')
            if s==0:
                if conv:
                    for x,t in frd(2): e(x); q.issue(t)
                    for i_ in range(4): e(f'v_cvt_pk_bf16_f32 v{KF+12+i_}, v{C+8+2*i_}, v{C+8+2*i_+1}')
                else:
                    for x,t in frd(3): e(x); q.issue(t)
            if s==1 and conv:
                for x,t in frd(3): e(x); q.issue(t)
    e('s_bitcmp1_b32 s41, s52')
    e('s_cbranch_scc1 K2_CV')
    ffn_stage(False)
    e('s_branch K2_CN')
    e('K2_CV:')
    ffn_stage(True)
    e('s_branch K2_CN')
    e('K2_CA:')
    q=DSQ()
    DB=[160,176,192,208]
    def kb(h): return F0+4*h
    def wb(h): return 80+8*h
    def ofr(h): return 32+4*(h%2)
    def rd(h):
        e(f'ds_read_b128 v[{kb(h)}:{kb(h)+3}], v13 offset:{h*1024}'); q.issue(f'k{h}q')
    def rdw(h):
        b=wb(h)
        for x,t in [(f'ds_read_b64_tr_b16 v[{b}:{b+1}], v14 offset:{h*2048}',f'w{h}'),
                    (f'ds_read_b64_tr_b16 v[{b+2}:{b+3}], v14 offset:{h*2048+1024}',f'w{h}'),
                    (f'ds_read_b64_tr_b16 v[{b+4}:{b+5}], v15 offset:{h*2048}',f'x{h}'),
                    (f'ds_read_b64_tr_b16 v[{b+6}:{b+7}], v15 offset:{h*2048+1024}',f'x{h}')]:
            e(x); q.issue(t)
    def d1(h):
        q.need(e,{f'k{h}q'})
        e(f'v_mfma_f32_32x32x16_bf16 {vr(DB[h],16)}, {vr(KF+4*h,4)}, {vr(kb(h),4)}, 0')
    def fin_valu(h):
        Dr=DB[h]; r=8+(h%2)
        L=[f'v_add_f32 v{r}, s74, v{Dr+8}', f'v_rcp_f32 v{r}, v{r}']
        M=[f'v_mul_f32 v{Dr+i}, v{Dr+i}, v{r}' for i in range(8)]
        Cc=[f'v_cvt_pk_bf16_f32 v{ofr(h)+i}, v{Dr+2*i}, v{Dr+2*i+1}' for i in range(4)]
        return L,M,Cc
    def mm(h,t):
        q.need(e,{f'{"wx"[t]}{h}'})
        e(f'v_mfma_f32_32x32x16_bf16 {vr(acc(t),16)}, {vr(wb(h)+4*t,4)}, {vr(ofr(h),4)}, {vr(acc(t),16)}')
    for h in range(4): rd(h)
    rdw(0); rdw(1)
    d1(0); d1(1); d1(2); d1(3)
    rdw(2)
    L0,M0,C0=fin_valu(0); L1,M1,C1=fin_valu(1); L2,M2,C2=fin_valu(2); L3,M3,C3=fin_valu(3)
    e('s_nop 3')
    for x in [L0[0],L0[1],L1[0],L1[1]]: e(x)
    for x in M0+C0: e(x)
    e('s_nop 1')
    mm(0,0)
    for x in M1[:4]: e(x)
    mm(0,1)
    rdw(3)
    for x in M1[4:]+C1+[L2[0],L2[1]]: e(x)
    mm(1,0)
    for x in [L3[0]]+M2[:4]: e(x)
    mm(1,1)
    conv_reads(q)
    for x in [L3[1]]+M2[4:]+C2: e(x)
    e('s_nop 0')
    mm(2,0)
    for x in M3[:4]: e(x)
    mm(2,1)
    for x in M3[4:]+C3: e(x)
    e('s_nop 1')
    mm(3,0); mm(3,1)
    q.need(e,{'k0'})
    for i_ in range(4): e(f'v_cvt_pk_bf16_f32 v{KF+8+i_}, v{C+2*i_}, v{C+2*i_+1}')
    q.need(e,{'k1'})
    for i_ in range(4): e(f'v_cvt_pk_bf16_f32 v{KF+12+i_}, v{C+8+2*i_}, v{C+8+2*i_+1}')
    e('K2_CN:')
    e(f'''
    s_waitcnt lgkmcnt(0)
    s_add_u32 s53, s53, s64
    s_cmp_eq_u32 s53, {NS*SLOT}
    s_cselect_b32 s50, s65, s64
    s_cselect_b32 s53, 0, s53
    v_add_u32 v13, s50, v13
    v_add_u32 v14, s50, v14
    v_add_u32 v15, s50, v15
    s_add_u32 s52, s52, 1
    s_cmp_lg_u32 s52, {NST}
    s_cbranch_scc1 K2_CL
    ''')
    stamp(e,opt)
    e(f'''
    s_lshl_b32 s48, s3, 12
    v_add_u32 v16, s48, v12
    s_xor_b32 s48, s3, 2
    s_lshl_b32 s48, s48, 12
    v_add_u32 v18, s48, v12
    v_and_b32 v9, 31, v2
    s_lshl_b32 s48, s46, 5
    v_add_u32 v9, s48, v9
    v_and_b32 v10, 7, v9              ; row&7
    s_lshl_b32 s49, s47, 2
    v_lshlrev_b32 v11, 7, v9
    v_lshl_add_u32 v11, v7, 3, v11
    v_add_u32 v11, {XL}, v11
    ''')
    for g in range(4): e(f'ds_write_b128 v16, v[{acc(1)+4*g}:{acc(1)+4*g+3}] offset:{g*1024}')
    e(f'''
    v_lshlrev_b32 v12, 3, v7
    s_lshl_b32 s50, s47, 6
    v_add_u32 v12, s50, v12
    v_add_u32 v12, {B2L}, v12         ; b2: b*64 + hi*8
    ''')
    for g in range(4):
        e(f'v_mov_b32 v16, s49')
        e(f'v_add_u32 v16, {g}, v16')
        e(f'v_xor_b32 v16, v16, v10')
        e(f'v_lshl_add_u32 v16, v16, 4, v11')
        e(f'ds_read_b64 v[{32+2*g}:{33+2*g}], v16')
        e(f'ds_read_b64 v[{40+2*g}:{41+2*g}], v12 offset:{g*16}')
    e(f'''
    s_mov_b32 s70, 0xffff0000
    s_lshl_b32 s48, s4, 6
    v_add_u32 v17, s48, v9
    v_lshlrev_b32 v17, 10, v17
    s_lshl_b32 s48, s5, 7
    s_lshl_b32 s49, s47, 6
    s_add_u32 s48, s48, s49
    v_lshl_add_u32 v17, v7, 4, v17
    v_add_u32 v17, s48, v17
    s_waitcnt lgkmcnt(0)
    ''')
    for g in range(4):
        for c2 in range(2):
            xr=32+2*g+c2; br=40+2*g+c2; a0=ACC+4*g+2*c2
            e(f'''
            v_lshlrev_b32 v20, 16, v{xr}
            v_and_b32 v21, s70, v{xr}
            v_lshlrev_b32 v22, 16, v{br}
            v_and_b32 v23, s70, v{br}
            v_add_f32 v20, v20, v22
            v_add_f32 v21, v21, v23
            v_add_f32 v{a0}, v20, v{a0}
            v_add_f32 v{a0+1}, v21, v{a0+1}
            ''')
    e('s_barrier')
    for g in range(4): e(f'ds_read_b128 v[{acc(1)+4*g}:{acc(1)+4*g+3}], v18 offset:{g*1024}')
    for g in range(4):
        e(f's_waitcnt lgkmcnt({3-g})')
        for i in range(4): e(f'v_add_f32 v{ACC+4*g+i}, v{ACC+4*g+i}, v{ACC+16+4*g+i}')
        for c2 in range(2): e(f'v_cvt_pk_bf16_f32 v{48+2*g+c2}, v{ACC+4*g+2*c2}, v{ACC+4*g+2*c2+1}')
    e('''
    s_nop 1
    v_permlane32_swap_b32 v48, v50
    v_permlane32_swap_b32 v49, v51
    v_permlane32_swap_b32 v52, v54
    v_permlane32_swap_b32 v53, v55
    ''')
    of=opt.get('outflag','')
    e(f'buffer_store_dwordx4 v[48:51], v17, s[20:23], 0 offen {of}')
    e(f'buffer_store_dwordx4 v[52:55], v17, s[20:23], 0 offen offset:32 {of}')
    e('K2_END:')
    if opt.get('prof'):
        e('s_waitcnt vmcnt(0)')
        stamp(e,opt)
        stamp_flush(e,opt,8,1,8)
    if opt.get('ts'):
        e(f'''
        s_waitcnt vmcnt(0)
        s_memrealtime s[68:69]
        s_mov_b32 s76, s38
        s_and_b32 s77, s39, 0xffff
        s_mov_b32 s78, {WS_TS+2*256*8*8}
        s_mov_b32 s79, 0x20000
        s_waitcnt lgkmcnt(0)
        s_lshl_b32 s70, s2, 3
        s_add_u32 s70, s70, s3
        s_lshl_b32 s70, s70, 3
        s_add_u32 s70, s70, {WS_TS+256*8*8}
        v_mov_b32 v8, s66
        v_mov_b32 v9, s68
        v_mov_b32 v10, 0
        buffer_store_dwordx2 v[8:9], v10, s[76:79], s70 offen
        ''')
    e('s_endpgm')
    return e.text()
```
